```python
import torch

def _softmax(x, axis=-1):
    return torch.softmax(x, dim=axis)
def _gelu(x):
    return torch.nn.functional.gelu(x, approximate="tanh")
def _silu(x):
    return torch.nn.functional.silu(x)
def _sigmoid(x):
    return torch.sigmoid(x)
def _layernorm(x, axis=-1, eps=1e-5):
    m = x.mean(dim=axis, keepdim=True)
    v = x.var(dim=axis, keepdim=True, unbiased=False)
    return (x - m) / torch.sqrt(v + eps)
def _scatter_add(tgt, idx, src, axis=0):
    return tgt.clone().index_add_(axis, idx, src)
def _segment_sum(src, seg, n):
    out = torch.zeros((n,) + src.shape[1:], dtype=src.dtype)
    return out.index_add_(0, seg, src)
def _pad(x, pw):
    flat = tuple(v for pair in reversed(pw) for v in pair)
    return torch.nn.functional.pad(x, flat)

kernel_name = 'parallel_sum__sliding_local_dilated__geglu_ffn__prompt'

def setup_inputs():

    _w = (lambda a: (lambda t: t.to(torch.bfloat16) if t.is_floating_point() else t)(torch.as_tensor(a)))
    def _A_setup():
        B, S, D = 1, 2048, 640
        return {
            "x": _w((lambda *s: torch.randn(*s, dtype=torch.bfloat16) * 0.05)(B, S, D)),
            "wqkv": _w((lambda *s: torch.randn(*s, dtype=torch.bfloat16) * 0.05)(D, 3 * D)),
            "wo": _w((lambda *s: torch.randn(*s, dtype=torch.bfloat16) * 0.05)(D, D)),
        }
    _A_in = _A_setup()

    def _B_setup():
        B, S, D, F = 1, 2048, 640, 1728
        return {
            "x": _w((lambda *s: torch.randn(*s, dtype=torch.bfloat16) * 0.05)(B, S, D)),
            "w_gate": _w((lambda *s: torch.randn(*s, dtype=torch.bfloat16) * 0.05)(D, F)),
            "w_up": _w((lambda *s: torch.randn(*s, dtype=torch.bfloat16) * 0.05)(D, F)),
            "w_down": _w((lambda *s: torch.randn(*s, dtype=torch.bfloat16) * 0.05)(F, D)),
        }
    _B_in = _B_setup()

    return {
        "A_x": _A_in["x"],
        "A_wqkv": _A_in["wqkv"],
        "A_wo": _A_in["wo"],
        "B_x": _B_in["x"],
        "B_w_gate": _B_in["w_gate"],
        "B_w_up": _B_in["w_up"],
        "B_w_down": _B_in["w_down"],
    }

def reference(A_x, A_wqkv, A_wo, B_x, B_w_gate, B_w_up, B_w_down):
    def _A_ref(x, wqkv, wo):
        B, S, D = x.shape
        H = 32; Dh = D // H
        W, dil = 8, 2
        qkv = (lambda x, *d: x.permute(*d))((x @ wqkv).reshape(B, S, 3, H, Dh), 2, 0, 3, 1, 4)
        q, k, v = qkv[0], qkv[1], qkv[2]
        scale = Dh ** -0.5
        pos = torch.arange(S)
        off = torch.arange(W) * dil
        idx = pos[:, None] - off[None, :]
        mask = idx >= 0
        idx_c = torch.where(mask, idx, 0).reshape(-1)
        kg = k[:, :, idx_c, :].reshape(B, H, S, W, Dh)
        vg = v[:, :, idx_c, :].reshape(B, H, S, W, Dh)
        logits = torch.einsum("bhsd,bhswd->bhsw", q, kg) * scale
        logits = torch.where(mask[None, None, :, :], logits, -1e9)
        attn = _softmax(logits, axis=-1)
        o = torch.einsum("bhsw,bhswd->bhsd", attn, vg)
        return (lambda x, *d: x.permute(*d))(o, 0, 2, 1, 3).reshape(B, S, D) @ wo

    def _B_ref(x, w_gate, w_up, w_down):
        return (_gelu(x @ w_gate) * (x @ w_up)) @ w_down

    x = A_x
    xn = _layernorm(x, axis=-1)
    return x + _A_ref(xn, A_wqkv, A_wo) + _B_ref(xn, B_w_gate, B_w_up, B_w_down)
```

```python
import sys, struct

NAME = "parallel_sum__sliding_local_dilated__geglu_ffn__prompt"
XN_OFF = 0
XN_BYTES = 2048 * 640 * 2
ACT_OFF = 4 << 20
ACT_MT = 74 * 1024
ACT_BYTES = 128 * ACT_MT
BIG = 0x40000000


def f2u(x):
    return struct.unpack("<I", struct.pack("<f", x))[0]


class Asm:
    def __init__(self):
        self.l = []

    def __call__(self, s):
        self.l.append("    " + s)

    def label(self, s):
        self.l.append(s + ":")

    def raw(self, s):
        self.l.append(s)

    def text(self):
        return "\n".join(self.l) + "\n"


def vr(a, n):
    return "v[%d:%d]" % (a, a + n - 1)


def sr(a, n):
    return "s[%d:%d]" % (a, a + n - 1)


def kernel_header(a, name):
    a.raw(".text")
    a.raw(".globl %s" % name)
    a.raw(".p2align 8")
    a.raw(".type %s,@function" % name)
    a.label(name)


def kernel_desc(a, name, vgpr, sgpr):
    a.raw('.section .rodata,"a"')
    a.raw(".p2align 6")
    a.raw(".amdhsa_kernel %s" % name)
    a.raw("  .amdhsa_next_free_vgpr %d" % vgpr)
    a.raw("  .amdhsa_next_free_sgpr %d" % sgpr)
    a.raw("  .amdhsa_accum_offset %d" % ((vgpr + 3) // 4 * 4))
    a.raw("  .amdhsa_group_segment_fixed_size 0")
    a.raw("  .amdhsa_kernarg_size 80")
    a.raw("  .amdhsa_user_sgpr_count 2")
    a.raw("  .amdhsa_user_sgpr_kernarg_segment_ptr 1")
    a.raw("  .amdhsa_system_sgpr_workgroup_id_x 1")
    a.raw(".end_amdhsa_kernel")


def make_srd(a, d, lo, hi, nbytes, off=0):
    if off:
        a("s_add_u32 s%d, s%d, 0x%x" % (d, lo, off))
        a("s_addc_u32 s%d, s%d, 0" % (d + 1, hi))
    else:
        a("s_mov_b32 s%d, s%d" % (d, lo))
        a("s_mov_b32 s%d, s%d" % (d + 1, hi))
    a("s_mov_b32 s%d, 0x%x" % (d + 2, nbytes))
    a("s_mov_b32 s%d, 0x00020000" % (d + 3))


def gen_ln(a):
    name = "ln_kernel"
    kernel_header(a, name)
    a("s_cmp_ge_u32 s2, 256")
    a("s_cbranch_scc1 L_ln_end")
    a("s_load_dwordx2 s[4:5], s[0:1], 0")
    a("s_load_dwordx2 s[6:7], s[0:1], 72")
    a("v_and_b32 v1, 15, v0")
    a("v_lshrrev_b32 v2, 4, v0")
    a("s_lshl_b32 s3, s2, 3")
    a("v_add_u32 v3, s3, v2")
    a("v_mul_u32_u24 v4, 1280, v3")
    a("v_lshl_add_u32 v4, v1, 4, v4")
    a("v_lshrrev_b32 v5, 4, v3")
    a("v_mul_u32_u24 v5, 20, v5")
    a("v_lshrrev_b32 v6, 2, v1")
    a("v_add_u32 v5, v5, v6")
    a("v_lshlrev_b32 v5, 10, v5")
    a("v_and_b32 v6, 3, v1")
    a("v_lshl_add_u32 v5, v6, 8, v5")
    a("v_and_b32 v6, 15, v3")
    a("v_lshl_add_u32 v5, v6, 4, v5")
    a("s_waitcnt lgkmcnt(0)")
    make_srd(a, 8, 4, 5, 2048 * 1280)
    make_srd(a, 12, 6, 7, XN_BYTES, XN_OFF)
    for j in range(5):
        a("buffer_load_dwordx4 %s, v4, s[8:11], 0 offen offset:%d" % (vr(8 + 4 * j, 4), 256 * j))
    for j in range(5):
        a("s_mov_b32 s%d, %d" % (16 + j, 4096 * j))
    a("s_mov_b32 s24, 0xffff0000")
    for j in range(5):
        a("s_waitcnt vmcnt(%d)" % (4 - j))
        for d in range(4):
            src = 8 + 4 * j + d
            a("v_lshlrev_b32 v%d, 16, v%d" % (32 + 8 * j + 2 * d, src))
            a("v_and_b32 v%d, s24, v%d" % (32 + 8 * j + 2 * d + 1, src))
    for p in range(4):
        a("v_add_f32 v%d, v%d, v%d" % (72 + p, 32 + p, 36 + p))
    for e in range(8, 40):
        a("v_add_f32 v%d, v%d, v%d" % (72 + e % 4, 72 + e % 4, 32 + e))
    a("v_add_f32 v72, v72, v73")
    a("v_add_f32 v74, v74, v75")
    a("v_add_f32 v72, v72, v74")

    def rowreduce(v):
        for sh in (8, 4, 2, 1):
            a("s_nop 1")
            a("v_add_f32_dpp v%d, v%d, v%d row_ror:%d row_mask:0xf bank_mask:0xf" % (v, v, v, sh))
    rowreduce(72)
    a("v_mul_f32 v72, 0x%x, v72" % f2u(1.0 / 640.0))
    for p in range(4):
        a("v_sub_f32 v%d, v%d, v72" % (76 + p, 32 + p))
        a("v_mul_f32 v%d, v%d, v%d" % (80 + p, 76 + p, 76 + p))
    for e in range(4, 40):
        a("v_sub_f32 v%d, v%d, v72" % (76 + e % 4, 32 + e))
        a("v_fmac_f32 v%d, v%d, v%d" % (80 + e % 4, 76 + e % 4, 76 + e % 4))
    a("v_add_f32 v80, v80, v81")
    a("v_add_f32 v82, v82, v83")
    a("v_add_f32 v80, v80, v82")
    rowreduce(80)
    a("v_mul_f32 v80, 0x%x, v80" % f2u(1.0 / 640.0))
    a("v_cvt_pk_bf16_f32 v81, v72, v80")
    a("v_lshlrev_b32 v72, 16, v81")
    a("v_and_b32 v80, s24, v81")
    a("v_add_f32 v80, 0x%x, v80" % f2u(1e-5))
    a("v_cvt_pk_bf16_f32 v80, v80, v80")
    a("v_lshlrev_b32 v80, 16, v80")
    a("v_sqrt_f32 v80, v80")
    a("s_nop 0")
    a("v_cvt_pk_bf16_f32 v80, v80, v80")
    a("v_lshlrev_b32 v80, 16, v80")
    a("v_rcp_f32 v80, v80")
    a("s_nop 0")
    for j in range(5):
        for d in range(4):
            e = 32 + 8 * j + 2 * d
            a("v_sub_f32 v%d, v%d, v72" % (e, e))
            a("v_sub_f32 v%d, v%d, v72" % (e + 1, e + 1))
        for d in range(4):
            e = 32 + 8 * j + 2 * d
            a("v_cvt_pk_bf16_f32 v%d, v%d, v%d" % (84 + d, e, e + 1))
        for d in range(4):
            e = 32 + 8 * j + 2 * d
            a("v_lshlrev_b32 v%d, 16, v%d" % (e, 84 + d))
            a("v_and_b32 v%d, s24, v%d" % (e + 1, 84 + d))
        for d in range(4):
            e = 32 + 8 * j + 2 * d
            a("v_mul_f32 v%d, v%d, v80" % (e, e))
            a("v_mul_f32 v%d, v%d, v80" % (e + 1, e + 1))
        for d in range(4):
            e = 32 + 8 * j + 2 * d
            a("v_cvt_pk_bf16_f32 v%d, v%d, v%d" % (8 + 4 * j + d, e, e + 1))
        a("buffer_store_dwordx4 %s, v5, s[12:15], s%d offen" % (vr(8 + 4 * j, 4), 16 + j))
    a.label("L_ln_end")
    a("s_endpgm")
    return (name, 88, 32)


K1_NS = 4
K1_SLOT = 32768
ACC = 64
FR0 = 160
PITCH = 288
REG_K = 0
REG_V = 176 * PITCH
REG_Q = 2 * 176 * PITCH
K1_LDS = 3 * 176 * PITCH


def k1_mainloop(a, nA, nB, a_addr, b_addr, dmas, nstage=20):
    NS = K1_NS
    nd = len(dmas["list"])

    def fa(p, i):
        return FR0 + 40 * p + 4 * i

    def fb(p, j):
        return FR0 + 40 * p + 4 * nA + 4 * j

    def dma_ops(stage):
        ops = []
        slot = stage % NS
        for (m0s, m0i, voff, srd, soff) in dmas["list"]:
            ops.append(("s_add_u32 m0, s%d, 0x%x" % (m0s, slot * K1_SLOT + m0i),
                        "buffer_load_dwordx4 v%d, %s, s%d offen lds" % (voff, sr(srd, 4), soff)))
        return ops

    def dma_adv():
        return ["s_add_u32 s%d, s%d, 0x%x" % (s, s, inc) for (s, inc) in dmas["adv"]]

    def read_ops(stage):
        p = stage % 2
        slot = stage % NS
        ops = []
        for i in range(nA):
            v, imm = a_addr(slot, i)
            ops.append("ds_read_b128 %s, v%d offset:%d" % (vr(fa(p, i), 4), v, imm))
        for j in range(nB):
            for e in range(2):
                v, imm = b_addr(slot, j, e)
                ops.append("ds_read_b64_tr_b16 %s, v%d offset:%d" % (vr(fb(p, j) + 2 * e, 2), v, imm))
        return ops

    for st in range(NS):
        for (m, d) in dma_ops(st):
            a(m)
            a("s_nop 0")
            a(d)
        for x in dma_adv():
            a(x)
    a("s_waitcnt vmcnt(%d)" % (nd * (NS - 1)))
    a("s_barrier")
    for x in read_ops(0):
        a(x)
    for it in range(nstage):
        p = it % 2
        outstanding_after = min(nstage - 1, it + NS - 1) - (it + 1)
        if it + 1 < nstage:
            a("s_waitcnt vmcnt(%d) lgkmcnt(0)" % (nd * max(0, outstanding_after)))
        else:
            a("s_waitcnt lgkmcnt(0)")
        a("s_barrier")
        fillers = []
        if it + NS < nstage:
            for (m, d) in dma_ops(it + NS):
                fillers.append([m])
                fillers.append([d])
            fillers.append(dma_adv())
        if it + 1 < nstage:
            for x in read_ops(it + 1):
                fillers.append([x])
        k = 0
        for i in range(nA):
            for j in range(nB):
                acc = ACC + 4 * (i * nB + j)
                c = "0" if it == 0 else vr(acc, 4)
                a("v_mfma_f32_16x16x32_bf16 %s, %s, %s, %s" % (vr(acc, 4), vr(fb(p, j), 4), vr(fa(p, i), 4), c))
                if k < len(fillers):
                    for x in fillers[k]:
                        a(x)
                    k += 1
        while k < len(fillers):
            for x in fillers[k]:
                a(x)
            k += 1


def gen_k1(a):
    name = "gemm1_kernel"
    kernel_header(a, name)
    a("s_cmp_ge_u32 s2, 248")
    a("s_cbranch_scc1 L_k1_end")
    a("s_load_dwordx2 s[4:5], s[0:1], 8")
    a("s_load_dwordx4 s[28:31], s[0:1], 32")
    a("s_load_dwordx2 s[32:33], s[0:1], 72")
    a("v_lshrrev_b32 v1, 6, v0")
    a("v_and_b32 v2, 63, v0")
    a("v_readfirstlane_b32 s20, v1")
    a("s_and_b32 s21, s2, 7")
    a("s_lshr_b32 s22, s2, 3")
    a("v_lshlrev_b32 v3, 4, v2")
    a("v_lshrrev_b32 v4, 4, v2")
    a("v_lshlrev_b32 v5, 10, v4")
    a("v_bfe_u32 v6, v2, 2, 2")
    a("v_lshl_add_u32 v5, v6, 7, v5")
    a("v_and_b32 v6, 3, v2")
    a("v_lshl_add_u32 v5, v6, 3, v5")
    a("v_bfe_u32 v6, v2, 3, 2")
    a("v_lshrrev_b32 v7, 3, v2")
    a("v_bfe_u32 v8, v2, 1, 2")
    a("v_bfe_u32 v9, v2, 4, 1")
    a("v_xor_b32 v8, v8, v9")
    a("v_and_b32 v9, 1, v2")
    a("s_lshr_b32 s23, s20, 2")
    a("s_and_b32 s24, s20, 3")
    a("s_waitcnt lgkmcnt(0)")
    make_srd(a, 8, 32, 33, XN_BYTES, XN_OFF)
    make_srd(a, 16, 32, 33, ACT_BYTES, ACT_OFF)
    a("s_cmp_lt_u32 s22, 18")
    a("s_cbranch_scc0 L_k1_att")

    a("s_lshl_b32 s27, s21, 1")
    a("s_add_u32 s27, s27, s22")
    a("s_sub_u32 s27, s27, 16")
    a("s_cmp_lt_u32 s22, 16")
    a("s_cselect_b32 s25, s21, 8")
    a("s_cselect_b32 s26, s22, s27")
    a("s_cmp_lt_u32 s20, 4")
    a("s_cselect_b32 s12, s28, s30")
    a("s_cselect_b32 s13, s29, s31")
    a("s_mov_b32 s14, %d" % (640 * 3456))
    a("s_mov_b32 s15, 0x00020000")
    a("s_lshl_b32 s27, s26, 3")
    a("s_add_u32 s27, s27, s20")
    a("s_mul_i32 s27, s27, 20480")
    a("v_add_u32 v10, s27, v3")
    a("s_mov_b32 s34, 0")
    a("s_mul_i32 s35, s25, 384")
    a("v_mul_u32_u24 v14, 3456, v7")
    a("v_lshlrev_b32 v15, 5, v8")
    a("v_lshl_add_u32 v15, v9, 4, v15")
    for j in range(3):
        a("s_mul_i32 s36, s20, 3")
        a("s_add_u32 s36, s36, %d" % j)
        a("s_and_b32 s37, s36, 3")
        a("s_lshr_b32 s38, s36, 2")
        a("s_cmp_ge_u32 s38, 3")
        a("s_cselect_b32 s39, 3, 0")
        a("s_sub_u32 s38, s38, s39")
        a("s_and_b32 s39, s37, 1")
        a("s_lshl_b32 s39, s39, 6")
        a("v_xor_b32 v%d, s39, v15" % (11 + j))
        a("s_mul_i32 s37, s37, %d" % (8 * 3456))
        a("s_lshl_b32 s38, s38, 7")
        a("s_add_u32 s37, s37, s38")
        a("v_add3_u32 v%d, v%d, v14, s37" % (11 + j, 11 + j))
    a("s_lshl_b32 s36, s20, 10")
    a("s_mul_i32 s37, s20, 3072")
    a("s_lshl_b32 s38, s23, 12")
    a("v_add_u32 v16, s38, v3")
    a("v_add_u32 v17, 0x10000, v16")
    for j in range(3):
        a("s_mul_i32 s38, s24, 3")
        a("s_add_u32 s38, s38, %d" % j)
        a("s_and_b32 s39, s38, 3")
        a("s_lshr_b32 s38, s38, 2")
        a("s_lshl_b32 s38, s38, 12")
        a("v_xor_b32 v%d, s39, v6" % (18 + j))
        a("v_lshl_add_u32 v%d, v%d, 5, v5" % (18 + j, 18 + j))
        a("v_add_u32 v%d, s38, v%d" % (18 + j, 18 + j))
        a("v_add_u32 v%d, 0x10000, v%d" % (21 + j, 18 + j))

    def a_addr(slot, i):
        return (16 + slot // 2, (slot % 2) * K1_SLOT + i * 1024)

    def b_addr(slot, j, e):
        mat, T = j // 3, j % 3
        return (18 + 3 * (slot // 2) + T, (slot % 2) * K1_SLOT + 8192 + mat * 12288 + e * 512)
    dmas = {"list": [(36, 0, 10, 8, 34)] + [(37, 8192 + 1024 * j, 11 + j, 12, 35) for j in range(3)],
            "adv": [(34, 1024), (35, 32 * 3456)]}
    k1_mainloop(a, 4, 6, a_addr, b_addr, dmas)

    LOG2E = 1.4426950408889634
    c1 = -2.0 * LOG2E * 0.7978845608028654
    c2 = c1 * 0.044715
    a("v_mov_b32 v24, 0x%x" % f2u(c2))
    a("v_and_b32 v25, 1, v4")
    a("s_mov_b32 s38, %d" % ACT_MT)
    a("v_mul_lo_u32 v25, v25, s38")
    a("v_lshrrev_b32 v26, 1, v4")
    a("v_lshl_add_u32 v25, v26, 8, v25")
    a("v_and_b32 v26, 15, v2")
    a("v_lshl_add_u32 v25, v26, 4, v25")
    a("s_mul_i32 s38, s23, %d" % (4 * ACT_MT))
    a("s_mul_i32 s39, s24, %d" % (6 * 256))
    a("s_add_u32 s38, s38, s39")
    a("v_add_u32 v25, s38, v25")
    a("s_mul_i32 s40, s26, %d" % (8 * ACT_MT))
    a("s_mul_i32 s39, s25, %d" % (24 * 256))
    a("s_add_u32 s40, s40, s39")
    a("s_add_u32 s40, s40, %d" % (80 * 256))
    a("s_add_u32 s41, s40, %d" % (2 * ACT_MT))
    a("s_nop 4")
    T0 = FR0
    OUT = FR0 + 16
    n = 0
    for ip in (0, 2):
        for j in range(3):
            el = []
            for ii in (ip, ip + 1):
                for r in range(4):
                    el.append((ACC + 4 * (ii * 6 + j) + r, ACC + 4 * (ii * 6 + 3 + j) + r))
            for q, (x, u) in enumerate(el):
                a("v_mul_f32 v%d, v%d, v%d" % (T0 + q, x, x))
            for q, (x, u) in enumerate(el):
                a("v_fmaak_f32 v%d, v%d, v24, 0x%x" % (T0 + q, T0 + q, f2u(c1)))
            for q, (x, u) in enumerate(el):
                a("v_mul_f32 v%d, v%d, v%d" % (T0 + q, x, T0 + q))
            for q, (x, u) in enumerate(el):
                a("v_exp_f32 v%d, v%d" % (T0 + q, T0 + q))
            for q, (x, u) in enumerate(el):
                a("v_mul_f32 v%d, v%d, v%d" % (u, x, u))
            for q, (x, u) in enumerate(el):
                a("v_add_f32 v%d, 1.0, v%d" % (T0 + q, T0 + q))
            for q, (x, u) in enumerate(el):
                a("v_rcp_f32 v%d, v%d" % (T0 + q, T0 + q))
            a("s_nop 0")
            for q, (x, u) in enumerate(el):
                a("v_mul_f32 v%d, v%d, v%d" % (u, u, T0 + q))
            o = OUT + 4 * (n % 3)
            n += 1
            a("v_cvt_pk_bf16_f32 v%d, v%d, v%d" % (o, el[0][1], el[1][1]))
            a("v_cvt_pk_bf16_f32 v%d, v%d, v%d" % (o + 1, el[2][1], el[3][1]))
            a("v_cvt_pk_bf16_f32 v%d, v%d, v%d" % (o + 2, el[4][1], el[5][1]))
            a("v_cvt_pk_bf16_f32 v%d, v%d, v%d" % (o + 3, el[6][1], el[7][1]))
            a("s_nop 1")
            a("v_permlane16_swap_b32 v%d, v%d" % (o, o + 2))
            a("v_permlane16_swap_b32 v%d, v%d" % (o + 1, o + 3))
            a("s_nop 1")
            a("buffer_store_dwordx4 %s, v25, s[16:19], s%d offen offset:%d" % (vr(o, 4), 40 if ip == 0 else 41, 512 * j))
    a("s_endpgm")

    a.label("L_k1_att")
    a("s_sub_u32 s26, s22, 18")
    make_srd(a, 12, 4, 5, 640 * 3840)
    a("s_mul_i32 s27, s26, 10")
    a("s_add_u32 s36, s27, s20")
    a("s_sub_u32 s37, s36, 1")
    a("s_mul_i32 s37, s37, 20480")
    a("s_cmp_eq_u32 s36, 0")
    a("s_cselect_b32 s37, 0x%x, s37" % BIG)
    a("v_add_u32 v10, s37, v3")
    a("s_cmp_ge_u32 s20, 3")
    a("s_cselect_b32 s38, 3, 0")
    a("s_sub_u32 s38, s20, s38")
    a("s_cmp_ge_u32 s38, 3")
    a("s_cselect_b32 s39, 3, 0")
    a("s_sub_u32 s38, s38, s39")
    a("s_add_u32 s38, s38, 8")
    a("s_add_u32 s39, s27, s38")
    a("s_sub_u32 s39, s39, 1")
    a("s_mul_i32 s39, s39, 20480")
    a("v_add_u32 v11, s39, v3")
    a("s_mov_b32 s34, 0")
    a("s_lshl_b32 s36, s20, 10")
    a("s_lshl_b32 s37, s38, 10")
    a("s_lshl_b32 s38, s20, 11")
    a("s_mul_i32 s35, s21, 160")
    a("v_mul_u32_u24 v14, 3840, v7")
    a("s_lshr_b32 s39, s20, 1")
    a("s_lshl_b32 s39, s39, 2")
    for j in range(2):
        if j:
            a("v_xor_b32 v15, 2, v8")
            a("v_add_u32 v15, s39, v15")
        else:
            a("v_add_u32 v15, s39, v8")
        a("v_min_u32 v15, 14, v15")
        a("v_lshlrev_b32 v%d, 5, v15" % (12 + j))
        a("v_lshl_add_u32 v%d, v9, 4, v%d" % (12 + j, 12 + j))
        a("v_add_u32 v%d, v%d, v14" % (12 + j, 12 + j))
        a("v_cmp_le_u32 vcc, 5, v15")
        a("v_mov_b32 v26, 1120")
        a("s_nop 1")
        a("v_cndmask_b32 v27, 0, v26, vcc")
        a("v_add_u32 v%d, v%d, v27" % (12 + j, 12 + j))
        a("v_cmp_le_u32 vcc, 10, v15")
        a("s_nop 1")
        a("v_cndmask_b32 v27, 0, v26, vcc")
        a("v_add_u32 v%d, v%d, v27" % (12 + j, 12 + j))
        a("s_and_b32 s40, s20, 1")
        a("s_lshl_b32 s40, s40, 1")
        a("s_add_u32 s40, s40, %d" % j)
        a("s_mul_i32 s40, s40, %d" % (8 * 3840))
        a("v_add_u32 v%d, s40, v%d" % (12 + j, 12 + j))
    a("s_mul_i32 s39, s23, 6144")
    a("v_add_u32 v16, s39, v3")
    a("v_add_u32 v17, 0x10000, v16")
    a("s_lshl_b32 s39, s24, 12")
    for j in range(4):
        a("v_xor_b32 v%d, %d, v6" % (18 + j, j))
        a("v_lshl_add_u32 v%d, v%d, 5, v5" % (18 + j, 18 + j))
        a("v_add_u32 v%d, s39, v%d" % (18 + j, 18 + j))
        a("v_add_u32 v%d, 0x10000, v%d" % (22 + j, 18 + j))

    def a_addr2(slot, i):
        return (16 + slot // 2, (slot % 2) * K1_SLOT + i * 1024)

    def b_addr2(slot, j, e):
        return (18 + 4 * (slot // 2) + j, (slot % 2) * K1_SLOT + 12288 + e * 512)
    dmas = {"list": [(36, 0, 10, 8, 34), (37, 0, 11, 8, 34)] + [(38, 12288 + 1024 * j, 12 + j, 12, 35) for j in range(2)],
            "adv": [(34, 1024), (35, 32 * 3840)]}
    k1_mainloop(a, 6, 4, a_addr2, b_addr2, dmas)

    a("v_mov_b32 v28, 0")
    a("v_mov_b32 v29, 0")
    a("v_mov_b32 v30, 0")
    a("v_mov_b32 v31, 0")
    a("v_lshrrev_b32 v26, 2, v0")
    a("v_mul_u32_u24 v26, %d, v26" % PITCH)
    a("v_and_b32 v27, 3, v0")
    a("v_lshl_add_u32 v26, v27, 6, v26")
    a("v_add_u32 v27, %d, v26" % REG_Q)
    for v in (26, 27):
        a("ds_write_b64 v%d, v[28:29] offset:40" % v)
        a("ds_write_b128 v%d, v[28:31] offset:48" % v)
    a("s_cmp_lt_u32 s20, 3")
    a("s_cbranch_scc0 L_att_nopad2")
    for v in (26, 27):
        a("ds_write_b64 v%d, v[28:29] offset:%d" % (v, 128 * PITCH + 40))
        a("ds_write_b128 v%d, v[28:31] offset:%d" % (v, 128 * PITCH + 48))
    a.label("L_att_nopad2")
    a("v_and_b32 v26, 15, v2")
    a("s_mul_i32 s39, s23, 96")
    a("v_add_u32 v27, s39, v26")
    a("v_mul_u32_u24 v27, %d, v27" % PITCH)
    a("v_mov_b32 v30, 24")
    for j in range(4):
        a("s_lshl_b32 s39, s24, 2")
        a("s_add_u32 s39, s39, %d" % j)
        a("s_cmp_ge_u32 s39, 5")
        a("s_cselect_b32 s40, 5, 0")
        a("s_cselect_b32 s41, %d, %d" % (REG_K, REG_Q))
        a("s_cmp_ge_u32 s39, 10")
        a("s_cselect_b32 s40, 10, s40")
        a("s_cselect_b32 s41, %d, s41" % REG_V)
        a("s_sub_u32 s39, s39, s40")
        a("s_lshl_b32 s39, s39, 4")
        a("v_lshl_add_u32 v28, v4, 2, s39")
        a("v_lshl_add_u32 v%d, v28, 1, v27" % (32 + j))
        a("v_add_u32 v%d, s41, v%d" % (32 + j, 32 + j))
        for th in (20, 40, 60):
            a("v_cmp_le_u32 vcc, %d, v28" % th)
            a("s_nop 1")
            a("v_cndmask_b32 v29, 0, v30, vcc")
            a("v_add_u32 v%d, v%d, v29" % (32 + j, 32 + j))
    W0 = FR0
    n = 0
    for i in range(6):
        if i == 5:
            a("s_cmp_eq_u32 s23, 1")
            a("s_cbranch_scc1 L_att_wdone")
        for j in range(4):
            if j == 3:
                a("s_cmp_eq_u32 s24, 3")
                a("s_cbranch_scc1 L_att_wskip%d" % i)
            acc = ACC + 4 * (i * 4 + j)
            o = W0 + 2 * (n % 8)
            n += 1
            a("v_cvt_pk_bf16_f32 v%d, v%d, v%d" % (o, acc, acc + 1))
            a("v_cvt_pk_bf16_f32 v%d, v%d, v%d" % (o + 1, acc + 2, acc + 3))
            a("ds_write_b64 v%d, %s offset:%d" % (32 + j, vr(o, 2), i * 16 * PITCH))
            if j == 3:
                a.label("L_att_wskip%d" % i)
    a.label("L_att_wdone")
    a("v_lshlrev_b32 v27, 2, v4")
    a("v_sub_u32 v27, v26, v27")
    for T in range(2):
        for r in range(4):
            a("v_add_u32 v28, %d, v27" % (16 - 16 * T - r))
            a("v_alignbit_b32 v28, v28, v28, 1")
            a("v_cmp_ge_u32 %s, 7, v28" % sr(44 + 2 * (4 * T + r), 2))
    a("s_lshr_b32 s39, s20, 2")
    a("s_or_b32 s39, s39, s26")
    a("s_cmp_eq_u32 s39, 0")
    for r in range(4):
        a("s_cselect_b64 %s, 0, %s" % (sr(60 + 2 * r, 2), sr(44 + 2 * r, 2)))
    a("s_mul_i32 s39, s23, %d" % (80 * PITCH))
    a("s_lshl_b32 s40, s24, 6")
    a("s_add_u32 s39, s39, s40")
    a("v_mul_u32_u24 v36, %d, v26" % PITCH)
    a("v_lshl_add_u32 v36, v4, 4, v36")
    a("v_add_u32 v36, s39, v36")
    a("v_add_u32 v37, %d, v36" % (REG_Q + 16 * PITCH))
    a("v_lshrrev_b32 v38, 2, v2")
    a("v_mul_u32_u24 v38, %d, v38" % PITCH)
    a("v_and_b32 v28, 3, v2")
    a("v_lshl_add_u32 v38, v28, 3, v38")
    a("s_add_u32 s39, s39, %d" % REG_V)
    a("v_add_u32 v38, s39, v38")
    a("s_mul_i32 s39, s21, 20")
    a("s_mul_i32 s40, s24, 5")
    a("s_add_u32 s39, s39, s40")
    for Dd in range(2):
        a("v_add_u32 v28, s39, v4")
        if Dd:
            a("v_add_u32 v28, 4, v28")
        a("v_lshrrev_b32 v29, 1, v28")
        a("v_lshlrev_b32 v29, 8, v29")
        a("v_and_b32 v28, 1, v28")
        a("v_lshl_add_u32 v29, v28, 3, v29")
        a("v_lshl_add_u32 v%d, v26, 4, v29" % (39 + Dd))
    a("v_cmp_gt_u32 vcc, 16, v2")
    a("v_mov_b32 v28, 0x%x" % BIG)
    a("s_nop 1")
    a("v_cndmask_b32 v40, v28, v40, vcc")
    a("s_mul_i32 s39, s26, 10")
    a("s_mul_i32 s40, s23, 5")
    a("s_add_u32 s39, s39, s40")
    a("s_mul_i32 s39, s39, %d" % ACT_MT)
    a("s_waitcnt lgkmcnt(0)")
    a("s_barrier")
    IB = ACC
    SB = FR0 + 8
    TB = FR0 + 48
    for n in range(5):
        b = IB + 20 * n
        off = n * 16 * PITCH
        a("ds_read_b128 %s, v37 offset:%d" % (vr(b, 4), off))
        a("ds_read_b128 %s, v36 offset:%d" % (vr(b + 4, 4), off))
        a("ds_read_b128 %s, v36 offset:%d" % (vr(b + 8, 4), off + 16 * PITCH))
    for n in range(5):
        b = IB + 20 * n
        off = n * 16 * PITCH
        for Dd in range(2):
            for e in range(2):
                a("ds_read_b64_tr_b16 %s, v38 offset:%d" % (vr(b + 12 + 4 * Dd + 2 * e, 2), off + e * 16 * PITCH + Dd * 32))
    a("s_waitcnt lgkmcnt(0)")
    for n in range(5):
        b = IB + 20 * n
        for T in range(2):
            a("v_mfma_f32_16x16x32_bf16 %s, %s, %s, 0" % (vr(SB + 8 * n + 4 * T, 4), vr(b + 4 + 4 * T, 4), vr(b, 4)))
    SC = (20 ** -0.5) * LOG2E
    a("v_mov_b32 v28, 0x%x" % f2u(SC))
    a("v_mov_b32 v29, 0x%x" % f2u(-1e9))
    a("s_nop 7")
    for n in range(5):
        s = SB + 8 * n
        for q in range(8):
            a("v_mul_f32 v%d, v28, v%d" % (s + q, s + q))
        for q in range(8):
            m = sr(60 + 2 * q, 2) if (n == 0 and q < 4) else sr(44 + 2 * q, 2)
            a("v_cndmask_b32 v%d, v29, v%d, %s" % (s + q, s + q, m))
        t = TB + 2 * n
        a("v_max3_f32 v%d, v%d, v%d, v%d" % (t, s, s + 1, s + 2))
        a("v_max3_f32 v%d, v%d, v%d, v%d" % (t + 1, s + 3, s + 4, s + 5))
        a("v_max3_f32 v%d, v%d, v%d, v%d" % (t, t, s + 6, s + 7))
        a("v_max_f32 v%d, v%d, v%d" % (t, t, t + 1))

    def xlane(op):
        for swp in ("v_permlane16_swap_b32", "v_permlane32_swap_b32"):
            for n in range(5):
                t = TB + 2 * n
                a("v_mov_b32 v%d, v%d" % (t + 1, t))
            a("s_nop 1")
            for n in range(5):
                t = TB + 2 * n
                a("%s v%d, v%d" % (swp, t, t + 1))
            a("s_nop 1")
            for n in range(5):
                t = TB + 2 * n
                a("%s v%d, v%d, v%d" % (op, t, t, t + 1))
    xlane("v_max_f32")
    for n in range(5):
        s = SB + 8 * n
        t = TB + 2 * n
        for q in range(8):
            a("v_sub_f32 v%d, v%d, v%d" % (s + q, s + q, t))
        for q in range(8):
            a("v_exp_f32 v%d, v%d" % (s + q, s + q))
        a("s_nop 0")
        a("v_add_f32 v%d, v%d, v%d" % (t, s, s + 1))
        a("v_add_f32 v%d, v%d, v%d" % (t + 1, s + 2, s + 3))
        a("v_add_f32 v%d, v%d, v%d" % (t, t, s + 4))
        a("v_add_f32 v%d, v%d, v%d" % (t + 1, t + 1, s + 5))
        a("v_add_f32 v%d, v%d, v%d" % (t, t, s + 6))
        a("v_add_f32 v%d, v%d, v%d" % (t + 1, t + 1, s + 7))
        a("v_add_f32 v%d, v%d, v%d" % (t, t, t + 1))
    xlane("v_add_f32")
    for n in range(5):
        t = TB + 2 * n
        a("v_rcp_f32 v%d, v%d" % (t, t))
    a("s_nop 0")
    for n in range(5):
        s = SB + 8 * n
        t = TB + 2 * n
        b = IB + 20 * n
        for q in range(8):
            a("v_mul_f32 v%d, v%d, v%d" % (s + q, s + q, t))
        for q in range(4):
            a("v_cvt_pk_bf16_f32 v%d, v%d, v%d" % (b + q, s + 2 * q, s + 2 * q + 1))
    a("s_nop 1")
    for n in range(5):
        b = IB + 20 * n
        for Dd in range(2):
            a("v_mfma_f32_16x16x32_bf16 %s, %s, %s, 0" % (vr(SB + 8 * n + 4 * Dd, 4), vr(b + 12 + 4 * Dd, 4), vr(b, 4)))
    a("s_nop 7")
    for n in range(5):
        s = SB + 8 * n
        b = IB + 20 * n
        for Dd in range(2):
            a("v_cvt_pk_bf16_f32 v%d, v%d, v%d" % (b + 4 + 2 * Dd, s + 4 * Dd, s + 4 * Dd + 1))
            a("v_cvt_pk_bf16_f32 v%d, v%d, v%d" % (b + 5 + 2 * Dd, s + 4 * Dd + 2, s + 4 * Dd + 3))
        for Dd in range(2):
            a("buffer_store_dwordx2 %s, v%d, s[16:19], s39 offen" % (vr(b + 4 + 2 * Dd, 2), 39 + Dd))
        a("s_add_u32 s39, s39, %d" % ACT_MT)
    a.label("L_k1_end")
    a("s_endpgm")
    return (name, 240, 72)


K2_NS = 7
K2_SLOT = 20480
K2_LDS = K2_NS * K2_SLOT
K2_NST = 37


def gen_k2(a):
    name = "gemm2_kernel"
    kernel_header(a, name)
    a("s_cmp_ge_u32 s2, 250")
    a("s_cbranch_scc1 L_k2_end")
    a("s_load_dwordx2 s[4:5], s[0:1], 0")
    a("s_load_dwordx2 s[6:7], s[0:1], 16")
    a("s_load_dwordx4 s[28:31], s[0:1], 48")
    a("s_load_dwordx2 s[32:33], s[0:1], 72")
    a("v_lshrrev_b32 v1, 6, v0")
    a("v_and_b32 v2, 63, v0")
    a("v_readfirstlane_b32 s20, v1")
    a("s_and_b32 s21, s2, 7")
    a("s_lshr_b32 s22, s2, 3")
    a("s_mul_i32 s23, s21, 31")
    a("s_min_u32 s24, s21, 2")
    a("s_add_u32 s23, s23, s24")
    a("s_add_u32 s23, s23, s22")
    a("s_mul_i32 s24, s23, 205")
    a("s_lshr_b32 s24, s24, 11")
    a("s_mul_i32 s25, s24, 10")
    a("s_sub_u32 s25, s23, s25")
    a("s_mul_i32 s26, s24, 6")
    a("s_mul_i32 s27, s24, 5")
    a("s_add_u32 s27, s27, 3")
    a("s_cmp_lt_u32 s24, 3")
    a("s_cselect_b32 s26, s26, s27")
    a("s_cselect_b32 s27, 6, 5")
    a("v_lshlrev_b32 v3, 4, v2")
    a("v_lshrrev_b32 v4, 4, v2")
    a("v_lshlrev_b32 v5, 10, v4")
    a("v_bfe_u32 v6, v2, 2, 2")
    a("v_lshl_add_u32 v5, v6, 7, v5")
    a("v_and_b32 v6, 3, v2")
    a("v_lshl_add_u32 v5, v6, 3, v5")
    a("v_bfe_u32 v6, v2, 3, 2")
    a("v_lshrrev_b32 v7, 3, v2")
    a("v_bfe_u32 v8, v2, 1, 2")
    a("v_bfe_u32 v9, v2, 4, 1")
    a("v_xor_b32 v8, v8, v9")
    a("v_and_b32 v9, 1, v2")
    a("s_lshr_b32 s34, s20, 2")
    a("s_bfe_u32 s35, s20, 0x10001")
    a("s_and_b32 s36, s20, 1")
    a("s_waitcnt lgkmcnt(0)")
    make_srd(a, 8, 32, 33, ACT_BYTES, ACT_OFF)
    make_srd(a, 12, 6, 7, 640 * 1280)
    make_srd(a, 16, 28, 29, 1728 * 1280)
    make_srd(a, 40, 4, 5, 2048 * 1280)
    make_srd(a, 44, 30, 31, 2048 * 1280)
    a("s_mul_i32 s37, s35, 3")
    a("s_add_u32 s37, s37, s26")
    a("s_mul_i32 s37, s37, %d" % (16 * 1280))
    a("s_lshl_b32 s38, s25, 7")
    a("s_add_u32 s37, s37, s38")
    a("s_lshl_b32 s38, s36, 1")
    a("s_add_u32 s38, s38, s34")
    a("s_lshl_b32 s38, s38, 5")
    a("s_add_u32 s37, s37, s38")
    a("v_and_b32 v26, 15, v2")
    a("v_mul_u32_u24 v26, 1280, v26")
    a("v_lshl_add_u32 v26, v4, 3, v26")
    a("v_add_u32 v26, s37, v26")
    a("s_mov_b32 s38, %d" % (16 * 1280))
    a("s_mov_b32 s39, %d" % (32 * 1280))
    a("buffer_load_dwordx2 v[28:29], v26, s[40:43], 0 offen")
    a("buffer_load_dwordx2 v[30:31], v26, s[40:43], s38 offen")
    a("buffer_load_dwordx2 v[32:33], v26, s[40:43], s39 offen")
    a("s_add_u32 s37, s26, s20")
    a("s_mul_i32 s37, s37, %d" % ACT_MT)
    a("v_add_u32 v10, s37, v3")
    a("s_mov_b32 s48, 0")
    a("v_lshlrev_b32 v11, 5, v8")
    a("v_lshl_add_u32 v11, v9, 4, v11")
    a("s_lshl_b32 s37, s36, 6")
    a("v_xor_b32 v11, s37, v11")
    a("v_mul_u32_u24 v12, 1280, v7")
    a("s_mul_i32 s37, s20, %d" % (8 * 1280))
    a("s_lshl_b32 s49, s25, 7")
    a("s_add_u32 s37, s37, s49")
    a("v_add3_u32 v11, v11, v12, s37")
    a("s_mov_b32 s49, 0")
    a("s_lshl_b32 s50, s20, 11")
    a("s_lshl_b32 s51, s20, 10")
    a("s_mul_i32 s37, s35, 6144")
    a("s_lshl_b32 s52, s34, 10")
    a("s_add_u32 s37, s37, s52")
    a("v_add_u32 v12, s37, v3")
    a("v_add_u32 v13, 0x10000, v12")
    a("v_add_u32 v14, 0x20000, v12")
    a("s_lshl_b32 s52, s34, 12")
    for jj in range(2):
        a("s_lshl_b32 s37, s36, 1")
        a("s_add_u32 s37, s37, %d" % jj)
        a("v_xor_b32 v%d, s37, v6" % (15 + 3 * jj))
        a("v_lshl_add_u32 v%d, v%d, 5, v5" % (15 + 3 * jj, 15 + 3 * jj))
        a("v_add_u32 v%d, s52, v%d" % (15 + 3 * jj, 15 + 3 * jj))
        a("v_add_u32 v%d, 0x10000, v%d" % (16 + 3 * jj, 15 + 3 * jj))
        a("v_add_u32 v%d, 0x20000, v%d" % (17 + 3 * jj, 15 + 3 * jj))
    AC = 64
    FRB = 96
    NS = K2_NS

    def split(off):
        return off >> 16, off & 0xffff

    def read_ops(st):
        p = st % 2
        base = (st % NS) * K2_SLOT
        ops = []
        for jj in range(2):
            for e in range(2):
                h, l = split(base + 12288 + e * 512)
                ops.append("ds_read_b64_tr_b16 %s, v%d offset:%d" % (vr(FRB + 20 * p + 12 + 4 * jj + 2 * e, 2), 15 + 3 * jj + h, l))
        for i in range(3):
            h, l = split(base + i * 2048)
            ops.append("ds_read_b128 %s, v%d offset:%d" % (vr(FRB + 20 * p + 4 * i, 4), 12 + h, l))
        return ops

    def body(loader):
        tag = "ld" if loader else "nl"
        nd = 3 if loader else 1

        def dma_ops(st):
            base = (st % NS) * K2_SLOT
            srd = 12 if st < 10 else 16
            ops = []
            if st == 10:
                ops.append(["s_mov_b32 s49, 0"])
            ops.append(["s_add_u32 m0, s51, 0x%x" % (base + 12288)])
            ops.append(["buffer_load_dwordx4 v11, %s, s49 offen lds" % sr(srd, 4), "s_add_u32 s49, s49, %d" % (64 * 1280)])
            if loader:
                ops.append(["s_add_u32 m0, s50, 0x%x" % base])
                ops.append(["buffer_load_dwordx4 v10, s[8:11], s48 offen lds"])
                ops.append(["buffer_load_dwordx4 v10, s[8:11], s48 offen offset:1024 lds", "s_add_u32 s48, s48, 2048"])
            return ops
        for st in range(NS):
            for o in dma_ops(st):
                for x in o:
                    a(x)
                if o[0].startswith("s_add_u32 m0"):
                    a("s_nop 0")
        a("s_waitcnt vmcnt(%d)" % (nd * (NS - 1)))
        a("s_barrier")
        for x in read_ops(0):
            a(x)
        for it in range(K2_NST):
            p = it % 2
            outstanding_after = min(K2_NST - 1, it + NS - 1) - (it + 1)
            if it + 1 < K2_NST:
                a("s_waitcnt vmcnt(%d) lgkmcnt(0)" % (nd * max(0, outstanding_after)))
            else:
                a("s_waitcnt lgkmcnt(0)")
            a("s_barrier")
            fillers = []
            if it + NS < K2_NST:
                fillers += dma_ops(it + NS)
            rd = read_ops(it + 1) if it + 1 < K2_NST else []
            gaps = [[] for _ in range(6)]
            for q, o in enumerate(fillers):
                gaps[min(q, 5)] += o
            for q, x in enumerate(rd):
                gaps[min(q, 5)].append(x)
            k = 0
            for i in range(3):
                for jj in range(2):
                    acc = AC + 4 * (2 * i + jj)
                    c = "0" if it == 0 else vr(acc, 4)
                    a("v_mfma_f32_16x16x32_bf16 %s, %s, %s, %s" % (vr(acc, 4), vr(FRB + 20 * p + 12 + 4 * jj, 4), vr(FRB + 20 * p + 4 * i, 4), c))
                    for x in gaps[k]:
                        a(x)
                    k += 1
    a("s_cmp_lt_u32 s20, s27")
    a("s_cbranch_scc0 L_k2_nl")
    body(True)
    a("s_branch L_k2_epi")
    a.label("L_k2_nl")
    body(False)
    a.label("L_k2_epi")
    a("s_mul_i32 s37, s20, 3072")
    a("v_add_u32 v12, s37, v3")
    a("s_xor_b32 s37, s20, 4")
    a("s_mul_i32 s37, s37, 3072")
    a("v_add_u32 v13, s37, v3")
    a("s_nop 4")
    a("s_cmp_eq_u32 s34, 0")
    a("s_cbranch_scc0 L_k2_x1")
    for kq in range(2):
        for i in range(3):
            a("ds_write_b128 v12, %s offset:%d" % (vr(AC + 4 * (2 * i + 1 - kq), 4), 1024 * i))
        for i in range(3):
            for r in range(4):
                a("v_mov_b32 v%d, v%d" % (FRB + 4 * i + r, AC + 4 * (2 * i + kq) + r))
        if kq == 0:
            a("s_branch L_k2_x2")
            a.label("L_k2_x1")
    a.label("L_k2_x2")
    a("s_waitcnt lgkmcnt(0)")
    a("s_barrier")
    for i in range(3):
        a("ds_read_b128 %s, v13 offset:%d" % (vr(AC + 4 * i, 4), 1024 * i))
    a("s_mov_b32 s37, 0xffff0000")
    a("s_waitcnt vmcnt(0) lgkmcnt(0)")
    for i in range(3):
        for r in range(4):
            a("v_add_f32 v%d, v%d, v%d" % (FRB + 4 * i + r, FRB + 4 * i + r, AC + 4 * i + r))
        for d in range(2):
            a("v_lshlrev_b32 v%d, 16, v%d" % (AC + 4 * i, 28 + 2 * i + d))
            a("v_and_b32 v%d, s37, v%d" % (AC + 4 * i + 1, 28 + 2 * i + d))
            a("v_add_f32 v%d, v%d, v%d" % (FRB + 4 * i + 2 * d, FRB + 4 * i + 2 * d, AC + 4 * i))
            a("v_add_f32 v%d, v%d, v%d" % (FRB + 4 * i + 2 * d + 1, FRB + 4 * i + 2 * d + 1, AC + 4 * i + 1))
        for d in range(2):
            a("v_cvt_pk_bf16_f32 v%d, v%d, v%d" % (28 + 2 * i + d, FRB + 4 * i + 2 * d, FRB + 4 * i + 2 * d + 1))
    a("buffer_store_dwordx2 v[28:29], v26, s[44:47], 0 offen")
    a("buffer_store_dwordx2 v[30:31], v26, s[44:47], s38 offen")
    a("s_sub_u32 s37, s27, s35")
    a("s_cmp_eq_u32 s37, 4")
    a("s_cbranch_scc1 L_k2_end")
    a("buffer_store_dwordx2 v[32:33], v26, s[44:47], s39 offen")
    a.label("L_k2_end")
    a("s_endpgm")
    return (name, 136, 56)


def main():
    a = Asm()
    hdr = open("cdna_kernels/%s.s.ref" % NAME).read().splitlines()
    for l in hdr:
        if l.startswith(";") and "@launch" not in l:
            a.raw(l)
    a.raw("; @launch kernel=ln_kernel grid=(256,1,1) block=(128,1,1) lds=0")
    a.raw("; @launch kernel=gemm1_kernel grid=(248,1,1) block=(512,1,1) lds=%d" % K1_LDS)
    a.raw("; @launch kernel=gemm2_kernel grid=(250,1,1) block=(512,1,1) lds=%d" % K2_LDS)
    a.raw('.amdgcn_target "amdgcn-amd-amdhsa--gfx950"')
    ks = [gen_ln(a), gen_k1(a), gen_k2(a)]
    for (n, v, s) in ks:
        kernel_desc(a, n, v, s)
    out = sys.argv[1] if len(sys.argv) > 1 else "cdna_kernels/%s.s" % NAME
    open(out, "w").write(a.text())


main()
```

```python
import sys, struct, re

NAME = "parallel_sum__sliding_local_dilated__geglu_ffn__prompt"
ST_OFF = 0
ST_CS = 2048 * 8
ST_BYTES = ST_CS + 3 * 5376 * 4
ACT_OFF = 4 << 20
ACT_MT = 74 * 1024
ACT_BYTES = 128 * ACT_MT
BIG = 0x40000000
LOG2E = 1.4426950408889634
STAMP = "--stamp" in sys.argv
STAMP_OFF = 32 << 20


def f2u(x):
    return struct.unpack("<I", struct.pack("<f", x))[0]


class Asm:
    def __init__(self):
        self.l = []
        self.vm = []

    def __call__(self, s, tag=None):
        m = re.match(r"s_cselect_b32 (s\d+), (\d+|0x[0-9a-f]+), (\d+|0x[0-9a-f]+)$", s)
        if m and int(m.group(2), 0) > 64 and int(m.group(3), 0) > 64:
            self.l.append("    s_mov_b32 %s, %s" % (m.group(1), m.group(3)))
            s = "s_cselect_b32 %s, %s, %s" % (m.group(1), m.group(2), m.group(1))
        self.l.append("    " + s)
        if s.startswith("buffer_") or s.startswith("global_"):
            self.vm.append(tag)

    def vmwait(self, tags):
        idx = [i for i, t in enumerate(self.vm) if t in tags]
        if not idx:
            return None
        return min(63, len(self.vm) - 1 - max(idx))

    def label(self, s):
        self.l.append(s + ":")

    def raw(self, s):
        self.l.append(s)

    def text(self):
        return "\n".join(self.l) + "\n"


def vr(a, n):
    return "v[%d:%d]" % (a, a + n - 1)


def sr(a, n):
    return "s[%d:%d]" % (a, a + n - 1)


def kernel_header(a, name):
    a.raw(".text")
    a.raw(".globl %s" % name)
    a.raw(".p2align 8")
    a.raw(".type %s,@function" % name)
    a.label(name)


def kernel_desc(a, name, vgpr, sgpr):
    a.raw('.section .rodata,"a"')
    a.raw(".p2align 6")
    a.raw(".amdhsa_kernel %s" % name)
    a.raw("  .amdhsa_next_free_vgpr %d" % vgpr)
    a.raw("  .amdhsa_next_free_sgpr %d" % sgpr)
    a.raw("  .amdhsa_accum_offset %d" % ((vgpr + 3) // 4 * 4))
    a.raw("  .amdhsa_group_segment_fixed_size 0")
    a.raw("  .amdhsa_kernarg_size 80")
    a.raw("  .amdhsa_user_sgpr_count 2")
    a.raw("  .amdhsa_user_sgpr_kernarg_segment_ptr 1")
    a.raw("  .amdhsa_system_sgpr_workgroup_id_x 1")
    a.raw(".end_amdhsa_kernel")


def stamp(a, idx):
    if STAMP:
        a("s_memtime %s" % sr(80 + 2 * idx, 2))


def stamp_start(a):
    if STAMP:
        a("s_memtime s[80:81]")
        a("s_memrealtime s[98:99]")


def stamp_flush(a, wave_sgpr, wslo, wshi, kidx, endlabel):
    if not STAMP:
        return
    stamp(a, 7)
    a("s_waitcnt vmcnt(0)")
    a("s_memtime s[96:97]")
    a("s_memrealtime s[100:101]")
    a("s_waitcnt lgkmcnt(0)")
    a("s_cmp_lg_u32 s%d, 0" % wave_sgpr)
    a("s_cbranch_scc1 %s" % endlabel)
    make_srd(a, 76, wslo, wshi, 1 << 20, STAMP_OFF + kidx * 65536)
    a("s_lshl_b32 s3, s2, 6")
    a("v_mov_b32 v0, s3")
    for i in range(9):
        a("v_mov_b32 v1, s%d" % (80 + 2 * i))
        a("buffer_store_dword v1, v0, s[76:79], 0 offen offset:%d" % (4 * i))
    a("v_mov_b32 v1, s98")
    a("buffer_store_dword v1, v0, s[76:79], 0 offen offset:56")
    a("v_mov_b32 v1, s100")
    a("buffer_store_dword v1, v0, s[76:79], 0 offen offset:60")


def make_srd(a, d, lo, hi, nbytes, off=0):
    if off:
        a("s_add_u32 s%d, s%d, 0x%x" % (d, lo, off))
        a("s_addc_u32 s%d, s%d, 0" % (d + 1, hi))
    else:
        a("s_mov_b32 s%d, s%d" % (d, lo))
        a("s_mov_b32 s%d, s%d" % (d + 1, hi))
    a("s_mov_b32 s%d, 0x%x" % (d + 2, nbytes))
    a("s_mov_b32 s%d, 0x00020000" % (d + 3))


ACC = 64
FR0 = 160
PITCH = 168
REG_K = 0
REG_V = 176 * PITCH
REG_Q = 2 * 176 * PITCH
SCR = 148480
K1_LDS = SCR + 2048
SX, SW, SACT, SST, SCS, SPF1, SPF2, SDBG = 24, 28, 32, 36, 40, 44, 48, 52
S_W, S_XCD, S_SLOT, S_WM, S_WN, S_FB, S_RB = 56, 57, 58, 59, 60, 61, 62
S_SOA, S_SOB = 64, 65
RL = 40
CL = 48
CA = 240
TT = 248
V_RSO, V_CSO, V_ATO, V_SCW, V_SCR = 35, 36, 37, 38, 39


def stats_issue(a):
    a("s_lshl_b32 s66, s2, 3")
    a("s_add_u32 s66, s66, s%d" % S_W)
    a("s_mul_i32 s67, s66, 1280")
    a("v_mov_b32 v1, 0x%x" % BIG)
    a("v_cmp_gt_u32 vcc, 40, v2")
    a("s_nop 1")
    a("v_cndmask_b32 v1, v1, v3, vcc")
    a("buffer_load_dwordx4 %s, v1, %s, s67 offen" % (vr(RL, 4), sr(SX, 4)), "SL")
    a("buffer_load_dwordx4 %s, v1, %s, s67 offen offset:640" % (vr(RL + 4, 4), sr(SX, 4)), "SL")
    a("s_lshl_b32 s67, s66, 3")
    a("v_mov_b32 v5, s67")
    a("v_mov_b32 v%d, 0x%x" % (V_RSO, BIG))
    a("v_cmp_eq_u32 vcc, 0, v2")
    a("s_nop 1")
    a("v_cndmask_b32 v%d, v%d, v5, vcc" % (V_RSO, V_RSO))
    a("s_mul_i32 s66, s%d, 43" % S_SLOT)
    a("s_lshr_b32 s66, s66, 7")
    a("s_mul_i32 s67, s66, 3")
    a("s_sub_u32 s70, s%d, s67" % S_SLOT)
    a("s_cmp_ge_u32 s66, 3")
    a("s_cselect_b32 s68, 2, 1")
    a("s_cselect_b32 s67, 3, 0")
    a("s_sub_u32 s66, s66, s67")
    a("s_mul_i32 s69, s%d, 3" % S_XCD)
    a("s_add_u32 s69, s69, s66")
    a("s_sub_u32 s66, s%d, 18" % S_SLOT)
    a("s_lshl_b32 s66, s66, 3")
    a("s_add_u32 s66, s66, s%d" % S_XCD)
    a("s_mul_i32 s67, s66, 171")
    a("s_lshr_b32 s67, s67, 9")
    a("s_mul_i32 s72, s67, 3")
    a("s_sub_u32 s72, s66, s72")
    a("s_mov_b32 s73, 0")
    a("s_mov_b32 s74, s67")
    a("s_cmp_ge_u32 s67, 30")
    a("s_cselect_b32 s73, 1, s73")
    a("s_cselect_b32 s75, 6, 0")
    a("s_sub_u32 s74, s74, s75")
    a("s_cmp_ge_u32 s67, 33")
    a("s_cselect_b32 s73, 2, s73")
    a("s_cselect_b32 s75, 3, 0")
    a("s_sub_u32 s74, s74, s75")
    a("s_cmp_ge_u32 s66, 108")
    a("s_cselect_b32 s71, 1, 0")
    a("s_cmp_ge_u32 s%d, 18" % S_SLOT)
    a("s_cselect_b32 s68, s73, s68")
    a("s_cselect_b32 s69, s74, s69")
    a("s_cselect_b32 s70, s72, s70")
    a("s_cselect_b32 s71, s71, 0")
    a("s_cmp_eq_u32 s68, 1")
    a("s_cselect_b32 s%d, s12, s14" % SCS)
    a("s_cselect_b32 s%d, s13, s15" % (SCS + 1))
    a("s_cselect_b32 s72, 1920, 3648")
    a("s_cmp_eq_u32 s68, 0")
    a("s_cselect_b32 s%d, s6, s%d" % (SCS, SCS))
    a("s_cselect_b32 s%d, s7, s%d" % (SCS + 1, SCS + 1))
    a("s_cselect_b32 s72, 0, s72")
    a("s_cselect_b32 s73, 3840, 3456")
    a("s_mul_i32 s%d, s73, 640" % (SCS + 2))
    a("s_mov_b32 s%d, 0x00020000" % (SCS + 3))
    a("s_mul_i32 s74, s70, 192")
    a("s_add_u32 s74, s74, 64")
    a("s_cmp_eq_u32 s70, 0")
    a("s_cselect_b32 s74, 0, s74")
    a("s_mul_i32 s74, s74, s73")
    a("s_lshl_b32 s75, s69, 7")
    a("s_add_u32 s74, s74, s75")
    a("s_cmp_eq_u32 s71, 1")
    a("s_cselect_b32 s74, 0x%x, s74" % BIG)
    a("v_lshrrev_b32 v1, 3, v2")
    a("s_lshl_b32 s75, s%d, 3" % S_W)
    a("v_add_u32 v1, s75, v1")
    a("v_mul_lo_u32 v1, v1, s73")
    a("v_and_b32 v5, 7, v2")
    a("v_lshl_add_u32 v1, v5, 4, v1")
    a("s_lshl_b32 s75, s73, 6")
    for i in range(4):
        if i == 3:
            a("s_cmp_eq_u32 s70, 0")
            a("s_cselect_b32 s74, s74, 0x%x" % BIG)
        a("buffer_load_dwordx4 %s, v1, %s, s74 offen" % (vr(CL + 4 * i, 4), sr(SCS, 4)), "SL")
        if i < 3:
            a("s_add_u32 s74, s74, s75")
    a("s_mul_i32 s74, s70, 5376")
    a("s_add_u32 s74, s74, s72")
    a("s_lshl_b32 s75, s69, 6")
    a("s_add_u32 s74, s74, s75")
    a("s_lshl_b32 s74, s74, 2")
    a("s_add_u32 s74, s74, %d" % ST_CS)
    a("s_or_b32 s75, s71, s%d" % S_W)
    a("s_cmp_eq_u32 s75, 0")
    a("s_cselect_b32 s74, s74, 0x%x" % BIG)
    a("v_lshl_add_u32 v%d, v2, 2, s74" % V_CSO)
    a("s_lshl_b32 s74, s%d, 8" % S_W)
    a("s_add_u32 s74, s74, %d" % SCR)
    a("v_lshl_add_u32 v%d, v5, 5, s74" % V_SCW)
    a("v_lshlrev_b32 v%d, 2, v2" % V_SCR)
    a("v_add_u32 v%d, %d, v%d" % (V_SCR, SCR, V_SCR))
    a("v_mov_b32 v%d, 0x%x" % (V_ATO, BIG))
    a("v_cmp_eq_u32 vcc, 0, v0")
    a("s_nop 1")
    a("v_cndmask_b32 v%d, v%d, 0, vcc" % (V_ATO, V_ATO))
    a("s_lshl_b32 s74, s2, 3")
    a("s_add_u32 s74, s74, s%d" % S_W)
    a("s_lshl_b32 s74, s74, 10")
    a("s_add_u32 s75, s74, 0x200000")
    a("buffer_load_dwordx4 %s, v3, %s, s74 offen" % (vr(TT, 4), sr(SPF1, 4)), "SL")
    a("buffer_load_dwordx4 %s, v3, %s, s74 offen" % (vr(TT, 4), sr(SPF2, 4)), "SL")
    a("buffer_load_dwordx4 %s, v3, %s, s75 offen" % (vr(TT, 4), sr(SPF1, 4)), "SL")


def wave_reduce(v, t):
    o = []
    for sh in (8, 4, 2, 1):
        o.append("s_nop 1")
        o.append("v_add_f32_dpp v%d, v%d, v%d row_ror:%d row_mask:0xf bank_mask:0xf" % (v, v, v, sh))
    for swp in ("v_permlane16_swap_b32", "v_permlane32_swap_b32"):
        o.append("v_mov_b32 v%d, v%d" % (t, v))
        o.append("s_nop 1")
        o.append("%s v%d, v%d" % (swp, v, t))
        o.append("s_nop 1")
        o.append("v_add_f32 v%d, v%d, v%d" % (v, v, t))
    return o


def stats_segA():
    o = []
    T = TT
    for i in range(4):
        for d in range(4):
            src = CL + 4 * i + d
            if i == 0:
                o.append("v_lshlrev_b32 v%d, 16, v%d" % (CA + 2 * d, src))
                o.append("v_and_b32 v%d, s63, v%d" % (CA + 2 * d + 1, src))
            else:
                o.append("v_lshlrev_b32 v%d, 16, v%d" % (T + (2 * d) % 4, src))
                o.append("v_and_b32 v%d, s63, v%d" % (T + (2 * d + 1) % 4, src))
                o.append("v_add_f32 v%d, v%d, v%d" % (CA + 2 * d, CA + 2 * d, T + (2 * d) % 4))
                o.append("v_add_f32 v%d, v%d, v%d" % (CA + 2 * d + 1, CA + 2 * d + 1, T + (2 * d + 1) % 4))
    o.append("s_nop 1")
    for c in range(8):
        o.append("v_add_f32_dpp v%d, v%d, v%d row_ror:8 row_mask:0xf bank_mask:0xf" % (CA + c, CA + c, CA + c))
    for swp in ("v_permlane16_swap_b32", "v_permlane32_swap_b32"):
        for c in range(8):
            o.append("v_mov_b32 v%d, v%d" % (CL + c, CA + c))
        o.append("s_nop 1")
        for c in range(8):
            o.append("%s v%d, v%d" % (swp, CA + c, CL + c))
        o.append("s_nop 1")
        for c in range(8):
            o.append("v_add_f32 v%d, v%d, v%d" % (CA + c, CA + c, CL + c))
    o.append("ds_write_b128 v%d, %s" % (V_SCW, vr(CA, 4)))
    o.append("ds_write_b128 v%d, %s offset:16" % (V_SCW, vr(CA + 4, 4)))
    U = CL
    for d in range(8):
        o.append("v_lshlrev_b32 v%d, 16, v%d" % (U + 2 * d, RL + d))
        o.append("v_and_b32 v%d, s63, v%d" % (U + 2 * d + 1, RL + d))
    o.append("v_add_f32 v%d, v%d, v%d" % (T, U, U + 1))
    o.append("v_add_f32 v%d, v%d, v%d" % (T + 1, U + 2, U + 3))
    for e in range(4, 16):
        o.append("v_add_f32 v%d, v%d, v%d" % (T + e % 2, T + e % 2, U + e))
    o.append("v_add_f32 v%d, v%d, v%d" % (T, T, T + 1))
    o += wave_reduce(T, T + 1)
    o.append("v_mul_f32 v%d, 0x%x, v%d" % (T, f2u(1.0 / 640.0), T))
    for e in range(16):
        o.append("v_sub_f32 v%d, v%d, v%d" % (U + e, U + e, T))
    o.append("v_mul_f32 v%d, v%d, v%d" % (T + 2, U, U))
    o.append("v_mul_f32 v%d, v%d, v%d" % (T + 3, U + 1, U + 1))
    for e in range(2, 16):
        o.append("v_fmac_f32 v%d, v%d, v%d" % (T + 2 + e % 2, U + e, U + e))
    o.append("v_add_f32 v%d, v%d, v%d" % (T + 2, T + 2, T + 3))
    o.append("v_cmp_gt_u32 vcc, 40, v2")
    o.append("s_nop 1")
    o.append("v_cndmask_b32 v%d, 0, v%d, vcc" % (T + 2, T + 2))
    o += wave_reduce(T + 2, T + 3)
    o.append("v_mul_f32 v%d, 0x%x, v%d" % (T + 2, f2u(1.0 / 640.0), T + 2))
    o.append("v_cvt_pk_bf16_f32 v%d, v%d, v%d" % (T + 1, T, T + 2))
    o.append("v_lshlrev_b32 v%d, 16, v%d" % (T + 4, T + 1))
    o.append("v_and_b32 v%d, s63, v%d" % (T + 5, T + 1))
    o.append("v_add_f32 v%d, 0x%x, v%d" % (T + 5, f2u(1e-5), T + 5))
    o.append("v_cvt_pk_bf16_f32 v%d, v%d, v%d" % (T + 5, T + 5, T + 5))
    o.append("v_lshlrev_b32 v%d, 16, v%d" % (T + 5, T + 5))
    o.append("v_sqrt_f32 v%d, v%d" % (T + 5, T + 5))
    o.append("s_nop 0")
    o.append("v_cvt_pk_bf16_f32 v%d, v%d, v%d" % (T + 5, T + 5, T + 5))
    o.append("v_lshlrev_b32 v%d, 16, v%d" % (T + 5, T + 5))
    o.append(("buffer_store_dwordx2 %s, v%d, %s, 0 offen sc1" % (vr(T + 4, 2), V_RSO, sr(SST, 4)), "ST"))
    return o


def stats_segB():
    return ["ds_read_b32 v%d, v%d offset:%d" % (CA + w, V_SCR, 256 * w) for w in range(8)]


def stats_segC():
    o = []
    for (x, y) in ((0, 1), (2, 3), (4, 5), (6, 7), (0, 2), (4, 6), (0, 4)):
        o.append("v_add_f32 v%d, v%d, v%d" % (CA + x, CA + x, CA + y))
    o.append(("buffer_store_dword v%d, v%d, %s, 0 offen sc1" % (CA, V_CSO, sr(SST, 4)), "ST"))
    return o


def stats_signal():
    return ["v_mov_b32 v%d, 1" % TT,
            ("buffer_atomic_add v%d, v%d, %s, 0 offen" % (TT, V_ATO, sr(SDBG, 4)), "AT")]


def emit(a, x):
    if isinstance(x, list):
        for y in x:
            emit(a, y)
    elif isinstance(x, tuple):
        a(x[0], x[1])
    else:
        a(x)


def k1_mainloop(a, P):
    nA, nB = P["nA"], P["nB"]
    NST = 20

    def fa(p, i):
        return FR0 + 40 * p + 4 * i

    def fb(p, j):
        return FR0 + 40 * p + 4 * nA + 4 * j

    def read_ops(stage):
        p = stage % 2
        ops = []
        for j in range(nB):
            for e in range(2):
                v, imm = P["b_addr"](stage % 4, j, e)
                ops.append("ds_read_b64_tr_b16 %s, v%d offset:%d" % (vr(fb(p, j) + 2 * e, 2), v, imm))
        for i in range(nA):
            v, imm = P["a_addr"]((stage // 2) % 3, stage % 2, i)
            ops.append("ds_read_b128 %s, v%d offset:%d" % (vr(fa(p, i), 4), v, imm))
        return ops

    def pro(ops):
        for (m, d, tag, adv) in ops:
            a(m)
            a("s_nop 0")
            a(d, tag)
            for x in adv:
                a(x)
    pro(P["bdma"](0))
    pro(sum(P["adma"](0), []))
    stats_issue(a)
    pro(P["bdma"](1))
    pro(sum(P["adma"](1), []))
    pro(P["bdma"](2))
    pro(P["bdma"](3))
    pro(sum(P["adma"](2), []))
    a("s_mov_b32 s63, 0xffff0000")
    stamp(a, 1)
    a("s_waitcnt vmcnt(%d)" % a.vmwait({"B0", "A0"}))
    a("s_barrier")
    stamp(a, 2)
    for x in read_ops(0):
        a(x)
    for it in range(NST):
        if it in (5, 10, 15):
            stamp(a, 2 + it // 5)
        p = it % 2
        tags = set()
        if it + 1 < NST:
            tags |= {"B%d" % (it + 1), "A%d" % ((it + 1) // 2)}
        if it == 0:
            tags.add("SL")
        if it == 10:
            tags.add("ST")
        if it == 18:
            tags.add("POLL")
        n = a.vmwait(tags)
        if n is not None:
            a("s_waitcnt vmcnt(%d) lgkmcnt(0)" % n)
        else:
            a("s_waitcnt lgkmcnt(0)")
        if it == 18:
            nm = P["name"]
            a("s_mov_b32 s66, 0")
            a.label("L_poll_%s" % nm)
            a("v_readfirstlane_b32 s67, v%d" % TT)
            a("s_add_u32 s66, s66, 1")
            a("s_cmp_ge_u32 s67, 256")
            a("s_cbranch_scc1 L_pollok_%s" % nm)
            a("s_cmp_ge_u32 s66, 0x40000")
            a("s_cbranch_scc1 L_pollok_%s" % nm)
            a("s_sleep 2")
            a.l.append("    buffer_load_dword v%d, v%d, %s, 0 offen sc1" % (TT, TT + 1, sr(SDBG, 4)))
            a("s_waitcnt vmcnt(0)")
            a("s_branch L_poll_%s" % nm)
            a.label("L_pollok_%s" % nm)
        a("s_barrier")
        fillers = []
        dm = []
        if it + 4 < NST:
            dm += P["bdma"](it + 4)
        if it >= 1:
            S = (it - 1) // 2 + 3
            if S < 10:
                dm += P["adma"](S)[(it - 1) % 2]
        for (m, d, tag, adv) in dm:
            fillers.append([m])
            fillers.append([(d, tag)] + adv)
        if it + 1 < NST:
            for x in read_ops(it + 1):
                fillers.append([x])
        bg = list(P["bg"].get(it, []))
        ngap = nA * nB
        rate = (len(bg) + ngap - 1) // ngap if bg else 0
        k = 0
        for i in range(nA):
            for j in range(nB):
                acc = ACC + 4 * (i * nB + j)
                c = "0" if it == 0 else vr(acc, 4)
                a("v_mfma_f32_16x16x32_bf16 %s, %s, %s, %s" % (vr(acc, 4), vr(fb(p, j), 4), vr(fa(p, i), 4), c))
                if k < len(fillers):
                    for x in fillers[k]:
                        emit(a, x)
                    k += 1
                for _ in range(rate):
                    if bg:
                        emit(a, bg.pop(0))
        while k < len(fillers):
            for x in fillers[k]:
                emit(a, x)
            k += 1
        for x in bg:
            emit(a, x)
    stamp(a, 6)


def split_bg(lst, its):
    n = (len(lst) + len(its) - 1) // len(its)
    return {it: lst[i * n:(i + 1) * n] for i, it in enumerate(its)}


def gen_k1(a):
    name = "gemm1_kernel"
    kernel_header(a, name)
    a("s_cmp_ge_u32 s2, 256")
    a("s_cbranch_scc1 L_k1_end")
    stamp_start(a)
    a("s_load_dwordx4 s[4:7], s[0:1], 0")
    a("s_load_dwordx2 s[8:9], s[0:1], 16")
    a("s_load_dwordx4 s[12:15], s[0:1], 32")
    a("s_load_dwordx4 s[16:19], s[0:1], 48")
    a("s_load_dwordx4 s[20:23], s[0:1], 64")
    a("v_lshrrev_b32 v1, 6, v0")
    a("v_and_b32 v2, 63, v0")
    a("v_readfirstlane_b32 s%d, v1" % S_W)
    a("s_and_b32 s%d, s2, 7" % S_XCD)
    a("s_lshr_b32 s%d, s2, 3" % S_SLOT)
    a("v_lshlrev_b32 v3, 4, v2")
    a("v_lshrrev_b32 v4, 4, v2")
    a("v_lshlrev_b32 v5, 10, v4")
    a("v_bfe_u32 v6, v2, 2, 2")
    a("v_lshl_add_u32 v5, v6, 7, v5")
    a("v_and_b32 v6, 3, v2")
    a("v_lshl_add_u32 v5, v6, 3, v5")
    a("v_bfe_u32 v6, v2, 3, 2")
    a("v_lshrrev_b32 v7, 3, v2")
    a("v_bfe_u32 v8, v2, 1, 2")
    a("v_bfe_u32 v9, v2, 4, 1")
    a("v_xor_b32 v8, v8, v9")
    a("v_and_b32 v9, 1, v2")
    a("v_and_b32 v10, 7, v2")
    a("v_lshrrev_b32 v11, 4, v2")
    a("v_xor_b32 v10, v10, v11")
    a("v_lshlrev_b32 v10, 4, v10")
    a("v_mul_u32_u24 v11, 1280, v7")
    a("v_add_u32 v10, v10, v11")
    a("v_bfe_u32 v16, v2, 1, 3")
    a("v_xor_b32 v16, v16, v4")
    a("v_lshlrev_b32 v16, 4, v16")
    a("v_and_b32 v17, 7, v2")
    a("v_lshl_add_u32 v16, v17, 7, v16")
    a("v_bfe_u32 v17, v2, 3, 1")
    a("v_lshl_add_u32 v16, v17, 10, v16")
    a("s_lshr_b32 s%d, s%d, 2" % (S_WM, S_W))
    a("s_and_b32 s%d, s%d, 3" % (S_WN, S_W))
    a("s_waitcnt lgkmcnt(0)")
    make_srd(a, SX, 4, 5, 2048 * 1280)
    make_srd(a, SACT, 22, 23, ACT_BYTES, ACT_OFF)
    make_srd(a, SST, 22, 23, ST_BYTES, ST_OFF)
    make_srd(a, SPF1, 16, 17, 1728 * 1280)
    make_srd(a, SPF2, 8, 9, 640 * 1280)
    make_srd(a, SDBG, 20, 21, 256)
    a("s_cmp_lt_u32 s%d, 18" % S_SLOT)
    a("s_cbranch_scc0 L_k1_att")

    a.vm = []
    a("s_lshl_b32 s66, s%d, 1" % S_XCD)
    a("s_add_u32 s66, s66, s%d" % S_SLOT)
    a("s_sub_u32 s66, s66, 16")
    a("s_cmp_lt_u32 s%d, 16" % S_SLOT)
    a("s_cselect_b32 s%d, s%d, 8" % (S_FB, S_XCD))
    a("s_cselect_b32 s%d, s%d, s66" % (S_RB, S_SLOT))
    a("s_cmp_lt_u32 s%d, 4" % S_W)
    a("s_cselect_b32 s%d, s12, s14" % SW)
    a("s_cselect_b32 s%d, s13, s15" % (SW + 1))
    a("s_mov_b32 s%d, %d" % (SW + 2, 640 * 3456))
    a("s_mov_b32 s%d, 0x00020000" % (SW + 3))
    a("s_mul_i32 s%d, s%d, 384" % (S_SOB, S_FB))
    a("v_mul_u32_u24 v18, 3456, v7")
    a("v_lshlrev_b32 v15, 5, v8")
    a("v_lshl_add_u32 v15, v9, 4, v15")
    for j in range(3):
        a("s_mul_i32 s66, s%d, 3" % S_W)
        a("s_add_u32 s66, s66, %d" % j)
        a("s_and_b32 s67, s66, 3")
        a("s_lshr_b32 s68, s66, 2")
        a("s_cmp_ge_u32 s68, 3")
        a("s_cselect_b32 s69, 3, 0")
        a("s_sub_u32 s68, s68, s69")
        a("s_and_b32 s69, s67, 1")
        a("s_lshl_b32 s69, s69, 6")
        a("v_xor_b32 v%d, s69, v15" % (12 + j))
        a("s_mul_i32 s67, s67, %d" % (8 * 3456))
        a("s_lshl_b32 s68, s68, 7")
        a("s_add_u32 s67, s67, s68")
        a("v_add3_u32 v%d, v%d, v18, s67" % (12 + j, 12 + j))
    a("s_lshl_b32 s66, s%d, 3" % S_RB)
    a("s_add_u32 s66, s66, s%d" % S_W)
    a("s_mul_i32 s66, s66, %d" % (16 * 1280))
    a("v_xor_b32 v11, 64, v10")
    a("v_add_u32 v10, s66, v10")
    a("s_add_u32 s66, s66, %d" % (8 * 1280))
    a("v_add_u32 v11, s66, v11")
    a("s_mov_b32 s%d, 0" % S_SOA)
    a("s_mul_i32 s3, s%d, 3072" % S_W)
    a("s_lshl_b32 s79, s%d, 11" % S_W)
    ARING = 98304
    a("s_lshl_b32 s66, s%d, 13" % S_WM)
    a("s_add_u32 s66, s66, %d" % ARING)
    a("v_xor_b32 v17, 64, v16")
    a("v_add_u32 v16, s66, v16")
    a("v_add_u32 v17, s66, v17")
    for j in range(3):
        a("s_mul_i32 s66, s%d, 3" % S_WN)
        a("s_add_u32 s66, s66, %d" % j)
        a("s_and_b32 s67, s66, 3")
        a("s_lshr_b32 s66, s66, 2")
        a("s_lshl_b32 s66, s66, 12")
        a("v_xor_b32 v%d, s67, v6" % (18 + j))
        a("v_lshl_add_u32 v%d, v%d, 5, v5" % (18 + j, 18 + j))
        a("v_add_u32 v%d, s66, v%d" % (18 + j, 18 + j))
        a("v_add_u32 v%d, 0x%x, v%d" % (21 + j, 2 * 24576, 18 + j))

    def bdma(st):
        o = []
        for j in range(3):
            o.append(("s_add_u32 m0, s3, 0x%x" % ((st % 4) * 24576 + 1024 * j),
                      "buffer_load_dwordx4 v%d, %s, s%d offen lds" % (12 + j, sr(SW, 4), S_SOB), "B%d" % st,
                      ["s_add_u32 s%d, s%d, %d" % (S_SOB, S_SOB, 32 * 3456)] if j == 2 else []))
        return o

    def adma(S):
        return [[("s_add_u32 m0, s79, 0x%x" % (ARING + (S % 3) * 16384 + 1024 * h),
                  "buffer_load_dwordx4 v%d, %s, s%d offen lds" % (10 + h, sr(SX, 4), S_SOA), "A%d" % S,
                  ["s_add_u32 s%d, s%d, 128" % (S_SOA, S_SOA)] if h == 1 else [])] for h in range(2)]

    pre = []
    pre += ["v_and_b32 v25, 1, v4", "s_mov_b32 s66, %d" % ACT_MT, "v_mul_lo_u32 v25, v25, s66",
            "v_lshrrev_b32 v26, 1, v4", "v_lshl_add_u32 v25, v26, 8, v25", "v_and_b32 v26, 15, v2",
            "v_lshl_add_u32 v25, v26, 4, v25",
            "s_mul_i32 s66, s%d, %d" % (S_WM, 4 * ACT_MT), "s_mul_i32 s67, s%d, %d" % (S_WN, 6 * 256),
            "s_add_u32 s66, s66, s67", "v_add_u32 v25, s66, v25",
            "s_mul_i32 s70, s%d, %d" % (S_RB, 8 * ACT_MT), "s_mul_i32 s67, s%d, %d" % (S_FB, 24 * 256),
            "s_add_u32 s70, s70, s67", "s_add_u32 s70, s70, %d" % (80 * 256), "s_add_u32 s71, s70, %d" % (2 * ACT_MT),
            "s_lshl_b32 s66, s%d, 1" % S_RB, "s_add_u32 s66, s66, s%d" % S_WM, "s_lshl_b32 s66, s66, 9",
            "v_lshl_add_u32 v26, v26, 3, s66",
            "s_mul_i32 s66, s%d, 768" % S_FB, "s_mul_i32 s67, s%d, 192" % S_WN, "s_add_u32 s66, s66, s67",
            "s_add_u32 s66, s66, %d" % (ST_CS + 1920 * 4), "v_lshl_add_u32 v27, v4, 4, s66",
            "s_mov_b32 s72, %d" % (1728 * 4), "s_mov_b32 s73, %d" % (5376 * 4), "s_mov_b32 s74, %d" % ((5376 + 1728) * 4),
            "s_mov_b32 s75, %d" % (2 * 5376 * 4), "s_mov_b32 s76, %d" % ((2 * 5376 + 1728) * 4),
            "v_mov_b32 v%d, 0" % (TT + 1)]
    poll = [("buffer_load_dword v%d, v%d, %s, 0 offen sc1" % (TT, TT + 1, sr(SDBG, 4)), "POLL")]
    RS = 28
    CS0 = 40

    def csreg(part, t):
        if part == 0:
            return CS0 + 4 * t
        if part == 1:
            return FR0 + 4 * t
        return (FR0 + 24 + 4 * t) if t < 4 else (CA + 4 * (t - 4))
    tl = []
    for i in range(4):
        tl.append(("buffer_load_dwordx2 %s, v26, %s, 0 offen offset:%d sc1" % (vr(RS + 2 * i, 2), sr(SST, 4), 128 * i), "TL"))
    for part in range(3):
        for mat in range(2):
            so = ["0", "s72", "s73", "s74", "s75", "s76"][part * 2 + mat]
            for j in range(3):
                tl.append(("buffer_load_dwordx4 %s, v27, %s, %s offen offset:%d sc1" % (vr(csreg(part, mat * 3 + j), 4), sr(SST, 4), so, 64 * j), "TL", part))
    tl18 = [x[:2] for x in tl if len(x) == 2 or x[2] == 0]
    tl19 = [x[:2] for x in tl if len(x) == 3 and x[2] > 0]
    bg = split_bg(stats_segA(), [0, 1, 2, 3])
    bg[5] = stats_segB()
    bg[6] = stats_segC()
    bg[10] = stats_signal()
    bg.update(split_bg(pre, [11, 12]))
    bg[16] = poll
    bg[18] = tl18
    bg[19] = tl19
    P = dict(nA=4, nB=6, name="ffn", bdma=bdma, adma=adma, bg=bg,
             a_addr=lambda S3, q, i: (16 + q, S3 * 16384 + i * 2048),
             b_addr=lambda slot, j, e: (18 + 3 * (slot // 2) + j % 3, (slot % 2) * 24576 + (j // 3) * 12288 + e * 512))
    k1_mainloop(a, P)

    c1 = -2.0 * LOG2E * 0.7978845608028654
    c2 = c1 * 0.044715
    a("s_waitcnt vmcnt(0)")
    for t in range(6):
        for r in range(4):
            a("v_add_f32 v%d, v%d, v%d" % (CS0 + 4 * t + r, CS0 + 4 * t + r, csreg(1, t) + r))
    for t in range(6):
        for r in range(4):
            a("v_add_f32 v%d, v%d, v%d" % (CS0 + 4 * t + r, CS0 + 4 * t + r, csreg(2, t) + r))
    RC = 5
    for i in range(4):
        a("v_rcp_f32 v%d, v%d" % (RC + 3 * i, RS + 2 * i + 1))
    a("s_nop 0")
    for i in range(4):
        a("v_mul_f32 v%d, v%d, v%d" % (RC + 3 * i + 2, RS + 2 * i + 1, RS + 2 * i + 1))
        a("v_mul_f32 v%d, v%d, v%d" % (RC + 3 * i + 1, RC + 3 * i, RC + 3 * i))
        a("v_mul_f32 v%d, 0x%x, v%d" % (RC + 3 * i, f2u(c1), RC + 3 * i))
        a("v_mul_f32 v%d, 0x%x, v%d" % (RC + 3 * i + 1, f2u(0.044715), RC + 3 * i + 1))
        a("v_mul_f32 v%d, v%d, v%d" % (RC + 3 * i + 1, RC + 3 * i + 1, RC + 3 * i))
    T0 = FR0 + 40
    OUT = FR0 + 56
    n = 0
    for ip in (0, 2):
        for j in range(3):
            el = []
            for ii in (ip, ip + 1):
                for r in range(4):
                    el.append((ACC + 4 * (ii * 6 + j) + r, ACC + 4 * (ii * 6 + 3 + j) + r, ii, r))
            for q, (x, u, ii, r) in enumerate(el):
                a("v_fma_f32 v%d, -v%d, v%d, v%d" % (x, RS + 2 * ii, CS0 + 4 * j + r, x))
            for q, (x, u, ii, r) in enumerate(el):
                a("v_mul_f32 v%d, v%d, v%d" % (T0 + q, x, x))
            for q, (x, u, ii, r) in enumerate(el):
                a("v_fma_f32 v%d, v%d, v%d, v%d" % (T0 + q, T0 + q, RC + 3 * ii + 1, RC + 3 * ii))
            for q, (x, u, ii, r) in enumerate(el):
                a("v_mul_f32 v%d, v%d, v%d" % (T0 + q, x, T0 + q))
            for q, (x, u, ii, r) in enumerate(el):
                a("v_exp_f32 v%d, v%d" % (T0 + q, T0 + q))
            for q, (x, u, ii, r) in enumerate(el):
                a("v_fma_f32 v%d, -v%d, v%d, v%d" % (u, RS + 2 * ii, CS0 + 4 * (3 + j) + r, u))
            for q, (x, u, ii, r) in enumerate(el):
                a("v_fma_f32 v%d, v%d, v%d, v%d" % (T0 + q, T0 + q, RC + 3 * ii + 2, RC + 3 * ii + 2))
            for q, (x, u, ii, r) in enumerate(el):
                a("v_rcp_f32 v%d, v%d" % (T0 + q, T0 + q))
            for q, (x, u, ii, r) in enumerate(el):
                a("v_mul_f32 v%d, v%d, v%d" % (u, x, u))
            for q, (x, u, ii, r) in enumerate(el):
                a("v_mul_f32 v%d, v%d, v%d" % (u, u, T0 + q))
            o = OUT + 4 * (n % 3)
            n += 1
            for q in range(4):
                a("v_cvt_pk_bf16_f32 v%d, v%d, v%d" % (o + q, el[2 * q][1], el[2 * q + 1][1]))
            a("s_nop 1")
            a("v_permlane16_swap_b32 v%d, v%d" % (o, o + 2))
            a("v_permlane16_swap_b32 v%d, v%d" % (o + 1, o + 3))
            a("s_nop 1")
            a("buffer_store_dwordx4 %s, v25, %s, s%d offen offset:%d" % (vr(o, 4), sr(SACT, 4), 70 if ip == 0 else 71, 512 * j))
    if STAMP:
        a("s_branch L_k1_flush")
    a("s_endpgm")

    a.label("L_k1_att")
    a.vm = []
    a("s_cmp_lt_u32 s%d, 31" % S_SLOT)
    a("s_cbranch_scc0 L_k1_extra")
    a("s_sub_u32 s%d, s%d, 18" % (S_RB, S_SLOT))
    make_srd(a, SW, 6, 7, 640 * 3840)
    ARING = 65536
    ASLOT = 22528
    a("s_mul_i32 s%d, s%d, 160" % (S_SOB, S_XCD))
    a("v_mul_u32_u24 v18, 3840, v7")
    a("s_lshr_b32 s66, s%d, 1" % S_W)
    a("s_lshl_b32 s66, s66, 2")
    a("v_mov_b32 v19, 1120")
    for j in range(2):
        if j:
            a("v_xor_b32 v15, 2, v8")
            a("v_add_u32 v15, s66, v15")
        else:
            a("v_add_u32 v15, s66, v8")
        a("v_min_u32 v15, 14, v15")
        a("v_lshlrev_b32 v%d, 5, v15" % (13 + j))
        a("v_lshl_add_u32 v%d, v9, 4, v%d" % (13 + j, 13 + j))
        a("v_cmp_le_u32 vcc, 5, v15")
        a("v_add_u32 v%d, v%d, v18" % (13 + j, 13 + j))
        a("s_and_b32 s67, s%d, 1" % S_W)
        a("v_cndmask_b32 v20, 0, v19, vcc")
        a("v_cmp_le_u32 vcc, 10, v15")
        a("v_add_u32 v%d, v%d, v20" % (13 + j, 13 + j))
        a("s_lshl_b32 s67, s67, 1")
        a("v_cndmask_b32 v20, 0, v19, vcc")
        a("s_add_u32 s67, s67, %d" % j)
        a("s_mul_i32 s67, s67, %d" % (8 * 3840))
        a("v_add3_u32 v%d, v%d, v20, s67" % (13 + j, 13 + j))
    a("s_and_b32 s66, s%d, 1" % S_W)
    a("s_lshl_b32 s66, s66, 6")
    a("v_xor_b32 v15, s66, v10")
    a("s_mul_i32 s66, s%d, 20" % S_RB)
    a("s_add_u32 s66, s66, s%d" % S_W)
    a("s_sub_u32 s67, s66, 2")
    a("s_mul_i32 s67, s67, %d" % (8 * 1280))
    a("s_cmp_lt_u32 s66, 2")
    a("s_cselect_b32 s68, 0x%x, s67" % BIG)
    a("v_add_u32 v10, s68, v15")
    a("s_add_u32 s67, s67, %d" % (64 * 1280))
    a("v_add_u32 v11, s67, v15")
    a("s_add_u32 s68, s67, %d" % (64 * 1280))
    a("s_cmp_lt_u32 s%d, 6" % S_W)
    a("s_cselect_b32 s68, s68, s67")
    a("s_cselect_b32 s78, 16384, 8192")
    a("v_add_u32 v12, s68, v15")
    a("s_lshl_b32 s79, s%d, 10" % S_W)
    a("s_add_u32 s78, s78, s79")
    a("s_mov_b32 s%d, 0" % S_SOA)
    a("s_lshl_b32 s3, s%d, 11" % S_W)
    a("s_mul_i32 s66, s%d, %d" % (S_WM, 6 * 2048))
    a("s_add_u32 s66, s66, %d" % ARING)
    a("v_xor_b32 v17, 64, v16")
    a("v_add_u32 v16, s66, v16")
    a("v_add_u32 v17, s66, v17")
    a("s_lshl_b32 s66, s%d, 12" % S_WN)
    for j in range(4):
        a("v_xor_b32 v%d, %d, v6" % (18 + j, j))
        a("v_lshl_add_u32 v%d, v%d, 5, v5" % (18 + j, 18 + j))
        a("v_add_u32 v%d, s66, v%d" % (18 + j, 18 + j))

    def bdma2(st):
        return [("s_add_u32 m0, s3, 0x%x" % ((st % 4) * 16384 + 1024 * j),
                 "buffer_load_dwordx4 v%d, %s, s%d offen lds" % (13 + j, sr(SW, 4), S_SOB), "B%d" % st,
                 ["s_add_u32 s%d, s%d, %d" % (S_SOB, S_SOB, 32 * 3840)] if j == 1 else []) for j in range(2)]

    def adma2(S):
        b = ARING + (S % 3) * ASLOT
        ld = "buffer_load_dwordx4 v%d, %s, s%d offen lds"
        return [[("s_add_u32 m0, s79, 0x%x" % b, ld % (10, sr(SX, 4), S_SOA), "A%d" % S, []),
                 ("s_add_u32 m0, s79, 0x%x" % (b + 8192), ld % (11, sr(SX, 4), S_SOA), "A%d" % S, [])],
                [("s_add_u32 m0, s78, 0x%x" % b, ld % (12, sr(SX, 4), S_SOA), "A%d" % S,
                  ["s_add_u32 s%d, s%d, 128" % (S_SOA, S_SOA)])]]

    pre = []
    pre += ["v_and_b32 v1, 15, v2", "s_mul_i32 s66, s%d, 96" % S_WM, "v_add_u32 v5, s66, v1",
            "v_mul_u32_u24 v5, %d, v5" % PITCH, "v_lshl_add_u32 v5, v4, 3, v5"]
    for j in range(4):
        pre += ["s_lshl_b32 s66, s%d, 2" % S_WN, "s_add_u32 s66, s66, %d" % j,
                "s_min_u32 s66, s66, 14",
                ["s_cmp_ge_u32 s66, 5", "s_cselect_b32 s67, 5, 0", "s_cselect_b32 s68, %d, %d" % (REG_K, REG_Q),
                 "s_cselect_b32 s69, 640, 0"],
                ["s_cmp_ge_u32 s66, 10", "s_cselect_b32 s67, 10, s67", "s_cselect_b32 s68, %d, s68" % REG_V,
                 "s_cselect_b32 s69, 1280, s69"],
                "s_sub_u32 s66, s66, s67", "s_lshl_b32 s66, s66, 4",
                "s_add_u32 s69, s69, s66", "s_lshl_b32 s%d, s69, 2" % (70 + j),
                "s_lshl_b32 s66, s66, 1", "s_add_u32 s66, s66, s68",
                "v_add_u32 v%d, s66, v5" % (22 + j)]
    pre += ["v_lshlrev_b32 v6, 2, v4", "v_sub_u32 v6, v1, v6"]
    for T in range(2):
        for r in range(4):
            pre += ["v_add_u32 v7, %d, v6" % (16 - 16 * T - r), "v_alignbit_b32 v7, v7, v7, 1",
                    "v_cmp_ge_u32 %s, 7, v7" % sr(4 + 2 * (4 * T + r), 2)]
    pre += ["s_or_b32 s66, s%d, s%d" % (S_WM, S_RB)]
    pre += [["s_cmp_eq_u32 s66, 0"] + ["s_cselect_b64 %s, 0, %s" % (sr(44 + 2 * r, 2), sr(4 + 2 * r, 2)) for r in range(4)]]
    pre += ["s_mul_i32 s66, s%d, %d" % (S_WM, 80 * PITCH), "s_mul_i32 s67, s%d, 40" % S_WN, "s_add_u32 s66, s66, s67",
            "v_mul_u32_u24 v5, %d, v1" % PITCH, "v_add_u32 v5, s66, v5",
            "v_lshlrev_b32 v6, 4, v4", "v_add_u32 v7, 8, v6",
            "v_cmp_gt_u32 s[76:77], 3, v4",
            "v_cmp_gt_u32 s[74:75], 2, v4", "s_nop 1",
            "v_cndmask_b32 v6, 0, v6, s[76:77]", "v_cndmask_b32 v7, 0, v7, s[74:75]",
            "v_add_u32 v26, v5, v6", "v_add_u32 v27, v5, v7",
            "v_add_u32 v28, %d, v26" % (REG_Q + 16 * PITCH), "v_add_u32 v29, %d, v27" % (REG_Q + 16 * PITCH),
            "v_lshrrev_b32 v30, 2, v2", "v_mul_u32_u24 v30, %d, v30" % PITCH, "v_and_b32 v6, 3, v2",
            "v_lshl_add_u32 v30, v6, 3, v30", "s_add_u32 s66, s66, %d" % REG_V, "v_add_u32 v30, s66, v30",
            "s_mul_i32 s66, s%d, 20" % S_XCD, "s_mul_i32 s67, s%d, 5" % S_WN, "s_add_u32 s66, s66, s67"]
    for Dd in range(2):
        pre += ["v_add_u32 v6, s66, v4"] + (["v_add_u32 v6, 4, v6"] if Dd else []) + \
               ["v_lshrrev_b32 v7, 1, v6", "v_lshlrev_b32 v7, 8, v7", "v_and_b32 v6, 1, v6",
                "v_lshl_add_u32 v7, v6, 3, v7", "v_lshl_add_u32 v%d, v1, 4, v7" % (31 + Dd)]
    pre += ["v_cmp_gt_u32 vcc, 16, v2", "v_mov_b32 v6, 0x%x" % BIG, "s_nop 1", "v_cndmask_b32 v32, v6, v32, vcc",
            "s_mul_i32 s69, s%d, 10" % S_RB, "s_mul_i32 s67, s%d, 5" % S_WM, "s_add_u32 s69, s69, s67",
            "s_mul_i32 s69, s69, %d" % ACT_MT,
            "s_mul_i32 s66, s%d, 160" % S_RB, "s_mul_i32 s67, s%d, 96" % S_WM, "s_add_u32 s66, s66, s67",
            "s_lshl_b32 s66, s66, 3", "v_lshl_add_u32 v33, v1, 3, s66",
            "s_mul_i32 s66, s%d, 320" % S_XCD, "s_add_u32 s66, s66, %d" % ST_CS, "v_lshl_add_u32 v34, v4, 4, s66",
            "v_mov_b32 v%d, 0" % (TT + 1)]
    RS = 40
    CS0 = 5

    def csreg2(part, j):
        if part == 0:
            return [52, 56, 60, 240][j]
        return FR0 + 16 * (part - 1) + 4 * j
    tl18, tl19 = [], []
    tl18.append("v_subrev_u32 v1, 128, v33")
    tl18.append(("buffer_load_dwordx2 %s, v1, %s, 0 offen sc1" % (vr(RS, 2), sr(SST, 4)), "TL"))
    for i in range(1, 6):
        tl18.append(("buffer_load_dwordx2 %s, v33, %s, 0 offen offset:%d sc1" % (vr(RS + 2 * i, 2), sr(SST, 4), 128 * (i - 1)), "TL"))
    for part in range(3):
        for j in range(4):
            x = ("buffer_load_dwordx4 %s, v34, %s, s%d offen sc1" % (vr(csreg2(part, j), 4), sr(SST, 4), 70 + j), "TL")
            (tl18 if part == 0 else tl19).append(x)
        if part < 2:
            (tl18 if part == 0 else tl19).append("v_add_u32 v34, %d, v34" % (5376 * 4))
    bg = split_bg(stats_segA(), [0, 1, 2, 3])
    bg[5] = stats_segB()
    bg[6] = stats_segC()
    bg[10] = stats_signal()
    bg.update(split_bg(pre, [11, 12, 13, 14, 15]))
    bg[16] = poll
    bg[18] = tl18
    bg[19] = tl19
    P = dict(nA=6, nB=4, name="att", bdma=bdma2, adma=adma2, bg=bg,
             a_addr=lambda S3, q, i: (16 + q, S3 * ASLOT + i * 2048),
             b_addr=lambda slot, j, e: (18 + j, slot * 16384 + e * 512))
    k1_mainloop(a, P)

    a("s_waitcnt vmcnt(0)")
    for part in (1, 2):
        for j in range(4):
            for r in range(4):
                a("v_add_f32 v%d, v%d, v%d" % (csreg2(0, j) + r, csreg2(0, j) + r, csreg2(part, j) + r))
    for i in range(6):
        a("v_max_f32 v%d, 0x%x, v%d" % (RS + 2 * i + 1, f2u(1e-3), RS + 2 * i + 1))
    for i in range(6):
        a("v_rcp_f32 v%d, v%d" % (RS + 2 * i + 1, RS + 2 * i + 1))
    W0 = FR0
    n = 0
    for i in range(6):
        if i == 5:
            a("s_cmp_eq_u32 s%d, 1" % S_WM)
            a("s_cbranch_scc1 L_att_wdone")
        for j in range(4):
            acc = ACC + 4 * (i * 4 + j)
            for r in range(4):
                a("v_fma_f32 v%d, -v%d, v%d, v%d" % (acc + r, RS + 2 * i, csreg2(0, j) + r, acc + r))
        for j in range(4):
            acc = ACC + 4 * (i * 4 + j)
            for r in range(4):
                a("v_mul_f32 v%d, v%d, v%d" % (acc + r, acc + r, RS + 2 * i + 1))
        for j in range(4):
            acc = ACC + 4 * (i * 4 + j)
            o = W0 + 2 * (n % 8)
            n += 1
            a("v_cvt_pk_bf16_f32 v%d, v%d, v%d" % (o, acc, acc + 1))
            a("v_cvt_pk_bf16_f32 v%d, v%d, v%d" % (o + 1, acc + 2, acc + 3))
            a("ds_write_b64 v%d, %s offset:%d" % (22 + j, vr(o, 2), i * 16 * PITCH))
    a.label("L_att_wdone")
    a("s_waitcnt lgkmcnt(0)")
    a("s_barrier")
    IB = ACC
    SB = FR0 + 8
    TB = FR0 + 48
    for n in range(5):
        b = IB + 20 * n
        off = n * 16 * PITCH
        a("ds_read_b64 %s, v28 offset:%d" % (vr(b, 2), off))
        a("ds_read_b64 %s, v29 offset:%d" % (vr(b + 2, 2), off))
        for T in range(2):
            a("ds_read_b64 %s, v26 offset:%d" % (vr(b + 4 + 4 * T, 2), off + T * 16 * PITCH))
            a("ds_read_b64 %s, v27 offset:%d" % (vr(b + 6 + 4 * T, 2), off + T * 16 * PITCH))
    for n in range(5):
        b = IB + 20 * n
        off = n * 16 * PITCH
        for Dd in range(2):
            for e in range(2):
                a("ds_read_b64_tr_b16 %s, v30 offset:%d" % (vr(b + 12 + 4 * Dd + 2 * e, 2), off + e * 16 * PITCH + Dd * 32))
    SC = (20 ** -0.5) * LOG2E
    a("v_mov_b32 v5, 0x%x" % f2u(SC))
    a("v_mov_b32 v6, 0x%x" % f2u(-1e9))
    a("s_waitcnt lgkmcnt(15)")
    for n in range(5):
        b = IB + 20 * n
        a("v_cndmask_b32 v%d, 0, v%d, s[76:77]" % (b, b))
        a("v_cndmask_b32 v%d, 0, v%d, s[76:77]" % (b + 1, b + 1))
        a("v_cndmask_b32 v%d, 0, v%d, s[74:75]" % (b + 2, b + 2))
        a("v_cndmask_b32 v%d, 0, v%d, s[74:75]" % (b + 3, b + 3))
    a("s_nop 1")
    for n in range(5):
        b = IB + 20 * n
        for T in range(2):
            a("v_mfma_f32_16x16x32_bf16 %s, %s, %s, 0" % (vr(SB + 8 * n + 4 * T, 4), vr(b + 4 + 4 * T, 4), vr(b, 4)))
    a("s_nop 0")
    for n in range(5):
        s = SB + 8 * n
        for q in range(8):
            a("v_mul_f32 v%d, v5, v%d" % (s + q, s + q))
        for q in range(8):
            m = sr(44 + 2 * q, 2) if (n == 0 and q < 4) else sr(4 + 2 * q, 2)
            a("v_cndmask_b32 v%d, v6, v%d, %s" % (s + q, s + q, m))
        t = TB + 2 * n
        a("v_max3_f32 v%d, v%d, v%d, v%d" % (t, s, s + 1, s + 2))
        a("v_max3_f32 v%d, v%d, v%d, v%d" % (t + 1, s + 3, s + 4, s + 5))
        a("v_max3_f32 v%d, v%d, v%d, v%d" % (t, t, s + 6, s + 7))
        a("v_max_f32 v%d, v%d, v%d" % (t, t, t + 1))

    def xlane(op):
        for swp in ("v_permlane16_swap_b32", "v_permlane32_swap_b32"):
            for n in range(5):
                t = TB + 2 * n
                a("v_mov_b32 v%d, v%d" % (t + 1, t))
            a("s_nop 1")
            for n in range(5):
                t = TB + 2 * n
                a("%s v%d, v%d" % (swp, t, t + 1))
            a("s_nop 1")
            for n in range(5):
                t = TB + 2 * n
                a("%s v%d, v%d, v%d" % (op, t, t, t + 1))
    xlane("v_max_f32")
    for n in range(5):
        s = SB + 8 * n
        t = TB + 2 * n
        for q in range(8):
            a("v_sub_f32 v%d, v%d, v%d" % (s + q, s + q, t))
        for q in range(8):
            a("v_exp_f32 v%d, v%d" % (s + q, s + q))
        a("s_nop 0")
        a("v_add_f32 v%d, v%d, v%d" % (t, s, s + 1))
        a("v_add_f32 v%d, v%d, v%d" % (t + 1, s + 2, s + 3))
        a("v_add_f32 v%d, v%d, v%d" % (t, t, s + 4))
        a("v_add_f32 v%d, v%d, v%d" % (t + 1, t + 1, s + 5))
        a("v_add_f32 v%d, v%d, v%d" % (t, t, s + 6))
        a("v_add_f32 v%d, v%d, v%d" % (t + 1, t + 1, s + 7))
        a("v_add_f32 v%d, v%d, v%d" % (t, t, t + 1))
    xlane("v_add_f32")
    for n in range(5):
        t = TB + 2 * n
        a("v_rcp_f32 v%d, v%d" % (t, t))
    a("s_nop 0")
    for n in range(5):
        s = SB + 8 * n
        t = TB + 2 * n
        b = IB + 20 * n
        for q in range(8):
            a("v_mul_f32 v%d, v%d, v%d" % (s + q, s + q, t))
        for q in range(4):
            a("v_cvt_pk_bf16_f32 v%d, v%d, v%d" % (b + q, s + 2 * q, s + 2 * q + 1))
    a("s_waitcnt lgkmcnt(0)")
    a("s_nop 0")
    for n in range(5):
        b = IB + 20 * n
        for Dd in range(2):
            a("v_mfma_f32_16x16x32_bf16 %s, %s, %s, 0" % (vr(SB + 8 * n + 4 * Dd, 4), vr(b + 12 + 4 * Dd, 4), vr(b, 4)))
    a("s_nop 0")
    for n in range(5):
        s = SB + 8 * n
        b = IB + 20 * n
        if n == 4:
            a("s_nop 3")
        for Dd in range(2):
            a("v_cvt_pk_bf16_f32 v%d, v%d, v%d" % (b + 4 + 2 * Dd, s + 4 * Dd, s + 4 * Dd + 1))
            a("v_cvt_pk_bf16_f32 v%d, v%d, v%d" % (b + 5 + 2 * Dd, s + 4 * Dd + 2, s + 4 * Dd + 3))
        for Dd in range(2):
            a("buffer_store_dwordx2 %s, v%d, %s, s69 offen" % (vr(b + 4 + 2 * Dd, 2), 31 + Dd, sr(SACT, 4)))
        a("s_add_u32 s69, s69, %d" % ACT_MT)
    if STAMP:
        a.label("L_k1_flush")
        stamp_flush(a, S_W, 22, 23, 1, "L_k1_end")
    a("s_endpgm")

    a.label("L_k1_extra")
    a.vm = []
    stats_issue(a)
    a("s_mov_b32 s63, 0xffff0000")
    a("s_waitcnt vmcnt(0)")
    for x in stats_segA():
        emit(a, x)
    a("s_waitcnt lgkmcnt(0)")
    a("s_barrier")
    for x in stats_segB():
        emit(a, x)
    a("s_waitcnt lgkmcnt(0)")
    for x in stats_segC():
        emit(a, x)
    a("s_waitcnt vmcnt(0)")
    a("s_barrier")
    for x in stats_signal():
        emit(a, x)
    a.label("L_k1_end")
    a("s_endpgm")
    return (name, 256, 102 if STAMP else 80)


K2_NS = 7
K2_SLOT = 20480
K2_LDS = K2_NS * K2_SLOT
K2_NST = 37


def gen_k2(a):
    name = "gemm2_kernel"
    kernel_header(a, name)
    a("s_cmp_ge_u32 s2, 250")
    a("s_cbranch_scc1 L_k2_end")
    stamp_start(a)
    a("s_load_dwordx2 s[4:5], s[0:1], 0")
    a("s_load_dwordx2 s[6:7], s[0:1], 16")
    a("s_load_dwordx4 s[28:31], s[0:1], 48")
    a("s_load_dwordx2 s[32:33], s[0:1], 72")
    a("v_lshrrev_b32 v1, 6, v0")
    a("v_and_b32 v2, 63, v0")
    a("v_readfirstlane_b32 s20, v1")
    a("s_and_b32 s21, s2, 7")
    a("s_lshr_b32 s22, s2, 3")
    a("s_mul_i32 s23, s21, 31")
    a("s_min_u32 s24, s21, 2")
    a("s_add_u32 s23, s23, s24")
    a("s_add_u32 s23, s23, s22")
    a("s_mul_i32 s24, s23, 205")
    a("s_lshr_b32 s24, s24, 11")
    a("s_mul_i32 s25, s24, 10")
    a("s_sub_u32 s25, s23, s25")
    a("s_mul_i32 s26, s24, 6")
    a("s_mul_i32 s27, s24, 5")
    a("s_add_u32 s27, s27, 3")
    a("s_cmp_lt_u32 s24, 3")
    a("s_cselect_b32 s26, s26, s27")
    a("s_cselect_b32 s27, 6, 5")
    a("v_lshlrev_b32 v3, 4, v2")
    a("v_lshrrev_b32 v4, 4, v2")
    a("v_lshlrev_b32 v5, 10, v4")
    a("v_bfe_u32 v6, v2, 2, 2")
    a("v_lshl_add_u32 v5, v6, 7, v5")
    a("v_and_b32 v6, 3, v2")
    a("v_lshl_add_u32 v5, v6, 3, v5")
    a("v_bfe_u32 v6, v2, 3, 2")
    a("v_lshrrev_b32 v7, 3, v2")
    a("v_bfe_u32 v8, v2, 1, 2")
    a("v_bfe_u32 v9, v2, 4, 1")
    a("v_xor_b32 v8, v8, v9")
    a("v_and_b32 v9, 1, v2")
    a("s_lshr_b32 s34, s20, 2")
    a("s_bfe_u32 s35, s20, 0x10001")
    a("s_and_b32 s36, s20, 1")
    a("s_waitcnt lgkmcnt(0)")
    make_srd(a, 8, 32, 33, ACT_BYTES, ACT_OFF)
    make_srd(a, 12, 6, 7, 640 * 1280)
    make_srd(a, 16, 28, 29, 1728 * 1280)
    make_srd(a, 40, 4, 5, 2048 * 1280)
    make_srd(a, 44, 30, 31, 2048 * 1280)
    a("s_mul_i32 s37, s35, 3")
    a("s_add_u32 s37, s37, s26")
    a("s_mul_i32 s37, s37, %d" % (16 * 1280))
    a("s_lshl_b32 s38, s25, 7")
    a("s_add_u32 s37, s37, s38")
    a("s_lshl_b32 s38, s36, 1")
    a("s_add_u32 s38, s38, s34")
    a("s_lshl_b32 s38, s38, 5")
    a("s_add_u32 s37, s37, s38")
    a("v_and_b32 v26, 15, v2")
    a("v_mul_u32_u24 v26, 1280, v26")
    a("v_lshl_add_u32 v26, v4, 3, v26")
    a("v_add_u32 v26, s37, v26")
    a("s_mov_b32 s38, %d" % (16 * 1280))
    a("s_mov_b32 s39, %d" % (32 * 1280))
    a("buffer_load_dwordx2 v[28:29], v26, s[40:43], 0 offen")
    a("buffer_load_dwordx2 v[30:31], v26, s[40:43], s38 offen")
    a("buffer_load_dwordx2 v[32:33], v26, s[40:43], s39 offen")
    a("s_add_u32 s37, s26, s20")
    a("s_mul_i32 s37, s37, %d" % ACT_MT)
    a("v_add_u32 v10, s37, v3")
    a("s_mov_b32 s48, 0")
    a("v_lshlrev_b32 v11, 5, v8")
    a("v_lshl_add_u32 v11, v9, 4, v11")
    a("s_lshl_b32 s37, s36, 6")
    a("v_xor_b32 v11, s37, v11")
    a("v_mul_u32_u24 v12, 1280, v7")
    a("s_mul_i32 s37, s20, %d" % (8 * 1280))
    a("s_lshl_b32 s49, s25, 7")
    a("s_add_u32 s37, s37, s49")
    a("v_add3_u32 v11, v11, v12, s37")
    a("s_mov_b32 s49, 0")
    a("s_lshl_b32 s50, s20, 11")
    a("s_lshl_b32 s51, s20, 10")
    a("s_mul_i32 s37, s35, 6144")
    a("s_lshl_b32 s52, s34, 10")
    a("s_add_u32 s37, s37, s52")
    a("v_add_u32 v12, s37, v3")
    a("v_add_u32 v13, 0x10000, v12")
    a("v_add_u32 v14, 0x20000, v12")
    a("s_lshl_b32 s52, s34, 12")
    for jj in range(2):
        a("s_lshl_b32 s37, s36, 1")
        a("s_add_u32 s37, s37, %d" % jj)
        a("v_xor_b32 v%d, s37, v6" % (15 + 3 * jj))
        a("v_lshl_add_u32 v%d, v%d, 5, v5" % (15 + 3 * jj, 15 + 3 * jj))
        a("v_add_u32 v%d, s52, v%d" % (15 + 3 * jj, 15 + 3 * jj))
        a("v_add_u32 v%d, 0x10000, v%d" % (16 + 3 * jj, 15 + 3 * jj))
        a("v_add_u32 v%d, 0x20000, v%d" % (17 + 3 * jj, 15 + 3 * jj))
    AC = 64
    FRB = 96
    NS = K2_NS

    def split(off):
        return off >> 16, off & 0xffff

    def read_ops(st):
        p = st % 2
        base = (st % NS) * K2_SLOT
        ops = []
        for jj in range(2):
            for e in range(2):
                h, l = split(base + 12288 + e * 512)
                ops.append("ds_read_b64_tr_b16 %s, v%d offset:%d" % (vr(FRB + 20 * p + 12 + 4 * jj + 2 * e, 2), 15 + 3 * jj + h, l))
        for i in range(3):
            h, l = split(base + i * 2048)
            ops.append("ds_read_b128 %s, v%d offset:%d" % (vr(FRB + 20 * p + 4 * i, 4), 12 + h, l))
        return ops

    def body(loader):
        nd = 3 if loader else 1

        def dma_ops(st):
            base = (st % NS) * K2_SLOT
            srd = 12 if st < 10 else 16
            ops = []
            if st == 10:
                ops.append(["s_mov_b32 s49, 0"])
            ops.append(["s_add_u32 m0, s51, 0x%x" % (base + 12288)])
            ops.append(["buffer_load_dwordx4 v11, %s, s49 offen lds" % sr(srd, 4), "s_add_u32 s49, s49, %d" % (64 * 1280)])
            if loader:
                ops.append(["s_add_u32 m0, s50, 0x%x" % base])
                ops.append(["buffer_load_dwordx4 v10, s[8:11], s48 offen lds"])
                ops.append(["buffer_load_dwordx4 v10, s[8:11], s48 offen offset:1024 lds", "s_add_u32 s48, s48, 2048"])
            return ops
        for st in range(NS):
            for o in dma_ops(st):
                for x in o:
                    a(x)
                if o[0].startswith("s_add_u32 m0"):
                    a("s_nop 0")
        stamp(a, 1)
        a("s_waitcnt vmcnt(%d)" % (nd * (NS - 1)))
        a("s_barrier")
        stamp(a, 2)
        for x in read_ops(0):
            a(x)
        for it in range(K2_NST):
            if it in (10, 20, 30):
                stamp(a, 2 + it // 10)
            p = it % 2
            outstanding_after = min(K2_NST - 1, it + NS - 1) - (it + 1)
            if it + 1 < K2_NST:
                a("s_waitcnt vmcnt(%d) lgkmcnt(0)" % (nd * max(0, outstanding_after)))
            else:
                a("s_waitcnt lgkmcnt(0)")
            a("s_barrier")
            fillers = []
            if it + NS < K2_NST:
                fillers += dma_ops(it + NS)
            rd = read_ops(it + 1) if it + 1 < K2_NST else []
            gaps = [[] for _ in range(6)]
            for q, o in enumerate(fillers):
                gaps[min(q, 5)] += o
            for q, x in enumerate(rd):
                gaps[min(q, 5)].append(x)
            k = 0
            for i in range(3):
                for jj in range(2):
                    acc = AC + 4 * (2 * i + jj)
                    c = "0" if it == 0 else vr(acc, 4)
                    a("v_mfma_f32_16x16x32_bf16 %s, %s, %s, %s" % (vr(acc, 4), vr(FRB + 20 * p + 12 + 4 * jj, 4), vr(FRB + 20 * p + 4 * i, 4), c))
                    for x in gaps[k]:
                        a(x)
                    k += 1
    a("s_cmp_lt_u32 s20, s27")
    a("s_cbranch_scc0 L_k2_nl")
    body(True)
    a("s_branch L_k2_epi")
    a.label("L_k2_nl")
    body(False)
    a.label("L_k2_epi")
    stamp(a, 6)
    a("s_mul_i32 s37, s20, 3072")
    a("v_add_u32 v12, s37, v3")
    a("s_xor_b32 s37, s20, 4")
    a("s_mul_i32 s37, s37, 3072")
    a("v_add_u32 v13, s37, v3")
    a("s_nop 4")
    a("s_cmp_eq_u32 s34, 0")
    a("s_cbranch_scc0 L_k2_x1")
    for kq in range(2):
        for i in range(3):
            a("ds_write_b128 v12, %s offset:%d" % (vr(AC + 4 * (2 * i + 1 - kq), 4), 1024 * i))
        for i in range(3):
            for r in range(4):
                a("v_mov_b32 v%d, v%d" % (FRB + 4 * i + r, AC + 4 * (2 * i + kq) + r))
        if kq == 0:
            a("s_branch L_k2_x2")
            a.label("L_k2_x1")
    a.label("L_k2_x2")
    a("s_waitcnt lgkmcnt(0)")
    a("s_barrier")
    for i in range(3):
        a("ds_read_b128 %s, v13 offset:%d" % (vr(AC + 4 * i, 4), 1024 * i))
    a("s_mov_b32 s37, 0xffff0000")
    a("s_waitcnt vmcnt(0) lgkmcnt(0)")
    for i in range(3):
        for r in range(4):
            a("v_add_f32 v%d, v%d, v%d" % (FRB + 4 * i + r, FRB + 4 * i + r, AC + 4 * i + r))
        for d in range(2):
            a("v_lshlrev_b32 v%d, 16, v%d" % (AC + 4 * i, 28 + 2 * i + d))
            a("v_and_b32 v%d, s37, v%d" % (AC + 4 * i + 1, 28 + 2 * i + d))
            a("v_add_f32 v%d, v%d, v%d" % (FRB + 4 * i + 2 * d, FRB + 4 * i + 2 * d, AC + 4 * i))
            a("v_add_f32 v%d, v%d, v%d" % (FRB + 4 * i + 2 * d + 1, FRB + 4 * i + 2 * d + 1, AC + 4 * i + 1))
        for d in range(2):
            a("v_cvt_pk_bf16_f32 v%d, v%d, v%d" % (28 + 2 * i + d, FRB + 4 * i + 2 * d, FRB + 4 * i + 2 * d + 1))
    a("buffer_store_dwordx2 v[28:29], v26, s[44:47], 0 offen")
    a("buffer_store_dwordx2 v[30:31], v26, s[44:47], s38 offen")
    a("s_sub_u32 s37, s27, s35")
    a("s_cmp_eq_u32 s37, 4")
    a("s_cbranch_scc1 L_k2_fl")
    a("buffer_store_dwordx2 v[32:33], v26, s[44:47], s39 offen")
    a.label("L_k2_fl")
    stamp_flush(a, 20, 32, 33, 2, "L_k2_end")
    a.label("L_k2_end")
    a("s_endpgm")
    return (name, 136, 102 if STAMP else 56)


def main():
    a = Asm()
    hdr = open("cdna_kernels/%s.s.ref" % NAME).read().splitlines()
    for l in hdr:
        if l.startswith(";") and "@launch" not in l:
            a.raw(l)
    a.raw("; @launch kernel=gemm1_kernel grid=(256,1,1) block=(512,1,1) lds=%d" % K1_LDS)
    a.raw("; @launch kernel=gemm2_kernel grid=(250,1,1) block=(512,1,1) lds=%d" % K2_LDS)
    a.raw('.amdgcn_target "amdgcn-amd-amdhsa--gfx950"')
    ks = [gen_k1(a), gen_k2(a)]
    for (n, v, s) in ks:
        kernel_desc(a, n, v, s)
    av = [x for x in sys.argv[1:] if not x.startswith("--")]
    out = av[0] if av else "cdna_kernels/%s.s" % NAME
    open(out, "w").write(a.text())


main()
```

```python
import sys, struct, re

NAME = "parallel_sum__sliding_local_dilated__geglu_ffn__prompt"
ST_OFF = 0
ST_CS = 2048 * 8
ST_BYTES = ST_CS + 5376 * 4
ACT_OFF = 4 << 20
ACT_MT = 74 * 1024
ACT_BYTES = 128 * ACT_MT
BIG = 0x40000000
LOG2E = 1.4426950408889634
STAMP = "--stamp" in sys.argv
STAMP_OFF = 32 << 20
MF = 32 if "--mf32" in sys.argv else 16
ROT = 0 if "--norot" in sys.argv else 1


def f2u(x):
    return struct.unpack("<I", struct.pack("<f", x))[0]


class Asm:
    def __init__(self):
        self.l = []
        self.vm = []

    def __call__(self, s, tag=None):
        m = re.match(r"s_cselect_b32 (s\d+), (\d+|0x[0-9a-f]+), (\d+|0x[0-9a-f]+)$", s)
        if m and int(m.group(2), 0) > 64 and int(m.group(3), 0) > 64:
            self.l.append("    s_mov_b32 %s, %s" % (m.group(1), m.group(3)))
            s = "s_cselect_b32 %s, %s, %s" % (m.group(1), m.group(2), m.group(1))
        self.l.append("    " + s)
        if s.startswith("buffer_") or s.startswith("global_"):
            self.vm.append(tag)

    def vmwait(self, tags):
        idx = [i for i, t in enumerate(self.vm) if t in tags]
        if not idx:
            return None
        return min(63, len(self.vm) - 1 - max(idx))

    def label(self, s):
        self.l.append(s + ":")

    def raw(self, s):
        self.l.append(s)

    def text(self):
        return "\n".join(self.l) + "\n"


def vr(a, n):
    return "v[%d:%d]" % (a, a + n - 1)


def sr(a, n):
    return "s[%d:%d]" % (a, a + n - 1)


def kernel_header(a, name):
    a.raw(".text")
    a.raw(".globl %s" % name)
    a.raw(".p2align 8")
    a.raw(".type %s,@function" % name)
    a.label(name)


def kernel_desc(a, name, vgpr, sgpr):
    a.raw('.section .rodata,"a"')
    a.raw(".p2align 6")
    a.raw(".amdhsa_kernel %s" % name)
    a.raw("  .amdhsa_next_free_vgpr %d" % vgpr)
    a.raw("  .amdhsa_next_free_sgpr %d" % sgpr)
    a.raw("  .amdhsa_accum_offset %d" % ((vgpr + 3) // 4 * 4))
    a.raw("  .amdhsa_group_segment_fixed_size 0")
    a.raw("  .amdhsa_kernarg_size 80")
    a.raw("  .amdhsa_user_sgpr_count 2")
    a.raw("  .amdhsa_user_sgpr_kernarg_segment_ptr 1")
    a.raw("  .amdhsa_system_sgpr_workgroup_id_x 1")
    a.raw(".end_amdhsa_kernel")


def stamp(a, idx):
    if STAMP:
        a("s_memtime %s" % sr(80 + 2 * idx, 2))


def stamp_start(a):
    if STAMP:
        a("s_memtime s[80:81]")
        a("s_memrealtime s[98:99]")


def stamp_flush(a, wave_sgpr, wslo, wshi, kidx, endlabel):
    if not STAMP:
        return
    stamp(a, 7)
    a("s_waitcnt vmcnt(0)")
    a("s_memtime s[96:97]")
    a("s_memrealtime s[100:101]")
    a("s_waitcnt lgkmcnt(0)")
    a("s_cmp_lg_u32 s%d, 0" % wave_sgpr)
    a("s_cbranch_scc1 %s" % endlabel)
    make_srd(a, 76, wslo, wshi, 1 << 20, STAMP_OFF + kidx * 65536)
    a("s_lshl_b32 s3, s2, 6")
    a("v_mov_b32 v0, s3")
    for i in range(9):
        a("v_mov_b32 v1, s%d" % (80 + 2 * i))
        a("buffer_store_dword v1, v0, s[76:79], 0 offen offset:%d" % (4 * i))
    a("v_mov_b32 v1, s98")
    a("buffer_store_dword v1, v0, s[76:79], 0 offen offset:56")
    a("v_mov_b32 v1, s100")
    a("buffer_store_dword v1, v0, s[76:79], 0 offen offset:60")


def make_srd(a, d, lo, hi, nbytes, off=0):
    if off:
        a("s_add_u32 s%d, s%d, 0x%x" % (d, lo, off))
        a("s_addc_u32 s%d, s%d, 0" % (d + 1, hi))
    else:
        a("s_mov_b32 s%d, s%d" % (d, lo))
        a("s_mov_b32 s%d, s%d" % (d + 1, hi))
    a("s_mov_b32 s%d, 0x%x" % (d + 2, nbytes))
    a("s_mov_b32 s%d, 0x00020000" % (d + 3))


ACC = 64
FR0 = 160
PITCH = 168
REG_K = 0
REG_V = 192 * PITCH
REG_Q = 2 * 192 * PITCH
SCR = 148480
CSL = SCR + 2048
P2_B = 98304
K1_LDS = P2_B + 7 * 8192
SX, SW, SACT, SST, SCS, SPF1, SPF2, SDBG = 24, 28, 32, 36, 40, 44, 48, 52
S_W, S_XCD, S_SLOT, S_WM, S_WN, S_FB, S_RB = 56, 57, 58, 59, 60, 61, 62
S_SOA, S_SOB = 64, 65
V_RLO, V_CLO = 30, 31
V_RSO, V_CSO, V_ATO, V_SCW, V_SCR = 32, 33, 34, 35, 29
RL = 36
CL = 44
SEL = 240
CD = 244
TT = 248


def k2_prefetch():
    D = TT + 4
    return [["s_lshl_b32 s66, s2, 3", "s_add_u32 s66, s66, s%d" % S_W, "s_lshl_b32 s66, s66, 10",
             ("buffer_load_dwordx4 %s, v3, %s, s66 offen" % (vr(D, 4), sr(SPF1, 4)), "PF"),
             ("buffer_load_dwordx4 %s, v3, %s, s66 offen" % (vr(D, 4), sr(SPF2, 4)), "PF"),
             "s_add_u32 s66, s66, 0x200000",
             ("buffer_load_dwordx4 %s, v3, %s, s66 offen" % (vr(D, 4), sr(SPF1, 4)), "PF")]]


def tlb_warm(a):
    tab = [(4, 2048 * 1280), (6, 640 * 3840), (12, 640 * 3456), (14, 640 * 3456), (16, 1728 * 1280), (8, 640 * 1280),
           (18, 2048 * 1280)]
    a("s_cmp_eq_u32 s%d, 7" % S_W)
    a("s_cbranch_scc1 L_tw7")
    make_srd(a, SCS, tab[0][0], tab[0][0] + 1, tab[0][1])
    for w in range(1, 7):
        a("s_cmp_eq_u32 s%d, %d" % (S_W, w))
        a("s_cselect_b32 s%d, s%d, s%d" % (SCS, tab[w][0], SCS))
        a("s_cselect_b32 s%d, s%d, s%d" % (SCS + 1, tab[w][0] + 1, SCS + 1))
        a("s_cselect_b32 s%d, %d, s%d" % (SCS + 2, tab[w][1], SCS + 2))
    a("v_lshlrev_b32 v1, 16, v2")
    a("buffer_load_dword v%d, v1, %s, 0 offen" % (TT + 7, sr(SCS, 4)), "TW")
    a("s_branch L_tw_done")
    a.label("L_tw7")
    make_srd(a, SCS, 22, 23, ACT_OFF + ACT_BYTES)
    a("v_mul_u32_u24 v1, 0x28000, v2")
    a("v_add_u32 v1, %d, v1" % (ACT_OFF - 0x28000))
    a("v_cmp_eq_u32 vcc, 0, v2")
    a("v_mov_b32 v%d, 49152" % (TT + 7))
    a("s_nop 0")
    a("v_cndmask_b32 v1, v1, v%d, vcc" % (TT + 7))
    a.l.append("    buffer_store_dword v%d, v1, %s, 0 offen sc1" % (TT + 7, sr(SCS, 4)))
    a.label("L_tw_done")


def p2_map(a, d):
    a("s_and_b32 s%d, s2, 7" % d)
    a("s_lshr_b32 s%d, s2, 3" % (d + 1))
    a("s_cmp_ge_u32 s%d, 2" % d)
    a("s_cselect_b32 s%d, 30, 31" % (d + 2))
    a("s_cselect_b32 s%d, 30, 99" % (d + 3))
    a("s_cmp_eq_u32 s%d, s%d" % (d + 1, d + 3))
    a("s_cselect_b32 s%d, 1, 0" % (d + 4))
    a("s_min_u32 s%d, s%d, s%d" % (d + 1, d + 1, d + 2))
    a("s_min_u32 s%d, s%d, 2" % (d + 2, d))
    a("s_mul_i32 s%d, s%d, 31" % (d, d))
    a("s_add_u32 s%d, s%d, s%d" % (d, d, d + 2))
    a("s_add_u32 s%d, s%d, s%d" % (d + 1, d, d + 1))
    a("s_mul_i32 s%d, s%d, 205" % (d, d + 1))
    a("s_lshr_b32 s%d, s%d, 11" % (d, d))
    a("s_mul_i32 s%d, s%d, 10" % (d + 2, d))
    a("s_sub_u32 s%d, s%d, s%d" % (d + 1, d + 1, d + 2))
    a("s_mul_i32 s%d, s%d, 6" % (d + 2, d))
    a("s_mul_i32 s%d, s%d, 5" % (d + 3, d))
    a("s_add_u32 s%d, s%d, 3" % (d + 3, d + 3))
    a("s_cmp_lt_u32 s%d, 3" % d)
    a("s_cselect_b32 s%d, s%d, s%d" % (d + 2, d + 2, d + 3))
    a("s_cselect_b32 s%d, 6, 5" % (d + 3))


P2V = 20


def p2_early(a):
    p2_map(a, 64)
    a("v_bfe_u32 v17, v2, 1, 2")
    a("v_bfe_u32 v18, v2, 4, 1")
    a("v_xor_b32 v17, v17, v18")
    a("v_and_b32 v18, 1, v2")
    a("v_lshlrev_b32 v17, 5, v17")
    a("v_lshl_add_u32 v17, v18, 4, v17")
    a("s_and_b32 s3, s%d, 1" % S_W)
    a("s_lshl_b32 s3, s3, 6")
    a("v_xor_b32 v17, s3, v17")
    a("v_lshrrev_b32 v18, 3, v2")
    a("v_mul_u32_u24 v18, 1280, v18")
    a("s_mul_i32 s3, s%d, %d" % (S_W, 8 * 1280))
    a("s_lshl_b32 s64, s65, 7")
    a("s_add_u32 s3, s3, s64")
    a("v_add3_u32 v%d, v17, v18, s3" % P2V)
    a("s_lshl_b32 s3, s%d, 10" % S_W)
    a("s_mov_b32 s64, 0")
    for st in range(6):
        a("s_add_u32 m0, s3, 0x%x" % (P2_B + st * 8192))
        a("s_nop 0")
        a("buffer_load_dwordx4 v%d, %s, s64 offen lds" % (P2V, sr(SPF1, 4)))
        a("s_add_u32 s64, s64, %d" % (64 * 1280))


def p1_done(a, cnt_sgpr_expr):
    a("s_waitcnt vmcnt(0)")
    a("s_barrier")
    for x in cnt_sgpr_expr:
        a(x)
    a("v_mov_b32 v1, 0x%x" % BIG)
    a("v_mov_b32 v5, s3")
    a("v_cmp_eq_u32 vcc, 0, v0")
    a("v_mov_b32 v6, 1")
    a("s_nop 0")
    a("v_cndmask_b32 v1, v1, v5, vcc")
    a("buffer_atomic_add v6, v1, %s, 0 offen" % sr(SDBG, 4))
    a("s_branch L_phase2")


def stats_setup(a):
    a("s_lshl_b32 s66, s2, 3")
    a("s_add_u32 s66, s66, s%d" % S_W)
    a("s_mul_i32 s67, s66, 1280")
    a("v_mov_b32 v9, 0x%x" % BIG)
    a("v_add_u32 v1, s67, v3")
    a("v_cmp_gt_u32 vcc, 40, v2")
    a("s_lshl_b32 s67, s66, 3")
    a("v_mov_b32 v5, s67")
    a("v_cndmask_b32 v%d, v9, v1, vcc" % V_RLO)
    a("v_cmp_eq_u32 vcc, 0, v2")
    a("s_cmp_ge_u32 s%d, 6" % S_SLOT)
    a("s_cselect_b32 s68, 2, 1")
    a("v_cndmask_b32 v%d, v9, v5, vcc" % V_RSO)
    a("s_cselect_b32 s67, 6, 0")
    a("s_sub_u32 s66, s%d, s67" % S_SLOT)
    a("s_mul_i32 s69, s%d, 6" % S_XCD)
    a("s_add_u32 s69, s69, s66")
    a("s_sub_u32 s66, s%d, 12" % S_SLOT)
    a("s_lshl_b32 s66, s66, 3")
    a("s_add_u32 s66, s66, s%d" % S_XCD)
    a("s_mov_b32 s73, 0")
    a("s_cmp_ge_u32 s66, 60")
    a("s_cselect_b32 s73, 1, s73")
    a("s_cselect_b32 s75, 12, 0")
    a("s_sub_u32 s74, s66, s75")
    a("s_cmp_ge_u32 s66, 66")
    a("s_cselect_b32 s73, 2, s73")
    a("s_cselect_b32 s75, 6, 0")
    a("s_sub_u32 s74, s74, s75")
    a("s_cmp_ge_u32 s%d, 12" % S_SLOT)
    a("s_cselect_b32 s68, s73, s68")
    a("s_cselect_b32 s69, s74, s69")
    a("s_cmp_ge_u32 s%d, 21" % S_SLOT)
    a("s_cselect_b32 s71, 1, 0")
    a("s_cmp_eq_u32 s68, 1")
    a("s_cselect_b32 s%d, s12, s14" % SCS)
    a("s_cselect_b32 s%d, s13, s15" % (SCS + 1))
    a("s_cselect_b32 s72, 1920, 3648")
    a("s_cmp_eq_u32 s68, 0")
    a("s_cselect_b32 s%d, s6, s%d" % (SCS, SCS))
    a("s_cselect_b32 s%d, s7, s%d" % (SCS + 1, SCS + 1))
    a("s_cselect_b32 s72, 0, s72")
    a("s_cselect_b32 s73, 3840, 3456")
    a("s_mul_i32 s%d, s73, 640" % (SCS + 2))
    a("s_mov_b32 s%d, 0x00020000" % (SCS + 3))
    a("v_lshrrev_b32 v1, 4, v2")
    a("v_bfe_u32 v5, v2, 2, 2")
    a("v_lshl_add_u32 v1, v1, 2, v5")
    a("s_lshl_b32 s75, s%d, 4" % S_W)
    a("v_add_u32 v1, s75, v1")
    a("v_mul_lo_u32 v1, v1, s73")
    a("v_and_b32 v5, 3, v2")
    a("v_lshl_add_u32 v1, v5, 4, v1")
    a("s_lshl_b32 s74, s69, 6")
    a("s_cmp_eq_u32 s71, 1")
    a("s_cselect_b32 s74, 0x%x, s74" % BIG)
    a("v_add_u32 v%d, s74, v1" % V_CLO)
    a("s_lshl_b32 s77, s73, 7")
    a("s_lshl_b32 s75, s69, 5")
    a("s_add_u32 s74, s72, s75")
    a("s_lshl_b32 s74, s74, 2")
    a("s_add_u32 s74, s74, %d" % ST_CS)
    a("s_or_b32 s75, s71, s%d" % S_W)
    a("s_cmp_eq_u32 s75, 0")
    a("s_cselect_b32 s74, s74, 0x%x" % BIG)
    a("v_lshl_add_u32 v1, v2, 2, s74")
    a("v_cmp_gt_u32 vcc, 32, v2")
    a("v_and_b32 v5, 15, v2")
    a("v_lshlrev_b32 v6, 4, v5")
    a("v_cndmask_b32 v%d, v9, v1, vcc" % V_CSO)
    a("v_cmp_gt_u32 vcc, 8, v5")
    a("s_lshl_b32 s74, s%d, 7" % S_W)
    a("s_add_u32 s74, s74, %d" % SCR)
    a("v_add_u32 v7, s74, v6")
    a("v_add_u32 v6, %d, v6" % (SCR + 1024))
    a("v_cndmask_b32 v%d, v6, v7, vcc" % V_SCW)
    for d in range(4):
        a("v_cmp_eq_u32 vcc, %d, v5" % (2 * d))
        a("v_mov_b32 v6, 0x3f80")
        a("v_cmp_eq_u32 s[68:69], %d, v5" % (2 * d + 1))
        a("v_cndmask_b32 v%d, 0, v6, vcc" % (SEL + d))
        a("v_mov_b32 v6, 0x3f800000")
        a("v_cndmask_b32 v%d, v%d, v6, s[68:69]" % (SEL + d, SEL + d))
    a("v_and_b32 v5, 7, v2")
    a("v_bfe_u32 v6, v2, 3, 2")
    a("v_lshlrev_b32 v6, 2, v6")
    a("v_lshl_add_u32 v5, v5, 4, v6")
    a("v_cmp_eq_u32 vcc, 0, v0")
    a("v_add_u32 v%d, %d, v5" % (V_SCR, SCR))
    a("s_lshl_b32 s76, s77, 1")
    a("v_cndmask_b32 v%d, v9, 0, vcc" % V_ATO)
    a("s_add_u32 s75, s76, s77")
    a("s_lshl_b32 s74, s77, 2")


def stats_loads():
    o = [("buffer_load_dwordx4 %s, v%d, %s, 0 offen" % (vr(RL, 4), V_RLO, sr(SX, 4)), "SL"),
         ("buffer_load_dwordx4 %s, v%d, %s, 0 offen offset:640" % (vr(RL + 4, 4), V_RLO, sr(SX, 4)), "SL")]
    for i in (1, 2, 0, 3, 4):
        so = ["0", "s77", "s76", "s75", "s74"][i]
        o.append(("buffer_load_dwordx4 %s, v%d, %s, %s offen" % (vr(CL + 4 * i, 4), V_CLO, sr(SCS, 4), so), "SL"))
    return o


def xreduce(regs, tmps, op="v_add_f32", swaps=("v_permlane16_swap_b32", "v_permlane32_swap_b32")):
    o = []
    for swp in swaps:
        for v, t in zip(regs, tmps):
            o.append("v_mov_b32 v%d, v%d" % (t, v))
        o.append("s_nop 1")
        for v, t in zip(regs, tmps):
            o.append("%s v%d, v%d" % (swp, v, t))
        o.append("s_nop 1")
        for v, t in zip(regs, tmps):
            o.append("%s v%d, v%d, v%d" % (op, v, v, t))
    return o


def stats_segA():
    o = []
    T = TT
    for i in range(5):
        o.append("v_mfma_f32_16x16x32_bf16 %s, %s, %s, %s" % (vr(CD, 4), vr(CL + 4 * i, 4), vr(SEL, 4), "0" if i == 0 else vr(CD, 4)))
    o.append("v_mov_b32 v%d, 0x3f803f80" % (T + 4))
    for d in range(8):
        c = "0" if d < 2 else "v%d" % (T + d % 2)
        o.append("v_dot2_f32_bf16 v%d, v%d, v%d, %s" % (T + d % 2, RL + d, T + 4, c))
        c = "0" if d < 2 else "v%d" % (T + 2 + d % 2)
        o.append("v_dot2_f32_bf16 v%d, v%d, v%d, %s" % (T + 2 + d % 2, RL + d, RL + d, c))
    o.append("s_nop 2")
    o.append("v_add_f32 v%d, v%d, v%d" % (T, T, T + 1))
    o.append("v_add_f32 v%d, v%d, v%d" % (T + 2, T + 2, T + 3))
    for sh in (8, 4, 2, 1):
        o.append("s_nop 1")
        for v in (T, T + 2):
            o.append("v_add_f32_dpp v%d, v%d, v%d row_ror:%d row_mask:0xf bank_mask:0xf" % (v, v, v, sh))
    o += xreduce([T, T + 2, CD, CD + 1, CD + 2, CD + 3], [T + 1, T + 3, CL, CL + 1, CL + 2, CL + 3])
    o.append("ds_write_b128 v%d, %s" % (V_SCW, vr(CD, 4)))
    o.append("v_mul_f32 v%d, 0x%x, v%d" % (T, f2u(1.0 / 640.0), T))
    o.append("v_mul_f32 v%d, 0x%x, v%d" % (T + 2, f2u(1.0 / 640.0), T + 2))
    o.append("v_fma_f32 v%d, -v%d, v%d, v%d" % (T + 2, T, T, T + 2))
    o.append("v_max_f32 v%d, 0, v%d" % (T + 2, T + 2))
    o.append("v_cvt_pk_bf16_f32 v%d, v%d, v%d" % (T + 1, T, T + 2))
    o.append("v_lshlrev_b32 v%d, 16, v%d" % (T + 4, T + 1))
    o.append("v_and_b32 v%d, 0xffff0000, v%d" % (T + 5, T + 1))
    o.append("v_add_f32 v%d, 0x%x, v%d" % (T + 5, f2u(1e-5), T + 5))
    o.append("v_cvt_pk_bf16_f32 v%d, v%d, v%d" % (T + 5, T + 5, T + 5))
    o.append("v_lshlrev_b32 v%d, 16, v%d" % (T + 5, T + 5))
    o.append("v_sqrt_f32 v%d, v%d" % (T + 5, T + 5))
    o.append("s_nop 0")
    o.append("v_cvt_pk_bf16_f32 v%d, v%d, v%d" % (T + 5, T + 5, T + 5))
    o.append("v_lshlrev_b32 v%d, 16, v%d" % (T + 5, T + 5))
    o.append(("buffer_store_dwordx2 %s, v%d, %s, 0 offen sc1" % (vr(T + 4, 2), V_RSO, sr(SST, 4)), "ST"))
    return o


def stats_segB():
    return ["ds_read_b32 v%d, v%d offset:%d" % (CL + w, V_SCR, 128 * w) for w in range(8)]


def stats_segC():
    o = []
    for (x, y) in ((0, 1), (2, 3), (4, 5), (6, 7), (0, 2), (4, 6), (0, 4)):
        o.append("v_add_f32 v%d, v%d, v%d" % (CL + x, CL + x, CL + y))
    o.append(("buffer_store_dword v%d, v%d, %s, 0 offen sc1" % (CL, V_CSO, sr(SST, 4)), "ST"))
    return o


def stats_signal():
    return ["v_mov_b32 v%d, 1" % TT,
            ("buffer_atomic_add v%d, v%d, %s, 0 offen" % (TT, V_ATO, sr(SDBG, 4)), "AT")]


def emit(a, x):
    if isinstance(x, list):
        for y in x:
            emit(a, y)
    elif isinstance(x, tuple):
        a(x[0], x[1])
    else:
        a(x)


IT_SIG, IT_POLL, IT_CHK = 11, 15, 17


def k1_mainloop(a, P):
    nI, nJ = P["nI"], P["nJ"]
    NST = 20
    nA, nB = 2 * nI, 2 * nJ

    def fx(p, I, hh):
        return FR0 + 40 * p + 8 * I + 4 * hh

    def fw(p, j, hh):
        return FR0 + 40 * p + 8 * nI + 8 * j + 4 * hh

    def read_ops(stage):
        p = stage % 2
        ops = []
        if MF == 32:
            for hh in range(2):
                for j in range(nJ):
                    for e in range(2):
                        v, imm = P["b_addr"](stage % 4, j)
                        ops.append("ds_read_b64_tr_b16 %s, v%d offset:%d" % (vr(fw(p, j, hh) + 2 * e, 2), v, imm + hh * 2048 + e * 512))
                for I in range(nI):
                    v, imm = P["a_addr"]((stage // 2) % 3, 2 * (stage % 2) + hh, I)
                    ops.append("ds_read_b128 %s, v%d offset:%d" % (vr(fx(p, I, hh), 4), v, imm))
        else:
            for j in range(nB):
                for e in range(2):
                    v, imm = P["b_addr"](stage % 4, j)
                    ops.append("ds_read_b64_tr_b16 %s, v%d offset:%d" % (vr(FR0 + 40 * p + 4 * nA + 4 * j + 2 * e, 2), v, imm + e * 512))
            for i in range(nA):
                v, imm = P["a_addr"]((stage // 2) % 3, stage % 2, i)
                ops.append("ds_read_b128 %s, v%d offset:%d" % (vr(FR0 + 40 * p + 4 * i, 4), v, imm))
        return ops

    def mfmas(it):
        p = it % 2
        o = []
        if MF == 32:
            for hh in range(2):
                for I in range(nI):
                    for j in range(nJ):
                        acc = ACC + 16 * (I * nJ + j)
                        c = "0" if (it == 0 and hh == 0) else vr(acc, 16)
                        o.append("v_mfma_f32_32x32x16_bf16 %s, %s, %s, %s" % (vr(acc, 16), vr(fw(p, j, hh), 4), vr(fx(p, I, hh), 4), c))
        else:
            for i in range(nA):
                for j in range(nB):
                    acc = ACC + 4 * (i * nB + j)
                    c = "0" if it == 0 else vr(acc, 4)
                    o.append("v_mfma_f32_16x16x32_bf16 %s, %s, %s, %s" % (vr(acc, 4), vr(FR0 + 40 * p + 4 * nA + 4 * j, 4), vr(FR0 + 40 * p + 4 * i, 4), c))
        return o

    def pro(ops):
        for (m, d, tag, adv) in ops:
            a(m)
            a("s_nop 0")
            a(d, tag)
            for x in adv:
                a(x)
    B, A = P["bdma"], P["adma"]
    pro(B(0))
    pro(sum(A(0), []))
    pro(B(1))
    pro(sum(A(1), []))
    stats_setup(a)
    for x in stats_loads()[:3]:
        emit(a, x)
    stamp(a, 2)
    a("s_waitcnt vmcnt(%d)" % a.vmwait({"B0", "A0"}))
    a("s_barrier")
    stamp(a, 3)
    for x in read_ops(0):
        a(x)
    for it in range(NST):
        if it in (2, 5):
            stamp(a, 4 + it // 5)
        p = it % 2
        tags = set()
        if it + 1 < NST:
            tags |= {"B%d" % (it + 1), "A%d" % ((it + 1) // 2)}
        tags |= P["toptags"].get(it, set())
        n = a.vmwait(tags)
        if n is not None:
            a("s_waitcnt vmcnt(%d) lgkmcnt(0)" % n)
        else:
            a("s_waitcnt lgkmcnt(0)")
        if it == IT_CHK:
            nm = P["name"]
            a("s_mov_b32 s66, 0")
            a.label("L_poll_%s" % nm)
            a("v_readfirstlane_b32 s67, v%d" % TT)
            a("s_add_u32 s66, s66, 1")
            a("s_cmp_ge_u32 s67, 256")
            a("s_cbranch_scc1 L_pollok_%s" % nm)
            a("s_cmp_ge_u32 s66, 0x40000")
            a("s_cbranch_scc1 L_pollok_%s" % nm)
            a("s_sleep 2")
            a.l.append("    buffer_load_dword v%d, v%d, %s, 0 offen sc1" % (TT, TT + 1, sr(SDBG, 4)))
            a("s_waitcnt vmcnt(0)")
            a("s_branch L_poll_%s" % nm)
            a.label("L_pollok_%s" % nm)
        a("s_barrier")
        dm = []
        if it == 0:
            dm = B(2) + B(3) + A(2)[0]
        elif it == 1:
            dm = B(4) + B(5) + A(2)[1]
        elif it == 2:
            dm = B(6) + A(3)[0] + A(3)[1]
        else:
            if it + 4 < NST:
                dm += B(it + 4)
            S = (it - 1) // 2 + 3
            if S < 10:
                dm += A(S)[(it - 1) % 2]
        rd = read_ops(it + 1) if it + 1 < NST else []
        stream = []
        for (m, d, tag, adv) in dm:
            mid = rd.pop(0) if rd else "s_nop 0"
            stream.append([m, mid, (d, tag)] + adv)
        stream += [[x] for x in rd]
        stream += [[x] for x in P["bg"].get(it, [])]
        mf = mfmas(it)
        ngap = len(mf)
        for gi, x in enumerate(mf):
            a(x)
            k = (len(stream) + (ngap - gi) - 1) // (ngap - gi) if MF == 32 else min(len(stream), max(1, (len(stream) + (ngap - gi) - 1) // (ngap - gi)))
            for _ in range(k):
                if stream:
                    emit(a, stream.pop(0))
        for x in stream:
            emit(a, x)
    stamp(a, 6)


def adv(r, inc, tot):
    return ["s_add_u32 s%d, s%d, %d" % (r, r, inc), "s_cmp_ge_u32 s%d, %d" % (r, tot), "s_cselect_b32 s%d, 0, s%d" % (r, r)]


def split_bg(lst, its):
    n = (len(lst) + len(its) - 1) // len(its)
    return {it: lst[i * n:(i + 1) * n] for i, it in enumerate(its)}


def std_bg(pre, tail17, tail19):
    sl = stats_loads()
    bg = {0: sl[3:5], 1: sl[5:6], 2: sl[6:7]}
    bg.update(split_bg(stats_segA(), [5, 6]))
    bg[9] = k2_prefetch()
    bg[7] = stats_segB()
    bg[8] = stats_segC()
    bg[IT_SIG] = stats_signal()
    bg.update(split_bg(pre, [12, 13, 14]))
    bg[IT_POLL] = [("buffer_load_dword v%d, v%d, %s, 0 offen sc1" % (TT, TT + 1, sr(SDBG, 4)), "POLL")]
    bg[IT_CHK] = tail17
    bg[19] = tail19
    top = {5: {"SL"}, 12: {"PF"}, IT_SIG: {"ST"}, IT_CHK: {"POLL"}, 19: {"TL"}}
    return bg, top


def gen_k1(a):
    name = "fused_kernel"
    kernel_header(a, name)
    a("s_cmp_ge_u32 s2, 256")
    a("s_cbranch_scc1 L_k1_end")
    stamp_start(a)
    a("s_load_dwordx4 s[4:7], s[0:1], 0")
    a("s_load_dwordx2 s[8:9], s[0:1], 16")
    a("s_load_dwordx4 s[12:15], s[0:1], 32")
    a("s_load_dwordx4 s[16:19], s[0:1], 48")
    a("s_load_dwordx4 s[20:23], s[0:1], 64")
    a("v_lshrrev_b32 v1, 6, v0")
    a("v_and_b32 v2, 63, v0")
    a("v_readfirstlane_b32 s%d, v1" % S_W)
    a("s_and_b32 s%d, s2, 7" % S_XCD)
    a("s_lshr_b32 s%d, s2, 3" % S_SLOT)
    a("v_lshlrev_b32 v3, 4, v2")
    a("v_lshrrev_b32 v4, %d, v2" % (5 if MF == 32 else 4))
    a("v_lshlrev_b32 v5, 10, v4")
    a("v_bfe_u32 v6, v2, 2, 2")
    a("v_lshl_add_u32 v5, v6, 7, v5")
    a("v_and_b32 v6, 3, v2")
    a("v_lshl_add_u32 v5, v6, 3, v5")
    if MF == 32:
        a("v_bfe_u32 v6, v2, 3, 1")
        a("v_lshl_add_u32 v6, v4, 1, v6")
    else:
        a("v_bfe_u32 v6, v2, 3, 2")
    a("v_bfe_u32 v26, v2, 4, 1")
    a("v_lshrrev_b32 v7, 3, v2")
    a("v_bfe_u32 v8, v2, 1, 2")
    a("v_xor_b32 v8, v8, v26")
    a("v_and_b32 v9, 1, v2")
    a("v_and_b32 v10, 7, v2")
    a("v_lshrrev_b32 v11, 4, v2")
    a("v_xor_b32 v10, v10, v11")
    a("v_lshlrev_b32 v10, 4, v10")
    a("v_mul_u32_u24 v11, 1280, v7")
    a("v_add_u32 v10, v10, v11")
    a("v_bfe_u32 v15, v2, 1, 3")
    a("v_xor_b32 v15, v15, v4")
    a("v_lshlrev_b32 v15, 4, v15")
    a("v_and_b32 v16, 7, v2")
    a("v_lshl_add_u32 v15, v16, 7, v15")
    a("v_bfe_u32 v16, v2, 3, %d" % (2 if MF == 32 else 1))
    a("v_lshl_add_u32 v15, v16, 10, v15")
    a("s_lshr_b32 s%d, s%d, 2" % (S_WM, S_W))
    a("s_and_b32 s%d, s%d, 3" % (S_WN, S_W))
    a("s_waitcnt lgkmcnt(0)")
    stamp(a, 1)
    make_srd(a, SX, 4, 5, 2048 * 1280)
    make_srd(a, SACT, 22, 23, ACT_BYTES, ACT_OFF)
    make_srd(a, SST, 22, 23, ST_BYTES, ST_OFF)
    make_srd(a, SPF1, 16, 17, 1728 * 1280)
    make_srd(a, SPF2, 8, 9, 640 * 1280)
    make_srd(a, SDBG, 20, 21, 256)
    tlb_warm(a)
    a("s_cmp_lt_u32 s%d, 18" % S_SLOT)
    a("s_cbranch_scc0 L_k1_att")

    a.vm = ["TW"]
    a("s_lshl_b32 s66, s%d, 1" % S_XCD)
    a("s_add_u32 s66, s66, s%d" % S_SLOT)
    a("s_sub_u32 s66, s66, 16")
    a("s_cmp_lt_u32 s%d, 16" % S_SLOT)
    a("s_cselect_b32 s%d, s%d, 8" % (S_FB, S_XCD))
    a("s_cselect_b32 s%d, s%d, s66" % (S_RB, S_SLOT))
    a("s_cmp_lt_u32 s%d, 4" % S_W)
    a("s_cselect_b32 s%d, s12, s14" % SW)
    a("s_cselect_b32 s%d, s13, s15" % (SW + 1))
    a("s_mov_b32 s%d, %d" % (SW + 2, 640 * 3456))
    a("s_mov_b32 s%d, 0x00020000" % (SW + 3))
    a("s_add_u32 s66, s%d, s%d" % (S_RB, S_FB))
    for _ in range(2):
        a("s_cmp_ge_u32 s66, 10")
        a("s_cselect_b32 s67, 10, 0")
        a("s_sub_u32 s66, s66, s67")
    if not ROT:
        a("s_mov_b32 s66, 0")
    a("s_lshl_b32 s%d, s66, 7" % S_SOA)
    a("s_mul_i32 s%d, s66, 221184" % S_SOB)
    a("s_mul_i32 s70, s%d, 384" % S_FB)
    a("v_mul_u32_u24 v16, 3456, v7")
    a("v_add_u32 v16, s70, v16")
    a("v_lshlrev_b32 v1, 5, v8")
    a("v_lshl_add_u32 v1, v9, 4, v1")
    for j in range(3):
        a("s_mul_i32 s66, s%d, 3" % S_W)
        a("s_add_u32 s66, s66, %d" % j)
        a("s_and_b32 s67, s66, 3")
        a("s_lshr_b32 s68, s66, 2")
        a("s_cmp_ge_u32 s68, 3")
        a("s_cselect_b32 s69, 3, 0")
        a("s_sub_u32 s68, s68, s69")
        if MF == 32:
            a("s_xor_b32 s69, s67, s%d" % S_WM)
            a("s_and_b32 s69, s69, 1")
        else:
            a("s_and_b32 s69, s67, 1")
        a("s_lshl_b32 s69, s69, 6")
        a("v_xor_b32 v%d, s69, v1" % (12 + j))
        a("s_mul_i32 s67, s67, %d" % (8 * 3456))
        a("s_lshl_b32 s68, s68, 7")
        a("s_add_u32 s67, s67, s68")
        a("v_add3_u32 v%d, v%d, v16, s67" % (12 + j, 12 + j))
    a("s_lshl_b32 s66, s%d, 3" % S_RB)
    a("s_add_u32 s66, s66, s%d" % S_W)
    a("s_mul_i32 s66, s66, %d" % (16 * 1280))
    a("v_xor_b32 v11, 64, v10")
    a("v_add_u32 v10, s66, v10")
    a("s_add_u32 s66, s66, %d" % (8 * 1280))
    a("v_add_u32 v11, s66, v11")
    a("s_mul_i32 s3, s%d, 3072" % S_W)
    a("s_lshl_b32 s79, s%d, 11" % S_W)
    ARING = 98304
    a("s_lshl_b32 s66, s%d, 13" % S_WM)
    a("s_add_u32 s66, s66, %d" % ARING)
    for c in ((3, 2, 1, 0) if MF == 32 else (1, 0)):
        if c:
            a("v_xor_b32 v%d, %d, v15" % (15 + c, (32 if MF == 32 else 64) * c))
        a("v_add_u32 v%d, s66, v%d" % (15 + c, 15 + c))
    if MF == 32:
        a("v_lshlrev_b32 v1, 1, v26")
        a("v_xor_b32 v6, v6, v1")
        a("v_mul_u32_u24 v1, 12288, v26")
        a("v_add_u32 v5, v5, v1")
    for j in range(3):
        a("s_mul_i32 s66, s%d, 3" % S_WN)
        a("s_add_u32 s66, s66, %d" % j)
        a("s_and_b32 s67, s66, 3")
        a("s_lshr_b32 s66, s66, 2")
        a("s_lshl_b32 s66, s66, 12")
        a("v_xor_b32 v%d, s67, v6" % (19 + j))
        a("v_lshl_add_u32 v%d, v%d, 5, v5" % (19 + j, 19 + j))
        a("v_add_u32 v%d, s66, v%d" % (19 + j, 19 + j))
        a("v_add_u32 v%d, 0x%x, v%d" % (22 + j, 2 * 24576, 19 + j))

    def bdma(st):
        o = []
        for j in range(3):
            o.append(("s_add_u32 m0, s3, 0x%x" % ((st % 4) * 24576 + 1024 * j),
                      "buffer_load_dwordx4 v%d, %s, s%d offen lds" % (12 + j, sr(SW, 4), S_SOB), "B%d" % st,
                      adv(S_SOB, 32 * 3456, 640 * 3456) if j == 2 else []))
        return o

    def adma(S):
        return [[("s_add_u32 m0, s79, 0x%x" % (ARING + (S % 3) * 16384 + 1024 * h),
                  "buffer_load_dwordx4 v%d, %s, s%d offen lds" % (10 + h, sr(SX, 4), S_SOA), "A%d" % S,
                  adv(S_SOA, 128, 1280) if h == 1 else [])] for h in range(2)]

    pre = ["v_and_b32 v25, 1, v4", "s_mov_b32 s66, %d" % ACT_MT, "v_mul_lo_u32 v25, v25, s66",
           "v_lshrrev_b32 v1, 1, v4", "v_lshl_add_u32 v25, v1, 8, v25", "v_and_b32 v1, 15, v2", "v_lshl_add_u32 v25, v1, 4, v25",
           "s_mul_i32 s66, s%d, %d" % (S_WM, 4 * ACT_MT), "s_mul_i32 s67, s%d, %d" % (S_WN, 6 * 256),
           "s_add_u32 s66, s66, s67", "v_add_u32 v25, s66, v25",
           "s_mul_i32 s70, s%d, %d" % (S_RB, 8 * ACT_MT), "s_mul_i32 s67, s%d, %d" % (S_FB, 24 * 256),
           "s_add_u32 s70, s70, s67", "s_add_u32 s70, s70, %d" % (80 * 256), "s_add_u32 s71, s70, %d" % (2 * ACT_MT),
           "s_lshl_b32 s66, s%d, 1" % S_RB, "s_add_u32 s66, s66, s%d" % S_WM, "s_lshl_b32 s66, s66, 9",
           "v_lshl_add_u32 v26, v1, 3, s66",
           "v_cmp_gt_u32 vcc, 48, v2", "v_mov_b32 v1, 0x%x" % BIG, "s_nop 0", "v_cndmask_b32 v27, v1, v3, vcc",
           "s_mul_i32 s72, s%d, 768" % S_FB, "s_add_u32 s72, s72, %d" % (ST_CS + 1920 * 4),
           "s_add_u32 s73, s72, %d" % (1728 * 4),
           "s_mul_i32 s66, s%d, 192" % S_WN, "s_add_u32 s66, s66, %d" % CSL, "v_lshl_add_u32 v28, v4, 4, s66",
           "v_mov_b32 v%d, 0" % (TT + 1)]
    RS = 36
    CS0 = 44
    t17 = [("buffer_load_dwordx2 %s, v26, %s, 0 offen offset:%d sc1" % (vr(RS + 2 * i, 2), sr(SST, 4), 128 * i), "TL") for i in range(4)]
    for mat in range(2):
        t17.append(["s_mov_b32 m0, %d" % (CSL + 1024 * mat), "s_nop 0",
                    ("buffer_load_dwordx4 v27, %s, s%d offen sc1 lds" % (sr(SST, 4), 72 + mat), "TL")])

    def csreg(t):
        return CS0 + 4 * t if t < 5 else 240
    t19 = ["ds_read_b128 %s, v28 offset:%d" % (vr(csreg(t), 4), (t // 3) * 1024 + (t % 3) * 64) for t in range(6)]
    bg, top = std_bg(pre, t17, t19)
    P = dict(nI=2, nJ=3, name="ffn", bdma=bdma, adma=adma, bg=bg, toptags=top,
             a_addr=lambda S3, q, i: (15 + q, S3 * 16384 + i * 2048),
             b_addr=lambda slot, j: (19 + 3 * (slot // 2) + j % 3, (slot % 2) * 24576 + (j // 3) * 12288))
    k1_mainloop(a, P)
    p2_early(a)

    c1 = -2.0 * LOG2E * 0.7978845608028654
    RC = 5
    for i in range(4):
        a("v_rcp_f32 v%d, v%d" % (RC + 3 * i, RS + 2 * i + 1))
    a("s_nop 0")
    for i in range(4):
        a("v_mul_f32 v%d, v%d, v%d" % (RC + 3 * i + 2, RS + 2 * i + 1, RS + 2 * i + 1))
        a("v_mul_f32 v%d, v%d, v%d" % (RC + 3 * i + 1, RC + 3 * i, RC + 3 * i))
        a("v_mul_f32 v%d, 0x%x, v%d" % (RC + 3 * i, f2u(c1), RC + 3 * i))
        a("v_mul_f32 v%d, 0x%x, v%d" % (RC + 3 * i + 1, f2u(0.044715), RC + 3 * i + 1))
        a("v_mul_f32 v%d, v%d, v%d" % (RC + 3 * i + 1, RC + 3 * i + 1, RC + 3 * i))
    a("s_waitcnt lgkmcnt(0)")
    T0 = FR0
    OUT = FR0 + 16
    n = 0
    for ip in (0, 2):
        for j in range(3):
            el = []
            for ii in (ip, ip + 1):
                for r in range(4):
                    el.append((ACC + 4 * (ii * 6 + j) + r, ACC + 4 * (ii * 6 + 3 + j) + r, csreg(j) + r, csreg(3 + j) + r,
                               RS + 2 * ii, RC + 3 * ii, RC + 3 * ii + 1, RC + 3 * ii + 2))
            for q, (x, u, cg, cu, m_, k1_, k3_, s2_) in enumerate(el):
                a("v_fma_f32 v%d, -v%d, v%d, v%d" % (x, m_, cg, x))
            for q, (x, u, cg, cu, m_, k1_, k3_, s2_) in enumerate(el):
                a("v_mul_f32 v%d, v%d, v%d" % (T0 + q, x, x))
            for q, (x, u, cg, cu, m_, k1_, k3_, s2_) in enumerate(el):
                a("v_fma_f32 v%d, v%d, v%d, v%d" % (T0 + q, T0 + q, k3_, k1_))
            for q, (x, u, cg, cu, m_, k1_, k3_, s2_) in enumerate(el):
                a("v_mul_f32 v%d, v%d, v%d" % (T0 + q, x, T0 + q))
            for q, (x, u, cg, cu, m_, k1_, k3_, s2_) in enumerate(el):
                a("v_exp_f32 v%d, v%d" % (T0 + q, T0 + q))
            for q, (x, u, cg, cu, m_, k1_, k3_, s2_) in enumerate(el):
                a("v_fma_f32 v%d, -v%d, v%d, v%d" % (u, m_, cu, u))
            for q, (x, u, cg, cu, m_, k1_, k3_, s2_) in enumerate(el):
                a("v_fma_f32 v%d, v%d, v%d, v%d" % (T0 + q, T0 + q, s2_, s2_))
            for q, (x, u, cg, cu, m_, k1_, k3_, s2_) in enumerate(el):
                a("v_rcp_f32 v%d, v%d" % (T0 + q, T0 + q))
            for q, (x, u, cg, cu, m_, k1_, k3_, s2_) in enumerate(el):
                a("v_mul_f32 v%d, v%d, v%d" % (u, x, u))
            for q, (x, u, cg, cu, m_, k1_, k3_, s2_) in enumerate(el):
                a("v_mul_f32 v%d, v%d, v%d" % (u, u, T0 + q))
            o = OUT + 4 * (n % 3)
            n += 1
            for q in range(4):
                a("v_cvt_pk_bf16_f32 v%d, v%d, v%d" % (o + q, el[2 * q][1], el[2 * q + 1][1]))
            a("s_nop 1")
            a("v_permlane16_swap_b32 v%d, v%d" % (o, o + 2))
            a("v_permlane16_swap_b32 v%d, v%d" % (o + 1, o + 3))
            a("s_nop 1")
            a("buffer_store_dwordx4 %s, v25, %s, s%d offen offset:%d sc1" % (vr(o, 4), sr(SACT, 4), 70 + ip // 2, 512 * j))
    stamp(a, 7)
    p1_done(a, ["s_lshl_b32 s3, s%d, 2" % S_RB, "s_add_u32 s3, s3, 64"])

    a.label("L_k1_att")
    a.vm = ["TW"]
    a("s_cmp_lt_u32 s%d, 31" % S_SLOT)
    a("s_cbranch_scc0 L_k1_extra")
    a("s_sub_u32 s%d, s%d, 18" % (S_RB, S_SLOT))
    make_srd(a, SW, 6, 7, 640 * 3840)
    ARING = 65536
    ASLOT = 22528
    a("s_add_u32 s66, s%d, s%d" % (S_RB, S_XCD))
    for _ in range(2):
        a("s_cmp_ge_u32 s66, 10")
        a("s_cselect_b32 s67, 10, 0")
        a("s_sub_u32 s66, s66, s67")
    if not ROT:
        a("s_mov_b32 s66, 0")
    a("s_lshl_b32 s%d, s66, 7" % S_SOA)
    a("s_mul_i32 s%d, s66, 245760" % S_SOB)
    a("s_mul_i32 s70, s%d, 160" % S_XCD)
    a("v_mul_u32_u24 v16, 3840, v7")
    a("v_add_u32 v16, s70, v16")
    a("s_lshr_b32 s66, s%d, 1" % S_W)
    a("s_lshl_b32 s66, s66, 2")
    a("v_mov_b32 v17, 1120")
    for j in range(2):
        if j:
            a("v_xor_b32 v1, 2, v8")
            a("v_add_u32 v1, s66, v1")
        else:
            a("v_add_u32 v1, s66, v8")
        a("v_min_u32 v1, 14, v1")
        a("v_lshlrev_b32 v%d, 5, v1" % (13 + j))
        a("v_lshl_add_u32 v%d, v9, 4, v%d" % (13 + j, 13 + j))
        a("v_cmp_le_u32 vcc, 5, v1")
        a("v_add_u32 v%d, v%d, v16" % (13 + j, 13 + j))
        a("s_and_b32 s67, s%d, 1" % S_W)
        a("v_cndmask_b32 v18, 0, v17, vcc")
        a("v_cmp_le_u32 vcc, 10, v1")
        a("v_add_u32 v%d, v%d, v18" % (13 + j, 13 + j))
        a("s_lshl_b32 s67, s67, 1")
        a("v_cndmask_b32 v18, 0, v17, vcc")
        a("s_add_u32 s67, s67, %d" % j)
        a("s_mul_i32 s67, s67, %d" % (8 * 3840))
        a("v_add3_u32 v%d, v%d, v18, s67" % (13 + j, 13 + j))
    a("s_and_b32 s66, s%d, 1" % S_W)
    a("s_lshl_b32 s66, s66, 6")
    a("v_xor_b32 v1, s66, v10")
    a("s_mul_i32 s66, s%d, 20" % S_RB)
    a("s_add_u32 s66, s66, s%d" % S_W)
    a("s_sub_u32 s67, s66, 2")
    a("s_mul_i32 s67, s67, %d" % (8 * 1280))
    a("s_cmp_lt_u32 s66, 2")
    a("s_cselect_b32 s68, 0x%x, s67" % BIG)
    a("v_add_u32 v10, s68, v1")
    a("s_add_u32 s67, s67, %d" % (64 * 1280))
    a("v_add_u32 v11, s67, v1")
    a("s_add_u32 s68, s67, %d" % (64 * 1280))
    a("s_cmp_lt_u32 s%d, 6" % S_W)
    a("s_cselect_b32 s68, s68, s67")
    a("s_cselect_b32 s78, 16384, 8192")
    a("v_add_u32 v12, s68, v1")
    a("s_lshl_b32 s79, s%d, 10" % S_W)
    a("s_add_u32 s78, s78, s79")
    a("s_lshl_b32 s3, s%d, 11" % S_W)
    a("s_mul_i32 s66, s%d, %d" % (S_WM, 6 * 2048))
    a("s_add_u32 s66, s66, %d" % ARING)
    for c in ((3, 2, 1, 0) if MF == 32 else (1, 0)):
        if c:
            a("v_xor_b32 v%d, %d, v15" % (15 + c, (32 if MF == 32 else 64) * c))
        a("v_add_u32 v%d, s66, v%d" % (15 + c, 15 + c))
    a("s_lshl_b32 s66, s%d, 12" % S_WN)
    for j in range(4):
        a("v_xor_b32 v%d, %d, v6" % (17 + j, j))
        a("v_lshl_add_u32 v%d, v%d, 5, v5" % (17 + j, 17 + j))
        a("v_add_u32 v%d, s66, v%d" % (17 + j, 17 + j))

    def bdma2(st):
        return [("s_add_u32 m0, s3, 0x%x" % ((st % 4) * 16384 + 1024 * j),
                 "buffer_load_dwordx4 v%d, %s, s%d offen lds" % (13 + j, sr(SW, 4), S_SOB), "B%d" % st,
                 adv(S_SOB, 32 * 3840, 640 * 3840) if j == 1 else []) for j in range(2)]

    def adma2(S):
        b = ARING + (S % 3) * ASLOT
        ld = "buffer_load_dwordx4 v%d, %s, s%d offen lds"
        return [[("s_add_u32 m0, s79, 0x%x" % b, ld % (10, sr(SX, 4), S_SOA), "A%d" % S, []),
                 ("s_add_u32 m0, s79, 0x%x" % (b + 8192), ld % (11, sr(SX, 4), S_SOA), "A%d" % S, [])],
                [("s_add_u32 m0, s78, 0x%x" % b, ld % (12, sr(SX, 4), S_SOA), "A%d" % S,
                  adv(S_SOA, 128, 1280))]]

    pre = ["v_and_b32 v1, 15, v2", "s_mul_i32 s66, s%d, 96" % S_WM, "v_add_u32 v5, s66, v1",
           "v_mul_u32_u24 v5, %d, v5" % PITCH, "v_lshl_add_u32 v5, v4, 3, v5", "v_lshlrev_b32 v6, 4, v4",
           "s_mul_i32 s67, s%d, 160" % S_RB, "s_add_u32 s66, s66, s67", "s_sub_u32 s66, s66, 16", "s_lshl_b32 s66, s66, 3",
           "v_lshl_add_u32 v63, v1, 3, s66"]
    for t in range(4):
        pre += ["s_lshl_b32 s66, s%d, 2" % S_WN, "s_add_u32 s66, s66, %d" % t, "s_min_u32 s66, s66, 14",
                ["s_cmp_ge_u32 s66, 5", "s_cselect_b32 s67, 5, 0", "s_cselect_b32 s68, %d, %d" % (REG_K, REG_Q),
                 "s_cselect_b32 s69, 1024, 0"],
                ["s_cmp_ge_u32 s66, 10", "s_cselect_b32 s67, 10, s67", "s_cselect_b32 s68, %d, s68" % REG_V,
                 "s_cselect_b32 s69, 2048, s69"],
                "s_sub_u32 s66, s66, s67", "s_lshl_b32 s67, s66, 5", "s_add_u32 s67, s67, s68",
                "v_add_u32 v%d, s67, v5" % (21 + t),
                "s_lshl_b32 s66, s66, 6", "s_add_u32 s66, s66, s69", "s_add_u32 s66, s66, %d" % CSL,
                "v_add_u32 v%d, s66, v6" % (52 + t)]
    pre += ["v_and_b32 v1, 15, v2", "v_lshrrev_b32 v26, 4, v2", "v_lshlrev_b32 v6, 2, v26", "v_sub_u32 v6, v1, v6"]
    for T in range(2):
        for r in range(4):
            pre += ["v_add_u32 v7, %d, v6" % (16 - 16 * T - r), "v_alignbit_b32 v7, v7, v7, 1",
                    "v_cmp_ge_u32 %s, 7, v7" % sr(4 + 2 * (4 * T + r), 2)]
    pre += ["s_mul_i32 s66, s%d, %d" % (S_WM, 80 * PITCH), "s_mul_i32 s67, s%d, 40" % S_WN, "s_add_u32 s66, s66, s67",
            "v_mul_u32_u24 v5, %d, v1" % PITCH, "v_add_u32 v5, s66, v5",
            "v_lshlrev_b32 v6, 4, v26", "v_add_u32 v7, 8, v6",
            "v_cmp_gt_u32 s[76:77], 3, v26", "v_cmp_gt_u32 s[74:75], 2, v26", "s_nop 1",
            "v_cndmask_b32 v6, 0, v6, s[76:77]", "v_cndmask_b32 v7, 0, v7, s[74:75]",
            "v_add_u32 v56, v5, v6", "v_add_u32 v57, v5, v7",
            "v_add_u32 v58, %d, v56" % (REG_Q + 16 * PITCH), "v_add_u32 v59, %d, v57" % (REG_Q + 16 * PITCH),
            "v_lshrrev_b32 v60, 2, v2", "v_mul_u32_u24 v60, %d, v60" % PITCH, "v_and_b32 v6, 3, v2",
            "v_lshl_add_u32 v60, v6, 3, v60", "s_add_u32 s66, s66, %d" % REG_V, "v_add_u32 v60, s66, v60",
            "s_mul_i32 s66, s%d, 20" % S_XCD, "s_mul_i32 s67, s%d, 5" % S_WN, "s_add_u32 s66, s66, s67"]
    for Dd in range(2):
        pre += ["v_add_u32 v6, s66, v26"] + (["v_add_u32 v6, 4, v6"] if Dd else []) + \
               ["v_lshrrev_b32 v7, 1, v6", "v_lshlrev_b32 v7, 8, v7", "v_and_b32 v6, 1, v6",
                "v_lshl_add_u32 v7, v6, 3, v7", "v_lshl_add_u32 v%d, v1, 4, v7" % (61 + Dd)]
    pre += ["v_cmp_gt_u32 vcc, 16, v2", "v_mov_b32 v6, 0x%x" % BIG, "s_nop 1", "v_cndmask_b32 v62, v6, v62, vcc",
            "v_cmp_gt_u32 vcc, 20, v2", "s_nop 1", "v_cndmask_b32 v27, v6, v3, vcc",
            "s_mul_i32 s69, s%d, 10" % S_RB, "s_mul_i32 s67, s%d, 5" % S_WM, "s_add_u32 s69, s69, s67",
            "s_mul_i32 s69, s69, %d" % ACT_MT,
            "s_mul_i32 s70, s%d, 320" % S_XCD, "s_add_u32 s70, s70, %d" % ST_CS, "s_add_u32 s71, s70, 2560", "s_add_u32 s72, s70, 5120",
            "v_mov_b32 v%d, 0" % (TT + 1)]
    RS = 36
    t17 = ["v_add_u32 v1, 128, v63",
           ("buffer_load_dwordx2 %s, v63, %s, 0 offen sc1" % (vr(RS, 2), sr(SST, 4)), "TL")]
    for i in range(1, 6):
        t17.append(("buffer_load_dwordx2 %s, v1, %s, 0 offen offset:%d sc1" % (vr(RS + 2 * i, 2), sr(SST, 4), 128 * (i - 1)), "TL"))
    for sec in range(3):
        t17.append(["s_mov_b32 m0, %d" % (CSL + 1024 * sec), "s_nop 0",
                    ("buffer_load_dwordx4 v27, %s, s%d offen sc1 lds" % (sr(SST, 4), 70 + sec), "TL")])

    def csreg2(t):
        return 240 + 4 * t
    t19 = ["ds_read_b128 %s, v%d" % (vr(csreg2(t), 4), 52 + t) for t in range(4)]
    bg, top = std_bg(pre, t17, t19)
    P = dict(nI=3, nJ=2, name="att", bdma=bdma2, adma=adma2, bg=bg, toptags=top,
             a_addr=lambda S3, q, i: (15 + q, S3 * ASLOT + i * 2048),
             b_addr=lambda slot, j: (17 + j, slot * 16384))
    k1_mainloop(a, P)
    FM = [28, 30, 40, 42]
    a("s_or_b32 s66, s%d, s%d" % (S_WM, S_RB))
    a("s_cmp_eq_u32 s66, 0")
    for r in range(4):
        a("s_cselect_b64 %s, 0, %s" % (sr(FM[r], 2), sr(4 + 2 * r, 2)))
    a("s_mov_b32 s63, s69")
    p2_early(a)

    for i in range(6):
        a("v_max_f32 v%d, 0x%x, v%d" % (RS + 2 * i + 1, f2u(1e-3), RS + 2 * i + 1))
    for i in range(6):
        a("v_rcp_f32 v%d, v%d" % (RS + 2 * i + 1, RS + 2 * i + 1))
    a("s_waitcnt lgkmcnt(0)")
    W0 = FR0
    n = 0
    for i in range(6):
        for j in range(4):
            acc = ACC + 4 * (i * 4 + j)
            for r in range(4):
                a("v_fma_f32 v%d, -v%d, v%d, v%d" % (acc + r, RS + 2 * i, csreg2(j) + r, acc + r))
        for j in range(4):
            acc = ACC + 4 * (i * 4 + j)
            for r in range(4):
                a("v_mul_f32 v%d, v%d, v%d" % (acc + r, acc + r, RS + 2 * i + 1))
        for j in range(4):
            acc = ACC + 4 * (i * 4 + j)
            o = W0 + 2 * (n % 8)
            n += 1
            a("v_cvt_pk_bf16_f32 v%d, v%d, v%d" % (o, acc, acc + 1))
            a("v_cvt_pk_bf16_f32 v%d, v%d, v%d" % (o + 1, acc + 2, acc + 3))
            a("ds_write_b64 v%d, %s offset:%d" % (21 + j, vr(o, 2), i * 16 * PITCH))
    a("s_waitcnt lgkmcnt(0)")
    a("s_barrier")
    IB = ACC
    SB = FR0 + 8
    TB = FR0 + 48
    for n in range(5):
        b = IB + 20 * n
        off = n * 16 * PITCH
        a("ds_read_b64 %s, v58 offset:%d" % (vr(b, 2), off))
        a("ds_read_b64 %s, v59 offset:%d" % (vr(b + 2, 2), off))
        for T in range(2):
            a("ds_read_b64 %s, v56 offset:%d" % (vr(b + 4 + 4 * T, 2), off + T * 16 * PITCH))
            a("ds_read_b64 %s, v57 offset:%d" % (vr(b + 6 + 4 * T, 2), off + T * 16 * PITCH))
    for n in range(5):
        b = IB + 20 * n
        off = n * 16 * PITCH
        for Dd in range(2):
            for e in range(2):
                a("ds_read_b64_tr_b16 %s, v60 offset:%d" % (vr(b + 12 + 4 * Dd + 2 * e, 2), off + e * 16 * PITCH + Dd * 32))
    SC = (20 ** -0.5) * LOG2E
    a("v_mov_b32 v5, 0x%x" % f2u(SC))
    a("v_mov_b32 v6, 0x%x" % f2u(-1e9))
    a("s_waitcnt lgkmcnt(15)")
    for n in range(5):
        b = IB + 20 * n
        a("v_cndmask_b32 v%d, 0, v%d, s[76:77]" % (b, b))
        a("v_cndmask_b32 v%d, 0, v%d, s[76:77]" % (b + 1, b + 1))
        a("v_cndmask_b32 v%d, 0, v%d, s[74:75]" % (b + 2, b + 2))
        a("v_cndmask_b32 v%d, 0, v%d, s[74:75]" % (b + 3, b + 3))
    a("s_nop 1")
    for n in range(5):
        b = IB + 20 * n
        for T in range(2):
            a("v_mfma_f32_16x16x32_bf16 %s, %s, %s, 0" % (vr(SB + 8 * n + 4 * T, 4), vr(b + 4 + 4 * T, 4), vr(b, 4)))
    a("s_nop 0")
    for n in range(5):
        s = SB + 8 * n
        for q in range(8):
            a("v_mul_f32 v%d, v5, v%d" % (s + q, s + q))
        for q in range(8):
            m = sr(FM[q], 2) if (n == 0 and q < 4) else sr(4 + 2 * q, 2)
            a("v_cndmask_b32 v%d, v6, v%d, %s" % (s + q, s + q, m))
        t = TB + 2 * n
        a("v_max3_f32 v%d, v%d, v%d, v%d" % (t, s, s + 1, s + 2))
        a("v_max3_f32 v%d, v%d, v%d, v%d" % (t + 1, s + 3, s + 4, s + 5))
        a("v_max3_f32 v%d, v%d, v%d, v%d" % (t, t, s + 6, s + 7))
        a("v_max_f32 v%d, v%d, v%d" % (t, t, t + 1))
    tr = [TB + 2 * n for n in range(5)]
    tt = [TB + 2 * n + 1 for n in range(5)]
    for x in xreduce(tr, tt, "v_max_f32"):
        a(x)
    for n in range(5):
        s = SB + 8 * n
        t = TB + 2 * n
        for q in range(8):
            a("v_sub_f32 v%d, v%d, v%d" % (s + q, s + q, t))
        for q in range(8):
            a("v_exp_f32 v%d, v%d" % (s + q, s + q))
        a("s_nop 0")
        a("v_add_f32 v%d, v%d, v%d" % (t, s, s + 1))
        a("v_add_f32 v%d, v%d, v%d" % (t + 1, s + 2, s + 3))
        a("v_add_f32 v%d, v%d, v%d" % (t, t, s + 4))
        a("v_add_f32 v%d, v%d, v%d" % (t + 1, t + 1, s + 5))
        a("v_add_f32 v%d, v%d, v%d" % (t, t, s + 6))
        a("v_add_f32 v%d, v%d, v%d" % (t + 1, t + 1, s + 7))
        a("v_add_f32 v%d, v%d, v%d" % (t, t, t + 1))
    for x in xreduce(tr, tt, "v_add_f32"):
        a(x)
    for n in range(5):
        t = TB + 2 * n
        a("v_rcp_f32 v%d, v%d" % (t, t))
    a("s_nop 0")
    for n in range(5):
        s = SB + 8 * n
        t = TB + 2 * n
        b = IB + 20 * n
        for q in range(8):
            a("v_mul_f32 v%d, v%d, v%d" % (s + q, s + q, t))
        for q in range(4):
            a("v_cvt_pk_bf16_f32 v%d, v%d, v%d" % (b + q, s + 2 * q, s + 2 * q + 1))
    a("s_waitcnt lgkmcnt(0)")
    a("s_nop 0")
    for n in range(5):
        b = IB + 20 * n
        for Dd in range(2):
            a("v_mfma_f32_16x16x32_bf16 %s, %s, %s, 0" % (vr(SB + 8 * n + 4 * Dd, 4), vr(b + 12 + 4 * Dd, 4), vr(b, 4)))
    a("s_nop 0")
    for n in range(5):
        s = SB + 8 * n
        b = IB + 20 * n
        for Dd in range(2):
            a("v_cvt_pk_bf16_f32 v%d, v%d, v%d" % (b + 4 + 2 * Dd, s + 4 * Dd, s + 4 * Dd + 1))
            a("v_cvt_pk_bf16_f32 v%d, v%d, v%d" % (b + 5 + 2 * Dd, s + 4 * Dd + 2, s + 4 * Dd + 3))
        for Dd in range(2):
            a("buffer_store_dwordx2 %s, v%d, %s, s63 offen sc1" % (vr(b + 4 + 2 * Dd, 2), 61 + Dd, sr(SACT, 4)))
        a("s_add_u32 s63, s63, %d" % ACT_MT)
    stamp(a, 7)
    p1_done(a, ["s_lshl_b32 s3, s%d, 2" % S_RB, "s_add_u32 s3, s3, 128"])

    a.label("L_k1_extra")
    a.vm = ["TW"]
    stats_setup(a)
    for x in stats_loads() + k2_prefetch():
        emit(a, x)
    a("s_waitcnt vmcnt(0)")
    for x in stats_segA():
        emit(a, x)
    a("s_waitcnt lgkmcnt(0)")
    a("s_barrier")
    for x in stats_segB():
        emit(a, x)
    a("s_waitcnt lgkmcnt(0)")
    for x in stats_segC():
        emit(a, x)
    a("s_waitcnt vmcnt(0)")
    a("s_barrier")
    for x in stats_signal():
        emit(a, x)
    p2_early(a)
    a("s_waitcnt vmcnt(0)")
    gen_phase2(a)
    a.label("L_k1_end")
    a("s_endpgm")
    return (name, 256, 102 if STAMP else 80)


K2_NS = 7
K2_NST = 37


def p2_poll(a, nm, lo_reg, exp_reg):
    a("s_mov_b32 s21, 0")
    a.label("L_p2poll_%s" % nm)
    a.l.append("    buffer_load_dword v22, v21, %s, 0 offen sc1" % sr(SDBG, 4))
    a("s_waitcnt vmcnt(0)")
    a("v_cmp_lt_u32 vcc, v22, v%d" % exp_reg)
    a("s_add_u32 s21, s21, 1")
    a("s_nop 2")
    a("s_cmp_eq_u64 vcc, 0")
    a("s_cbranch_scc1 L_p2ok_%s" % nm)
    a("s_cmp_ge_u32 s21, 0x40000")
    a("s_cbranch_scc1 L_p2ok_%s" % nm)
    a("s_sleep 1")
    a("s_branch L_p2poll_%s" % nm)
    a.label("L_p2ok_%s" % nm)


def gen_phase2(a):
    a.label("L_phase2")
    a("s_load_dwordx2 s[4:5], s[0:1], 0")
    a("s_load_dwordx2 s[30:31], s[0:1], 56")
    p2_map(a, 24)
    a("s_cmp_eq_u32 s28, 1")
    a("s_cbranch_scc1 L_p2_end")
    a("s_mov_b32 s20, s%d" % S_W)
    a("v_lshrrev_b32 v4, 4, v2")
    a("v_lshlrev_b32 v5, 10, v4")
    a("v_bfe_u32 v6, v2, 2, 2")
    a("v_lshl_add_u32 v5, v6, 7, v5")
    a("v_and_b32 v6, 3, v2")
    a("v_lshl_add_u32 v5, v6, 3, v5")
    a("v_bfe_u32 v6, v2, 3, 2")
    a("s_lshr_b32 s34, s20, 2")
    a("s_lshl_b32 s36, s26, 4")
    a("s_add_u32 s37, s26, s27")
    a("s_lshl_b32 s37, s37, 4")
    a("s_sub_u32 s37, s37, 1")
    a("s_lshr_b32 s38, s36, 7")
    a("s_lshr_b32 s39, s37, 7")
    a("s_add_u32 s38, s38, 16")
    a("s_add_u32 s39, s39, 16")
    a("v_lshlrev_b32 v21, 2, v2")
    a("v_cmp_eq_u32 vcc, s38, v2")
    a("v_cmp_eq_u32 s[40:41], s39, v2")
    a("s_mul_i32 s38, s36, 6554")
    a("s_mul_i32 s39, s37, 6554")
    a("s_or_b64 vcc, vcc, s[40:41]")
    a("s_lshr_b32 s38, s38, 20")
    a("s_lshr_b32 s39, s39, 20")
    a("v_cndmask_b32 v23, 0, 9, vcc")
    a("s_add_u32 s38, s38, 32")
    a("s_add_u32 s39, s39, 32")
    a("v_cmp_eq_u32 vcc, s38, v2")
    a("v_cmp_eq_u32 s[40:41], s39, v2")
    a("s_nop 1")
    a("s_or_b64 vcc, vcc, s[40:41]")
    a("s_nop 0")
    a("v_cndmask_b32 v24, 0, 8, vcc")
    return_sact = True
    a("s_bfe_u32 s35, s20, 0x10001")
    a("s_and_b32 s36, s20, 1")
    a("s_waitcnt lgkmcnt(0)")
    make_srd(a, 40, 4, 5, 2048 * 1280)
    make_srd(a, 8, 30, 31, 2048 * 1280)
    make_srd(a, 12, 22, 23, ACT_BYTES, ACT_OFF)
    a("s_mul_i32 s37, s35, 3")
    a("s_add_u32 s37, s37, s26")
    a("s_mul_i32 s37, s37, %d" % (16 * 1280))
    a("s_lshl_b32 s38, s25, 7")
    a("s_add_u32 s37, s37, s38")
    a("s_lshl_b32 s38, s36, 1")
    a("s_add_u32 s38, s38, s34")
    a("s_lshl_b32 s38, s38, 5")
    a("s_add_u32 s37, s37, s38")
    a("v_and_b32 v26, 15, v2")
    a("v_mul_u32_u24 v26, 1280, v26")
    a("v_lshl_add_u32 v26, v4, 3, v26")
    a("v_add_u32 v26, s37, v26")
    a("s_mov_b32 s38, %d" % (16 * 1280))
    a("s_mov_b32 s39, %d" % (32 * 1280))
    a("buffer_load_dwordx2 v[28:29], v26, s[40:43], 0 offen")
    a("buffer_load_dwordx2 v[30:31], v26, s[40:43], s38 offen")
    a("buffer_load_dwordx2 v[32:33], v26, s[40:43], s39 offen")
    a("s_add_u32 s37, s26, s20")
    a("s_mul_i32 s37, s37, %d" % ACT_MT)
    a("v_add_u32 v10, s37, v3")
    a("s_mov_b32 s16, %d" % (20 * 1024))
    a("s_mov_b32 s17, %d" % (6 * 64 * 1280))
    a("s_lshl_b32 s18, s20, 11")
    a("s_lshl_b32 s19, s20, 10")
    a("s_mul_i32 s37, s35, 6144")
    a("s_lshl_b32 s29, s34, 10")
    a("s_add_u32 s37, s37, s29")
    a("v_add_u32 v12, s37, v3")
    a("v_add_u32 v13, 0x10000, v12")
    a("s_lshl_b32 s29, s34, 12")
    a("s_add_u32 s29, s29, %d" % P2_B)
    for jj in range(2):
        a("s_lshl_b32 s37, s36, 1")
        a("s_add_u32 s37, s37, %d" % jj)
        a("v_xor_b32 v%d, s37, v6" % (15 + jj))
        a("v_lshl_add_u32 v%d, v%d, 5, v5" % (15 + jj, 15 + jj))
        a("v_add_u32 v%d, s29, v%d" % (15 + jj, 15 + jj))
    AC = 64
    FRB = 96
    NS = K2_NS
    p2_poll(a, "f", 21, 23)
    a("s_barrier")
    stamp(a, 1)

    def read_ops(st):
        p = st % 2
        ops = []
        for jj in range(2):
            for e in range(2):
                ops.append("ds_read_b64_tr_b16 %s, v%d offset:%d" % (vr(FRB + 20 * p + 12 + 4 * jj + 2 * e, 2), 15 + jj, (st % NS) * 8192 + e * 512))
        for i in range(3):
            off = (st % NS) * 12288 + i * 2048
            ops.append("ds_read_b128 %s, v%d offset:%d" % (vr(FRB + 20 * p + 4 * i, 4), 12 + (off >> 16), off & 0xffff))
        return ops

    def body(loader):
        a.vm = []
        tag = "l" if loader else "n"

        def dma_ops(st, doB=True):
            ops = []
            if loader:
                if st == 27:
                    ops.append(["s_mov_b32 s16, 0"])
                ops.append(["s_add_u32 m0, s18, 0x%x" % ((st % NS) * 12288)])
                ops.append([("buffer_load_dwordx4 v10, s[12:15], s16 offen lds", "S%d" % st)])
                ops.append([("buffer_load_dwordx4 v10, s[12:15], s16 offen offset:1024 lds", "S%d" % st), "s_add_u32 s16, s16, 2048"])
            if doB:
                srd = SPF1 if st < 27 else SPF2
                if st == 27:
                    ops.append(["s_mov_b32 s17, 0"])
                ops.append(["s_add_u32 m0, s19, 0x%x" % (P2_B + (st % NS) * 8192)])
                ops.append([("buffer_load_dwordx4 v%d, %s, s17 offen lds" % (P2V, sr(srd, 4)), "S%d" % st), "s_add_u32 s17, s17, %d" % (64 * 1280)])
            return ops
        for st in range(NS):
            for o in dma_ops(st, st >= 6):
                emit(a, o)
                if isinstance(o[0], str) and o[0].startswith("s_add_u32 m0"):
                    a("s_nop 0")
        n = a.vmwait({"S0"})
        a("s_waitcnt vmcnt(%d)" % (n if n is not None else 63))
        a("s_barrier")
        stamp(a, 2)
        for x in read_ops(0):
            a(x)
        for it in range(K2_NST):
            if it in (10, 20, 30):
                stamp(a, 2 + it // 10)
            p = it % 2
            n = a.vmwait({"S%d" % (it + 1)}) if it + 1 < K2_NST else None
            if it + NS == 27:
                a("s_waitcnt lgkmcnt(0)")
                p2_poll(a, "a" + tag, 21, 24)
                a.vm = []
            elif n is not None:
                a("s_waitcnt vmcnt(%d) lgkmcnt(0)" % n)
            else:
                a("s_waitcnt lgkmcnt(0)")
            a("s_barrier")
            fillers = dma_ops(it + NS) if it + NS < K2_NST else []
            rd = read_ops(it + 1) if it + 1 < K2_NST else []
            gaps = [[] for _ in range(6)]
            for q, o in enumerate(fillers):
                gaps[min(q, 5)].append(o)
                if q >= 5 and isinstance(o[0], str) and o[0].startswith("s_add_u32 m0"):
                    gaps[5].append("s_nop 0")
            for q, x in enumerate(rd):
                gaps[min(q, 5)].append(x)
            k = 0
            for i in range(3):
                for jj in range(2):
                    acc = AC + 4 * (2 * i + jj)
                    c = "0" if it == 0 else vr(acc, 4)
                    a("v_mfma_f32_16x16x32_bf16 %s, %s, %s, %s" % (vr(acc, 4), vr(FRB + 20 * p + 12 + 4 * jj, 4), vr(FRB + 20 * p + 4 * i, 4), c))
                    emit(a, gaps[k])
                    k += 1
    a("s_cmp_lt_u32 s20, s27")
    a("s_cbranch_scc0 L_k2_nl")
    body(True)
    a("s_branch L_k2_epi")
    a.label("L_k2_nl")
    body(False)
    a.label("L_k2_epi")
    stamp(a, 6)
    a("s_mul_i32 s37, s20, 3072")
    a("v_add_u32 v12, s37, v3")
    a("s_xor_b32 s37, s20, 4")
    a("s_mul_i32 s37, s37, 3072")
    a("v_add_u32 v13, s37, v3")
    a("s_nop 4")
    a("s_cmp_eq_u32 s34, 0")
    a("s_cbranch_scc0 L_k2_x1")
    for kq in range(2):
        for i in range(3):
            a("ds_write_b128 v12, %s offset:%d" % (vr(AC + 4 * (2 * i + 1 - kq), 4), 1024 * i))
        for i in range(3):
            for r in range(4):
                a("v_mov_b32 v%d, v%d" % (FRB + 4 * i + r, AC + 4 * (2 * i + kq) + r))
        if kq == 0:
            a("s_branch L_k2_x2")
            a.label("L_k2_x1")
    a.label("L_k2_x2")
    a("s_waitcnt lgkmcnt(0)")
    a("s_barrier")
    for i in range(3):
        a("ds_read_b128 %s, v13 offset:%d" % (vr(AC + 4 * i, 4), 1024 * i))
    a("s_mov_b32 s37, 0xffff0000")
    a("s_waitcnt vmcnt(0) lgkmcnt(0)")
    for i in range(3):
        for r in range(4):
            a("v_add_f32 v%d, v%d, v%d" % (FRB + 4 * i + r, FRB + 4 * i + r, AC + 4 * i + r))
        for d in range(2):
            a("v_lshlrev_b32 v%d, 16, v%d" % (AC + 4 * i, 28 + 2 * i + d))
            a("v_and_b32 v%d, s37, v%d" % (AC + 4 * i + 1, 28 + 2 * i + d))
            a("v_add_f32 v%d, v%d, v%d" % (FRB + 4 * i + 2 * d, FRB + 4 * i + 2 * d, AC + 4 * i))
            a("v_add_f32 v%d, v%d, v%d" % (FRB + 4 * i + 2 * d + 1, FRB + 4 * i + 2 * d + 1, AC + 4 * i + 1))
        for d in range(2):
            a("v_cvt_pk_bf16_f32 v%d, v%d, v%d" % (28 + 2 * i + d, FRB + 4 * i + 2 * d, FRB + 4 * i + 2 * d + 1))
    a("buffer_store_dwordx2 v[28:29], v26, s[8:11], 0 offen")
    a("buffer_store_dwordx2 v[30:31], v26, s[8:11], s38 offen")
    a("s_sub_u32 s37, s27, s35")
    a("s_cmp_eq_u32 s37, 4")
    a("s_cbranch_scc1 L_k2_fl")
    a("buffer_store_dwordx2 v[32:33], v26, s[8:11], s39 offen")
    a.label("L_k2_fl")
    a.label("L_p2_end")
    if STAMP:
        a("s_waitcnt vmcnt(0)")
        a("s_memtime s[96:97]")
        a("s_memrealtime s[100:101]")
        a("s_waitcnt lgkmcnt(0)")
        a("s_cmp_lg_u32 s%d, 0" % S_W)
        a("s_cbranch_scc1 L_k1_end")
        make_srd(a, 76, 22, 23, 1 << 20, STAMP_OFF + 65536)
        a("s_lshl_b32 s3, s2, 6")
        a("v_mov_b32 v0, s3")
        for i in range(9):
            a("v_mov_b32 v1, s%d" % (80 + 2 * i))
            a("buffer_store_dword v1, v0, s[76:79], 0 offen offset:%d" % (4 * i))
        a("v_mov_b32 v1, s98")
        a("buffer_store_dword v1, v0, s[76:79], 0 offen offset:56")
        a("v_mov_b32 v1, s100")
        a("buffer_store_dword v1, v0, s[76:79], 0 offen offset:60")


def main():
    a = Asm()
    hdr = open("cdna_kernels/%s.s.ref" % NAME).read().splitlines()
    for l in hdr:
        if l.startswith(";") and "@launch" not in l:
            a.raw(l)
    a.raw("; @launch kernel=fused_kernel grid=(256,1,1) block=(512,1,1) lds=%d" % K1_LDS)
    a.raw('.amdgcn_target "amdgcn-amd-amdhsa--gfx950"')
    ks = [gen_k1(a)]
    for (n, v, s) in ks:
        kernel_desc(a, n, v, s)
    av = [x for x in sys.argv[1:] if not x.startswith("--")]
    out = av[0] if av else "cdna_kernels/%s.s" % NAME
    open(out, "w").write(a.text())


main()
```

```python
import sys, struct, re

NAME = "parallel_sum__sliding_local_dilated__geglu_ffn__prompt"
ST_OFF = 0
ST_CS = 2048 * 8
ST_BYTES = ST_CS + 5376 * 4
ACT_OFF = 4 << 20
ACT_MT = 74 * 1024
ACT_BYTES = 128 * ACT_MT
BIG = 0x40000000
LOG2E = 1.4426950408889634
STAMP = "--stamp" in sys.argv
STAMP_OFF = 32 << 20
MF = 32 if "--mf32" in sys.argv else 16
ROT = 0 if "--norot" in sys.argv else 1


def f2u(x):
    return struct.unpack("<I", struct.pack("<f", x))[0]


class Asm:
    def __init__(self):
        self.l = []
        self.vm = []

    def __call__(self, s, tag=None):
        m = re.match(r"s_cselect_b32 (s\d+), (\d+|0x[0-9a-f]+), (\d+|0x[0-9a-f]+)$", s)
        if m and int(m.group(2), 0) > 64 and int(m.group(3), 0) > 64:
            self.l.append("    s_mov_b32 %s, %s" % (m.group(1), m.group(3)))
            s = "s_cselect_b32 %s, %s, %s" % (m.group(1), m.group(2), m.group(1))
        self.l.append("    " + s)
        if s.startswith("buffer_") or s.startswith("global_"):
            self.vm.append(tag)

    def vmwait(self, tags):
        idx = [i for i, t in enumerate(self.vm) if t in tags]
        if not idx:
            return None
        return min(63, len(self.vm) - 1 - max(idx))

    def label(self, s):
        self.l.append(s + ":")

    def raw(self, s):
        self.l.append(s)

    def text(self):
        return "\n".join(self.l) + "\n"


def vr(a, n):
    return "v[%d:%d]" % (a, a + n - 1)


def sr(a, n):
    return "s[%d:%d]" % (a, a + n - 1)


def kernel_header(a, name):
    a.raw(".text")
    a.raw(".globl %s" % name)
    a.raw(".p2align 8")
    a.raw(".type %s,@function" % name)
    a.label(name)


def kernel_desc(a, name, vgpr, sgpr):
    a.raw('.section .rodata,"a"')
    a.raw(".p2align 6")
    a.raw(".amdhsa_kernel %s" % name)
    a.raw("  .amdhsa_next_free_vgpr %d" % vgpr)
    a.raw("  .amdhsa_next_free_sgpr %d" % sgpr)
    a.raw("  .amdhsa_accum_offset %d" % ((vgpr + 3) // 4 * 4))
    a.raw("  .amdhsa_group_segment_fixed_size 0")
    a.raw("  .amdhsa_kernarg_size 80")
    a.raw("  .amdhsa_user_sgpr_count 2")
    a.raw("  .amdhsa_user_sgpr_kernarg_segment_ptr 1")
    a.raw("  .amdhsa_system_sgpr_workgroup_id_x 1")
    a.raw(".end_amdhsa_kernel")


def stamp(a, idx):
    if STAMP:
        a("s_memtime %s" % sr(80 + 2 * idx, 2))


def stamp_start(a):
    if STAMP:
        a("s_memtime s[80:81]")
        a("s_memrealtime s[98:99]")


def stamp_flush(a, wave_sgpr, wslo, wshi, kidx, endlabel):
    if not STAMP:
        return
    stamp(a, 7)
    a("s_waitcnt vmcnt(0)")
    a("s_memtime s[96:97]")
    a("s_memrealtime s[100:101]")
    a("s_waitcnt lgkmcnt(0)")
    a("s_cmp_lg_u32 s%d, 0" % wave_sgpr)
    a("s_cbranch_scc1 %s" % endlabel)
    make_srd(a, 76, wslo, wshi, 1 << 20, STAMP_OFF + kidx * 65536)
    a("s_lshl_b32 s3, s2, 6")
    a("v_mov_b32 v0, s3")
    for i in range(9):
        a("v_mov_b32 v1, s%d" % (80 + 2 * i))
        a("buffer_store_dword v1, v0, s[76:79], 0 offen offset:%d" % (4 * i))
    a("v_mov_b32 v1, s98")
    a("buffer_store_dword v1, v0, s[76:79], 0 offen offset:56")
    a("v_mov_b32 v1, s100")
    a("buffer_store_dword v1, v0, s[76:79], 0 offen offset:60")


def make_srd(a, d, lo, hi, nbytes, off=0):
    if off:
        a("s_add_u32 s%d, s%d, 0x%x" % (d, lo, off))
        a("s_addc_u32 s%d, s%d, 0" % (d + 1, hi))
    else:
        a("s_mov_b32 s%d, s%d" % (d, lo))
        a("s_mov_b32 s%d, s%d" % (d + 1, hi))
    a("s_mov_b32 s%d, 0x%x" % (d + 2, nbytes))
    a("s_mov_b32 s%d, 0x00020000" % (d + 3))


ACC = 64
FR0 = 160
PITCH = 168
REG_K = 0
REG_V = 192 * PITCH
REG_Q = 2 * 192 * PITCH
SCR = 148480
CSL = SCR + 2048
K1_LDS = CSL + 4096
SX, SW, SACT, SST, SCS, SPF1, SPF2, SDBG = 24, 28, 32, 36, 40, 44, 48, 52
S_W, S_XCD, S_SLOT, S_WM, S_WN, S_FB, S_RB = 56, 57, 58, 59, 60, 61, 62
S_SOA, S_SOB = 64, 65
V_RLO, V_CLO = 30, 31
V_RSO, V_CSO, V_ATO, V_SCW, V_SCR = 32, 33, 34, 35, 29
RL = 36
CL = 44
SEL = 240
CD = 244
TT = 248


def k2_prefetch():
    D = TT + 4
    return [["s_lshl_b32 s66, s2, 3", "s_add_u32 s66, s66, s%d" % S_W, "s_lshl_b32 s66, s66, 10",
             ("buffer_load_dwordx4 %s, v3, %s, s66 offen" % (vr(D, 4), sr(SPF1, 4)), "PF"),
             ("buffer_load_dwordx4 %s, v3, %s, s66 offen" % (vr(D, 4), sr(SPF2, 4)), "PF"),
             "s_add_u32 s66, s66, 0x200000",
             ("buffer_load_dwordx4 %s, v3, %s, s66 offen" % (vr(D, 4), sr(SPF1, 4)), "PF")]]


def tlb_warm(a):
    tab = [(4, 2048 * 1280), (6, 640 * 3840), (12, 640 * 3456), (14, 640 * 3456), (16, 1728 * 1280), (8, 640 * 1280),
           (18, 2048 * 1280), (22, ACT_OFF + ACT_BYTES)]
    make_srd(a, SCS, tab[0][0], tab[0][0] + 1, tab[0][1])
    for w in range(1, 8):
        a("s_cmp_eq_u32 s%d, %d" % (S_W, w))
        a("s_cselect_b32 s%d, s%d, s%d" % (SCS, tab[w][0], SCS))
        a("s_cselect_b32 s%d, s%d, s%d" % (SCS + 1, tab[w][0] + 1, SCS + 1))
        a("s_cselect_b32 s%d, %d, s%d" % (SCS + 2, tab[w][1], SCS + 2))
    a("s_cselect_b32 s66, 0x38000, 0x10000")
    a("v_mul_lo_u32 v1, v2, s66")
    a("buffer_load_dword v%d, v1, %s, 0 offen" % (TT + 7, sr(SCS, 4)), "TW")


def stats_setup(a):
    a("s_lshl_b32 s66, s2, 3")
    a("s_add_u32 s66, s66, s%d" % S_W)
    a("s_mul_i32 s67, s66, 1280")
    a("v_mov_b32 v9, 0x%x" % BIG)
    a("v_add_u32 v1, s67, v3")
    a("v_cmp_gt_u32 vcc, 40, v2")
    a("s_lshl_b32 s67, s66, 3")
    a("v_mov_b32 v5, s67")
    a("v_cndmask_b32 v%d, v9, v1, vcc" % V_RLO)
    a("v_cmp_eq_u32 vcc, 0, v2")
    a("s_cmp_ge_u32 s%d, 6" % S_SLOT)
    a("s_cselect_b32 s68, 2, 1")
    a("v_cndmask_b32 v%d, v9, v5, vcc" % V_RSO)
    a("s_cselect_b32 s67, 6, 0")
    a("s_sub_u32 s66, s%d, s67" % S_SLOT)
    a("s_mul_i32 s69, s%d, 6" % S_XCD)
    a("s_add_u32 s69, s69, s66")
    a("s_sub_u32 s66, s%d, 12" % S_SLOT)
    a("s_lshl_b32 s66, s66, 3")
    a("s_add_u32 s66, s66, s%d" % S_XCD)
    a("s_mov_b32 s73, 0")
    a("s_cmp_ge_u32 s66, 60")
    a("s_cselect_b32 s73, 1, s73")
    a("s_cselect_b32 s75, 12, 0")
    a("s_sub_u32 s74, s66, s75")
    a("s_cmp_ge_u32 s66, 66")
    a("s_cselect_b32 s73, 2, s73")
    a("s_cselect_b32 s75, 6, 0")
    a("s_sub_u32 s74, s74, s75")
    a("s_cmp_ge_u32 s%d, 12" % S_SLOT)
    a("s_cselect_b32 s68, s73, s68")
    a("s_cselect_b32 s69, s74, s69")
    a("s_cmp_ge_u32 s%d, 21" % S_SLOT)
    a("s_cselect_b32 s71, 1, 0")
    a("s_cmp_eq_u32 s68, 1")
    a("s_cselect_b32 s%d, s12, s14" % SCS)
    a("s_cselect_b32 s%d, s13, s15" % (SCS + 1))
    a("s_cselect_b32 s72, 1920, 3648")
    a("s_cmp_eq_u32 s68, 0")
    a("s_cselect_b32 s%d, s6, s%d" % (SCS, SCS))
    a("s_cselect_b32 s%d, s7, s%d" % (SCS + 1, SCS + 1))
    a("s_cselect_b32 s72, 0, s72")
    a("s_cselect_b32 s73, 3840, 3456")
    a("s_mul_i32 s%d, s73, 640" % (SCS + 2))
    a("s_mov_b32 s%d, 0x00020000" % (SCS + 3))
    a("v_lshrrev_b32 v1, 4, v2")
    a("v_bfe_u32 v5, v2, 2, 2")
    a("v_lshl_add_u32 v1, v1, 2, v5")
    a("s_lshl_b32 s75, s%d, 4" % S_W)
    a("v_add_u32 v1, s75, v1")
    a("v_mul_lo_u32 v1, v1, s73")
    a("v_and_b32 v5, 3, v2")
    a("v_lshl_add_u32 v1, v5, 4, v1")
    a("s_lshl_b32 s74, s69, 6")
    a("s_cmp_eq_u32 s71, 1")
    a("s_cselect_b32 s74, 0x%x, s74" % BIG)
    a("v_add_u32 v%d, s74, v1" % V_CLO)
    a("s_lshl_b32 s77, s73, 7")
    a("s_lshl_b32 s75, s69, 5")
    a("s_add_u32 s74, s72, s75")
    a("s_lshl_b32 s74, s74, 2")
    a("s_add_u32 s74, s74, %d" % ST_CS)
    a("s_or_b32 s75, s71, s%d" % S_W)
    a("s_cmp_eq_u32 s75, 0")
    a("s_cselect_b32 s74, s74, 0x%x" % BIG)
    a("v_lshl_add_u32 v1, v2, 2, s74")
    a("v_cmp_gt_u32 vcc, 32, v2")
    a("v_and_b32 v5, 15, v2")
    a("v_lshlrev_b32 v6, 4, v5")
    a("v_cndmask_b32 v%d, v9, v1, vcc" % V_CSO)
    a("v_cmp_gt_u32 vcc, 8, v5")
    a("s_lshl_b32 s74, s%d, 7" % S_W)
    a("s_add_u32 s74, s74, %d" % SCR)
    a("v_add_u32 v7, s74, v6")
    a("v_add_u32 v6, %d, v6" % (SCR + 1024))
    a("v_cndmask_b32 v%d, v6, v7, vcc" % V_SCW)
    for d in range(4):
        a("v_cmp_eq_u32 vcc, %d, v5" % (2 * d))
        a("v_mov_b32 v6, 0x3f80")
        a("v_cmp_eq_u32 s[68:69], %d, v5" % (2 * d + 1))
        a("v_cndmask_b32 v%d, 0, v6, vcc" % (SEL + d))
        a("v_mov_b32 v6, 0x3f800000")
        a("v_cndmask_b32 v%d, v%d, v6, s[68:69]" % (SEL + d, SEL + d))
    a("v_and_b32 v5, 7, v2")
    a("v_bfe_u32 v6, v2, 3, 2")
    a("v_lshlrev_b32 v6, 2, v6")
    a("v_lshl_add_u32 v5, v5, 4, v6")
    a("v_cmp_eq_u32 vcc, 0, v0")
    a("v_add_u32 v%d, %d, v5" % (V_SCR, SCR))
    a("s_lshl_b32 s76, s77, 1")
    a("v_cndmask_b32 v%d, v9, 0, vcc" % V_ATO)
    a("s_add_u32 s75, s76, s77")
    a("s_lshl_b32 s74, s77, 2")


def stats_loads():
    o = [("buffer_load_dwordx4 %s, v%d, %s, 0 offen" % (vr(RL, 4), V_RLO, sr(SX, 4)), "SL"),
         ("buffer_load_dwordx4 %s, v%d, %s, 0 offen offset:640" % (vr(RL + 4, 4), V_RLO, sr(SX, 4)), "SL")]
    for i in (1, 2, 0, 3, 4):
        so = ["0", "s77", "s76", "s75", "s74"][i]
        o.append(("buffer_load_dwordx4 %s, v%d, %s, %s offen" % (vr(CL + 4 * i, 4), V_CLO, sr(SCS, 4), so), "SL"))
    return o


def xreduce(regs, tmps, op="v_add_f32", swaps=("v_permlane16_swap_b32", "v_permlane32_swap_b32")):
    o = []
    for swp in swaps:
        for v, t in zip(regs, tmps):
            o.append("v_mov_b32 v%d, v%d" % (t, v))
        o.append("s_nop 1")
        for v, t in zip(regs, tmps):
            o.append("%s v%d, v%d" % (swp, v, t))
        o.append("s_nop 1")
        for v, t in zip(regs, tmps):
            o.append("%s v%d, v%d, v%d" % (op, v, v, t))
    return o


def stats_segA():
    o = []
    T = TT
    for i in range(5):
        o.append("v_mfma_f32_16x16x32_bf16 %s, %s, %s, %s" % (vr(CD, 4), vr(CL + 4 * i, 4), vr(SEL, 4), "0" if i == 0 else vr(CD, 4)))
    o.append("v_mov_b32 v%d, 0x3f803f80" % (T + 4))
    for d in range(8):
        c = "0" if d < 2 else "v%d" % (T + d % 2)
        o.append("v_dot2_f32_bf16 v%d, v%d, v%d, %s" % (T + d % 2, RL + d, T + 4, c))
        c = "0" if d < 2 else "v%d" % (T + 2 + d % 2)
        o.append("v_dot2_f32_bf16 v%d, v%d, v%d, %s" % (T + 2 + d % 2, RL + d, RL + d, c))
    o.append("s_nop 2")
    o.append("v_add_f32 v%d, v%d, v%d" % (T, T, T + 1))
    o.append("v_add_f32 v%d, v%d, v%d" % (T + 2, T + 2, T + 3))
    for sh in (8, 4, 2, 1):
        o.append("s_nop 1")
        for v in (T, T + 2):
            o.append("v_add_f32_dpp v%d, v%d, v%d row_ror:%d row_mask:0xf bank_mask:0xf" % (v, v, v, sh))
    o += xreduce([T, T + 2, CD, CD + 1, CD + 2, CD + 3], [T + 1, T + 3, CL, CL + 1, CL + 2, CL + 3])
    o.append("ds_write_b128 v%d, %s" % (V_SCW, vr(CD, 4)))
    o.append("v_mul_f32 v%d, 0x%x, v%d" % (T, f2u(1.0 / 640.0), T))
    o.append("v_mul_f32 v%d, 0x%x, v%d" % (T + 2, f2u(1.0 / 640.0), T + 2))
    o.append("v_fma_f32 v%d, -v%d, v%d, v%d" % (T + 2, T, T, T + 2))
    o.append("v_max_f32 v%d, 0, v%d" % (T + 2, T + 2))
    o.append("v_cvt_pk_bf16_f32 v%d, v%d, v%d" % (T + 1, T, T + 2))
    o.append("v_lshlrev_b32 v%d, 16, v%d" % (T + 4, T + 1))
    o.append("v_and_b32 v%d, 0xffff0000, v%d" % (T + 5, T + 1))
    o.append("v_add_f32 v%d, 0x%x, v%d" % (T + 5, f2u(1e-5), T + 5))
    o.append("v_cvt_pk_bf16_f32 v%d, v%d, v%d" % (T + 5, T + 5, T + 5))
    o.append("v_lshlrev_b32 v%d, 16, v%d" % (T + 5, T + 5))
    o.append("v_sqrt_f32 v%d, v%d" % (T + 5, T + 5))
    o.append("s_nop 0")
    o.append("v_cvt_pk_bf16_f32 v%d, v%d, v%d" % (T + 5, T + 5, T + 5))
    o.append("v_lshlrev_b32 v%d, 16, v%d" % (T + 5, T + 5))
    o.append(("buffer_store_dwordx2 %s, v%d, %s, 0 offen sc1" % (vr(T + 4, 2), V_RSO, sr(SST, 4)), "ST"))
    return o


def stats_segB():
    return ["ds_read_b32 v%d, v%d offset:%d" % (CL + w, V_SCR, 128 * w) for w in range(8)]


def stats_segC():
    o = []
    for (x, y) in ((0, 1), (2, 3), (4, 5), (6, 7), (0, 2), (4, 6), (0, 4)):
        o.append("v_add_f32 v%d, v%d, v%d" % (CL + x, CL + x, CL + y))
    o.append(("buffer_store_dword v%d, v%d, %s, 0 offen sc1" % (CL, V_CSO, sr(SST, 4)), "ST"))
    return o


def stats_signal():
    return ["v_mov_b32 v%d, 1" % TT,
            ("buffer_atomic_add v%d, v%d, %s, 0 offen" % (TT, V_ATO, sr(SDBG, 4)), "AT")]


def emit(a, x):
    if isinstance(x, list):
        for y in x:
            emit(a, y)
    elif isinstance(x, tuple):
        a(x[0], x[1])
    else:
        a(x)


IT_SIG, IT_POLL, IT_CHK = 11, 15, 17


def k1_mainloop(a, P):
    nI, nJ = P["nI"], P["nJ"]
    NST = 20
    nA, nB = 2 * nI, 2 * nJ

    def fx(p, I, hh):
        return FR0 + 40 * p + 8 * I + 4 * hh

    def fw(p, j, hh):
        return FR0 + 40 * p + 8 * nI + 8 * j + 4 * hh

    def read_ops(stage):
        p = stage % 2
        ops = []
        if MF == 32:
            for hh in range(2):
                for j in range(nJ):
                    for e in range(2):
                        v, imm = P["b_addr"](stage % 4, j)
                        ops.append("ds_read_b64_tr_b16 %s, v%d offset:%d" % (vr(fw(p, j, hh) + 2 * e, 2), v, imm + hh * 2048 + e * 512))
                for I in range(nI):
                    v, imm = P["a_addr"]((stage // 2) % 3, 2 * (stage % 2) + hh, I)
                    ops.append("ds_read_b128 %s, v%d offset:%d" % (vr(fx(p, I, hh), 4), v, imm))
        else:
            for j in range(nB):
                for e in range(2):
                    v, imm = P["b_addr"](stage % 4, j)
                    ops.append("ds_read_b64_tr_b16 %s, v%d offset:%d" % (vr(FR0 + 40 * p + 4 * nA + 4 * j + 2 * e, 2), v, imm + e * 512))
            for i in range(nA):
                v, imm = P["a_addr"]((stage // 2) % 3, stage % 2, i)
                ops.append("ds_read_b128 %s, v%d offset:%d" % (vr(FR0 + 40 * p + 4 * i, 4), v, imm))
        return ops

    def mfmas(it):
        p = it % 2
        o = []
        if MF == 32:
            for hh in range(2):
                for I in range(nI):
                    for j in range(nJ):
                        acc = ACC + 16 * (I * nJ + j)
                        c = "0" if (it == 0 and hh == 0) else vr(acc, 16)
                        o.append("v_mfma_f32_32x32x16_bf16 %s, %s, %s, %s" % (vr(acc, 16), vr(fw(p, j, hh), 4), vr(fx(p, I, hh), 4), c))
        else:
            for i in range(nA):
                for j in range(nB):
                    acc = ACC + 4 * (i * nB + j)
                    c = "0" if it == 0 else vr(acc, 4)
                    o.append("v_mfma_f32_16x16x32_bf16 %s, %s, %s, %s" % (vr(acc, 4), vr(FR0 + 40 * p + 4 * nA + 4 * j, 4), vr(FR0 + 40 * p + 4 * i, 4), c))
        return o

    def pro(ops):
        for (m, d, tag, adv) in ops:
            a(m)
            a("s_nop 0")
            a(d, tag)
            for x in adv:
                a(x)
    B, A = P["bdma"], P["adma"]
    pro(B(0))
    pro(sum(A(0), []))
    stats_setup(a)
    for x in stats_loads()[:3]:
        emit(a, x)
    pro(B(1))
    pro(sum(A(1), []))
    stamp(a, 2)
    a("s_waitcnt vmcnt(%d)" % a.vmwait({"B0", "A0"}))
    a("s_barrier")
    stamp(a, 3)
    for x in read_ops(0):
        a(x)
    for it in range(NST):
        if it in (2, 5):
            stamp(a, 4 + it // 5)
        p = it % 2
        tags = set()
        if it + 1 < NST:
            tags |= {"B%d" % (it + 1), "A%d" % ((it + 1) // 2)}
        tags |= P["toptags"].get(it, set())
        n = a.vmwait(tags)
        if n is not None:
            a("s_waitcnt vmcnt(%d) lgkmcnt(0)" % n)
        else:
            a("s_waitcnt lgkmcnt(0)")
        if it == IT_CHK:
            nm = P["name"]
            a("s_mov_b32 s66, 0")
            a.label("L_poll_%s" % nm)
            a("v_readfirstlane_b32 s67, v%d" % TT)
            a("s_add_u32 s66, s66, 1")
            a("s_cmp_ge_u32 s67, 256")
            a("s_cbranch_scc1 L_pollok_%s" % nm)
            a("s_cmp_ge_u32 s66, 0x40000")
            a("s_cbranch_scc1 L_pollok_%s" % nm)
            a("s_sleep 2")
            a.l.append("    buffer_load_dword v%d, v%d, %s, 0 offen sc1" % (TT, TT + 1, sr(SDBG, 4)))
            a("s_waitcnt vmcnt(0)")
            a("s_branch L_poll_%s" % nm)
            a.label("L_pollok_%s" % nm)
        a("s_barrier")
        dm = []
        if it == 0:
            dm = B(2) + B(3) + A(2)[0]
        elif it == 1:
            dm = B(4) + B(5) + A(2)[1]
        elif it == 2:
            dm = B(6) + A(3)[0] + A(3)[1]
        else:
            if it + 4 < NST:
                dm += B(it + 4)
            S = (it - 1) // 2 + 3
            if S < 10:
                dm += A(S)[(it - 1) % 2]
        rd = read_ops(it + 1) if it + 1 < NST else []
        stream = []
        for (m, d, tag, adv) in dm:
            mid = rd.pop(0) if rd else "s_nop 0"
            stream.append([m, mid, (d, tag)] + adv)
        stream += [[x] for x in rd]
        stream += [[x] for x in P["bg"].get(it, [])]
        mf = mfmas(it)
        ngap = len(mf)
        for gi, x in enumerate(mf):
            a(x)
            k = (len(stream) + (ngap - gi) - 1) // (ngap - gi) if MF == 32 else min(len(stream), max(1, (len(stream) + (ngap - gi) - 1) // (ngap - gi)))
            for _ in range(k):
                if stream:
                    emit(a, stream.pop(0))
        for x in stream:
            emit(a, x)
    stamp(a, 6)


def adv(r, inc, tot):
    return ["s_add_u32 s%d, s%d, %d" % (r, r, inc), "s_cmp_ge_u32 s%d, %d" % (r, tot), "s_cselect_b32 s%d, 0, s%d" % (r, r)]


def split_bg(lst, its):
    n = (len(lst) + len(its) - 1) // len(its)
    return {it: lst[i * n:(i + 1) * n] for i, it in enumerate(its)}


def std_bg(pre, tail17, tail19):
    sl = stats_loads()
    bg = {0: sl[3:5], 1: sl[5:6], 2: sl[6:7]}
    bg.update(split_bg(stats_segA(), [5, 6]))
    bg[9] = k2_prefetch()
    bg[7] = stats_segB()
    bg[8] = stats_segC()
    bg[IT_SIG] = stats_signal()
    bg.update(split_bg(pre, [12, 13, 14]))
    bg[IT_POLL] = [("buffer_load_dword v%d, v%d, %s, 0 offen sc1" % (TT, TT + 1, sr(SDBG, 4)), "POLL")]
    bg[IT_CHK] = tail17
    bg[19] = tail19
    top = {5: {"SL"}, 12: {"PF"}, IT_SIG: {"ST"}, IT_CHK: {"POLL"}, 19: {"TL"}}
    return bg, top


def gen_k1(a):
    name = "gemm1_kernel"
    kernel_header(a, name)
    a("s_cmp_ge_u32 s2, 256")
    a("s_cbranch_scc1 L_k1_end")
    stamp_start(a)
    a("s_load_dwordx4 s[4:7], s[0:1], 0")
    a("s_load_dwordx2 s[8:9], s[0:1], 16")
    a("s_load_dwordx4 s[12:15], s[0:1], 32")
    a("s_load_dwordx4 s[16:19], s[0:1], 48")
    a("s_load_dwordx4 s[20:23], s[0:1], 64")
    a("v_lshrrev_b32 v1, 6, v0")
    a("v_and_b32 v2, 63, v0")
    a("v_readfirstlane_b32 s%d, v1" % S_W)
    a("s_and_b32 s%d, s2, 7" % S_XCD)
    a("s_lshr_b32 s%d, s2, 3" % S_SLOT)
    a("v_lshlrev_b32 v3, 4, v2")
    a("v_lshrrev_b32 v4, %d, v2" % (5 if MF == 32 else 4))
    a("v_lshlrev_b32 v5, 10, v4")
    a("v_bfe_u32 v6, v2, 2, 2")
    a("v_lshl_add_u32 v5, v6, 7, v5")
    a("v_and_b32 v6, 3, v2")
    a("v_lshl_add_u32 v5, v6, 3, v5")
    if MF == 32:
        a("v_bfe_u32 v6, v2, 3, 1")
        a("v_lshl_add_u32 v6, v4, 1, v6")
    else:
        a("v_bfe_u32 v6, v2, 3, 2")
    a("v_bfe_u32 v26, v2, 4, 1")
    a("v_lshrrev_b32 v7, 3, v2")
    a("v_bfe_u32 v8, v2, 1, 2")
    a("v_xor_b32 v8, v8, v26")
    a("v_and_b32 v9, 1, v2")
    a("v_and_b32 v10, 7, v2")
    a("v_lshrrev_b32 v11, 4, v2")
    a("v_xor_b32 v10, v10, v11")
    a("v_lshlrev_b32 v10, 4, v10")
    a("v_mul_u32_u24 v11, 1280, v7")
    a("v_add_u32 v10, v10, v11")
    a("v_bfe_u32 v15, v2, 1, 3")
    a("v_xor_b32 v15, v15, v4")
    a("v_lshlrev_b32 v15, 4, v15")
    a("v_and_b32 v16, 7, v2")
    a("v_lshl_add_u32 v15, v16, 7, v15")
    a("v_bfe_u32 v16, v2, 3, %d" % (2 if MF == 32 else 1))
    a("v_lshl_add_u32 v15, v16, 10, v15")
    a("s_lshr_b32 s%d, s%d, 2" % (S_WM, S_W))
    a("s_and_b32 s%d, s%d, 3" % (S_WN, S_W))
    a("s_waitcnt lgkmcnt(0)")
    stamp(a, 1)
    make_srd(a, SX, 4, 5, 2048 * 1280)
    make_srd(a, SACT, 22, 23, ACT_BYTES, ACT_OFF)
    make_srd(a, SST, 22, 23, ST_BYTES, ST_OFF)
    make_srd(a, SPF1, 16, 17, 1728 * 1280)
    make_srd(a, SPF2, 8, 9, 640 * 1280)
    make_srd(a, SDBG, 20, 21, 256)
    tlb_warm(a)
    a("s_cmp_lt_u32 s%d, 18" % S_SLOT)
    a("s_cbranch_scc0 L_k1_att")

    a.vm = ["TW"]
    a("s_lshl_b32 s66, s%d, 1" % S_XCD)
    a("s_add_u32 s66, s66, s%d" % S_SLOT)
    a("s_sub_u32 s66, s66, 16")
    a("s_cmp_lt_u32 s%d, 16" % S_SLOT)
    a("s_cselect_b32 s%d, s%d, 8" % (S_FB, S_XCD))
    a("s_cselect_b32 s%d, s%d, s66" % (S_RB, S_SLOT))
    a("s_cmp_lt_u32 s%d, 4" % S_W)
    a("s_cselect_b32 s%d, s12, s14" % SW)
    a("s_cselect_b32 s%d, s13, s15" % (SW + 1))
    a("s_mov_b32 s%d, %d" % (SW + 2, 640 * 3456))
    a("s_mov_b32 s%d, 0x00020000" % (SW + 3))
    a("s_add_u32 s66, s%d, s%d" % (S_RB, S_FB))
    for _ in range(2):
        a("s_cmp_ge_u32 s66, 10")
        a("s_cselect_b32 s67, 10, 0")
        a("s_sub_u32 s66, s66, s67")
    if not ROT:
        a("s_mov_b32 s66, 0")
    a("s_lshl_b32 s%d, s66, 7" % S_SOA)
    a("s_mul_i32 s%d, s66, 221184" % S_SOB)
    a("s_mul_i32 s70, s%d, 384" % S_FB)
    a("v_mul_u32_u24 v16, 3456, v7")
    a("v_add_u32 v16, s70, v16")
    a("v_lshlrev_b32 v1, 5, v8")
    a("v_lshl_add_u32 v1, v9, 4, v1")
    for j in range(3):
        a("s_mul_i32 s66, s%d, 3" % S_W)
        a("s_add_u32 s66, s66, %d" % j)
        a("s_and_b32 s67, s66, 3")
        a("s_lshr_b32 s68, s66, 2")
        a("s_cmp_ge_u32 s68, 3")
        a("s_cselect_b32 s69, 3, 0")
        a("s_sub_u32 s68, s68, s69")
        if MF == 32:
            a("s_xor_b32 s69, s67, s%d" % S_WM)
            a("s_and_b32 s69, s69, 1")
        else:
            a("s_and_b32 s69, s67, 1")
        a("s_lshl_b32 s69, s69, 6")
        a("v_xor_b32 v%d, s69, v1" % (12 + j))
        a("s_mul_i32 s67, s67, %d" % (8 * 3456))
        a("s_lshl_b32 s68, s68, 7")
        a("s_add_u32 s67, s67, s68")
        a("v_add3_u32 v%d, v%d, v16, s67" % (12 + j, 12 + j))
    a("s_lshl_b32 s66, s%d, 3" % S_RB)
    a("s_add_u32 s66, s66, s%d" % S_W)
    a("s_mul_i32 s66, s66, %d" % (16 * 1280))
    a("v_xor_b32 v11, 64, v10")
    a("v_add_u32 v10, s66, v10")
    a("s_add_u32 s66, s66, %d" % (8 * 1280))
    a("v_add_u32 v11, s66, v11")
    a("s_mul_i32 s3, s%d, 3072" % S_W)
    a("s_lshl_b32 s79, s%d, 11" % S_W)
    ARING = 98304
    a("s_lshl_b32 s66, s%d, 13" % S_WM)
    a("s_add_u32 s66, s66, %d" % ARING)
    for c in ((3, 2, 1, 0) if MF == 32 else (1, 0)):
        if c:
            a("v_xor_b32 v%d, %d, v15" % (15 + c, (32 if MF == 32 else 64) * c))
        a("v_add_u32 v%d, s66, v%d" % (15 + c, 15 + c))
    if MF == 32:
        a("v_lshlrev_b32 v1, 1, v26")
        a("v_xor_b32 v6, v6, v1")
        a("v_mul_u32_u24 v1, 12288, v26")
        a("v_add_u32 v5, v5, v1")
    for j in range(3):
        a("s_mul_i32 s66, s%d, 3" % S_WN)
        a("s_add_u32 s66, s66, %d" % j)
        a("s_and_b32 s67, s66, 3")
        a("s_lshr_b32 s66, s66, 2")
        a("s_lshl_b32 s66, s66, 12")
        a("v_xor_b32 v%d, s67, v6" % (19 + j))
        a("v_lshl_add_u32 v%d, v%d, 5, v5" % (19 + j, 19 + j))
        a("v_add_u32 v%d, s66, v%d" % (19 + j, 19 + j))
        a("v_add_u32 v%d, 0x%x, v%d" % (22 + j, 2 * 24576, 19 + j))

    def bdma(st):
        o = []
        for j in range(3):
            o.append(("s_add_u32 m0, s3, 0x%x" % ((st % 4) * 24576 + 1024 * j),
                      "buffer_load_dwordx4 v%d, %s, s%d offen lds" % (12 + j, sr(SW, 4), S_SOB), "B%d" % st,
                      adv(S_SOB, 32 * 3456, 640 * 3456) if j == 2 else []))
        return o

    def adma(S):
        return [[("s_add_u32 m0, s79, 0x%x" % (ARING + (S % 3) * 16384 + 1024 * h),
                  "buffer_load_dwordx4 v%d, %s, s%d offen lds" % (10 + h, sr(SX, 4), S_SOA), "A%d" % S,
                  adv(S_SOA, 128, 1280) if h == 1 else [])] for h in range(2)]

    pre = ["v_and_b32 v25, 1, v4", "s_mov_b32 s66, %d" % ACT_MT, "v_mul_lo_u32 v25, v25, s66",
           "v_lshrrev_b32 v1, 1, v4", "v_lshl_add_u32 v25, v1, 8, v25", "v_and_b32 v1, 15, v2", "v_lshl_add_u32 v25, v1, 4, v25",
           "s_mul_i32 s66, s%d, %d" % (S_WM, 4 * ACT_MT), "s_mul_i32 s67, s%d, %d" % (S_WN, 6 * 256),
           "s_add_u32 s66, s66, s67", "v_add_u32 v25, s66, v25",
           "s_mul_i32 s70, s%d, %d" % (S_RB, 8 * ACT_MT), "s_mul_i32 s67, s%d, %d" % (S_FB, 24 * 256),
           "s_add_u32 s70, s70, s67", "s_add_u32 s70, s70, %d" % (80 * 256), "s_add_u32 s71, s70, %d" % (2 * ACT_MT),
           "s_lshl_b32 s66, s%d, 1" % S_RB, "s_add_u32 s66, s66, s%d" % S_WM, "s_lshl_b32 s66, s66, 9",
           "v_lshl_add_u32 v26, v1, 3, s66",
           "v_cmp_gt_u32 vcc, 48, v2", "v_mov_b32 v1, 0x%x" % BIG, "s_nop 0", "v_cndmask_b32 v27, v1, v3, vcc",
           "s_mul_i32 s72, s%d, 768" % S_FB, "s_add_u32 s72, s72, %d" % (ST_CS + 1920 * 4),
           "s_add_u32 s73, s72, %d" % (1728 * 4),
           "s_mul_i32 s66, s%d, 192" % S_WN, "s_add_u32 s66, s66, %d" % CSL, "v_lshl_add_u32 v28, v4, 4, s66",
           "v_mov_b32 v%d, 0" % (TT + 1)]
    RS = 36
    CS0 = 44
    t17 = [("buffer_load_dwordx2 %s, v26, %s, 0 offen offset:%d sc1" % (vr(RS + 2 * i, 2), sr(SST, 4), 128 * i), "TL") for i in range(4)]
    for mat in range(2):
        t17.append(["s_mov_b32 m0, %d" % (CSL + 1024 * mat), "s_nop 0",
                    ("buffer_load_dwordx4 v27, %s, s%d offen sc1 lds" % (sr(SST, 4), 72 + mat), "TL")])

    def csreg(t):
        return CS0 + 4 * t if t < 5 else 240
    t19 = ["ds_read_b128 %s, v28 offset:%d" % (vr(csreg(t), 4), (t // 3) * 1024 + (t % 3) * 64) for t in range(6)]
    bg, top = std_bg(pre, t17, t19)
    P = dict(nI=2, nJ=3, name="ffn", bdma=bdma, adma=adma, bg=bg, toptags=top,
             a_addr=lambda S3, q, i: (15 + q, S3 * 16384 + i * 2048),
             b_addr=lambda slot, j: (19 + 3 * (slot // 2) + j % 3, (slot % 2) * 24576 + (j // 3) * 12288))
    k1_mainloop(a, P)

    c1 = -2.0 * LOG2E * 0.7978845608028654
    RC = 5
    for i in range(4):
        a("v_rcp_f32 v%d, v%d" % (RC + 3 * i, RS + 2 * i + 1))
    a("s_nop 0")
    for i in range(4):
        a("v_mul_f32 v%d, v%d, v%d" % (RC + 3 * i + 2, RS + 2 * i + 1, RS + 2 * i + 1))
        a("v_mul_f32 v%d, v%d, v%d" % (RC + 3 * i + 1, RC + 3 * i, RC + 3 * i))
        a("v_mul_f32 v%d, 0x%x, v%d" % (RC + 3 * i, f2u(c1), RC + 3 * i))
        a("v_mul_f32 v%d, 0x%x, v%d" % (RC + 3 * i + 1, f2u(0.044715), RC + 3 * i + 1))
        a("v_mul_f32 v%d, v%d, v%d" % (RC + 3 * i + 1, RC + 3 * i + 1, RC + 3 * i))
    a("s_waitcnt lgkmcnt(0)")
    T0 = FR0
    OUT = FR0 + 16
    n = 0
    for ip in (0, 2):
        for j in range(3):
            el = []
            for ii in (ip, ip + 1):
                for r in range(4):
                    el.append((ACC + 4 * (ii * 6 + j) + r, ACC + 4 * (ii * 6 + 3 + j) + r, csreg(j) + r, csreg(3 + j) + r,
                               RS + 2 * ii, RC + 3 * ii, RC + 3 * ii + 1, RC + 3 * ii + 2))
            for q, (x, u, cg, cu, m_, k1_, k3_, s2_) in enumerate(el):
                a("v_fma_f32 v%d, -v%d, v%d, v%d" % (x, m_, cg, x))
            for q, (x, u, cg, cu, m_, k1_, k3_, s2_) in enumerate(el):
                a("v_mul_f32 v%d, v%d, v%d" % (T0 + q, x, x))
            for q, (x, u, cg, cu, m_, k1_, k3_, s2_) in enumerate(el):
                a("v_fma_f32 v%d, v%d, v%d, v%d" % (T0 + q, T0 + q, k3_, k1_))
            for q, (x, u, cg, cu, m_, k1_, k3_, s2_) in enumerate(el):
                a("v_mul_f32 v%d, v%d, v%d" % (T0 + q, x, T0 + q))
            for q, (x, u, cg, cu, m_, k1_, k3_, s2_) in enumerate(el):
                a("v_exp_f32 v%d, v%d" % (T0 + q, T0 + q))
            for q, (x, u, cg, cu, m_, k1_, k3_, s2_) in enumerate(el):
                a("v_fma_f32 v%d, -v%d, v%d, v%d" % (u, m_, cu, u))
            for q, (x, u, cg, cu, m_, k1_, k3_, s2_) in enumerate(el):
                a("v_fma_f32 v%d, v%d, v%d, v%d" % (T0 + q, T0 + q, s2_, s2_))
            for q, (x, u, cg, cu, m_, k1_, k3_, s2_) in enumerate(el):
                a("v_rcp_f32 v%d, v%d" % (T0 + q, T0 + q))
            for q, (x, u, cg, cu, m_, k1_, k3_, s2_) in enumerate(el):
                a("v_mul_f32 v%d, v%d, v%d" % (u, x, u))
            for q, (x, u, cg, cu, m_, k1_, k3_, s2_) in enumerate(el):
                a("v_mul_f32 v%d, v%d, v%d" % (u, u, T0 + q))
            o = OUT + 4 * (n % 3)
            n += 1
            for q in range(4):
                a("v_cvt_pk_bf16_f32 v%d, v%d, v%d" % (o + q, el[2 * q][1], el[2 * q + 1][1]))
            a("s_nop 1")
            a("v_permlane16_swap_b32 v%d, v%d" % (o, o + 2))
            a("v_permlane16_swap_b32 v%d, v%d" % (o + 1, o + 3))
            a("s_nop 1")
            a("buffer_store_dwordx4 %s, v25, %s, s%d offen offset:%d" % (vr(o, 4), sr(SACT, 4), 70 + ip // 2, 512 * j))
    if STAMP:
        a("s_branch L_k1_flush")
    a("s_endpgm")

    a.label("L_k1_att")
    a.vm = ["TW"]
    a("s_cmp_lt_u32 s%d, 31" % S_SLOT)
    a("s_cbranch_scc0 L_k1_extra")
    a("s_sub_u32 s%d, s%d, 18" % (S_RB, S_SLOT))
    make_srd(a, SW, 6, 7, 640 * 3840)
    ARING = 65536
    ASLOT = 22528
    a("s_add_u32 s66, s%d, s%d" % (S_RB, S_XCD))
    for _ in range(2):
        a("s_cmp_ge_u32 s66, 10")
        a("s_cselect_b32 s67, 10, 0")
        a("s_sub_u32 s66, s66, s67")
    if not ROT:
        a("s_mov_b32 s66, 0")
    a("s_lshl_b32 s%d, s66, 7" % S_SOA)
    a("s_mul_i32 s%d, s66, 245760" % S_SOB)
    a("s_mul_i32 s70, s%d, 160" % S_XCD)
    a("v_mul_u32_u24 v16, 3840, v7")
    a("v_add_u32 v16, s70, v16")
    a("s_lshr_b32 s66, s%d, 1" % S_W)
    a("s_lshl_b32 s66, s66, 2")
    a("v_mov_b32 v17, 1120")
    for j in range(2):
        if j:
            a("v_xor_b32 v1, 2, v8")
            a("v_add_u32 v1, s66, v1")
        else:
            a("v_add_u32 v1, s66, v8")
        a("v_min_u32 v1, 14, v1")
        a("v_lshlrev_b32 v%d, 5, v1" % (13 + j))
        a("v_lshl_add_u32 v%d, v9, 4, v%d" % (13 + j, 13 + j))
        a("v_cmp_le_u32 vcc, 5, v1")
        a("v_add_u32 v%d, v%d, v16" % (13 + j, 13 + j))
        a("s_and_b32 s67, s%d, 1" % S_W)
        a("v_cndmask_b32 v18, 0, v17, vcc")
        a("v_cmp_le_u32 vcc, 10, v1")
        a("v_add_u32 v%d, v%d, v18" % (13 + j, 13 + j))
        a("s_lshl_b32 s67, s67, 1")
        a("v_cndmask_b32 v18, 0, v17, vcc")
        a("s_add_u32 s67, s67, %d" % j)
        a("s_mul_i32 s67, s67, %d" % (8 * 3840))
        a("v_add3_u32 v%d, v%d, v18, s67" % (13 + j, 13 + j))
    a("s_and_b32 s66, s%d, 1" % S_W)
    a("s_lshl_b32 s66, s66, 6")
    a("v_xor_b32 v1, s66, v10")
    a("s_mul_i32 s66, s%d, 20" % S_RB)
    a("s_add_u32 s66, s66, s%d" % S_W)
    a("s_sub_u32 s67, s66, 2")
    a("s_mul_i32 s67, s67, %d" % (8 * 1280))
    a("s_cmp_lt_u32 s66, 2")
    a("s_cselect_b32 s68, 0x%x, s67" % BIG)
    a("v_add_u32 v10, s68, v1")
    a("s_add_u32 s67, s67, %d" % (64 * 1280))
    a("v_add_u32 v11, s67, v1")
    a("s_add_u32 s68, s67, %d" % (64 * 1280))
    a("s_cmp_lt_u32 s%d, 6" % S_W)
    a("s_cselect_b32 s68, s68, s67")
    a("s_cselect_b32 s78, 16384, 8192")
    a("v_add_u32 v12, s68, v1")
    a("s_lshl_b32 s79, s%d, 10" % S_W)
    a("s_add_u32 s78, s78, s79")
    a("s_lshl_b32 s3, s%d, 11" % S_W)
    a("s_mul_i32 s66, s%d, %d" % (S_WM, 6 * 2048))
    a("s_add_u32 s66, s66, %d" % ARING)
    for c in ((3, 2, 1, 0) if MF == 32 else (1, 0)):
        if c:
            a("v_xor_b32 v%d, %d, v15" % (15 + c, (32 if MF == 32 else 64) * c))
        a("v_add_u32 v%d, s66, v%d" % (15 + c, 15 + c))
    a("s_lshl_b32 s66, s%d, 12" % S_WN)
    for j in range(4):
        a("v_xor_b32 v%d, %d, v6" % (17 + j, j))
        a("v_lshl_add_u32 v%d, v%d, 5, v5" % (17 + j, 17 + j))
        a("v_add_u32 v%d, s66, v%d" % (17 + j, 17 + j))

    def bdma2(st):
        return [("s_add_u32 m0, s3, 0x%x" % ((st % 4) * 16384 + 1024 * j),
                 "buffer_load_dwordx4 v%d, %s, s%d offen lds" % (13 + j, sr(SW, 4), S_SOB), "B%d" % st,
                 adv(S_SOB, 32 * 3840, 640 * 3840) if j == 1 else []) for j in range(2)]

    def adma2(S):
        b = ARING + (S % 3) * ASLOT
        ld = "buffer_load_dwordx4 v%d, %s, s%d offen lds"
        return [[("s_add_u32 m0, s79, 0x%x" % b, ld % (10, sr(SX, 4), S_SOA), "A%d" % S, []),
                 ("s_add_u32 m0, s79, 0x%x" % (b + 8192), ld % (11, sr(SX, 4), S_SOA), "A%d" % S, [])],
                [("s_add_u32 m0, s78, 0x%x" % b, ld % (12, sr(SX, 4), S_SOA), "A%d" % S,
                  adv(S_SOA, 128, 1280))]]

    pre = ["v_and_b32 v1, 15, v2", "s_mul_i32 s66, s%d, 96" % S_WM, "v_add_u32 v5, s66, v1",
           "v_mul_u32_u24 v5, %d, v5" % PITCH, "v_lshl_add_u32 v5, v4, 3, v5", "v_lshlrev_b32 v6, 4, v4",
           "s_mul_i32 s67, s%d, 160" % S_RB, "s_add_u32 s66, s66, s67", "s_sub_u32 s66, s66, 16", "s_lshl_b32 s66, s66, 3",
           "v_lshl_add_u32 v63, v1, 3, s66"]
    for t in range(4):
        pre += ["s_lshl_b32 s66, s%d, 2" % S_WN, "s_add_u32 s66, s66, %d" % t, "s_min_u32 s66, s66, 14",
                ["s_cmp_ge_u32 s66, 5", "s_cselect_b32 s67, 5, 0", "s_cselect_b32 s68, %d, %d" % (REG_K, REG_Q),
                 "s_cselect_b32 s69, 1024, 0"],
                ["s_cmp_ge_u32 s66, 10", "s_cselect_b32 s67, 10, s67", "s_cselect_b32 s68, %d, s68" % REG_V,
                 "s_cselect_b32 s69, 2048, s69"],
                "s_sub_u32 s66, s66, s67", "s_lshl_b32 s67, s66, 5", "s_add_u32 s67, s67, s68",
                "v_add_u32 v%d, s67, v5" % (21 + t),
                "s_lshl_b32 s66, s66, 6", "s_add_u32 s66, s66, s69", "s_add_u32 s66, s66, %d" % CSL,
                "v_add_u32 v%d, s66, v6" % (52 + t)]
    pre += ["v_and_b32 v1, 15, v2", "v_lshrrev_b32 v26, 4, v2", "v_lshlrev_b32 v6, 2, v26", "v_sub_u32 v6, v1, v6"]
    for T in range(2):
        for r in range(4):
            pre += ["v_add_u32 v7, %d, v6" % (16 - 16 * T - r), "v_alignbit_b32 v7, v7, v7, 1",
                    "v_cmp_ge_u32 %s, 7, v7" % sr(4 + 2 * (4 * T + r), 2)]
    pre += ["s_or_b32 s66, s%d, s%d" % (S_WM, S_RB)]
    pre += [["s_cmp_eq_u32 s66, 0"] + ["s_cselect_b64 %s, 0, %s" % (sr(44 + 2 * r, 2), sr(4 + 2 * r, 2)) for r in range(4)]]
    pre += ["s_mul_i32 s66, s%d, %d" % (S_WM, 80 * PITCH), "s_mul_i32 s67, s%d, 40" % S_WN, "s_add_u32 s66, s66, s67",
            "v_mul_u32_u24 v5, %d, v1" % PITCH, "v_add_u32 v5, s66, v5",
            "v_lshlrev_b32 v6, 4, v26", "v_add_u32 v7, 8, v6",
            "v_cmp_gt_u32 s[76:77], 3, v26", "v_cmp_gt_u32 s[74:75], 2, v26", "s_nop 1",
            "v_cndmask_b32 v6, 0, v6, s[76:77]", "v_cndmask_b32 v7, 0, v7, s[74:75]",
            "v_add_u32 v56, v5, v6", "v_add_u32 v57, v5, v7",
            "v_add_u32 v58, %d, v56" % (REG_Q + 16 * PITCH), "v_add_u32 v59, %d, v57" % (REG_Q + 16 * PITCH),
            "v_lshrrev_b32 v60, 2, v2", "v_mul_u32_u24 v60, %d, v60" % PITCH, "v_and_b32 v6, 3, v2",
            "v_lshl_add_u32 v60, v6, 3, v60", "s_add_u32 s66, s66, %d" % REG_V, "v_add_u32 v60, s66, v60",
            "s_mul_i32 s66, s%d, 20" % S_XCD, "s_mul_i32 s67, s%d, 5" % S_WN, "s_add_u32 s66, s66, s67"]
    for Dd in range(2):
        pre += ["v_add_u32 v6, s66, v26"] + (["v_add_u32 v6, 4, v6"] if Dd else []) + \
               ["v_lshrrev_b32 v7, 1, v6", "v_lshlrev_b32 v7, 8, v7", "v_and_b32 v6, 1, v6",
                "v_lshl_add_u32 v7, v6, 3, v7", "v_lshl_add_u32 v%d, v1, 4, v7" % (61 + Dd)]
    pre += ["v_cmp_gt_u32 vcc, 16, v2", "v_mov_b32 v6, 0x%x" % BIG, "s_nop 1", "v_cndmask_b32 v62, v6, v62, vcc",
            "v_cmp_gt_u32 vcc, 20, v2", "s_nop 1", "v_cndmask_b32 v27, v6, v3, vcc",
            "s_mul_i32 s69, s%d, 10" % S_RB, "s_mul_i32 s67, s%d, 5" % S_WM, "s_add_u32 s69, s69, s67",
            "s_mul_i32 s69, s69, %d" % ACT_MT,
            "s_mul_i32 s70, s%d, 320" % S_XCD, "s_add_u32 s70, s70, %d" % ST_CS, "s_add_u32 s71, s70, 2560", "s_add_u32 s72, s70, 5120",
            "v_mov_b32 v%d, 0" % (TT + 1)]
    RS = 36
    t17 = ["v_add_u32 v1, 128, v63",
           ("buffer_load_dwordx2 %s, v63, %s, 0 offen sc1" % (vr(RS, 2), sr(SST, 4)), "TL")]
    for i in range(1, 6):
        t17.append(("buffer_load_dwordx2 %s, v1, %s, 0 offen offset:%d sc1" % (vr(RS + 2 * i, 2), sr(SST, 4), 128 * (i - 1)), "TL"))
    for sec in range(3):
        t17.append(["s_mov_b32 m0, %d" % (CSL + 1024 * sec), "s_nop 0",
                    ("buffer_load_dwordx4 v27, %s, s%d offen sc1 lds" % (sr(SST, 4), 70 + sec), "TL")])

    def csreg2(t):
        return 240 + 4 * t
    t19 = ["ds_read_b128 %s, v%d" % (vr(csreg2(t), 4), 52 + t) for t in range(4)]
    bg, top = std_bg(pre, t17, t19)
    P = dict(nI=3, nJ=2, name="att", bdma=bdma2, adma=adma2, bg=bg, toptags=top,
             a_addr=lambda S3, q, i: (15 + q, S3 * ASLOT + i * 2048),
             b_addr=lambda slot, j: (17 + j, slot * 16384))
    k1_mainloop(a, P)

    for i in range(6):
        a("v_max_f32 v%d, 0x%x, v%d" % (RS + 2 * i + 1, f2u(1e-3), RS + 2 * i + 1))
    for i in range(6):
        a("v_rcp_f32 v%d, v%d" % (RS + 2 * i + 1, RS + 2 * i + 1))
    a("s_waitcnt lgkmcnt(0)")
    W0 = FR0
    n = 0
    for i in range(6):
        for j in range(4):
            acc = ACC + 4 * (i * 4 + j)
            for r in range(4):
                a("v_fma_f32 v%d, -v%d, v%d, v%d" % (acc + r, RS + 2 * i, csreg2(j) + r, acc + r))
        for j in range(4):
            acc = ACC + 4 * (i * 4 + j)
            for r in range(4):
                a("v_mul_f32 v%d, v%d, v%d" % (acc + r, acc + r, RS + 2 * i + 1))
        for j in range(4):
            acc = ACC + 4 * (i * 4 + j)
            o = W0 + 2 * (n % 8)
            n += 1
            a("v_cvt_pk_bf16_f32 v%d, v%d, v%d" % (o, acc, acc + 1))
            a("v_cvt_pk_bf16_f32 v%d, v%d, v%d" % (o + 1, acc + 2, acc + 3))
            a("ds_write_b64 v%d, %s offset:%d" % (21 + j, vr(o, 2), i * 16 * PITCH))
    a("s_waitcnt lgkmcnt(0)")
    a("s_barrier")
    IB = ACC
    SB = FR0 + 8
    TB = FR0 + 48
    for n in range(5):
        b = IB + 20 * n
        off = n * 16 * PITCH
        a("ds_read_b64 %s, v58 offset:%d" % (vr(b, 2), off))
        a("ds_read_b64 %s, v59 offset:%d" % (vr(b + 2, 2), off))
        for T in range(2):
            a("ds_read_b64 %s, v56 offset:%d" % (vr(b + 4 + 4 * T, 2), off + T * 16 * PITCH))
            a("ds_read_b64 %s, v57 offset:%d" % (vr(b + 6 + 4 * T, 2), off + T * 16 * PITCH))
    for n in range(5):
        b = IB + 20 * n
        off = n * 16 * PITCH
        for Dd in range(2):
            for e in range(2):
                a("ds_read_b64_tr_b16 %s, v60 offset:%d" % (vr(b + 12 + 4 * Dd + 2 * e, 2), off + e * 16 * PITCH + Dd * 32))
    SC = (20 ** -0.5) * LOG2E
    a("v_mov_b32 v5, 0x%x" % f2u(SC))
    a("v_mov_b32 v6, 0x%x" % f2u(-1e9))
    a("s_waitcnt lgkmcnt(15)")
    for n in range(5):
        b = IB + 20 * n
        a("v_cndmask_b32 v%d, 0, v%d, s[76:77]" % (b, b))
        a("v_cndmask_b32 v%d, 0, v%d, s[76:77]" % (b + 1, b + 1))
        a("v_cndmask_b32 v%d, 0, v%d, s[74:75]" % (b + 2, b + 2))
        a("v_cndmask_b32 v%d, 0, v%d, s[74:75]" % (b + 3, b + 3))
    a("s_nop 1")
    for n in range(5):
        b = IB + 20 * n
        for T in range(2):
            a("v_mfma_f32_16x16x32_bf16 %s, %s, %s, 0" % (vr(SB + 8 * n + 4 * T, 4), vr(b + 4 + 4 * T, 4), vr(b, 4)))
    a("s_nop 0")
    for n in range(5):
        s = SB + 8 * n
        for q in range(8):
            a("v_mul_f32 v%d, v5, v%d" % (s + q, s + q))
        for q in range(8):
            m = sr(44 + 2 * q, 2) if (n == 0 and q < 4) else sr(4 + 2 * q, 2)
            a("v_cndmask_b32 v%d, v6, v%d, %s" % (s + q, s + q, m))
        t = TB + 2 * n
        a("v_max3_f32 v%d, v%d, v%d, v%d" % (t, s, s + 1, s + 2))
        a("v_max3_f32 v%d, v%d, v%d, v%d" % (t + 1, s + 3, s + 4, s + 5))
        a("v_max3_f32 v%d, v%d, v%d, v%d" % (t, t, s + 6, s + 7))
        a("v_max_f32 v%d, v%d, v%d" % (t, t, t + 1))
    tr = [TB + 2 * n for n in range(5)]
    tt = [TB + 2 * n + 1 for n in range(5)]
    for x in xreduce(tr, tt, "v_max_f32"):
        a(x)
    for n in range(5):
        s = SB + 8 * n
        t = TB + 2 * n
        for q in range(8):
            a("v_sub_f32 v%d, v%d, v%d" % (s + q, s + q, t))
        for q in range(8):
            a("v_exp_f32 v%d, v%d" % (s + q, s + q))
        a("s_nop 0")
        a("v_add_f32 v%d, v%d, v%d" % (t, s, s + 1))
        a("v_add_f32 v%d, v%d, v%d" % (t + 1, s + 2, s + 3))
        a("v_add_f32 v%d, v%d, v%d" % (t, t, s + 4))
        a("v_add_f32 v%d, v%d, v%d" % (t + 1, t + 1, s + 5))
        a("v_add_f32 v%d, v%d, v%d" % (t, t, s + 6))
        a("v_add_f32 v%d, v%d, v%d" % (t + 1, t + 1, s + 7))
        a("v_add_f32 v%d, v%d, v%d" % (t, t, t + 1))
    for x in xreduce(tr, tt, "v_add_f32"):
        a(x)
    for n in range(5):
        t = TB + 2 * n
        a("v_rcp_f32 v%d, v%d" % (t, t))
    a("s_nop 0")
    for n in range(5):
        s = SB + 8 * n
        t = TB + 2 * n
        b = IB + 20 * n
        for q in range(8):
            a("v_mul_f32 v%d, v%d, v%d" % (s + q, s + q, t))
        for q in range(4):
            a("v_cvt_pk_bf16_f32 v%d, v%d, v%d" % (b + q, s + 2 * q, s + 2 * q + 1))
    a("s_waitcnt lgkmcnt(0)")
    a("s_nop 0")
    for n in range(5):
        b = IB + 20 * n
        for Dd in range(2):
            a("v_mfma_f32_16x16x32_bf16 %s, %s, %s, 0" % (vr(SB + 8 * n + 4 * Dd, 4), vr(b + 12 + 4 * Dd, 4), vr(b, 4)))
    a("s_nop 0")
    for n in range(5):
        s = SB + 8 * n
        b = IB + 20 * n
        for Dd in range(2):
            a("v_cvt_pk_bf16_f32 v%d, v%d, v%d" % (b + 4 + 2 * Dd, s + 4 * Dd, s + 4 * Dd + 1))
            a("v_cvt_pk_bf16_f32 v%d, v%d, v%d" % (b + 5 + 2 * Dd, s + 4 * Dd + 2, s + 4 * Dd + 3))
        for Dd in range(2):
            a("buffer_store_dwordx2 %s, v%d, %s, s69 offen" % (vr(b + 4 + 2 * Dd, 2), 61 + Dd, sr(SACT, 4)))
        a("s_add_u32 s69, s69, %d" % ACT_MT)
    if STAMP:
        a.label("L_k1_flush")
        stamp_flush(a, S_W, 22, 23, 1, "L_k1_end")
    a("s_endpgm")

    a.label("L_k1_extra")
    a.vm = ["TW"]
    stats_setup(a)
    for x in stats_loads() + k2_prefetch():
        emit(a, x)
    a("s_waitcnt vmcnt(0)")
    for x in stats_segA():
        emit(a, x)
    a("s_waitcnt lgkmcnt(0)")
    a("s_barrier")
    for x in stats_segB():
        emit(a, x)
    a("s_waitcnt lgkmcnt(0)")
    for x in stats_segC():
        emit(a, x)
    a("s_waitcnt vmcnt(0)")
    a("s_barrier")
    for x in stats_signal():
        emit(a, x)
    a.label("L_k1_end")
    a("s_endpgm")
    return (name, 256, 102 if STAMP else 80)


K2_NS = 7
K2_SLOT = 20480
K2_LDS = K2_NS * K2_SLOT
K2_NST = 37


def gen_k2(a):
    name = "gemm2_kernel"
    kernel_header(a, name)
    a("s_cmp_ge_u32 s2, 250")
    a("s_cbranch_scc1 L_k2_end")
    stamp_start(a)
    a("s_load_dwordx2 s[4:5], s[0:1], 0")
    a("s_load_dwordx2 s[6:7], s[0:1], 16")
    a("s_load_dwordx4 s[28:31], s[0:1], 48")
    a("s_load_dwordx2 s[32:33], s[0:1], 72")
    a("v_lshrrev_b32 v1, 6, v0")
    a("v_and_b32 v2, 63, v0")
    a("v_readfirstlane_b32 s20, v1")
    a("s_and_b32 s21, s2, 7")
    a("s_lshr_b32 s22, s2, 3")
    a("s_mul_i32 s23, s21, 31")
    a("s_min_u32 s24, s21, 2")
    a("s_add_u32 s23, s23, s24")
    a("s_add_u32 s23, s23, s22")
    a("s_mul_i32 s24, s23, 205")
    a("s_lshr_b32 s24, s24, 11")
    a("s_mul_i32 s25, s24, 10")
    a("s_sub_u32 s25, s23, s25")
    a("s_mul_i32 s26, s24, 6")
    a("s_mul_i32 s27, s24, 5")
    a("s_add_u32 s27, s27, 3")
    a("s_cmp_lt_u32 s24, 3")
    a("s_cselect_b32 s26, s26, s27")
    a("s_cselect_b32 s27, 6, 5")
    a("v_lshlrev_b32 v3, 4, v2")
    a("v_lshrrev_b32 v4, 4, v2")
    a("v_lshlrev_b32 v5, 10, v4")
    a("v_bfe_u32 v6, v2, 2, 2")
    a("v_lshl_add_u32 v5, v6, 7, v5")
    a("v_and_b32 v6, 3, v2")
    a("v_lshl_add_u32 v5, v6, 3, v5")
    a("v_bfe_u32 v6, v2, 3, 2")
    a("v_lshrrev_b32 v7, 3, v2")
    a("v_bfe_u32 v8, v2, 1, 2")
    a("v_bfe_u32 v9, v2, 4, 1")
    a("v_xor_b32 v8, v8, v9")
    a("v_and_b32 v9, 1, v2")
    a("s_lshr_b32 s34, s20, 2")
    a("s_bfe_u32 s35, s20, 0x10001")
    a("s_and_b32 s36, s20, 1")
    a("s_waitcnt lgkmcnt(0)")
    make_srd(a, 8, 32, 33, ACT_BYTES, ACT_OFF)
    make_srd(a, 12, 6, 7, 640 * 1280)
    make_srd(a, 16, 28, 29, 1728 * 1280)
    make_srd(a, 40, 4, 5, 2048 * 1280)
    make_srd(a, 44, 30, 31, 2048 * 1280)
    a("s_mul_i32 s37, s35, 3")
    a("s_add_u32 s37, s37, s26")
    a("s_mul_i32 s37, s37, %d" % (16 * 1280))
    a("s_lshl_b32 s38, s25, 7")
    a("s_add_u32 s37, s37, s38")
    a("s_lshl_b32 s38, s36, 1")
    a("s_add_u32 s38, s38, s34")
    a("s_lshl_b32 s38, s38, 5")
    a("s_add_u32 s37, s37, s38")
    a("v_and_b32 v26, 15, v2")
    a("v_mul_u32_u24 v26, 1280, v26")
    a("v_lshl_add_u32 v26, v4, 3, v26")
    a("v_add_u32 v26, s37, v26")
    a("s_mov_b32 s38, %d" % (16 * 1280))
    a("s_mov_b32 s39, %d" % (32 * 1280))
    a("buffer_load_dwordx2 v[28:29], v26, s[40:43], 0 offen")
    a("buffer_load_dwordx2 v[30:31], v26, s[40:43], s38 offen")
    a("buffer_load_dwordx2 v[32:33], v26, s[40:43], s39 offen")
    a("s_add_u32 s37, s26, s20")
    a("s_mul_i32 s37, s37, %d" % ACT_MT)
    a("v_add_u32 v10, s37, v3")
    a("s_mov_b32 s48, 0")
    a("v_lshlrev_b32 v11, 5, v8")
    a("v_lshl_add_u32 v11, v9, 4, v11")
    a("s_lshl_b32 s37, s36, 6")
    a("v_xor_b32 v11, s37, v11")
    a("v_mul_u32_u24 v12, 1280, v7")
    a("s_mul_i32 s37, s20, %d" % (8 * 1280))
    a("s_lshl_b32 s49, s25, 7")
    a("s_add_u32 s37, s37, s49")
    a("v_add3_u32 v11, v11, v12, s37")
    a("s_mov_b32 s49, 0")
    a("s_lshl_b32 s50, s20, 11")
    a("s_lshl_b32 s51, s20, 10")
    a("s_mul_i32 s37, s35, 6144")
    a("s_lshl_b32 s52, s34, 10")
    a("s_add_u32 s37, s37, s52")
    a("v_add_u32 v12, s37, v3")
    a("v_add_u32 v13, 0x10000, v12")
    a("v_add_u32 v14, 0x20000, v12")
    a("s_lshl_b32 s52, s34, 12")
    for jj in range(2):
        a("s_lshl_b32 s37, s36, 1")
        a("s_add_u32 s37, s37, %d" % jj)
        a("v_xor_b32 v%d, s37, v6" % (15 + 3 * jj))
        a("v_lshl_add_u32 v%d, v%d, 5, v5" % (15 + 3 * jj, 15 + 3 * jj))
        a("v_add_u32 v%d, s52, v%d" % (15 + 3 * jj, 15 + 3 * jj))
        a("v_add_u32 v%d, 0x10000, v%d" % (16 + 3 * jj, 15 + 3 * jj))
        a("v_add_u32 v%d, 0x20000, v%d" % (17 + 3 * jj, 15 + 3 * jj))
    AC = 64
    FRB = 96
    NS = K2_NS

    def split(off):
        return off >> 16, off & 0xffff

    def read_ops(st):
        p = st % 2
        base = (st % NS) * K2_SLOT
        ops = []
        for jj in range(2):
            for e in range(2):
                h, l = split(base + 12288 + e * 512)
                ops.append("ds_read_b64_tr_b16 %s, v%d offset:%d" % (vr(FRB + 20 * p + 12 + 4 * jj + 2 * e, 2), 15 + 3 * jj + h, l))
        for i in range(3):
            h, l = split(base + i * 2048)
            ops.append("ds_read_b128 %s, v%d offset:%d" % (vr(FRB + 20 * p + 4 * i, 4), 12 + h, l))
        return ops

    def body(loader):
        nd = 3 if loader else 1

        def dma_ops(st):
            base = (st % NS) * K2_SLOT
            srd = 12 if st < 10 else 16
            ops = []
            if st == 10:
                ops.append(["s_mov_b32 s49, 0"])
            ops.append(["s_add_u32 m0, s51, 0x%x" % (base + 12288)])
            ops.append(["buffer_load_dwordx4 v11, %s, s49 offen lds" % sr(srd, 4), "s_add_u32 s49, s49, %d" % (64 * 1280)])
            if loader:
                ops.append(["s_add_u32 m0, s50, 0x%x" % base])
                ops.append(["buffer_load_dwordx4 v10, s[8:11], s48 offen lds"])
                ops.append(["buffer_load_dwordx4 v10, s[8:11], s48 offen offset:1024 lds", "s_add_u32 s48, s48, 2048"])
            return ops
        for st in range(NS):
            for o in dma_ops(st):
                for x in o:
                    a(x)
                if o[0].startswith("s_add_u32 m0"):
                    a("s_nop 0")
        stamp(a, 1)
        a("s_waitcnt vmcnt(%d)" % (nd * (NS - 1)))
        a("s_barrier")
        stamp(a, 2)
        for x in read_ops(0):
            a(x)
        for it in range(K2_NST):
            if it in (10, 20, 30):
                stamp(a, 2 + it // 10)
            p = it % 2
            outstanding_after = min(K2_NST - 1, it + NS - 1) - (it + 1)
            if it + 1 < K2_NST:
                a("s_waitcnt vmcnt(%d) lgkmcnt(0)" % (nd * max(0, outstanding_after)))
            else:
                a("s_waitcnt lgkmcnt(0)")
            a("s_barrier")
            fillers = []
            if it + NS < K2_NST:
                fillers += dma_ops(it + NS)
            rd = read_ops(it + 1) if it + 1 < K2_NST else []
            gaps = [[] for _ in range(6)]
            for q, o in enumerate(fillers):
                gaps[min(q, 5)] += o
            for q, x in enumerate(rd):
                gaps[min(q, 5)].append(x)
            k = 0
            for i in range(3):
                for jj in range(2):
                    acc = AC + 4 * (2 * i + jj)
                    c = "0" if it == 0 else vr(acc, 4)
                    a("v_mfma_f32_16x16x32_bf16 %s, %s, %s, %s" % (vr(acc, 4), vr(FRB + 20 * p + 12 + 4 * jj, 4), vr(FRB + 20 * p + 4 * i, 4), c))
                    for x in gaps[k]:
                        a(x)
                    k += 1
    a("s_cmp_lt_u32 s20, s27")
    a("s_cbranch_scc0 L_k2_nl")
    body(True)
    a("s_branch L_k2_epi")
    a.label("L_k2_nl")
    body(False)
    a.label("L_k2_epi")
    stamp(a, 6)
    a("s_mul_i32 s37, s20, 3072")
    a("v_add_u32 v12, s37, v3")
    a("s_xor_b32 s37, s20, 4")
    a("s_mul_i32 s37, s37, 3072")
    a("v_add_u32 v13, s37, v3")
    a("s_nop 4")
    a("s_cmp_eq_u32 s34, 0")
    a("s_cbranch_scc0 L_k2_x1")
    for kq in range(2):
        for i in range(3):
            a("ds_write_b128 v12, %s offset:%d" % (vr(AC + 4 * (2 * i + 1 - kq), 4), 1024 * i))
        for i in range(3):
            for r in range(4):
                a("v_mov_b32 v%d, v%d" % (FRB + 4 * i + r, AC + 4 * (2 * i + kq) + r))
        if kq == 0:
            a("s_branch L_k2_x2")
            a.label("L_k2_x1")
    a.label("L_k2_x2")
    a("s_waitcnt lgkmcnt(0)")
    a("s_barrier")
    for i in range(3):
        a("ds_read_b128 %s, v13 offset:%d" % (vr(AC + 4 * i, 4), 1024 * i))
    a("s_mov_b32 s37, 0xffff0000")
    a("s_waitcnt vmcnt(0) lgkmcnt(0)")
    for i in range(3):
        for r in range(4):
            a("v_add_f32 v%d, v%d, v%d" % (FRB + 4 * i + r, FRB + 4 * i + r, AC + 4 * i + r))
        for d in range(2):
            a("v_lshlrev_b32 v%d, 16, v%d" % (AC + 4 * i, 28 + 2 * i + d))
            a("v_and_b32 v%d, s37, v%d" % (AC + 4 * i + 1, 28 + 2 * i + d))
            a("v_add_f32 v%d, v%d, v%d" % (FRB + 4 * i + 2 * d, FRB + 4 * i + 2 * d, AC + 4 * i))
            a("v_add_f32 v%d, v%d, v%d" % (FRB + 4 * i + 2 * d + 1, FRB + 4 * i + 2 * d + 1, AC + 4 * i + 1))
        for d in range(2):
            a("v_cvt_pk_bf16_f32 v%d, v%d, v%d" % (28 + 2 * i + d, FRB + 4 * i + 2 * d, FRB + 4 * i + 2 * d + 1))
    a("buffer_store_dwordx2 v[28:29], v26, s[44:47], 0 offen")
    a("buffer_store_dwordx2 v[30:31], v26, s[44:47], s38 offen")
    a("s_sub_u32 s37, s27, s35")
    a("s_cmp_eq_u32 s37, 4")
    a("s_cbranch_scc1 L_k2_fl")
    a("buffer_store_dwordx2 v[32:33], v26, s[44:47], s39 offen")
    a.label("L_k2_fl")
    stamp_flush(a, 20, 32, 33, 2, "L_k2_end")
    a.label("L_k2_end")
    a("s_endpgm")
    return (name, 136, 102 if STAMP else 56)


def main():
    a = Asm()
    hdr = open("cdna_kernels/%s.s.ref" % NAME).read().splitlines()
    for l in hdr:
        if l.startswith(";") and "@launch" not in l:
            a.raw(l)
    a.raw("; @launch kernel=gemm1_kernel grid=(256,1,1) block=(512,1,1) lds=%d" % K1_LDS)
    a.raw("; @launch kernel=gemm2_kernel grid=(250,1,1) block=(512,1,1) lds=%d" % K2_LDS)
    a.raw('.amdgcn_target "amdgcn-amd-amdhsa--gfx950"')
    ks = [gen_k1(a), gen_k2(a)]
    for (n, v, s) in ks:
        kernel_desc(a, n, v, s)
    av = [x for x in sys.argv[1:] if not x.startswith("--")]
    out = av[0] if av else "cdna_kernels/%s.s" % NAME
    open(out, "w").write(a.text())


main()
```

```python
import sys, struct, re

NAME = "parallel_sum__sliding_local_dilated__geglu_ffn__prompt"
ST_OFF = 0
ST_CS = 2048 * 8
ST_BYTES = ST_CS + 5376 * 4
ACT_OFF = 4 << 20
ACT_MT = 74 * 1024
ACT_BYTES = 128 * ACT_MT
BIG = 0x40000000
LOG2E = 1.4426950408889634
STAMP = "--stamp" in sys.argv
STAMP_OFF = 32 << 20
MF = 32 if "--mf32" in sys.argv else 16
ROT = 0 if "--norot" in sys.argv else 1


def f2u(x):
    return struct.unpack("<I", struct.pack("<f", x))[0]


class Asm:
    def __init__(self):
        self.l = []
        self.vm = []

    def __call__(self, s, tag=None):
        m = re.match(r"s_cselect_b32 (s\d+), (\d+|0x[0-9a-f]+), (\d+|0x[0-9a-f]+)$", s)
        if m and int(m.group(2), 0) > 64 and int(m.group(3), 0) > 64:
            self.l.append("    s_mov_b32 %s, %s" % (m.group(1), m.group(3)))
            s = "s_cselect_b32 %s, %s, %s" % (m.group(1), m.group(2), m.group(1))
        self.l.append("    " + s)
        if s.startswith("buffer_") or s.startswith("global_"):
            kind = "D" if s.endswith(" lds") else ("L" if ("_load" in s or ("atomic" in s and " sc0" in s)) else "S")
            self.vm.append((tag, kind))

    def vmwait(self, tags):
        best = None
        for kind in "DLS":
            idx = [i for i, (t, k) in enumerate(self.vm) if t in tags and k == kind]
            if not idx:
                continue
            n = 0 if kind == "S" else sum(1 for (t, k) in self.vm[max(idx) + 1:] if k == kind)
            best = n if best is None else min(best, n)
        return None if best is None else min(63, best)

    def label(self, s):
        self.l.append(s + ":")

    def raw(self, s):
        self.l.append(s)

    def text(self):
        return "\n".join(self.l) + "\n"


def vr(a, n):
    return "v[%d:%d]" % (a, a + n - 1)


def sr(a, n):
    return "s[%d:%d]" % (a, a + n - 1)


def kernel_header(a, name):
    a.raw(".text")
    a.raw(".globl %s" % name)
    a.raw(".p2align 8")
    a.raw(".type %s,@function" % name)
    a.label(name)


def kernel_desc(a, name, vgpr, sgpr):
    a.raw('.section .rodata,"a"')
    a.raw(".p2align 6")
    a.raw(".amdhsa_kernel %s" % name)
    a.raw("  .amdhsa_next_free_vgpr %d" % vgpr)
    a.raw("  .amdhsa_next_free_sgpr %d" % sgpr)
    a.raw("  .amdhsa_accum_offset %d" % ((vgpr + 3) // 4 * 4))
    a.raw("  .amdhsa_group_segment_fixed_size 0")
    a.raw("  .amdhsa_kernarg_size 80")
    a.raw("  .amdhsa_user_sgpr_count 2")
    a.raw("  .amdhsa_user_sgpr_kernarg_segment_ptr 1")
    a.raw("  .amdhsa_system_sgpr_workgroup_id_x 1")
    a.raw(".end_amdhsa_kernel")


def stamp(a, idx):
    if STAMP:
        a("s_memtime %s" % sr(80 + 2 * idx, 2))


def stamp_start(a):
    if STAMP:
        a("s_memtime s[80:81]")
        a("s_memrealtime s[98:99]")


def stamp_flush(a, wave_sgpr, wslo, wshi, kidx, endlabel):
    if not STAMP:
        return
    stamp(a, 7)
    a("s_waitcnt vmcnt(0)")
    a("s_memtime s[96:97]")
    a("s_memrealtime s[100:101]")
    a("s_waitcnt lgkmcnt(0)")
    a("s_cmp_lg_u32 s%d, 0" % wave_sgpr)
    a("s_cbranch_scc1 %s" % endlabel)
    make_srd(a, 76, wslo, wshi, 1 << 20, STAMP_OFF + kidx * 65536)
    a("s_lshl_b32 s3, s2, 6")
    a("v_mov_b32 v0, s3")
    for i in range(9):
        a("v_mov_b32 v1, s%d" % (80 + 2 * i))
        a("buffer_store_dword v1, v0, s[76:79], 0 offen offset:%d" % (4 * i))
    a("v_mov_b32 v1, s98")
    a("buffer_store_dword v1, v0, s[76:79], 0 offen offset:56")
    a("v_mov_b32 v1, s100")
    a("buffer_store_dword v1, v0, s[76:79], 0 offen offset:60")


def stamp_dump(a, kidx, lbl):
    if not STAMP:
        return
    a("s_memtime s[96:97]")
    a("s_memrealtime s[100:101]")
    a("s_waitcnt lgkmcnt(0)")
    a("s_cmp_lg_u32 s56, 0")
    a("s_cbranch_scc1 %s" % lbl)
    make_srd(a, 76, 22, 23, 1 << 20, STAMP_OFF + kidx * 65536)
    a("s_lshl_b32 s3, s2, 6")
    a("v_mov_b32 v7, s3")
    for i in range(9):
        a("v_mov_b32 v1, s%d" % (80 + 2 * i))
        a.l.append("    buffer_store_dword v1, v7, s[76:79], 0 offen offset:%d" % (4 * i))
    a("v_mov_b32 v1, s98")
    a.l.append("    buffer_store_dword v1, v7, s[76:79], 0 offen offset:56")
    a("v_mov_b32 v1, s100")
    a.l.append("    buffer_store_dword v1, v7, s[76:79], 0 offen offset:60")
    a.label(lbl)


def make_srd(a, d, lo, hi, nbytes, off=0):
    if off:
        a("s_add_u32 s%d, s%d, 0x%x" % (d, lo, off))
        a("s_addc_u32 s%d, s%d, 0" % (d + 1, hi))
    else:
        a("s_mov_b32 s%d, s%d" % (d, lo))
        a("s_mov_b32 s%d, s%d" % (d + 1, hi))
    a("s_mov_b32 s%d, 0x%x" % (d + 2, nbytes))
    a("s_mov_b32 s%d, 0x00020000" % (d + 3))


ACC = 64
FR0 = 160
PITCH = 168
REG_K = 0
REG_V = 192 * PITCH
REG_Q = 2 * 192 * PITCH
SCR = 148480
CSL = SCR + 2048
P2_B = 98304
K1_LDS = P2_B + 7 * 8192
SX, SW, SACT, SST, SCS, SPF1, SPF2, SDBG = 24, 28, 32, 36, 40, 44, 48, 52
S_W, S_XCD, S_SLOT, S_WM, S_WN, S_FB, S_RB = 56, 57, 58, 59, 60, 61, 62
S_SOA, S_SOB = 64, 65
V_RLO, V_CLO = 30, 31
V_RSO, V_CSO, V_ATO, V_SCW, V_SCR = 32, 33, 34, 35, 29
RL = 36
CL = 44
SEL = 240
CD = 244
TT = 248


def k2_prefetch():
    D = TT + 4
    return [["s_lshl_b32 s66, s2, 3", "s_add_u32 s66, s66, s%d" % S_W, "s_lshl_b32 s66, s66, 10",
             ("buffer_load_dwordx4 %s, v3, %s, s66 offen" % (vr(D, 4), sr(SPF1, 4)), "PF"),
             ("buffer_load_dwordx4 %s, v3, %s, s66 offen" % (vr(D, 4), sr(SPF2, 4)), "PF"),
             "s_add_u32 s66, s66, 0x200000",
             ("buffer_load_dwordx4 %s, v3, %s, s66 offen" % (vr(D, 4), sr(SPF1, 4)), "PF")]]


def tlb_warm(a):
    tab = [(4, 2048 * 1280), (6, 640 * 3840), (12, 640 * 3456), (14, 640 * 3456), (16, 1728 * 1280), (8, 640 * 1280),
           (18, 2048 * 1280)]
    a("s_cmp_eq_u32 s%d, 7" % S_W)
    a("s_cbranch_scc1 L_tw7")
    make_srd(a, SCS, tab[0][0], tab[0][0] + 1, tab[0][1])
    for w in range(1, 7):
        a("s_cmp_eq_u32 s%d, %d" % (S_W, w))
        a("s_cselect_b32 s%d, s%d, s%d" % (SCS, tab[w][0], SCS))
        a("s_cselect_b32 s%d, s%d, s%d" % (SCS + 1, tab[w][0] + 1, SCS + 1))
        a("s_cselect_b32 s%d, %d, s%d" % (SCS + 2, tab[w][1], SCS + 2))
    a("v_lshlrev_b32 v1, 16, v2")
    a("buffer_load_dword v%d, v1, %s, 0 offen" % (TT + 7, sr(SCS, 4)), "TW")
    a("s_branch L_tw_done")
    a.label("L_tw7")
    make_srd(a, SCS, 22, 23, 65536)
    a("v_mov_b32 v1, 49152")
    a.l.append("    buffer_load_dword v%d, v1, %s, 0 offen" % (TT + 7, sr(SCS, 4)))
    a.label("L_tw_done")


def tlb_warm_act(a):
    if "--noact" in sys.argv:
        a("s_waitcnt vmcnt(0)")
        return
    make_srd(a, SCS, 22, 23, ACT_OFF + ACT_BYTES)
    a("v_mul_u32_u24 v1, 0x5000, v0")
    a("v_add_u32 v1, %d, v1" % ACT_OFF)
    a("buffer_store_dword v1, v1, %s, 0 offen sc1" % sr(SCS, 4))
    a("s_waitcnt vmcnt(0)")


def p2_map(a, d):
    a("s_and_b32 s%d, s2, 7" % d)
    a("s_lshr_b32 s%d, s2, 3" % (d + 1))
    a("s_cmp_ge_u32 s%d, 2" % d)
    a("s_cselect_b32 s%d, 30, 31" % (d + 2))
    a("s_cselect_b32 s%d, 30, 99" % (d + 3))
    a("s_cmp_eq_u32 s%d, s%d" % (d + 1, d + 3))
    a("s_cselect_b32 s%d, 1, 0" % (d + 4))
    a("s_min_u32 s%d, s%d, s%d" % (d + 1, d + 1, d + 2))
    a("s_min_u32 s%d, s%d, 2" % (d + 2, d))
    a("s_mul_i32 s%d, s%d, 31" % (d, d))
    a("s_add_u32 s%d, s%d, s%d" % (d, d, d + 2))
    a("s_add_u32 s%d, s%d, s%d" % (d + 1, d, d + 1))
    a("s_mul_i32 s%d, s%d, 205" % (d, d + 1))
    a("s_lshr_b32 s%d, s%d, 11" % (d, d))
    a("s_mul_i32 s%d, s%d, 10" % (d + 2, d))
    a("s_sub_u32 s%d, s%d, s%d" % (d + 1, d + 1, d + 2))
    a("s_mul_i32 s%d, s%d, 6" % (d + 2, d))
    a("s_mul_i32 s%d, s%d, 5" % (d + 3, d))
    a("s_add_u32 s%d, s%d, 3" % (d + 3, d + 3))
    a("s_cmp_lt_u32 s%d, 3" % d)
    a("s_cselect_b32 s%d, s%d, s%d" % (d + 2, d + 2, d + 3))
    a("s_cselect_b32 s%d, 6, 5" % (d + 3))


P2V = 20


def p2_early(a):
    p2_map(a, 64)
    a("v_bfe_u32 v17, v2, 1, 2")
    a("v_bfe_u32 v18, v2, 4, 1")
    a("v_xor_b32 v17, v17, v18")
    a("v_and_b32 v18, 1, v2")
    a("v_lshlrev_b32 v17, 5, v17")
    a("v_lshl_add_u32 v17, v18, 4, v17")
    a("s_and_b32 s3, s%d, 1" % S_W)
    a("s_lshl_b32 s3, s3, 6")
    a("v_xor_b32 v17, s3, v17")
    a("v_lshrrev_b32 v18, 3, v2")
    a("v_mul_u32_u24 v18, 1280, v18")
    a("s_mul_i32 s3, s%d, %d" % (S_W, 8 * 1280))
    a("s_lshl_b32 s64, s65, 7")
    a("s_add_u32 s3, s3, s64")
    a("v_add3_u32 v%d, v17, v18, s3" % P2V)
    a("s_lshl_b32 s3, s%d, 10" % S_W)
    a("s_mov_b32 s64, 0")
    for st in range(6):
        a("s_add_u32 m0, s3, 0x%x" % (P2_B + st * 8192))
        a("s_nop 0")
        a("buffer_load_dwordx4 v%d, %s, s64 offen lds" % (P2V, sr(SPF1, 4)))
        a("s_add_u32 s64, s64, %d" % (64 * 1280))


def p1_done(a, cnt_sgpr_expr):
    a("s_waitcnt vmcnt(0)")
    a("s_barrier")
    for x in cnt_sgpr_expr:
        a(x)
    a("v_mov_b32 v1, 0x%x" % BIG)
    a("v_mov_b32 v5, s3")
    a("v_cmp_eq_u32 vcc, 0, v0")
    a("v_mov_b32 v6, 1")
    a("s_nop 0")
    a("v_cndmask_b32 v1, v1, v5, vcc")
    a("buffer_atomic_add v6, v1, %s, 0 offen" % sr(SDBG, 4))
    stamp_dump(a, 1, "L_sd_%d" % len(a.l))
    a("s_branch L_phase2")


def stats_setup(a):
    a("s_lshl_b32 s66, s2, 3")
    a("s_add_u32 s66, s66, s%d" % S_W)
    a("s_mul_i32 s67, s66, 1280")
    a("v_mov_b32 v9, 0x%x" % BIG)
    a("v_add_u32 v1, s67, v3")
    a("v_cmp_gt_u32 vcc, 40, v2")
    a("s_lshl_b32 s67, s66, 3")
    a("v_mov_b32 v5, s67")
    a("v_cndmask_b32 v%d, v9, v1, vcc" % V_RLO)
    a("v_cmp_eq_u32 vcc, 0, v2")
    a("s_cmp_ge_u32 s%d, 6" % S_SLOT)
    a("s_cselect_b32 s68, 2, 1")
    a("v_cndmask_b32 v%d, v9, v5, vcc" % V_RSO)
    a("s_cselect_b32 s67, 6, 0")
    a("s_sub_u32 s66, s%d, s67" % S_SLOT)
    a("s_mul_i32 s69, s%d, 6" % S_XCD)
    a("s_add_u32 s69, s69, s66")
    a("s_sub_u32 s66, s%d, 12" % S_SLOT)
    a("s_lshl_b32 s66, s66, 3")
    a("s_add_u32 s66, s66, s%d" % S_XCD)
    a("s_mov_b32 s73, 0")
    a("s_cmp_ge_u32 s66, 60")
    a("s_cselect_b32 s73, 1, s73")
    a("s_cselect_b32 s75, 12, 0")
    a("s_sub_u32 s74, s66, s75")
    a("s_cmp_ge_u32 s66, 66")
    a("s_cselect_b32 s73, 2, s73")
    a("s_cselect_b32 s75, 6, 0")
    a("s_sub_u32 s74, s74, s75")
    a("s_cmp_ge_u32 s%d, 12" % S_SLOT)
    a("s_cselect_b32 s68, s73, s68")
    a("s_cselect_b32 s69, s74, s69")
    a("s_cmp_ge_u32 s%d, 21" % S_SLOT)
    a("s_cselect_b32 s71, 1, 0")
    a("s_cmp_eq_u32 s68, 1")
    a("s_cselect_b32 s%d, s12, s14" % SCS)
    a("s_cselect_b32 s%d, s13, s15" % (SCS + 1))
    a("s_cselect_b32 s72, 1920, 3648")
    a("s_cmp_eq_u32 s68, 0")
    a("s_cselect_b32 s%d, s6, s%d" % (SCS, SCS))
    a("s_cselect_b32 s%d, s7, s%d" % (SCS + 1, SCS + 1))
    a("s_cselect_b32 s72, 0, s72")
    a("s_cselect_b32 s73, 3840, 3456")
    a("s_mul_i32 s%d, s73, 640" % (SCS + 2))
    a("s_mov_b32 s%d, 0x00020000" % (SCS + 3))
    a("v_lshrrev_b32 v1, 4, v2")
    a("v_bfe_u32 v5, v2, 2, 2")
    a("v_lshl_add_u32 v1, v1, 2, v5")
    a("s_lshl_b32 s75, s%d, 4" % S_W)
    a("v_add_u32 v1, s75, v1")
    a("v_mul_lo_u32 v1, v1, s73")
    a("v_and_b32 v5, 3, v2")
    a("v_lshl_add_u32 v1, v5, 4, v1")
    a("s_lshl_b32 s74, s69, 6")
    a("s_cmp_eq_u32 s71, 1")
    a("s_cselect_b32 s74, 0x%x, s74" % BIG)
    a("v_add_u32 v%d, s74, v1" % V_CLO)
    a("s_lshl_b32 s77, s73, 7")
    a("s_lshl_b32 s75, s69, 5")
    a("s_add_u32 s74, s72, s75")
    a("s_lshl_b32 s74, s74, 2")
    a("s_add_u32 s74, s74, %d" % ST_CS)
    a("s_or_b32 s75, s71, s%d" % S_W)
    a("s_cmp_eq_u32 s75, 0")
    a("s_cselect_b32 s74, s74, 0x%x" % BIG)
    a("v_lshl_add_u32 v1, v2, 2, s74")
    a("v_cmp_gt_u32 vcc, 32, v2")
    a("v_and_b32 v5, 15, v2")
    a("v_lshlrev_b32 v6, 4, v5")
    a("v_cndmask_b32 v%d, v9, v1, vcc" % V_CSO)
    a("v_cmp_gt_u32 vcc, 8, v5")
    a("s_lshl_b32 s74, s%d, 7" % S_W)
    a("s_add_u32 s74, s74, %d" % SCR)
    a("v_add_u32 v7, s74, v6")
    a("v_add_u32 v6, %d, v6" % (SCR + 1024))
    a("v_cndmask_b32 v%d, v6, v7, vcc" % V_SCW)
    for d in range(4):
        a("v_cmp_eq_u32 vcc, %d, v5" % (2 * d))
        a("v_mov_b32 v6, 0x3f80")
        a("v_cmp_eq_u32 s[68:69], %d, v5" % (2 * d + 1))
        a("v_cndmask_b32 v%d, 0, v6, vcc" % (SEL + d))
        a("v_mov_b32 v6, 0x3f800000")
        a("v_cndmask_b32 v%d, v%d, v6, s[68:69]" % (SEL + d, SEL + d))
    a("v_and_b32 v5, 7, v2")
    a("v_bfe_u32 v6, v2, 3, 2")
    a("v_lshlrev_b32 v6, 2, v6")
    a("v_lshl_add_u32 v5, v5, 4, v6")
    a("v_cmp_eq_u32 vcc, 0, v0")
    a("v_add_u32 v%d, %d, v5" % (V_SCR, SCR))
    a("s_lshl_b32 s76, s77, 1")
    a("v_mov_b32 v5, 240")
    a("v_cndmask_b32 v%d, v9, v5, vcc" % V_ATO)
    a("s_add_u32 s75, s76, s77")
    a("s_lshl_b32 s74, s77, 2")


def stats_loads():
    o = [("buffer_load_dwordx4 %s, v%d, %s, 0 offen" % (vr(RL, 4), V_RLO, sr(SX, 4)), "SL"),
         ("buffer_load_dwordx4 %s, v%d, %s, 0 offen offset:640" % (vr(RL + 4, 4), V_RLO, sr(SX, 4)), "SL")]
    for i in (1, 2, 0, 3, 4):
        so = ["0", "s77", "s76", "s75", "s74"][i]
        o.append(("buffer_load_dwordx4 %s, v%d, %s, %s offen" % (vr(CL + 4 * i, 4), V_CLO, sr(SCS, 4), so), "SL"))
    return o


def xreduce(regs, tmps, op="v_add_f32", swaps=("v_permlane16_swap_b32", "v_permlane32_swap_b32")):
    o = []
    for swp in swaps:
        for v, t in zip(regs, tmps):
            o.append("v_mov_b32 v%d, v%d" % (t, v))
        o.append("s_nop 1")
        for v, t in zip(regs, tmps):
            o.append("%s v%d, v%d" % (swp, v, t))
        o.append("s_nop 1")
        for v, t in zip(regs, tmps):
            o.append("%s v%d, v%d, v%d" % (op, v, v, t))
    return o


def stats_segA():
    o = []
    T = TT
    for i in range(5):
        o.append("v_mfma_f32_16x16x32_bf16 %s, %s, %s, %s" % (vr(CD, 4), vr(CL + 4 * i, 4), vr(SEL, 4), "0" if i == 0 else vr(CD, 4)))
    o.append("v_mov_b32 v%d, 0x3f803f80" % (T + 4))
    for d in range(8):
        c = "0" if d < 2 else "v%d" % (T + d % 2)
        o.append("v_dot2_f32_bf16 v%d, v%d, v%d, %s" % (T + d % 2, RL + d, T + 4, c))
        c = "0" if d < 2 else "v%d" % (T + 2 + d % 2)
        o.append("v_dot2_f32_bf16 v%d, v%d, v%d, %s" % (T + 2 + d % 2, RL + d, RL + d, c))
    o.append("s_nop 2")
    o.append("v_add_f32 v%d, v%d, v%d" % (T, T, T + 1))
    o.append("v_add_f32 v%d, v%d, v%d" % (T + 2, T + 2, T + 3))
    for sh in (8, 4, 2, 1):
        o.append("s_nop 1")
        for v in (T, T + 2):
            o.append("v_add_f32_dpp v%d, v%d, v%d row_ror:%d row_mask:0xf bank_mask:0xf" % (v, v, v, sh))
    o += xreduce([T, T + 2, CD, CD + 1, CD + 2, CD + 3], [T + 1, T + 3, CL, CL + 1, CL + 2, CL + 3])
    o.append("ds_write_b128 v%d, %s" % (V_SCW, vr(CD, 4)))
    o.append("v_mul_f32 v%d, 0x%x, v%d" % (T, f2u(1.0 / 640.0), T))
    o.append("v_mul_f32 v%d, 0x%x, v%d" % (T + 2, f2u(1.0 / 640.0), T + 2))
    o.append("v_fma_f32 v%d, -v%d, v%d, v%d" % (T + 2, T, T, T + 2))
    o.append("v_max_f32 v%d, 0, v%d" % (T + 2, T + 2))
    o.append("v_cvt_pk_bf16_f32 v%d, v%d, v%d" % (T + 1, T, T + 2))
    o.append("v_lshlrev_b32 v%d, 16, v%d" % (T + 4, T + 1))
    o.append("v_and_b32 v%d, 0xffff0000, v%d" % (T + 5, T + 1))
    o.append("v_add_f32 v%d, 0x%x, v%d" % (T + 5, f2u(1e-5), T + 5))
    o.append("v_cvt_pk_bf16_f32 v%d, v%d, v%d" % (T + 5, T + 5, T + 5))
    o.append("v_lshlrev_b32 v%d, 16, v%d" % (T + 5, T + 5))
    o.append("v_sqrt_f32 v%d, v%d" % (T + 5, T + 5))
    o.append("s_nop 0")
    o.append("v_cvt_pk_bf16_f32 v%d, v%d, v%d" % (T + 5, T + 5, T + 5))
    o.append("v_lshlrev_b32 v%d, 16, v%d" % (T + 5, T + 5))
    o.append(("buffer_store_dwordx2 %s, v%d, %s, 0 offen sc1" % (vr(T + 4, 2), V_RSO, sr(SST, 4)), "ST"))
    return o


def stats_segB():
    return ["ds_read_b32 v%d, v%d offset:%d" % (CL + w, V_SCR, 128 * w) for w in range(8)]


def stats_segC():
    o = []
    for (x, y) in ((0, 1), (2, 3), (4, 5), (6, 7), (0, 2), (4, 6), (0, 4)):
        o.append("v_add_f32 v%d, v%d, v%d" % (CL + x, CL + x, CL + y))
    o.append(("buffer_store_dword v%d, v%d, %s, 0 offen sc1" % (CL, V_CSO, sr(SST, 4)), "ST"))
    return o


def stats_signal():
    return ["v_mov_b32 v%d, 1" % TT,
            ("buffer_atomic_add v%d, v%d, %s, 0 offen" % (TT, V_ATO, sr(SDBG, 4)), "AT")]


def emit(a, x):
    if isinstance(x, list):
        for y in x:
            emit(a, y)
    elif isinstance(x, tuple):
        a(x[0], x[1])
    else:
        a(x)


IT_SIG, IT_POLL, IT_CHK = 7, 15, 17


def k1_mainloop(a, P):
    nI, nJ = P["nI"], P["nJ"]
    NST = 20
    nA, nB = 2 * nI, 2 * nJ

    def fx(p, I, hh):
        return FR0 + 40 * p + 8 * I + 4 * hh

    def fw(p, j, hh):
        return FR0 + 40 * p + 8 * nI + 8 * j + 4 * hh

    def read_ops(stage):
        p = stage % 2
        ops = []
        if MF == 32:
            for hh in range(2):
                for j in range(nJ):
                    for e in range(2):
                        v, imm = P["b_addr"](stage % 4, j)
                        ops.append("ds_read_b64_tr_b16 %s, v%d offset:%d" % (vr(fw(p, j, hh) + 2 * e, 2), v, imm + hh * 2048 + e * 512))
                for I in range(nI):
                    v, imm = P["a_addr"]((stage // 2) % 3, 2 * (stage % 2) + hh, I)
                    ops.append("ds_read_b128 %s, v%d offset:%d" % (vr(fx(p, I, hh), 4), v, imm))
        else:
            for j in range(nB):
                for e in range(2):
                    v, imm = P["b_addr"](stage % 4, j)
                    ops.append("ds_read_b64_tr_b16 %s, v%d offset:%d" % (vr(FR0 + 40 * p + 4 * nA + 4 * j + 2 * e, 2), v, imm + e * 512))
            for i in range(nA):
                v, imm = P["a_addr"]((stage // 2) % 3, stage % 2, i)
                ops.append("ds_read_b128 %s, v%d offset:%d" % (vr(FR0 + 40 * p + 4 * i, 4), v, imm))
        return ops

    def mfmas(it):
        p = it % 2
        o = []
        if MF == 32:
            for hh in range(2):
                for I in range(nI):
                    for j in range(nJ):
                        acc = ACC + 16 * (I * nJ + j)
                        c = "0" if (it == 0 and hh == 0) else vr(acc, 16)
                        o.append("v_mfma_f32_32x32x16_bf16 %s, %s, %s, %s" % (vr(acc, 16), vr(fw(p, j, hh), 4), vr(fx(p, I, hh), 4), c))
        else:
            for i in range(nA):
                for j in range(nB):
                    acc = ACC + 4 * (i * nB + j)
                    c = "0" if it == 0 else vr(acc, 4)
                    o.append("v_mfma_f32_16x16x32_bf16 %s, %s, %s, %s" % (vr(acc, 4), vr(FR0 + 40 * p + 4 * nA + 4 * j, 4), vr(FR0 + 40 * p + 4 * i, 4), c))
        return o

    def pro(ops):
        for (m, d, tag, adv) in ops:
            a(m)
            a("s_nop 0")
            a(d, tag)
            for x in adv:
                a(x)
    B, A = P["bdma"], P["adma"]
    pro(B(0))
    pro(sum(A(0), []))
    pro(B(1))
    pro(sum(A(1), []))
    for x in stats_loads()[:3]:
        emit(a, x)
    stamp(a, 2)
    a("s_waitcnt vmcnt(%d)" % a.vmwait({"B0", "A0"}))
    a("s_barrier")
    stamp(a, 3)
    for x in read_ops(0):
        a(x)
    for it in range(NST):
        if it == IT_CHK:
            stamp(a, 4)
        p = it % 2
        tags = set()
        if it + 1 < NST:
            tags |= {"B%d" % (it + 1), "A%d" % ((it + 1) // 2)}
        tags |= P["toptags"].get(it, set())
        n = a.vmwait(tags)
        if n is not None:
            a("s_waitcnt vmcnt(%d) lgkmcnt(0)" % n)
        else:
            a("s_waitcnt lgkmcnt(0)")
        if it == IT_CHK:
            nm = P["name"]
            a("s_mov_b32 s66, 0")
            a.label("L_poll_%s" % nm)
            a("v_readfirstlane_b32 s67, v%d" % TT)
            a("s_add_u32 s66, s66, 1")
            a("s_cmp_ge_u32 s67, 256")
            a("s_cbranch_scc1 L_pollok_%s" % nm)
            a("s_cmp_ge_u32 s66, 0x40000")
            a("s_cbranch_scc1 L_pollok_%s" % nm)
            a("s_sleep 2")
            a.l.append("    buffer_load_dword v%d, v%d, %s, 0 offen sc1" % (TT, TT + 1, sr(SDBG, 4)))
            a("s_waitcnt vmcnt(0)")
            a("s_branch L_poll_%s" % nm)
            a.label("L_pollok_%s" % nm)
            stamp(a, 5)
        a("s_barrier")
        dm = []
        if it == 0:
            dm = B(2) + B(3) + A(2)[0]
        elif it == 1:
            dm = B(4) + B(5) + A(2)[1]
        elif it == 2:
            dm = B(6) + A(3)[0] + A(3)[1]
        else:
            if it + 4 < NST:
                dm += B(it + 4)
            S = (it - 1) // 2 + 3
            if S < 10:
                dm += A(S)[(it - 1) % 2]
        rd = read_ops(it + 1) if it + 1 < NST else []
        stream = []
        for (m, d, tag, adv) in dm:
            mid = rd.pop(0) if rd else "s_nop 0"
            stream.append([m, mid, (d, tag)] + adv)
        stream += [[x] for x in rd]
        stream += [[x] for x in P["bg"].get(it, [])]
        mf = mfmas(it)
        ngap = len(mf)
        for gi, x in enumerate(mf):
            a(x)
            k = (len(stream) + (ngap - gi) - 1) // (ngap - gi) if MF == 32 else min(len(stream), max(1, (len(stream) + (ngap - gi) - 1) // (ngap - gi)))
            for _ in range(k):
                if stream:
                    emit(a, stream.pop(0))
        for x in stream:
            emit(a, x)
    stamp(a, 6)


def adv(r, inc, tot):
    return ["s_add_u32 s%d, s%d, %d" % (r, r, inc), "s_cmp_ge_u32 s%d, %d" % (r, tot), "s_cselect_b32 s%d, 0, s%d" % (r, r)]


def split_bg(lst, its):
    n = (len(lst) + len(its) - 1) // len(its)
    return {it: lst[i * n:(i + 1) * n] for i, it in enumerate(its)}


def std_bg(pre, tail17, tail19):
    sl = stats_loads()
    bg = {0: sl[3:7]}
    bg.update(split_bg(stats_segA(), [2, 3]))
    bg[9] = k2_prefetch()
    bg[4] = stats_segB()
    bg[5] = stats_segC()
    bg[IT_SIG] = stats_signal()
    bg.update(split_bg(pre, [12, 13, 14]))
    bg[IT_POLL] = [("buffer_load_dword v%d, v%d, %s, 0 offen sc1" % (TT, TT + 1, sr(SDBG, 4)), "POLL")]
    bg[IT_CHK] = tail17
    bg[19] = tail19
    top = {2: {"SL"}, IT_SIG: {"ST"}, IT_CHK: {"POLL"}, 19: {"TL"}}
    return bg, top


def gen_k1(a):
    name = "fused_kernel"
    kernel_header(a, name)
    a("s_cmp_ge_u32 s2, 256")
    a("s_cbranch_scc1 L_k1_end")
    stamp_start(a)
    a("s_load_dwordx4 s[20:23], s[0:1], 64")
    a("s_load_dwordx4 s[4:7], s[0:1], 0")
    a("s_load_dwordx2 s[8:9], s[0:1], 16")
    a("s_load_dwordx4 s[12:15], s[0:1], 32")
    a("s_load_dwordx4 s[16:19], s[0:1], 48")
    a("v_lshrrev_b32 v1, 6, v0")
    a("v_and_b32 v2, 63, v0")
    a("v_readfirstlane_b32 s%d, v1" % S_W)
    a("v_lshlrev_b32 v3, 4, v2")
    a("s_getreg_b32 s78, hwreg(HW_REG_XCC_ID)")
    a("s_and_b32 s%d, s2, 7" % S_XCD)
    a("s_lshr_b32 s%d, s2, 3" % S_SLOT)
    a("s_and_b32 s78, s78, 7")
    a("s_lshl_b32 s66, s78, 2")
    a("s_add_u32 s66, s66, 192")
    a("v_mov_b32 v17, s66")
    a("v_mov_b32 v1, 0x%x" % BIG)
    a("v_cmp_eq_u32 vcc, 0, v0")
    a("v_mov_b32 v18, 1")
    a("s_lshr_b32 s%d, s%d, 2" % (S_WM, S_W))
    a("s_and_b32 s%d, s%d, 3" % (S_WN, S_W))
    a("v_cndmask_b32 v17, v1, v17, vcc")
    a("s_waitcnt lgkmcnt(0)")
    stamp(a, 1)
    make_srd(a, SDBG, 20, 21, 256)
    a.vm = []
    a("buffer_atomic_add v18, v17, %s, 0 offen sc0" % sr(SDBG, 4), "TK")
    make_srd(a, SX, 4, 5, 2048 * 1280)
    make_srd(a, SACT, 22, 23, ACT_BYTES, ACT_OFF)
    make_srd(a, SST, 22, 23, ST_BYTES, ST_OFF)
    make_srd(a, SPF1, 16, 17, 1728 * 1280)
    make_srd(a, SPF2, 8, 9, 640 * 1280)
    tlb_warm(a)
    stats_setup(a)
    a("v_lshrrev_b32 v4, 4, v2")
    a("v_lshlrev_b32 v5, 10, v4")
    a("v_bfe_u32 v6, v2, 2, 2")
    a("v_lshl_add_u32 v5, v6, 7, v5")
    a("v_and_b32 v6, 3, v2")
    a("v_lshl_add_u32 v5, v6, 3, v5")
    a("v_bfe_u32 v6, v2, 3, 2")
    a("v_bfe_u32 v26, v2, 4, 1")
    a("v_lshrrev_b32 v7, 3, v2")
    a("v_bfe_u32 v8, v2, 1, 2")
    a("v_xor_b32 v8, v8, v26")
    a("v_and_b32 v9, 1, v2")
    a("v_and_b32 v10, 7, v2")
    a("v_lshrrev_b32 v11, 4, v2")
    a("v_xor_b32 v10, v10, v11")
    a("v_lshlrev_b32 v10, 4, v10")
    a("v_mul_u32_u24 v11, 1280, v7")
    a("v_add_u32 v10, v10, v11")
    a("v_bfe_u32 v15, v2, 1, 3")
    a("v_xor_b32 v15, v15, v4")
    a("v_lshlrev_b32 v15, 4, v15")
    a("v_and_b32 v16, 7, v2")
    a("v_lshl_add_u32 v15, v16, 7, v15")
    a("v_bfe_u32 v16, v2, 3, 1")
    a("v_lshl_add_u32 v15, v16, 10, v15")
    a("s_cmp_lg_u32 s%d, 0" % S_W)
    a("s_cbranch_scc1 L_tk_done")
    a("s_mov_b32 s67, 0")
    a("s_waitcnt vmcnt(%d)" % a.vmwait({"TK"}))
    a.label("L_tk_loop")
    a("v_readfirstlane_b32 s68, v18")
    a("s_add_u32 s67, s67, 1")
    a("s_nop 2")
    a("s_cmp_lt_u32 s68, 32")
    a("s_cbranch_scc1 L_tk_got")
    a("s_cmp_ge_u32 s67, 16")
    a("s_cbranch_scc1 L_tk_got")
    a("s_add_u32 s78, s78, 1")
    a("s_and_b32 s78, s78, 7")
    a("s_lshl_b32 s68, s78, 2")
    a("s_add_u32 s68, s68, 192")
    a("v_writelane_b32 v17, s68, 0")
    a("v_mov_b32 v18, 1")
    a.l.append("    buffer_atomic_add v18, v17, %s, 0 offen sc0" % sr(SDBG, 4))
    a("s_waitcnt vmcnt(0)")
    a("s_branch L_tk_loop")
    a.label("L_tk_got")
    a("s_and_b32 s68, s68, 31")
    a("s_lshl_b32 s68, s68, 3")
    a("s_add_u32 s68, s68, s78")
    a("v_mov_b32 v17, %d" % (SCR + 2044))
    a("v_mov_b32 v18, s68")
    a("ds_write_b32 v17, v18")
    a("s_waitcnt lgkmcnt(0)")
    a.label("L_tk_done")
    a("s_barrier")
    a("v_mov_b32 v1, %d" % (SCR + 2044))
    a("ds_read_b32 v1, v1")
    a("s_waitcnt lgkmcnt(0)")
    a("v_readfirstlane_b32 s2, v1")
    a("s_nop 3")
    a("s_and_b32 s%d, s2, 7" % S_XCD)
    a("s_lshr_b32 s%d, s2, 3" % S_SLOT)
    VM0 = list(a.vm)
    a("s_cmp_lt_u32 s%d, 18" % S_SLOT)
    a("s_cbranch_scc0 L_k1_att")

    a.vm = list(VM0)
    a("s_lshl_b32 s66, s%d, 1" % S_XCD)
    a("s_add_u32 s66, s66, s%d" % S_SLOT)
    a("s_sub_u32 s66, s66, 16")
    a("s_cmp_lt_u32 s%d, 16" % S_SLOT)
    a("s_cselect_b32 s%d, s%d, 8" % (S_FB, S_XCD))
    a("s_cselect_b32 s%d, s%d, s66" % (S_RB, S_SLOT))
    a("s_cmp_lt_u32 s%d, 4" % S_W)
    a("s_cselect_b32 s%d, s12, s14" % SW)
    a("s_cselect_b32 s%d, s13, s15" % (SW + 1))
    a("s_mov_b32 s%d, %d" % (SW + 2, 640 * 3456))
    a("s_mov_b32 s%d, 0x00020000" % (SW + 3))
    a("s_add_u32 s66, s%d, s%d" % (S_RB, S_FB))
    for _ in range(2):
        a("s_cmp_ge_u32 s66, 10")
        a("s_cselect_b32 s67, 10, 0")
        a("s_sub_u32 s66, s66, s67")
    if not ROT:
        a("s_mov_b32 s66, 0")
    a("s_lshl_b32 s%d, s66, 7" % S_SOA)
    a("s_mul_i32 s%d, s66, 221184" % S_SOB)
    a("s_mul_i32 s70, s%d, 384" % S_FB)
    a("v_mul_u32_u24 v16, 3456, v7")
    a("v_add_u32 v16, s70, v16")
    a("v_lshlrev_b32 v1, 5, v8")
    a("v_lshl_add_u32 v1, v9, 4, v1")
    for j in range(3):
        a("s_mul_i32 s66, s%d, 3" % S_W)
        a("s_add_u32 s66, s66, %d" % j)
        a("s_and_b32 s67, s66, 3")
        a("s_lshr_b32 s68, s66, 2")
        a("s_cmp_ge_u32 s68, 3")
        a("s_cselect_b32 s69, 3, 0")
        a("s_sub_u32 s68, s68, s69")
        if MF == 32:
            a("s_xor_b32 s69, s67, s%d" % S_WM)
            a("s_and_b32 s69, s69, 1")
        else:
            a("s_and_b32 s69, s67, 1")
        a("s_lshl_b32 s69, s69, 6")
        a("v_xor_b32 v%d, s69, v1" % (12 + j))
        a("s_mul_i32 s67, s67, %d" % (8 * 3456))
        a("s_lshl_b32 s68, s68, 7")
        a("s_add_u32 s67, s67, s68")
        a("v_add3_u32 v%d, v%d, v16, s67" % (12 + j, 12 + j))
    a("s_lshl_b32 s66, s%d, 3" % S_RB)
    a("s_add_u32 s66, s66, s%d" % S_W)
    a("s_mul_i32 s66, s66, %d" % (16 * 1280))
    a("v_xor_b32 v11, 64, v10")
    a("v_add_u32 v10, s66, v10")
    a("s_add_u32 s66, s66, %d" % (8 * 1280))
    a("v_add_u32 v11, s66, v11")
    a("s_mul_i32 s3, s%d, 3072" % S_W)
    a("s_lshl_b32 s79, s%d, 11" % S_W)
    ARING = 98304
    a("s_lshl_b32 s66, s%d, 13" % S_WM)
    a("s_add_u32 s66, s66, %d" % ARING)
    for c in ((3, 2, 1, 0) if MF == 32 else (1, 0)):
        if c:
            a("v_xor_b32 v%d, %d, v15" % (15 + c, (32 if MF == 32 else 64) * c))
        a("v_add_u32 v%d, s66, v%d" % (15 + c, 15 + c))
    if MF == 32:
        a("v_lshlrev_b32 v1, 1, v26")
        a("v_xor_b32 v6, v6, v1")
        a("v_mul_u32_u24 v1, 12288, v26")
        a("v_add_u32 v5, v5, v1")
    for j in range(3):
        a("s_mul_i32 s66, s%d, 3" % S_WN)
        a("s_add_u32 s66, s66, %d" % j)
        a("s_and_b32 s67, s66, 3")
        a("s_lshr_b32 s66, s66, 2")
        a("s_lshl_b32 s66, s66, 12")
        a("v_xor_b32 v%d, s67, v6" % (19 + j))
        a("v_lshl_add_u32 v%d, v%d, 5, v5" % (19 + j, 19 + j))
        a("v_add_u32 v%d, s66, v%d" % (19 + j, 19 + j))
        a("v_add_u32 v%d, 0x%x, v%d" % (22 + j, 2 * 24576, 19 + j))

    def bdma(st):
        o = []
        for j in range(3):
            o.append(("s_add_u32 m0, s3, 0x%x" % ((st % 4) * 24576 + 1024 * j),
                      "buffer_load_dwordx4 v%d, %s, s%d offen lds" % (12 + j, sr(SW, 4), S_SOB), "B%d" % st,
                      adv(S_SOB, 32 * 3456, 640 * 3456) if j == 2 else []))
        return o

    def adma(S):
        return [[("s_add_u32 m0, s79, 0x%x" % (ARING + (S % 3) * 16384 + 1024 * h),
                  "buffer_load_dwordx4 v%d, %s, s%d offen lds" % (10 + h, sr(SX, 4), S_SOA), "A%d" % S,
                  adv(S_SOA, 128, 1280) if h == 1 else [])] for h in range(2)]

    pre = ["v_and_b32 v25, 1, v4", "s_mov_b32 s66, %d" % ACT_MT, "v_mul_lo_u32 v25, v25, s66",
           "v_lshrrev_b32 v1, 1, v4", "v_lshl_add_u32 v25, v1, 8, v25", "v_and_b32 v1, 15, v2", "v_lshl_add_u32 v25, v1, 4, v25",
           "s_mul_i32 s66, s%d, %d" % (S_WM, 4 * ACT_MT), "s_mul_i32 s67, s%d, %d" % (S_WN, 6 * 256),
           "s_add_u32 s66, s66, s67", "v_add_u32 v25, s66, v25",
           "s_mul_i32 s70, s%d, %d" % (S_RB, 8 * ACT_MT), "s_mul_i32 s67, s%d, %d" % (S_FB, 24 * 256),
           "s_add_u32 s70, s70, s67", "s_add_u32 s70, s70, %d" % (80 * 256), "s_add_u32 s71, s70, %d" % (2 * ACT_MT),
           "s_lshl_b32 s66, s%d, 1" % S_RB, "s_add_u32 s66, s66, s%d" % S_WM, "s_lshl_b32 s66, s66, 9",
           "v_lshl_add_u32 v26, v1, 3, s66",
           "v_cmp_gt_u32 vcc, 48, v2", "v_mov_b32 v1, 0x%x" % BIG, "s_nop 0", "v_cndmask_b32 v27, v1, v3, vcc",
           "s_mul_i32 s72, s%d, 768" % S_FB, "s_add_u32 s72, s72, %d" % (ST_CS + 1920 * 4),
           "s_add_u32 s73, s72, %d" % (1728 * 4),
           "s_mul_i32 s66, s%d, 192" % S_WN, "s_add_u32 s66, s66, %d" % CSL, "v_lshl_add_u32 v28, v4, 4, s66",
           "v_mov_b32 v%d, 240" % (TT + 1)]
    RS = 36
    CS0 = 44
    t17 = [("buffer_load_dwordx2 %s, v26, %s, 0 offen offset:%d sc1" % (vr(RS + 2 * i, 2), sr(SST, 4), 128 * i), "TL") for i in range(4)]
    for mat in range(2):
        t17.append(["s_mov_b32 m0, %d" % (CSL + 1024 * mat), "s_nop 0",
                    ("buffer_load_dwordx4 v27, %s, s%d offen sc1 lds" % (sr(SST, 4), 72 + mat), "TL")])

    def csreg(t):
        return CS0 + 4 * t if t < 5 else 240
    t19 = ["ds_read_b128 %s, v28 offset:%d" % (vr(csreg(t), 4), (t // 3) * 1024 + (t % 3) * 64) for t in range(6)]
    bg, top = std_bg(pre, t17, t19)
    P = dict(nI=2, nJ=3, name="ffn", bdma=bdma, adma=adma, bg=bg, toptags=top,
             a_addr=lambda S3, q, i: (15 + q, S3 * 16384 + i * 2048),
             b_addr=lambda slot, j: (19 + 3 * (slot // 2) + j % 3, (slot % 2) * 24576 + (j // 3) * 12288))
    k1_mainloop(a, P)
    p2_early(a)

    c1 = -2.0 * LOG2E * 0.7978845608028654
    RC = 5
    for i in range(4):
        a("v_rcp_f32 v%d, v%d" % (RC + 3 * i, RS + 2 * i + 1))
    a("s_nop 0")
    for i in range(4):
        a("v_mul_f32 v%d, v%d, v%d" % (RC + 3 * i + 2, RS + 2 * i + 1, RS + 2 * i + 1))
        a("v_mul_f32 v%d, v%d, v%d" % (RC + 3 * i + 1, RC + 3 * i, RC + 3 * i))
        a("v_mul_f32 v%d, 0x%x, v%d" % (RC + 3 * i, f2u(c1), RC + 3 * i))
        a("v_mul_f32 v%d, 0x%x, v%d" % (RC + 3 * i + 1, f2u(0.044715), RC + 3 * i + 1))
        a("v_mul_f32 v%d, v%d, v%d" % (RC + 3 * i + 1, RC + 3 * i + 1, RC + 3 * i))
    a("s_waitcnt lgkmcnt(0)")
    T0 = FR0
    OUT = FR0 + 16
    n = 0
    for ip in (0, 2):
        for j in range(3):
            el = []
            for ii in (ip, ip + 1):
                for r in range(4):
                    el.append((ACC + 4 * (ii * 6 + j) + r, ACC + 4 * (ii * 6 + 3 + j) + r, csreg(j) + r, csreg(3 + j) + r,
                               RS + 2 * ii, RC + 3 * ii, RC + 3 * ii + 1, RC + 3 * ii + 2))
            for q, (x, u, cg, cu, m_, k1_, k3_, s2_) in enumerate(el):
                a("v_fma_f32 v%d, -v%d, v%d, v%d" % (x, m_, cg, x))
            for q, (x, u, cg, cu, m_, k1_, k3_, s2_) in enumerate(el):
                a("v_mul_f32 v%d, v%d, v%d" % (T0 + q, x, x))
            for q, (x, u, cg, cu, m_, k1_, k3_, s2_) in enumerate(el):
                a("v_fma_f32 v%d, v%d, v%d, v%d" % (T0 + q, T0 + q, k3_, k1_))
            for q, (x, u, cg, cu, m_, k1_, k3_, s2_) in enumerate(el):
                a("v_mul_f32 v%d, v%d, v%d" % (T0 + q, x, T0 + q))
            for q, (x, u, cg, cu, m_, k1_, k3_, s2_) in enumerate(el):
                a("v_exp_f32 v%d, v%d" % (T0 + q, T0 + q))
            for q, (x, u, cg, cu, m_, k1_, k3_, s2_) in enumerate(el):
                a("v_fma_f32 v%d, -v%d, v%d, v%d" % (u, m_, cu, u))
            for q, (x, u, cg, cu, m_, k1_, k3_, s2_) in enumerate(el):
                a("v_fma_f32 v%d, v%d, v%d, v%d" % (T0 + q, T0 + q, s2_, s2_))
            for q, (x, u, cg, cu, m_, k1_, k3_, s2_) in enumerate(el):
                a("v_rcp_f32 v%d, v%d" % (T0 + q, T0 + q))
            for q, (x, u, cg, cu, m_, k1_, k3_, s2_) in enumerate(el):
                a("v_mul_f32 v%d, v%d, v%d" % (u, x, u))
            for q, (x, u, cg, cu, m_, k1_, k3_, s2_) in enumerate(el):
                a("v_mul_f32 v%d, v%d, v%d" % (u, u, T0 + q))
            o = OUT + 4 * (n % 3)
            n += 1
            for q in range(4):
                a("v_cvt_pk_bf16_f32 v%d, v%d, v%d" % (o + q, el[2 * q][1], el[2 * q + 1][1]))
            a("s_nop 1")
            a("v_permlane16_swap_b32 v%d, v%d" % (o, o + 2))
            a("v_permlane16_swap_b32 v%d, v%d" % (o + 1, o + 3))
            a("s_nop 1")
            a("buffer_store_dwordx4 %s, v25, %s, s%d offen offset:%d sc1" % (vr(o, 4), sr(SACT, 4), 70 + ip // 2, 512 * j))
    stamp(a, 7)
    p1_done(a, ["s_cmp_eq_u32 s%d, 8" % S_FB, "s_cselect_b32 s64, 0, 64", "s_lshl_b32 s3, s%d, 2" % S_RB, "s_add_u32 s3, s3, s64"])

    a.label("L_k1_att")
    a.vm = list(VM0)
    a("s_cmp_lt_u32 s%d, 31" % S_SLOT)
    a("s_cbranch_scc0 L_k1_extra")
    a("s_sub_u32 s%d, s%d, 18" % (S_RB, S_SLOT))
    make_srd(a, SW, 6, 7, 640 * 3840)
    ARING = 65536
    ASLOT = 22528
    a("s_add_u32 s66, s%d, s%d" % (S_RB, S_XCD))
    for _ in range(2):
        a("s_cmp_ge_u32 s66, 10")
        a("s_cselect_b32 s67, 10, 0")
        a("s_sub_u32 s66, s66, s67")
    if not ROT:
        a("s_mov_b32 s66, 0")
    a("s_lshl_b32 s%d, s66, 7" % S_SOA)
    a("s_mul_i32 s%d, s66, 245760" % S_SOB)
    a("s_mul_i32 s70, s%d, 160" % S_XCD)
    a("v_mul_u32_u24 v16, 3840, v7")
    a("v_add_u32 v16, s70, v16")
    a("s_lshr_b32 s66, s%d, 1" % S_W)
    a("s_lshl_b32 s66, s66, 2")
    a("v_mov_b32 v17, 1120")
    for j in range(2):
        if j:
            a("v_xor_b32 v1, 2, v8")
            a("v_add_u32 v1, s66, v1")
        else:
            a("v_add_u32 v1, s66, v8")
        a("v_min_u32 v1, 14, v1")
        a("v_lshlrev_b32 v%d, 5, v1" % (13 + j))
        a("v_lshl_add_u32 v%d, v9, 4, v%d" % (13 + j, 13 + j))
        a("v_cmp_le_u32 vcc, 5, v1")
        a("v_add_u32 v%d, v%d, v16" % (13 + j, 13 + j))
        a("s_and_b32 s67, s%d, 1" % S_W)
        a("v_cndmask_b32 v18, 0, v17, vcc")
        a("v_cmp_le_u32 vcc, 10, v1")
        a("v_add_u32 v%d, v%d, v18" % (13 + j, 13 + j))
        a("s_lshl_b32 s67, s67, 1")
        a("v_cndmask_b32 v18, 0, v17, vcc")
        a("s_add_u32 s67, s67, %d" % j)
        a("s_mul_i32 s67, s67, %d" % (8 * 3840))
        a("v_add3_u32 v%d, v%d, v18, s67" % (13 + j, 13 + j))
    a("s_and_b32 s66, s%d, 1" % S_W)
    a("s_lshl_b32 s66, s66, 6")
    a("v_xor_b32 v1, s66, v10")
    a("s_mul_i32 s66, s%d, 20" % S_RB)
    a("s_add_u32 s66, s66, s%d" % S_W)
    a("s_max_u32 s67, s66, 2")
    a("s_sub_u32 s67, s67, 2")
    a("s_min_u32 s67, s67, 255")
    a("s_mul_i32 s67, s67, %d" % (8 * 1280))
    a("v_add_u32 v10, s67, v1")
    a("s_add_u32 s67, s66, 6")
    a("s_min_u32 s68, s67, 255")
    a("s_mul_i32 s68, s68, %d" % (8 * 1280))
    a("v_add_u32 v11, s68, v1")
    a("s_add_u32 s67, s66, 14")
    a("s_min_u32 s67, s67, 255")
    a("s_mul_i32 s67, s67, %d" % (8 * 1280))
    a("s_cmp_lt_u32 s%d, 6" % S_W)
    a("s_cselect_b32 s68, s67, s68")
    a("s_cselect_b32 s78, 16384, 8192")
    a("v_add_u32 v12, s68, v1")
    a("s_lshl_b32 s79, s%d, 10" % S_W)
    a("s_add_u32 s78, s78, s79")
    a("s_lshl_b32 s3, s%d, 11" % S_W)
    a("s_mul_i32 s66, s%d, %d" % (S_WM, 6 * 2048))
    a("s_add_u32 s66, s66, %d" % ARING)
    for c in ((3, 2, 1, 0) if MF == 32 else (1, 0)):
        if c:
            a("v_xor_b32 v%d, %d, v15" % (15 + c, (32 if MF == 32 else 64) * c))
        a("v_add_u32 v%d, s66, v%d" % (15 + c, 15 + c))
    a("s_lshl_b32 s66, s%d, 12" % S_WN)
    for j in range(4):
        a("v_xor_b32 v%d, %d, v6" % (17 + j, j))
        a("v_lshl_add_u32 v%d, v%d, 5, v5" % (17 + j, 17 + j))
        a("v_add_u32 v%d, s66, v%d" % (17 + j, 17 + j))

    def bdma2(st):
        return [("s_add_u32 m0, s3, 0x%x" % ((st % 4) * 16384 + 1024 * j),
                 "buffer_load_dwordx4 v%d, %s, s%d offen lds" % (13 + j, sr(SW, 4), S_SOB), "B%d" % st,
                 adv(S_SOB, 32 * 3840, 640 * 3840) if j == 1 else []) for j in range(2)]

    def adma2(S):
        b = ARING + (S % 3) * ASLOT
        ld = "buffer_load_dwordx4 v%d, %s, s%d offen lds"
        return [[("s_add_u32 m0, s79, 0x%x" % b, ld % (10, sr(SX, 4), S_SOA), "A%d" % S, []),
                 ("s_add_u32 m0, s79, 0x%x" % (b + 8192), ld % (11, sr(SX, 4), S_SOA), "A%d" % S, [])],
                [("s_add_u32 m0, s78, 0x%x" % b, ld % (12, sr(SX, 4), S_SOA), "A%d" % S,
                  adv(S_SOA, 128, 1280))]]

    pre = ["v_and_b32 v1, 15, v2", "s_mul_i32 s66, s%d, 96" % S_WM, "v_add_u32 v5, s66, v1",
           "v_mul_u32_u24 v5, %d, v5" % PITCH, "v_lshl_add_u32 v5, v4, 3, v5", "v_lshlrev_b32 v6, 4, v4",
           "s_mul_i32 s67, s%d, 160" % S_RB, "s_add_u32 s66, s66, s67", "s_sub_u32 s66, s66, 16", "s_lshl_b32 s66, s66, 3",
           "v_lshl_add_u32 v63, v1, 3, s66"]
    for t in range(4):
        pre += ["s_lshl_b32 s66, s%d, 2" % S_WN, "s_add_u32 s66, s66, %d" % t, "s_min_u32 s66, s66, 14",
                ["s_cmp_ge_u32 s66, 5", "s_cselect_b32 s67, 5, 0", "s_cselect_b32 s68, %d, %d" % (REG_K, REG_Q),
                 "s_cselect_b32 s69, 1024, 0"],
                ["s_cmp_ge_u32 s66, 10", "s_cselect_b32 s67, 10, s67", "s_cselect_b32 s68, %d, s68" % REG_V,
                 "s_cselect_b32 s69, 2048, s69"],
                "s_sub_u32 s66, s66, s67", "s_lshl_b32 s67, s66, 5", "s_add_u32 s67, s67, s68",
                "v_add_u32 v%d, s67, v5" % (21 + t),
                "s_lshl_b32 s66, s66, 6", "s_add_u32 s66, s66, s69", "s_add_u32 s66, s66, %d" % CSL,
                "v_add_u32 v%d, s66, v6" % (52 + t)]
    pre += ["v_and_b32 v1, 15, v2", "v_lshrrev_b32 v26, 4, v2", "v_lshlrev_b32 v6, 2, v26", "v_sub_u32 v6, v1, v6"]
    for T in range(2):
        for r in range(4):
            pre += ["v_add_u32 v7, %d, v6" % (16 - 16 * T - r), "v_alignbit_b32 v7, v7, v7, 1",
                    "v_cmp_ge_u32 %s, 7, v7" % sr(4 + 2 * (4 * T + r), 2)]
    pre += ["s_mul_i32 s66, s%d, %d" % (S_WM, 80 * PITCH), "s_mul_i32 s67, s%d, 40" % S_WN, "s_add_u32 s66, s66, s67",
            "v_mul_u32_u24 v5, %d, v1" % PITCH, "v_add_u32 v5, s66, v5",
            "v_lshlrev_b32 v6, 4, v26", "v_add_u32 v7, 8, v6",
            "v_cmp_gt_u32 s[76:77], 3, v26", "v_cmp_gt_u32 s[74:75], 2, v26", "s_nop 1",
            "v_cndmask_b32 v6, 0, v6, s[76:77]", "v_cndmask_b32 v7, 0, v7, s[74:75]",
            "v_add_u32 v56, v5, v6", "v_add_u32 v57, v5, v7",
            "v_add_u32 v58, %d, v56" % (REG_Q + 16 * PITCH), "v_add_u32 v59, %d, v57" % (REG_Q + 16 * PITCH),
            "v_lshrrev_b32 v60, 2, v2", "v_mul_u32_u24 v60, %d, v60" % PITCH, "v_and_b32 v6, 3, v2",
            "v_lshl_add_u32 v60, v6, 3, v60", "s_add_u32 s66, s66, %d" % REG_V, "v_add_u32 v60, s66, v60",
            "s_mul_i32 s66, s%d, 5" % S_WN, "s_mul_i32 s67, s%d, %d" % (S_WM, 5 * 2560)]
    for Dd in range(2):
        pre += ["v_add_u32 v6, s66, v26"] + (["v_add_u32 v6, 4, v6"] if Dd else []) + \
               ["v_lshrrev_b32 v7, 1, v6", "v_lshlrev_b32 v7, 8, v7", "v_and_b32 v6, 1, v6",
                "v_lshl_add_u32 v7, v6, 3, v7", "v_lshl_add_u32 v7, v1, 4, v7", "v_add_u32 v%d, s67, v7" % (61 + Dd)]
    pre += ["v_cmp_gt_u32 vcc, 16, v2", "v_mov_b32 v6, %d" % 26624, "s_nop 1", "v_cndmask_b32 v62, v6, v62, vcc",
            "v_mov_b32 v6, 0x%x" % BIG, "s_mov_b32 s67, 26215", "s_mov_b32 s68, %d" % (ACT_MT - 2560)]
    for nn in range(4):
        pre += ["s_lshl_b32 s66, s%d, 10" % S_W, "s_add_u32 s66, s66, %d" % (8192 * nn), "v_add_u32 v7, s66, v3",
                "v_mul_lo_u32 v5, v7, s67", "v_lshrrev_b32 v5, 26, v5", "v_mul_lo_u32 v5, v5, s68",
                "v_cmp_gt_u32 vcc, 25600, v7", "v_add_u32 v5, v5, v7", "s_nop 0", "v_cndmask_b32 v%d, v6, v5, vcc" % (48 + nn)]
    pre += ["v_cmp_gt_u32 vcc, 20, v2", "s_nop 1", "v_cndmask_b32 v27, v6, v3, vcc",
            "s_mul_i32 s69, s%d, %d" % (S_RB, 10 * ACT_MT), "s_mul_i32 s67, s%d, 2560" % S_XCD, "s_add_u32 s69, s69, s67",
            "s_mul_i32 s70, s%d, 320" % S_XCD, "s_add_u32 s70, s70, %d" % ST_CS, "s_add_u32 s71, s70, 2560", "s_add_u32 s72, s70, 5120",
            "v_mov_b32 v%d, 240" % (TT + 1)]
    RS = 36
    t17 = ["v_add_u32 v1, 128, v63",
           ("buffer_load_dwordx2 %s, v63, %s, 0 offen sc1" % (vr(RS, 2), sr(SST, 4)), "TL")]
    for i in range(1, 6):
        t17.append(("buffer_load_dwordx2 %s, v1, %s, 0 offen offset:%d sc1" % (vr(RS + 2 * i, 2), sr(SST, 4), 128 * (i - 1)), "TL"))
    for sec in range(3):
        t17.append(["s_mov_b32 m0, %d" % (CSL + 1024 * sec), "s_nop 0",
                    ("buffer_load_dwordx4 v27, %s, s%d offen sc1 lds" % (sr(SST, 4), 70 + sec), "TL")])

    def csreg2(t):
        return 240 + 4 * t
    t19 = ["ds_read_b128 %s, v%d" % (vr(csreg2(t), 4), 52 + t) for t in range(4)]
    bg, top = std_bg(pre, t17, t19)
    P = dict(nI=3, nJ=2, name="att", bdma=bdma2, adma=adma2, bg=bg, toptags=top,
             a_addr=lambda S3, q, i: (15 + q, S3 * ASLOT + i * 2048),
             b_addr=lambda slot, j: (17 + j, slot * 16384))
    k1_mainloop(a, P)
    FM = [28, 30, 40, 42]
    a("s_or_b32 s66, s%d, s%d" % (S_WM, S_RB))
    a("s_cmp_eq_u32 s66, 0")
    for r in range(4):
        a("s_cselect_b64 %s, 0, %s" % (sr(FM[r], 2), sr(4 + 2 * r, 2)))
    a("s_mov_b32 s63, s69")
    p2_early(a)

    for i in range(6):
        a("v_max_f32 v%d, 0x%x, v%d" % (RS + 2 * i + 1, f2u(1e-3), RS + 2 * i + 1))
    for i in range(6):
        a("v_rcp_f32 v%d, v%d" % (RS + 2 * i + 1, RS + 2 * i + 1))
    a("s_waitcnt lgkmcnt(0)")
    W0 = FR0
    n = 0
    for i in range(6):
        for j in range(4):
            acc = ACC + 4 * (i * 4 + j)
            for r in range(4):
                a("v_fma_f32 v%d, -v%d, v%d, v%d" % (acc + r, RS + 2 * i, csreg2(j) + r, acc + r))
        for j in range(4):
            acc = ACC + 4 * (i * 4 + j)
            for r in range(4):
                a("v_mul_f32 v%d, v%d, v%d" % (acc + r, acc + r, RS + 2 * i + 1))
        for j in range(4):
            acc = ACC + 4 * (i * 4 + j)
            o = W0 + 2 * (n % 8)
            n += 1
            a("v_cvt_pk_bf16_f32 v%d, v%d, v%d" % (o, acc, acc + 1))
            a("v_cvt_pk_bf16_f32 v%d, v%d, v%d" % (o + 1, acc + 2, acc + 3))
            a("ds_write_b64 v%d, %s offset:%d" % (21 + j, vr(o, 2), i * 16 * PITCH))
    a("s_waitcnt lgkmcnt(0)")
    a("s_barrier")
    IB = ACC
    SB = FR0 + 8
    TB = FR0 + 48
    for n in range(5):
        b = IB + 20 * n
        off = n * 16 * PITCH
        a("ds_read_b64 %s, v58 offset:%d" % (vr(b, 2), off))
        a("ds_read_b64 %s, v59 offset:%d" % (vr(b + 2, 2), off))
        for T in range(2):
            a("ds_read_b64 %s, v56 offset:%d" % (vr(b + 4 + 4 * T, 2), off + T * 16 * PITCH))
            a("ds_read_b64 %s, v57 offset:%d" % (vr(b + 6 + 4 * T, 2), off + T * 16 * PITCH))
    for n in range(5):
        b = IB + 20 * n
        off = n * 16 * PITCH
        for Dd in range(2):
            for e in range(2):
                a("ds_read_b64_tr_b16 %s, v60 offset:%d" % (vr(b + 12 + 4 * Dd + 2 * e, 2), off + e * 16 * PITCH + Dd * 32))
    SC = (20 ** -0.5) * LOG2E
    a("v_mov_b32 v5, 0x%x" % f2u(SC))
    a("v_mov_b32 v6, 0x%x" % f2u(-1e9))
    a("s_waitcnt lgkmcnt(15)")
    for n in range(5):
        b = IB + 20 * n
        a("v_cndmask_b32 v%d, 0, v%d, s[76:77]" % (b, b))
        a("v_cndmask_b32 v%d, 0, v%d, s[76:77]" % (b + 1, b + 1))
        a("v_cndmask_b32 v%d, 0, v%d, s[74:75]" % (b + 2, b + 2))
        a("v_cndmask_b32 v%d, 0, v%d, s[74:75]" % (b + 3, b + 3))
    a("s_nop 1")
    for n in range(5):
        b = IB + 20 * n
        for T in range(2):
            a("v_mfma_f32_16x16x32_bf16 %s, %s, %s, 0" % (vr(SB + 8 * n + 4 * T, 4), vr(b + 4 + 4 * T, 4), vr(b, 4)))
    a("s_nop 0")
    for n in range(5):
        s = SB + 8 * n
        for q in range(8):
            a("v_mul_f32 v%d, v5, v%d" % (s + q, s + q))
        for q in range(8):
            m = sr(FM[q], 2) if (n == 0 and q < 4) else sr(4 + 2 * q, 2)
            a("v_cndmask_b32 v%d, v6, v%d, %s" % (s + q, s + q, m))
        t = TB + 2 * n
        a("v_max3_f32 v%d, v%d, v%d, v%d" % (t, s, s + 1, s + 2))
        a("v_max3_f32 v%d, v%d, v%d, v%d" % (t + 1, s + 3, s + 4, s + 5))
        a("v_max3_f32 v%d, v%d, v%d, v%d" % (t, t, s + 6, s + 7))
        a("v_max_f32 v%d, v%d, v%d" % (t, t, t + 1))
    tr = [TB + 2 * n for n in range(5)]
    tt = [TB + 2 * n + 1 for n in range(5)]
    for x in xreduce(tr, tt, "v_max_f32"):
        a(x)
    for n in range(5):
        s = SB + 8 * n
        t = TB + 2 * n
        for q in range(8):
            a("v_sub_f32 v%d, v%d, v%d" % (s + q, s + q, t))
        for q in range(8):
            a("v_exp_f32 v%d, v%d" % (s + q, s + q))
        a("s_nop 0")
        a("v_add_f32 v%d, v%d, v%d" % (t, s, s + 1))
        a("v_add_f32 v%d, v%d, v%d" % (t + 1, s + 2, s + 3))
        a("v_add_f32 v%d, v%d, v%d" % (t, t, s + 4))
        a("v_add_f32 v%d, v%d, v%d" % (t + 1, t + 1, s + 5))
        a("v_add_f32 v%d, v%d, v%d" % (t, t, s + 6))
        a("v_add_f32 v%d, v%d, v%d" % (t + 1, t + 1, s + 7))
        a("v_add_f32 v%d, v%d, v%d" % (t, t, t + 1))
    for x in xreduce(tr, tt, "v_add_f32"):
        a(x)
    for n in range(5):
        t = TB + 2 * n
        a("v_rcp_f32 v%d, v%d" % (t, t))
    a("s_nop 0")
    for n in range(5):
        s = SB + 8 * n
        t = TB + 2 * n
        b = IB + 20 * n
        for q in range(8):
            a("v_mul_f32 v%d, v%d, v%d" % (s + q, s + q, t))
        for q in range(4):
            a("v_cvt_pk_bf16_f32 v%d, v%d, v%d" % (b + q, s + 2 * q, s + 2 * q + 1))
    a("s_waitcnt lgkmcnt(0)")
    a("s_barrier")
    for n in range(5):
        b = IB + 20 * n
        for Dd in range(2):
            a("v_mfma_f32_16x16x32_bf16 %s, %s, %s, 0" % (vr(SB + 8 * n + 4 * Dd, 4), vr(b + 12 + 4 * Dd, 4), vr(b, 4)))
    a("s_nop 0")
    for n in range(5):
        s = SB + 8 * n
        b = IB + 20 * n
        for Dd in range(2):
            a("v_cvt_pk_bf16_f32 v%d, v%d, v%d" % (b + 4 + 2 * Dd, s + 4 * Dd, s + 4 * Dd + 1))
            a("v_cvt_pk_bf16_f32 v%d, v%d, v%d" % (b + 5 + 2 * Dd, s + 4 * Dd + 2, s + 4 * Dd + 3))
        for Dd in range(2):
            a("ds_write_b64 v%d, %s offset:%d" % (61 + Dd, vr(b + 4 + 2 * Dd, 2), 2560 * n))
    a("s_lshl_b32 s3, s%d, 10" % S_W)
    a("v_add_u32 v5, s3, v3")
    a("s_waitcnt lgkmcnt(0)")
    a("s_barrier")
    for nn in range(4):
        a("ds_read_b128 %s, v5 offset:%d" % (vr(ACC + 4 * nn, 4), 8192 * nn))
    for nn in range(4):
        a("s_waitcnt lgkmcnt(%d)" % (3 - nn))
        a("buffer_store_dwordx4 %s, v%d, %s, s63 offen sc1" % (vr(ACC + 4 * nn, 4), 48 + nn, sr(SACT, 4)))
    stamp(a, 7)
    p1_done(a, ["s_lshl_b32 s3, s%d, 2" % S_RB, "s_add_u32 s3, s3, 128"])

    a.label("L_k1_extra")
    a.vm = list(VM0)
    for x in stats_loads() + k2_prefetch():
        emit(a, x)
    a("s_waitcnt vmcnt(0)")
    for x in stats_segA():
        emit(a, x)
    a("s_waitcnt lgkmcnt(0)")
    a("s_barrier")
    for x in stats_segB():
        emit(a, x)
    a("s_waitcnt lgkmcnt(0)")
    for x in stats_segC():
        emit(a, x)
    tlb_warm_act(a)
    a("s_barrier")
    for x in stats_signal():
        emit(a, x)
    p2_early(a)
    a("s_waitcnt vmcnt(0)")
    gen_phase2(a)
    a.label("L_k1_end")
    a("s_endpgm")
    a.label("L_code_end")
    return (name, 256, 102 if STAMP else 80)


K2_NS = 7
K2_NST = 37


def p2_poll(a, nm, lo_reg, exp_reg):
    a("s_cmp_lg_u32 s20, 0")
    a("s_cbranch_scc1 L_p2ok_%s" % nm)
    a("v_cmp_lt_u32 vcc, 0, v%d" % exp_reg)
    a("v_mov_b32 v25, 0x%x" % BIG)
    a("s_mov_b32 s21, 0")
    a("v_cndmask_b32 v25, v25, v21, vcc")
    a.label("L_p2poll_%s" % nm)
    a.l.append("    buffer_load_dword v22, v25, %s, 0 offen sc1" % sr(SDBG, 4))
    a("s_waitcnt vmcnt(0)")
    a("v_cmp_lt_u32 vcc, v22, v%d" % exp_reg)
    a("s_add_u32 s21, s21, 1")
    a("s_nop 2")
    a("s_cmp_eq_u64 vcc, 0")
    a("s_cbranch_scc1 L_p2ok_%s" % nm)
    a("s_cmp_ge_u32 s21, 0x20000")
    a("s_cbranch_scc1 L_p2ok_%s" % nm)
    a("v_cmp_lt_u32 vcc, 0, v22")
    a("s_sleep 4")
    a("s_nop 2")
    a("s_cmp_lg_u64 vcc, 0")
    a("s_cbranch_scc1 L_p2poll_%s" % nm)
    a("s_sleep 40")
    a("s_branch L_p2poll_%s" % nm)
    a.label("L_p2ok_%s" % nm)


def gen_phase2(a):
    a.label("L_phase2")
    a("s_load_dwordx2 s[4:5], s[0:1], 0")
    a("s_load_dwordx2 s[30:31], s[0:1], 56")
    p2_map(a, 24)
    a("s_cmp_eq_u32 s28, 1")
    a("s_cbranch_scc1 L_p2_end")
    a("s_mov_b32 s20, s%d" % S_W)
    a("v_lshrrev_b32 v4, 4, v2")
    a("v_lshlrev_b32 v5, 10, v4")
    a("v_bfe_u32 v6, v2, 2, 2")
    a("v_lshl_add_u32 v5, v6, 7, v5")
    a("v_and_b32 v6, 3, v2")
    a("v_lshl_add_u32 v5, v6, 3, v5")
    a("v_bfe_u32 v6, v2, 3, 2")
    a("s_lshr_b32 s34, s20, 2")
    a("s_lshl_b32 s36, s26, 4")
    a("s_add_u32 s37, s26, s27")
    a("s_lshl_b32 s37, s37, 4")
    a("s_sub_u32 s37, s37, 1")
    a("s_lshr_b32 s38, s36, 7")
    a("s_lshr_b32 s39, s37, 7")
    a("s_add_u32 s38, s38, 16")
    a("s_add_u32 s39, s39, 16")
    a("v_lshlrev_b32 v21, 2, v2")
    a("v_cmp_eq_u32 vcc, s38, v2")
    a("v_cmp_eq_u32 s[40:41], s39, v2")
    a("s_mul_i32 s38, s36, 6554")
    a("s_mul_i32 s39, s37, 6554")
    a("s_or_b64 vcc, vcc, s[40:41]")
    a("s_lshr_b32 s38, s38, 20")
    a("s_lshr_b32 s39, s39, 20")
    a("v_cndmask_b32 v23, 0, 8, vcc")
    a("s_lshr_b64 s[42:43], vcc, 16")
    a("s_add_u32 s38, s38, 32")
    a("s_add_u32 s39, s39, 32")
    a("v_cmp_eq_u32 vcc, s38, v2")
    a("v_cmp_eq_u32 s[40:41], s39, v2")
    a("s_nop 1")
    a("s_or_b64 vcc, vcc, s[40:41]")
    a("s_nop 0")
    a("v_cndmask_b32 v24, 0, 8, vcc")
    a("v_cndmask_b32 v24, v24, 1, s[42:43]")
    return_sact = True
    a("s_bfe_u32 s35, s20, 0x10001")
    a("s_and_b32 s36, s20, 1")
    a("s_waitcnt lgkmcnt(0)")
    make_srd(a, 40, 4, 5, 2048 * 1280)
    make_srd(a, 8, 30, 31, 2048 * 1280)
    make_srd(a, 12, 22, 23, ACT_BYTES, ACT_OFF)
    a("s_mul_i32 s37, s35, 3")
    a("s_add_u32 s37, s37, s26")
    a("s_mul_i32 s37, s37, %d" % (16 * 1280))
    a("s_lshl_b32 s38, s25, 7")
    a("s_add_u32 s37, s37, s38")
    a("s_lshl_b32 s38, s36, 1")
    a("s_add_u32 s38, s38, s34")
    a("s_lshl_b32 s38, s38, 5")
    a("s_add_u32 s37, s37, s38")
    a("v_and_b32 v26, 15, v2")
    a("v_mul_u32_u24 v26, 1280, v26")
    a("v_lshl_add_u32 v26, v4, 3, v26")
    a("v_add_u32 v26, s37, v26")
    a("s_mov_b32 s38, %d" % (16 * 1280))
    a("s_mov_b32 s39, %d" % (32 * 1280))
    a("buffer_load_dwordx2 v[28:29], v26, s[40:43], 0 offen")
    a("buffer_load_dwordx2 v[30:31], v26, s[40:43], s38 offen")
    a("buffer_load_dwordx2 v[32:33], v26, s[40:43], s39 offen")
    a("s_add_u32 s37, s26, s20")
    a("s_mul_i32 s37, s37, %d" % ACT_MT)
    a("v_add_u32 v10, s37, v3")
    a("s_mov_b32 s16, %d" % (20 * 1024))
    a("s_mov_b32 s17, %d" % (6 * 64 * 1280))
    a("s_lshl_b32 s18, s20, 11")
    a("s_lshl_b32 s19, s20, 10")
    a("s_mul_i32 s37, s35, 6144")
    a("s_lshl_b32 s29, s34, 10")
    a("s_add_u32 s37, s37, s29")
    a("v_add_u32 v12, s37, v3")
    a("v_add_u32 v13, 0x10000, v12")
    a("s_lshl_b32 s29, s34, 12")
    a("s_add_u32 s29, s29, %d" % P2_B)
    for jj in range(2):
        a("s_lshl_b32 s37, s36, 1")
        a("s_add_u32 s37, s37, %d" % jj)
        a("v_xor_b32 v%d, s37, v6" % (15 + jj))
        a("v_lshl_add_u32 v%d, v%d, 5, v5" % (15 + jj, 15 + jj))
        a("v_add_u32 v%d, s29, v%d" % (15 + jj, 15 + jj))
    AC = 64
    FRB = 96
    NS = K2_NS
    p2_poll(a, "f", 21, 23)
    a("s_barrier")
    stamp(a, 1)

    def read_ops(st):
        p = st % 2
        ops = []
        for jj in range(2):
            for e in range(2):
                ops.append("ds_read_b64_tr_b16 %s, v%d offset:%d" % (vr(FRB + 20 * p + 12 + 4 * jj + 2 * e, 2), 15 + jj, (st % NS) * 8192 + e * 512))
        for i in range(3):
            off = (st % NS) * 12288 + i * 2048
            ops.append("ds_read_b128 %s, v%d offset:%d" % (vr(FRB + 20 * p + 4 * i, 4), 12 + (off >> 16), off & 0xffff))
        return ops

    def body(loader):
        a.vm = []
        tag = "l" if loader else "n"

        def dma_ops(st, doB=True):
            ops = []
            if loader:
                if st == 27:
                    ops.append(["s_mov_b32 s16, 0"])
                ops.append(["s_add_u32 m0, s18, 0x%x" % ((st % NS) * 12288)])
                ops.append([("buffer_load_dwordx4 v10, s[12:15], s16 offen lds", "S%d" % st)])
                ops.append([("buffer_load_dwordx4 v10, s[12:15], s16 offen offset:1024 lds", "S%d" % st), "s_add_u32 s16, s16, 2048"])
            if doB:
                srd = SPF1 if st < 27 else SPF2
                if st == 27:
                    ops.append(["s_mov_b32 s17, 0"])
                ops.append(["s_add_u32 m0, s19, 0x%x" % (P2_B + (st % NS) * 8192)])
                ops.append([("buffer_load_dwordx4 v%d, %s, s17 offen lds" % (P2V, sr(srd, 4)), "S%d" % st), "s_add_u32 s17, s17, %d" % (64 * 1280)])
            return ops
        for st in range(NS):
            for o in dma_ops(st, st >= 6):
                emit(a, o)
                if isinstance(o[0], str) and o[0].startswith("s_add_u32 m0"):
                    a("s_nop 0")
        n = a.vmwait({"S0"})
        a("s_waitcnt vmcnt(%d)" % (n if n is not None else 63))
        a("s_barrier")
        stamp(a, 2)
        for x in read_ops(0):
            a(x)
        for it in range(K2_NST):
            if it in (10, 20, 30):
                stamp(a, 2 + it // 10)
            p = it % 2
            n = a.vmwait({"S%d" % (it + 1)}) if it + 1 < K2_NST else None
            if it + NS == 24 and loader:
                p2_poll(a, "a" + tag, 21, 24)
            if n is not None:
                a("s_waitcnt vmcnt(%d) lgkmcnt(0)" % n)
            else:
                a("s_waitcnt lgkmcnt(0)")
            a("s_barrier")
            fillers = dma_ops(it + NS) if it + NS < K2_NST else []
            rd = read_ops(it + 1) if it + 1 < K2_NST else []
            gaps = [[] for _ in range(6)]
            for q, o in enumerate(fillers):
                gaps[min(q, 5)].append(o)
                if q >= 5 and isinstance(o[0], str) and o[0].startswith("s_add_u32 m0"):
                    gaps[5].append("s_nop 0")
            for q, x in enumerate(rd):
                gaps[min(q, 5)].append(x)
            k = 0
            for i in range(3):
                for jj in range(2):
                    acc = AC + 4 * (2 * i + jj)
                    c = "0" if it == 0 else vr(acc, 4)
                    a("v_mfma_f32_16x16x32_bf16 %s, %s, %s, %s" % (vr(acc, 4), vr(FRB + 20 * p + 12 + 4 * jj, 4), vr(FRB + 20 * p + 4 * i, 4), c))
                    emit(a, gaps[k])
                    k += 1
    a("s_cmp_lt_u32 s20, s27")
    a("s_cbranch_scc0 L_k2_nl")
    body(True)
    a("s_branch L_k2_epi")
    a.label("L_k2_nl")
    body(False)
    a.label("L_k2_epi")
    stamp(a, 6)
    a("s_mul_i32 s37, s20, 3072")
    a("v_add_u32 v12, s37, v3")
    a("s_xor_b32 s37, s20, 4")
    a("s_mul_i32 s37, s37, 3072")
    a("v_add_u32 v13, s37, v3")
    a("s_nop 4")
    a("s_cmp_eq_u32 s34, 0")
    a("s_cbranch_scc0 L_k2_x1")
    for kq in range(2):
        for i in range(3):
            a("ds_write_b128 v12, %s offset:%d" % (vr(AC + 4 * (2 * i + 1 - kq), 4), 1024 * i))
        for i in range(3):
            for r in range(4):
                a("v_mov_b32 v%d, v%d" % (FRB + 4 * i + r, AC + 4 * (2 * i + kq) + r))
        if kq == 0:
            a("s_branch L_k2_x2")
            a.label("L_k2_x1")
    a.label("L_k2_x2")
    a("s_waitcnt lgkmcnt(0)")
    a("s_barrier")
    for i in range(3):
        a("ds_read_b128 %s, v13 offset:%d" % (vr(AC + 4 * i, 4), 1024 * i))
    a("s_mov_b32 s37, 0xffff0000")
    a("s_waitcnt vmcnt(0) lgkmcnt(0)")
    for i in range(3):
        for r in range(4):
            a("v_add_f32 v%d, v%d, v%d" % (FRB + 4 * i + r, FRB + 4 * i + r, AC + 4 * i + r))
        for d in range(2):
            a("v_lshlrev_b32 v%d, 16, v%d" % (AC + 4 * i, 28 + 2 * i + d))
            a("v_and_b32 v%d, s37, v%d" % (AC + 4 * i + 1, 28 + 2 * i + d))
            a("v_add_f32 v%d, v%d, v%d" % (FRB + 4 * i + 2 * d, FRB + 4 * i + 2 * d, AC + 4 * i))
            a("v_add_f32 v%d, v%d, v%d" % (FRB + 4 * i + 2 * d + 1, FRB + 4 * i + 2 * d + 1, AC + 4 * i + 1))
        for d in range(2):
            a("v_cvt_pk_bf16_f32 v%d, v%d, v%d" % (28 + 2 * i + d, FRB + 4 * i + 2 * d, FRB + 4 * i + 2 * d + 1))
    a("buffer_store_dwordx2 v[28:29], v26, s[8:11], 0 offen")
    a("buffer_store_dwordx2 v[30:31], v26, s[8:11], s38 offen")
    a("s_sub_u32 s37, s27, s35")
    a("s_cmp_eq_u32 s37, 4")
    a("s_cbranch_scc1 L_k2_fl")
    a("buffer_store_dwordx2 v[32:33], v26, s[8:11], s39 offen")
    a.label("L_k2_fl")
    a.label("L_p2_end")
    if STAMP:
        a("s_waitcnt vmcnt(0)")
        stamp_dump(a, 2, "L_sd_end")


def main():
    a = Asm()
    hdr = open("cdna_kernels/%s.s.ref" % NAME).read().splitlines()
    for l in hdr:
        if l.startswith(";") and "@launch" not in l:
            a.raw(l)
    a.raw("; @launch kernel=fused_kernel grid=(256,1,1) block=(512,1,1) lds=%d" % K1_LDS)
    a.raw('.amdgcn_target "amdgcn-amd-amdhsa--gfx950"')
    ks = [gen_k1(a)]
    for (n, v, s) in ks:
        kernel_desc(a, n, v, s)
    av = [x for x in sys.argv[1:] if not x.startswith("--")]
    out = av[0] if av else "cdna_kernels/%s.s" % NAME
    open(out, "w").write(a.text())


main()
```

```python
import sys, struct, re

NAME = "parallel_sum__sliding_local_dilated__geglu_ffn__prompt"
ST_OFF = 0
ST_CS = 256 * 128
ST_BYTES = ST_CS + 5376 * 4
ACT_OFF = 4 << 20
ACT_MT = 74 * 1024
ACT_BYTES = 128 * ACT_MT
BIG = 0x40000000
LOG2E = 1.4426950408889634
STAMP = "--stamp" in sys.argv
STAMP_OFF = 32 << 20
MF = 32 if "--mf32" in sys.argv else 16
ROT = 0 if "--norot" in sys.argv else 1


def f2u(x):
    return struct.unpack("<I", struct.pack("<f", x))[0]


class Asm:
    def __init__(self):
        self.l = []
        self.vm = []

    def __call__(self, s, tag=None):
        m = re.match(r"s_cselect_b32 (s\d+), (\d+|0x[0-9a-f]+), (\d+|0x[0-9a-f]+)$", s)
        if m and int(m.group(2), 0) > 64 and int(m.group(3), 0) > 64:
            self.l.append("    s_mov_b32 %s, %s" % (m.group(1), m.group(3)))
            s = "s_cselect_b32 %s, %s, %s" % (m.group(1), m.group(2), m.group(1))
        self.l.append("    " + s)
        if s.startswith("buffer_") or s.startswith("global_"):
            kind = "D" if s.endswith(" lds") else ("L" if ("_load" in s or ("atomic" in s and " sc0" in s)) else "S")
            self.vm.append((tag, kind))

    def vmwait(self, tags):
        best = None
        for kind in "DLS":
            idx = [i for i, (t, k) in enumerate(self.vm) if t in tags and k == kind]
            if not idx:
                continue
            n = 0 if kind == "S" else sum(1 for (t, k) in self.vm[max(idx) + 1:] if k == kind)
            best = n if best is None else min(best, n)
        return None if best is None else min(63, best)

    def label(self, s):
        self.l.append(s + ":")

    def raw(self, s):
        self.l.append(s)

    def text(self):
        return "\n".join(self.l) + "\n"


def vr(a, n):
    return "v[%d:%d]" % (a, a + n - 1)


def sr(a, n):
    return "s[%d:%d]" % (a, a + n - 1)


def kernel_header(a, name):
    a.raw(".text")
    a.raw(".globl %s" % name)
    a.raw(".p2align 8")
    a.raw(".type %s,@function" % name)
    a.label(name)


def kernel_desc(a, name, vgpr, sgpr):
    a.raw('.section .rodata,"a"')
    a.raw(".p2align 6")
    a.raw(".amdhsa_kernel %s" % name)
    a.raw("  .amdhsa_next_free_vgpr %d" % vgpr)
    a.raw("  .amdhsa_next_free_sgpr %d" % sgpr)
    a.raw("  .amdhsa_accum_offset %d" % ((vgpr + 3) // 4 * 4))
    a.raw("  .amdhsa_group_segment_fixed_size 0")
    a.raw("  .amdhsa_kernarg_size 80")
    a.raw("  .amdhsa_user_sgpr_count 2")
    a.raw("  .amdhsa_user_sgpr_kernarg_segment_ptr 1")
    a.raw("  .amdhsa_system_sgpr_workgroup_id_x 1")
    a.raw(".end_amdhsa_kernel")


def stamp(a, idx):
    if STAMP:
        a("s_memtime %s" % sr(80 + 2 * idx, 2))


def stamp_start(a):
    if STAMP:
        a("s_memtime s[80:81]")
        a("s_memrealtime s[98:99]")


def stamp_flush(a, wave_sgpr, wslo, wshi, kidx, endlabel):
    if not STAMP:
        return
    stamp(a, 7)
    a("s_waitcnt vmcnt(0)")
    a("s_memtime s[96:97]")
    a("s_memrealtime s[100:101]")
    a("s_waitcnt lgkmcnt(0)")
    a("s_cmp_lg_u32 s%d, 0" % wave_sgpr)
    a("s_cbranch_scc1 %s" % endlabel)
    make_srd(a, 76, wslo, wshi, 1 << 20, STAMP_OFF + kidx * 65536)
    a("s_lshl_b32 s3, s2, 6")
    a("v_mov_b32 v0, s3")
    for i in range(9):
        a("v_mov_b32 v1, s%d" % (80 + 2 * i))
        a("buffer_store_dword v1, v0, s[76:79], 0 offen offset:%d" % (4 * i))
    a("v_mov_b32 v1, s98")
    a("buffer_store_dword v1, v0, s[76:79], 0 offen offset:56")
    a("v_mov_b32 v1, s100")
    a("buffer_store_dword v1, v0, s[76:79], 0 offen offset:60")


def stamp_dump(a, kidx, lbl):
    if not STAMP:
        return
    a("s_memtime s[96:97]")
    a("s_memrealtime s[100:101]")
    a("s_waitcnt lgkmcnt(0)")
    a("s_cmp_lg_u32 s56, 0")
    a("s_cbranch_scc1 %s" % lbl)
    make_srd(a, 76, 22, 23, 1 << 20, STAMP_OFF + kidx * 65536)
    a("s_lshl_b32 s3, s2, 6")
    a("v_mov_b32 v7, s3")
    for i in range(9):
        a("v_mov_b32 v1, s%d" % (80 + 2 * i))
        a.l.append("    buffer_store_dword v1, v7, s[76:79], 0 offen offset:%d" % (4 * i))
    a("v_mov_b32 v1, s98")
    a.l.append("    buffer_store_dword v1, v7, s[76:79], 0 offen offset:56")
    a("v_mov_b32 v1, s100")
    a.l.append("    buffer_store_dword v1, v7, s[76:79], 0 offen offset:60")
    a.label(lbl)


def make_srd(a, d, lo, hi, nbytes, off=0):
    if off:
        a("s_add_u32 s%d, s%d, 0x%x" % (d, lo, off))
        a("s_addc_u32 s%d, s%d, 0" % (d + 1, hi))
    else:
        a("s_mov_b32 s%d, s%d" % (d, lo))
        a("s_mov_b32 s%d, s%d" % (d + 1, hi))
    a("s_mov_b32 s%d, 0x%x" % (d + 2, nbytes))
    a("s_mov_b32 s%d, 0x00020000" % (d + 3))


ACC = 64
FR0 = 160
PITCH = 168
REG_K = 0
REG_V = 192 * PITCH
REG_Q = 2 * 192 * PITCH
SCR = 148480
CSL = SCR + 2048
P2_B = 98304
K1_LDS = P2_B + 7 * 8192
SX, SW, SACT, SST, SCS, SPF1, SPF2, SDBG = 24, 28, 32, 36, 40, 44, 48, 52
S_W, S_XCD, S_SLOT, S_WM, S_WN, S_FB, S_RB = 56, 57, 58, 59, 60, 61, 62
S_SOA, S_SOB = 64, 65
V_RLO, V_CLO = 30, 31
V_RSO, V_CSO, V_ATO, V_SCW, V_SCR = 32, 33, 34, 35, 29
RL = 36
CL = 44
SEL = 240
CD = 244
TT = 248


def k2_prefetch():
    D = TT + 4
    return [["s_lshl_b32 s66, s2, 3", "s_add_u32 s66, s66, s%d" % S_W, "s_lshl_b32 s66, s66, 10",
             ("buffer_load_dwordx4 %s, v3, %s, s66 offen" % (vr(D, 4), sr(SPF1, 4)), "PF"),
             ("buffer_load_dwordx4 %s, v3, %s, s66 offen" % (vr(D, 4), sr(SPF2, 4)), "PF"),
             "s_add_u32 s66, s66, 0x200000",
             ("buffer_load_dwordx4 %s, v3, %s, s66 offen" % (vr(D, 4), sr(SPF1, 4)), "PF")]]


def tlb_warm(a):
    tab = [(4, 2048 * 1280), (6, 640 * 3840), (12, 640 * 3456), (14, 640 * 3456), (16, 1728 * 1280), (8, 640 * 1280),
           (18, 2048 * 1280)]
    a("s_cmp_eq_u32 s%d, 7" % S_W)
    a("s_cbranch_scc1 L_tw7")
    make_srd(a, SCS, tab[0][0], tab[0][0] + 1, tab[0][1])
    for w in range(1, 7):
        a("s_cmp_eq_u32 s%d, %d" % (S_W, w))
        a("s_cselect_b32 s%d, s%d, s%d" % (SCS, tab[w][0], SCS))
        a("s_cselect_b32 s%d, s%d, s%d" % (SCS + 1, tab[w][0] + 1, SCS + 1))
        a("s_cselect_b32 s%d, %d, s%d" % (SCS + 2, tab[w][1], SCS + 2))
    a("v_lshlrev_b32 v1, 16, v2")
    a("buffer_load_dword v%d, v1, %s, 0 offen" % (TT + 7, sr(SCS, 4)), "TW")
    a("s_branch L_tw_done")
    a.label("L_tw7")
    make_srd(a, SCS, 22, 23, 65536)
    a("v_mov_b32 v1, 61440")
    a.l.append("    buffer_load_dword v%d, v1, %s, 0 offen" % (TT + 7, sr(SCS, 4)))
    a.label("L_tw_done")


def tlb_warm_act(a):
    if "--act" not in sys.argv:
        a("s_waitcnt vmcnt(0)")
        return
    make_srd(a, SCS, 22, 23, ACT_OFF + ACT_BYTES)
    a("v_mul_u32_u24 v1, 0x5000, v0")
    a("v_add_u32 v1, %d, v1" % ACT_OFF)
    a("buffer_store_dword v1, v1, %s, 0 offen sc1" % sr(SCS, 4))
    a("s_waitcnt vmcnt(0)")


def p2_map(a, d):
    a("s_and_b32 s%d, s2, 7" % d)
    a("s_lshr_b32 s%d, s2, 3" % (d + 1))
    a("s_cmp_ge_u32 s%d, 2" % d)
    a("s_cselect_b32 s%d, 30, 31" % (d + 2))
    a("s_cselect_b32 s%d, 30, 99" % (d + 3))
    a("s_cmp_eq_u32 s%d, s%d" % (d + 1, d + 3))
    a("s_cselect_b32 s%d, 1, 0" % (d + 4))
    a("s_min_u32 s%d, s%d, s%d" % (d + 1, d + 1, d + 2))
    a("s_min_u32 s%d, s%d, 2" % (d + 2, d))
    a("s_mul_i32 s%d, s%d, 31" % (d, d))
    a("s_add_u32 s%d, s%d, s%d" % (d, d, d + 2))
    a("s_add_u32 s%d, s%d, s%d" % (d + 1, d, d + 1))
    a("s_mul_i32 s%d, s%d, 205" % (d, d + 1))
    a("s_lshr_b32 s%d, s%d, 11" % (d, d))
    a("s_mul_i32 s%d, s%d, 10" % (d + 2, d))
    a("s_sub_u32 s%d, s%d, s%d" % (d + 1, d + 1, d + 2))
    a("s_mul_i32 s%d, s%d, 6" % (d + 2, d))
    a("s_mul_i32 s%d, s%d, 5" % (d + 3, d))
    a("s_add_u32 s%d, s%d, 3" % (d + 3, d + 3))
    a("s_cmp_lt_u32 s%d, 3" % d)
    a("s_cselect_b32 s%d, s%d, s%d" % (d + 2, d + 2, d + 3))
    a("s_cselect_b32 s%d, 6, 5" % (d + 3))


P2V = 20


def p2_early(a):
    p2_map(a, 64)
    a("v_bfe_u32 v17, v2, 1, 2")
    a("v_bfe_u32 v18, v2, 4, 1")
    a("v_xor_b32 v17, v17, v18")
    a("v_and_b32 v18, 1, v2")
    a("v_lshlrev_b32 v17, 5, v17")
    a("v_lshl_add_u32 v17, v18, 4, v17")
    a("s_and_b32 s3, s%d, 1" % S_W)
    a("s_lshl_b32 s3, s3, 6")
    a("v_xor_b32 v17, s3, v17")
    a("v_lshrrev_b32 v18, 3, v2")
    a("v_mul_u32_u24 v18, 1280, v18")
    a("s_mul_i32 s3, s%d, %d" % (S_W, 8 * 1280))
    a("s_lshl_b32 s64, s65, 7")
    a("s_add_u32 s3, s3, s64")
    a("v_add3_u32 v%d, v17, v18, s3" % P2V)
    a("s_lshl_b32 s3, s%d, 10" % S_W)
    a("s_mov_b32 s64, 0")
    for st in range(6):
        a("s_add_u32 m0, s3, 0x%x" % (P2_B + st * 8192))
        a("s_nop 0")
        a("buffer_load_dwordx4 v%d, %s, s64 offen lds" % (P2V, sr(SPF1, 4)))
        a("s_add_u32 s64, s64, %d" % (64 * 1280))


def p1_done(a, cnt_sgpr_expr):
    a("s_waitcnt vmcnt(0)")
    a("s_barrier")
    for x in cnt_sgpr_expr:
        a(x)
    a("v_mov_b32 v1, 0x%x" % BIG)
    a("v_mov_b32 v5, s3")
    a("v_cmp_eq_u32 vcc, 0, v0")
    a("v_mov_b32 v6, 1")
    a("s_nop 0")
    a("v_cndmask_b32 v1, v1, v5, vcc")
    a("buffer_atomic_add v6, v1, %s, 0 offen" % sr(SDBG, 4))
    stamp_dump(a, 1, "L_sd_%d" % len(a.l))
    a("s_branch L_phase2")


def stats_setup(a):
    a("s_lshl_b32 s66, s2, 3")
    a("s_add_u32 s66, s66, s%d" % S_W)
    a("s_mul_i32 s67, s66, 1280")
    a("v_mov_b32 v9, 0x%x" % BIG)
    a("v_add_u32 v1, s67, v3")
    a("v_cmp_gt_u32 vcc, 40, v2")
    a("s_lshl_b32 s67, s2, 7")
    a("v_lshl_add_u32 v5, v2, 3, s67")
    a("v_cndmask_b32 v%d, v9, v1, vcc" % V_RLO)
    a("v_cmp_gt_u32 vcc, 16, v0")
    a("s_cmp_ge_u32 s%d, 6" % S_SLOT)
    a("s_cselect_b32 s68, 2, 1")
    a("v_cndmask_b32 v%d, v9, v5, vcc" % V_RSO)
    a("s_cselect_b32 s67, 6, 0")
    a("s_sub_u32 s66, s%d, s67" % S_SLOT)
    a("s_mul_i32 s69, s%d, 6" % S_XCD)
    a("s_add_u32 s69, s69, s66")
    a("s_sub_u32 s66, s%d, 12" % S_SLOT)
    a("s_lshl_b32 s66, s66, 3")
    a("s_add_u32 s66, s66, s%d" % S_XCD)
    a("s_mov_b32 s73, 0")
    a("s_cmp_ge_u32 s66, 60")
    a("s_cselect_b32 s73, 1, s73")
    a("s_cselect_b32 s75, 12, 0")
    a("s_sub_u32 s74, s66, s75")
    a("s_cmp_ge_u32 s66, 66")
    a("s_cselect_b32 s73, 2, s73")
    a("s_cselect_b32 s75, 6, 0")
    a("s_sub_u32 s74, s74, s75")
    a("s_cmp_ge_u32 s%d, 12" % S_SLOT)
    a("s_cselect_b32 s68, s73, s68")
    a("s_cselect_b32 s69, s74, s69")
    a("s_cmp_ge_u32 s%d, 21" % S_SLOT)
    a("s_cselect_b32 s71, 1, 0")
    a("s_cmp_eq_u32 s68, 1")
    a("s_cselect_b32 s%d, s12, s14" % SCS)
    a("s_cselect_b32 s%d, s13, s15" % (SCS + 1))
    a("s_cselect_b32 s72, 1920, 3648")
    a("s_cmp_eq_u32 s68, 0")
    a("s_cselect_b32 s%d, s6, s%d" % (SCS, SCS))
    a("s_cselect_b32 s%d, s7, s%d" % (SCS + 1, SCS + 1))
    a("s_cselect_b32 s72, 0, s72")
    a("s_cselect_b32 s73, 3840, 3456")
    a("s_mul_i32 s%d, s73, 640" % (SCS + 2))
    a("s_mov_b32 s%d, 0x00020000" % (SCS + 3))
    a("v_lshrrev_b32 v1, 4, v2")
    a("v_bfe_u32 v5, v2, 2, 2")
    a("v_lshl_add_u32 v1, v1, 2, v5")
    a("s_lshl_b32 s75, s%d, 4" % S_W)
    a("v_add_u32 v1, s75, v1")
    a("v_mul_lo_u32 v1, v1, s73")
    a("v_and_b32 v5, 3, v2")
    a("v_lshl_add_u32 v1, v5, 4, v1")
    a("s_lshl_b32 s74, s69, 6")
    a("s_cmp_eq_u32 s71, 1")
    a("s_cselect_b32 s74, 0x%x, s74" % BIG)
    a("v_add_u32 v%d, s74, v1" % V_CLO)
    a("s_lshl_b32 s77, s73, 7")
    a("s_lshl_b32 s75, s69, 5")
    a("s_add_u32 s74, s72, s75")
    a("s_lshl_b32 s74, s74, 2")
    a("s_add_u32 s74, s74, %d" % ST_CS)
    a("s_or_b32 s75, s71, s%d" % S_W)
    a("s_cmp_eq_u32 s75, 0")
    a("s_cselect_b32 s74, s74, 0x%x" % BIG)
    a("v_lshl_add_u32 v1, v2, 2, s74")
    a("v_cmp_gt_u32 vcc, 32, v2")
    a("v_and_b32 v5, 15, v2")
    a("v_lshlrev_b32 v6, 4, v5")
    a("v_cndmask_b32 v%d, v9, v1, vcc" % V_CSO)
    a("v_cmp_gt_u32 vcc, 8, v5")
    a("s_lshl_b32 s74, s%d, 7" % S_W)
    a("s_add_u32 s74, s74, %d" % SCR)
    a("v_add_u32 v7, s74, v6")
    a("v_add_u32 v6, %d, v6" % (SCR + 1024))
    a("v_cndmask_b32 v%d, v6, v7, vcc" % V_SCW)
    for d in range(4):
        a("v_cmp_eq_u32 vcc, %d, v5" % (2 * d))
        a("v_mov_b32 v6, 0x3f80")
        a("v_cmp_eq_u32 s[68:69], %d, v5" % (2 * d + 1))
        a("v_cndmask_b32 v%d, 0, v6, vcc" % (SEL + d))
        a("v_mov_b32 v6, 0x3f800000")
        a("v_cndmask_b32 v%d, v%d, v6, s[68:69]" % (SEL + d, SEL + d))
    a("v_and_b32 v5, 7, v2")
    a("v_bfe_u32 v6, v2, 3, 2")
    a("v_lshlrev_b32 v6, 2, v6")
    a("v_lshl_add_u32 v5, v5, 4, v6")
    a("v_cmp_eq_u32 vcc, 0, v0")
    a("v_add_u32 v%d, %d, v5" % (V_SCR, SCR))
    a("s_lshl_b32 s76, s77, 1")
    a("v_mov_b32 v5, 240")
    a("v_cndmask_b32 v%d, v9, v5, vcc" % V_ATO)
    a("s_add_u32 s75, s76, s77")
    a("s_lshl_b32 s74, s77, 2")


def stats_loads():
    o = [("buffer_load_dwordx4 %s, v%d, %s, 0 offen" % (vr(RL, 4), V_RLO, sr(SX, 4)), "SL"),
         ("buffer_load_dwordx4 %s, v%d, %s, 0 offen offset:640" % (vr(RL + 4, 4), V_RLO, sr(SX, 4)), "SL")]
    for i in (1, 2, 0, 3, 4):
        so = ["0", "s77", "s76", "s75", "s74"][i]
        o.append(("buffer_load_dwordx4 %s, v%d, %s, %s offen" % (vr(CL + 4 * i, 4), V_CLO, sr(SCS, 4), so), "SL"))
    return o


def xreduce(regs, tmps, op="v_add_f32", swaps=("v_permlane16_swap_b32", "v_permlane32_swap_b32")):
    o = []
    for swp in swaps:
        for v, t in zip(regs, tmps):
            o.append("v_mov_b32 v%d, v%d" % (t, v))
        o.append("s_nop 1")
        for v, t in zip(regs, tmps):
            o.append("%s v%d, v%d" % (swp, v, t))
        o.append("s_nop 1")
        for v, t in zip(regs, tmps):
            o.append("%s v%d, v%d, v%d" % (op, v, v, t))
    return o


def stats_segA():
    o = []
    T = TT
    for i in range(5):
        o.append("v_mfma_f32_16x16x32_bf16 %s, %s, %s, %s" % (vr(CD, 4), vr(CL + 4 * i, 4), vr(SEL, 4), "0" if i == 0 else vr(CD, 4)))
    o.append("v_mov_b32 v%d, 0x3f803f80" % (T + 4))
    for d in range(8):
        c = "0" if d < 2 else "v%d" % (T + d % 2)
        o.append("v_dot2_f32_bf16 v%d, v%d, v%d, %s" % (T + d % 2, RL + d, T + 4, c))
        c = "0" if d < 2 else "v%d" % (T + 2 + d % 2)
        o.append("v_dot2_f32_bf16 v%d, v%d, v%d, %s" % (T + 2 + d % 2, RL + d, RL + d, c))
    o.append("s_nop 2")
    o.append("v_add_f32 v%d, v%d, v%d" % (T, T, T + 1))
    o.append("v_add_f32 v%d, v%d, v%d" % (T + 2, T + 2, T + 3))
    for sh in (8, 4, 2, 1):
        o.append("s_nop 1")
        for v in (T, T + 2):
            o.append("v_add_f32_dpp v%d, v%d, v%d row_ror:%d row_mask:0xf bank_mask:0xf" % (v, v, v, sh))
    o += xreduce([T, T + 2, CD, CD + 1, CD + 2, CD + 3], [T + 1, T + 3, CL, CL + 1, CL + 2, CL + 3])
    o.append("ds_write_b128 v%d, %s" % (V_SCW, vr(CD, 4)))
    o.append("v_mul_f32 v%d, 0x%x, v%d" % (T, f2u(1.0 / 640.0), T))
    o.append("v_mul_f32 v%d, 0x%x, v%d" % (T + 2, f2u(1.0 / 640.0), T + 2))
    o.append("v_fma_f32 v%d, -v%d, v%d, v%d" % (T + 2, T, T, T + 2))
    o.append("v_max_f32 v%d, 0, v%d" % (T + 2, T + 2))
    o.append("v_cvt_pk_bf16_f32 v%d, v%d, v%d" % (T + 1, T, T + 2))
    o.append("v_lshlrev_b32 v%d, 16, v%d" % (T + 4, T + 1))
    o.append("v_and_b32 v%d, 0xffff0000, v%d" % (T + 5, T + 1))
    o.append("v_add_f32 v%d, 0x%x, v%d" % (T + 5, f2u(1e-5), T + 5))
    o.append("v_cvt_pk_bf16_f32 v%d, v%d, v%d" % (T + 5, T + 5, T + 5))
    o.append("v_lshlrev_b32 v%d, 16, v%d" % (T + 5, T + 5))
    o.append("v_sqrt_f32 v%d, v%d" % (T + 5, T + 5))
    o.append("s_nop 0")
    o.append("v_cvt_pk_bf16_f32 v%d, v%d, v%d" % (T + 5, T + 5, T + 5))
    o.append("v_lshlrev_b32 v%d, 16, v%d" % (T + 5, T + 5))
    o.append(["s_lshl_b32 s66, s%d, 3" % S_W, "s_add_u32 s66, s66, %d" % (SCR + 1536), "v_mov_b32 v%d, s66" % T])
    o.append("ds_write_b64 v%d, %s offset:%d" % (T, vr(T + 4, 2), 0))
    return o


def stats_segB():
    return ["ds_read_b32 v%d, v%d offset:%d" % (CL + w, V_SCR, 128 * w) for w in range(8)] + \
           ["v_and_b32 v%d, 7, v2" % TT, "v_lshlrev_b32 v%d, 3, v%d" % (TT, TT), "v_add_u32 v%d, %d, v%d" % (TT, SCR + 1536, TT),
            "ds_read_b64 %s, v%d" % (vr(TT + 2, 2), TT)]


def stats_segC():
    o = []
    for (x, y) in ((0, 1), (2, 3), (4, 5), (6, 7), (0, 2), (4, 6), (0, 4)):
        o.append("v_add_f32 v%d, v%d, v%d" % (CL + x, CL + x, CL + y))
    o.append(("buffer_store_dword v%d, v%d, %s, 0 offen sc1" % (CL, V_CSO, sr(SST, 4)), "ST"))
    o.append(("buffer_store_dwordx2 %s, v%d, %s, 0 offen sc1" % (vr(TT + 2, 2), V_RSO, sr(SST, 4)), "ST"))
    return o


def stats_signal():
    return ["v_mov_b32 v%d, 1" % TT,
            ("buffer_atomic_add v%d, v%d, %s, 0 offen" % (TT, V_ATO, sr(SDBG, 4)), "AT")]


def emit(a, x):
    if isinstance(x, list):
        for y in x:
            emit(a, y)
    elif isinstance(x, tuple):
        a(x[0], x[1])
    else:
        a(x)


IT_SIG, IT_POLL, IT_CHK = 7, 15, 17


def k1_mainloop(a, P):
    nI, nJ = P["nI"], P["nJ"]
    NST = 20
    nA, nB = 2 * nI, 2 * nJ

    def fx(p, I, hh):
        return FR0 + 40 * p + 8 * I + 4 * hh

    def fw(p, j, hh):
        return FR0 + 40 * p + 8 * nI + 8 * j + 4 * hh

    def read_ops(stage):
        p = stage % 2
        ops = []
        if MF == 32:
            for hh in range(2):
                for j in range(nJ):
                    for e in range(2):
                        v, imm = P["b_addr"](stage % 4, j)
                        ops.append("ds_read_b64_tr_b16 %s, v%d offset:%d" % (vr(fw(p, j, hh) + 2 * e, 2), v, imm + hh * 2048 + e * 512))
                for I in range(nI):
                    v, imm = P["a_addr"]((stage // 2) % 3, 2 * (stage % 2) + hh, I)
                    ops.append("ds_read_b128 %s, v%d offset:%d" % (vr(fx(p, I, hh), 4), v, imm))
        else:
            for j in range(nB):
                for e in range(2):
                    v, imm = P["b_addr"](stage % 4, j)
                    ops.append("ds_read_b64_tr_b16 %s, v%d offset:%d" % (vr(FR0 + 40 * p + 4 * nA + 4 * j + 2 * e, 2), v, imm + e * 512))
            for i in range(nA):
                v, imm = P["a_addr"]((stage // 2) % 3, stage % 2, i)
                ops.append("ds_read_b128 %s, v%d offset:%d" % (vr(FR0 + 40 * p + 4 * i, 4), v, imm))
        return ops

    def mfmas(it):
        p = it % 2
        o = []
        if MF == 32:
            for hh in range(2):
                for I in range(nI):
                    for j in range(nJ):
                        acc = ACC + 16 * (I * nJ + j)
                        c = "0" if (it == 0 and hh == 0) else vr(acc, 16)
                        o.append("v_mfma_f32_32x32x16_bf16 %s, %s, %s, %s" % (vr(acc, 16), vr(fw(p, j, hh), 4), vr(fx(p, I, hh), 4), c))
        else:
            for i in range(nA):
                for j in range(nB):
                    acc = ACC + 4 * (i * nB + j)
                    c = "0" if it == 0 else vr(acc, 4)
                    o.append("v_mfma_f32_16x16x32_bf16 %s, %s, %s, %s" % (vr(acc, 4), vr(FR0 + 40 * p + 4 * nA + 4 * j, 4), vr(FR0 + 40 * p + 4 * i, 4), c))
        return o

    def pro(ops):
        for (m, d, tag, adv) in ops:
            a(m)
            a("s_nop 0")
            a(d, tag)
            for x in adv:
                a(x)
    B, A = P["bdma"], P["adma"]
    pro(B(0))
    pro(sum(A(0), []))
    pro(B(1))
    pro(sum(A(1), []))
    for x in stats_loads()[:3]:
        emit(a, x)
    stamp(a, 2)
    a("s_waitcnt vmcnt(%d)" % a.vmwait({"B0", "A0"}))
    a("s_barrier")
    stamp(a, 3)
    for x in read_ops(0):
        a(x)
    for it in range(NST):
        if it == IT_CHK:
            stamp(a, 4)
        p = it % 2
        tags = set()
        if it + 1 < NST:
            tags |= {"B%d" % (it + 1), "A%d" % ((it + 1) // 2)}
        tags |= P["toptags"].get(it, set())
        n = a.vmwait(tags)
        if n is not None:
            a("s_waitcnt vmcnt(%d) lgkmcnt(0)" % n)
        else:
            a("s_waitcnt lgkmcnt(0)")
        if it == IT_CHK:
            nm = P["name"]
            a("s_mov_b32 s66, 0")
            a.label("L_poll_%s" % nm)
            a("v_readfirstlane_b32 s67, v%d" % TT)
            a("s_add_u32 s66, s66, 1")
            a("s_cmp_ge_u32 s67, 256")
            a("s_cbranch_scc1 L_pollok_%s" % nm)
            a("s_cmp_ge_u32 s66, 0x40000")
            a("s_cbranch_scc1 L_pollok_%s" % nm)
            a("s_sleep 2")
            a.l.append("    buffer_load_dword v%d, v%d, %s, 0 offen sc1" % (TT, TT + 1, sr(SDBG, 4)))
            a("s_waitcnt vmcnt(0)")
            a("s_branch L_poll_%s" % nm)
            a.label("L_pollok_%s" % nm)
            stamp(a, 5)
        a("s_barrier")
        dm = []
        if it == 0:
            dm = B(2) + B(3) + A(2)[0]
        elif it == 1:
            dm = B(4) + B(5) + A(2)[1]
        elif it == 2:
            dm = B(6) + A(3)[0] + A(3)[1]
        else:
            if it + 4 < NST:
                dm += B(it + 4)
            S = (it - 1) // 2 + 3
            if S < 10:
                dm += A(S)[(it - 1) % 2]
        rd = read_ops(it + 1) if it + 1 < NST else []
        stream = []
        for (m, d, tag, adv) in dm:
            mid = rd.pop(0) if rd else "s_nop 0"
            stream.append([m, mid, (d, tag)] + adv)
        stream += [[x] for x in rd]
        stream += [[x] for x in P["bg"].get(it, [])]
        mf = mfmas(it)
        ngap = len(mf)
        for gi, x in enumerate(mf):
            a(x)
            k = (len(stream) + (ngap - gi) - 1) // (ngap - gi) if MF == 32 else min(len(stream), max(1, (len(stream) + (ngap - gi) - 1) // (ngap - gi)))
            for _ in range(k):
                if stream:
                    emit(a, stream.pop(0))
        for x in stream:
            emit(a, x)
    stamp(a, 6)


def adv(r, inc, tot):
    return ["s_add_u32 s%d, s%d, %d" % (r, r, inc), "s_cmp_ge_u32 s%d, %d" % (r, tot), "s_cselect_b32 s%d, 0, s%d" % (r, r)]


def split_bg(lst, its):
    n = (len(lst) + len(its) - 1) // len(its)
    return {it: lst[i * n:(i + 1) * n] for i, it in enumerate(its)}


def std_bg(pre, tail17, tail19):
    sl = stats_loads()
    bg = {0: sl[3:7]}
    bg.update(split_bg(stats_segA(), [2, 3]))
    bg[9] = k2_prefetch()
    bg[4] = stats_segB()
    bg[5] = stats_segC()
    bg[IT_SIG] = stats_signal()
    bg.update(split_bg(pre, [12, 13, 14]))
    bg[IT_POLL] = [("buffer_load_dword v%d, v%d, %s, 0 offen sc1" % (TT, TT + 1, sr(SDBG, 4)), "POLL")]
    bg[IT_CHK] = tail17
    bg[19] = tail19
    top = {2: {"SL"}, IT_SIG: {"ST"}, IT_CHK: {"POLL"}, 19: {"TL"}}
    return bg, top


def gen_k1(a):
    name = NAME + "_kernel"
    kernel_header(a, name)
    a("s_cmp_ge_u32 s2, 256")
    a("s_cbranch_scc1 L_k1_end")
    stamp_start(a)
    a("s_load_dwordx4 s[20:23], s[0:1], 64")
    a("s_load_dwordx4 s[4:7], s[0:1], 0")
    a("s_load_dwordx2 s[8:9], s[0:1], 16")
    a("s_load_dwordx4 s[12:15], s[0:1], 32")
    a("s_load_dwordx4 s[16:19], s[0:1], 48")
    a("v_lshrrev_b32 v1, 6, v0")
    a("v_and_b32 v2, 63, v0")
    a("v_readfirstlane_b32 s%d, v1" % S_W)
    a("v_lshlrev_b32 v3, 4, v2")
    a("s_getreg_b32 s78, hwreg(HW_REG_XCC_ID)")
    a("s_and_b32 s%d, s2, 7" % S_XCD)
    a("s_lshr_b32 s%d, s2, 3" % S_SLOT)
    a("s_and_b32 s78, s78, 7")
    a("s_lshl_b32 s66, s78, 2")
    a("s_add_u32 s66, s66, 192")
    a("v_mov_b32 v17, s66")
    a("v_mov_b32 v1, 0x%x" % BIG)
    a("v_cmp_eq_u32 vcc, 0, v0")
    a("v_mov_b32 v18, 1")
    a("s_lshr_b32 s%d, s%d, 2" % (S_WM, S_W))
    a("s_and_b32 s%d, s%d, 3" % (S_WN, S_W))
    a("v_cndmask_b32 v17, v1, v17, vcc")
    a("s_waitcnt lgkmcnt(0)")
    stamp(a, 1)
    make_srd(a, SDBG, 20, 21, 256)
    a.vm = []
    a("s_cmp_lg_u32 s%d, 0" % S_W)
    a("s_cbranch_scc1 L_tk_skip")
    a("buffer_atomic_add v18, v17, %s, 0 offen sc0" % sr(SDBG, 4), "TK")
    a.label("L_tk_skip")
    make_srd(a, SX, 4, 5, 2048 * 1280)
    make_srd(a, SACT, 22, 23, ACT_BYTES, ACT_OFF)
    make_srd(a, SST, 22, 23, ST_BYTES, ST_OFF)
    make_srd(a, SPF1, 16, 17, 1728 * 1280)
    make_srd(a, SPF2, 8, 9, 640 * 1280)
    tlb_warm(a)
    stats_setup(a)
    a("v_lshrrev_b32 v4, 4, v2")
    a("v_lshlrev_b32 v5, 10, v4")
    a("v_bfe_u32 v6, v2, 2, 2")
    a("v_lshl_add_u32 v5, v6, 7, v5")
    a("v_and_b32 v6, 3, v2")
    a("v_lshl_add_u32 v5, v6, 3, v5")
    a("v_bfe_u32 v6, v2, 3, 2")
    a("v_bfe_u32 v26, v2, 4, 1")
    a("v_lshrrev_b32 v7, 3, v2")
    a("v_bfe_u32 v8, v2, 1, 2")
    a("v_xor_b32 v8, v8, v26")
    a("v_and_b32 v9, 1, v2")
    a("v_and_b32 v10, 7, v2")
    a("v_lshrrev_b32 v11, 4, v2")
    a("v_xor_b32 v10, v10, v11")
    a("v_lshlrev_b32 v10, 4, v10")
    a("v_mul_u32_u24 v11, 1280, v7")
    a("v_add_u32 v10, v10, v11")
    a("v_bfe_u32 v15, v2, 1, 3")
    a("v_xor_b32 v15, v15, v4")
    a("v_lshlrev_b32 v15, 4, v15")
    a("v_and_b32 v16, 7, v2")
    a("v_lshl_add_u32 v15, v16, 7, v15")
    a("v_bfe_u32 v16, v2, 3, 1")
    a("v_lshl_add_u32 v15, v16, 10, v15")
    a("s_cmp_lg_u32 s%d, 0" % S_W)
    a("s_cbranch_scc1 L_tk_done")
    a("s_mov_b32 s67, 0")
    a("s_waitcnt vmcnt(%d)" % a.vmwait({"TK"}))
    a.label("L_tk_loop")
    a("v_readfirstlane_b32 s68, v18")
    a("s_add_u32 s67, s67, 1")
    a("s_nop 2")
    a("s_cmp_lt_u32 s68, 32")
    a("s_cbranch_scc1 L_tk_got")
    a("s_cmp_ge_u32 s67, 16")
    a("s_cbranch_scc1 L_tk_got")
    a("s_add_u32 s78, s78, 1")
    a("s_and_b32 s78, s78, 7")
    a("s_lshl_b32 s68, s78, 2")
    a("s_add_u32 s68, s68, 192")
    a("v_writelane_b32 v17, s68, 0")
    a("v_mov_b32 v18, 1")
    a.l.append("    buffer_atomic_add v18, v17, %s, 0 offen sc0" % sr(SDBG, 4))
    a("s_waitcnt vmcnt(0)")
    a("s_branch L_tk_loop")
    a.label("L_tk_got")
    a("s_and_b32 s68, s68, 31")
    a("s_lshl_b32 s68, s68, 3")
    a("s_add_u32 s68, s68, s78")
    a("v_mov_b32 v17, %d" % (SCR + 2044))
    a("v_mov_b32 v18, s68")
    a("ds_write_b32 v17, v18")
    a("s_waitcnt lgkmcnt(0)")
    a.label("L_tk_done")
    a("s_barrier")
    a("v_mov_b32 v1, %d" % (SCR + 2044))
    a("ds_read_b32 v1, v1")
    a("s_waitcnt lgkmcnt(0)")
    a("v_readfirstlane_b32 s2, v1")
    a("s_nop 3")
    a("s_and_b32 s%d, s2, 7" % S_XCD)
    a("s_lshr_b32 s%d, s2, 3" % S_SLOT)
    VM0 = list(a.vm)
    a("s_cmp_lt_u32 s%d, 18" % S_SLOT)
    a("s_cbranch_scc0 L_k1_att")

    a.vm = list(VM0)
    a("s_lshl_b32 s66, s%d, 1" % S_XCD)
    a("s_add_u32 s66, s66, s%d" % S_SLOT)
    a("s_sub_u32 s66, s66, 16")
    a("s_cmp_lt_u32 s%d, 16" % S_SLOT)
    a("s_cselect_b32 s%d, s%d, 8" % (S_FB, S_XCD))
    a("s_cselect_b32 s%d, s%d, s66" % (S_RB, S_SLOT))
    a("s_cmp_lt_u32 s%d, 4" % S_W)
    a("s_cselect_b32 s%d, s12, s14" % SW)
    a("s_cselect_b32 s%d, s13, s15" % (SW + 1))
    a("s_mov_b32 s%d, %d" % (SW + 2, 640 * 3456))
    a("s_mov_b32 s%d, 0x00020000" % (SW + 3))
    a("s_add_u32 s66, s%d, s%d" % (S_RB, S_FB))
    for _ in range(2):
        a("s_cmp_ge_u32 s66, 10")
        a("s_cselect_b32 s67, 10, 0")
        a("s_sub_u32 s66, s66, s67")
    if not ROT:
        a("s_mov_b32 s66, 0")
    a("s_lshl_b32 s%d, s66, 7" % S_SOA)
    a("s_mul_i32 s%d, s66, 221184" % S_SOB)
    a("s_mul_i32 s70, s%d, 384" % S_FB)
    a("v_mul_u32_u24 v16, 3456, v7")
    a("v_add_u32 v16, s70, v16")
    a("v_lshlrev_b32 v1, 5, v8")
    a("v_lshl_add_u32 v1, v9, 4, v1")
    for j in range(3):
        a("s_mul_i32 s66, s%d, 3" % S_W)
        a("s_add_u32 s66, s66, %d" % j)
        a("s_and_b32 s67, s66, 3")
        a("s_lshr_b32 s68, s66, 2")
        a("s_cmp_ge_u32 s68, 3")
        a("s_cselect_b32 s69, 3, 0")
        a("s_sub_u32 s68, s68, s69")
        if MF == 32:
            a("s_xor_b32 s69, s67, s%d" % S_WM)
            a("s_and_b32 s69, s69, 1")
        else:
            a("s_and_b32 s69, s67, 1")
        a("s_lshl_b32 s69, s69, 6")
        a("v_xor_b32 v%d, s69, v1" % (12 + j))
        a("s_mul_i32 s67, s67, %d" % (8 * 3456))
        a("s_lshl_b32 s68, s68, 7")
        a("s_add_u32 s67, s67, s68")
        a("v_add3_u32 v%d, v%d, v16, s67" % (12 + j, 12 + j))
    a("s_lshl_b32 s66, s%d, 3" % S_RB)
    a("s_add_u32 s66, s66, s%d" % S_W)
    a("s_mul_i32 s66, s66, %d" % (16 * 1280))
    a("v_xor_b32 v11, 64, v10")
    a("v_add_u32 v10, s66, v10")
    a("s_add_u32 s66, s66, %d" % (8 * 1280))
    a("v_add_u32 v11, s66, v11")
    a("s_mul_i32 s3, s%d, 3072" % S_W)
    a("s_lshl_b32 s79, s%d, 11" % S_W)
    ARING = 98304
    a("s_lshl_b32 s66, s%d, 13" % S_WM)
    a("s_add_u32 s66, s66, %d" % ARING)
    for c in ((3, 2, 1, 0) if MF == 32 else (1, 0)):
        if c:
            a("v_xor_b32 v%d, %d, v15" % (15 + c, (32 if MF == 32 else 64) * c))
        a("v_add_u32 v%d, s66, v%d" % (15 + c, 15 + c))
    if MF == 32:
        a("v_lshlrev_b32 v1, 1, v26")
        a("v_xor_b32 v6, v6, v1")
        a("v_mul_u32_u24 v1, 12288, v26")
        a("v_add_u32 v5, v5, v1")
    for j in range(3):
        a("s_mul_i32 s66, s%d, 3" % S_WN)
        a("s_add_u32 s66, s66, %d" % j)
        a("s_and_b32 s67, s66, 3")
        a("s_lshr_b32 s66, s66, 2")
        a("s_lshl_b32 s66, s66, 12")
        a("v_xor_b32 v%d, s67, v6" % (19 + j))
        a("v_lshl_add_u32 v%d, v%d, 5, v5" % (19 + j, 19 + j))
        a("v_add_u32 v%d, s66, v%d" % (19 + j, 19 + j))
        a("v_add_u32 v%d, 0x%x, v%d" % (22 + j, 2 * 24576, 19 + j))

    def bdma(st):
        o = []
        for j in range(3):
            o.append(("s_add_u32 m0, s3, 0x%x" % ((st % 4) * 24576 + 1024 * j),
                      "buffer_load_dwordx4 v%d, %s, s%d offen lds" % (12 + j, sr(SW, 4), S_SOB), "B%d" % st,
                      adv(S_SOB, 32 * 3456, 640 * 3456) if j == 2 else []))
        return o

    def adma(S):
        return [[("s_add_u32 m0, s79, 0x%x" % (ARING + (S % 3) * 16384 + 1024 * h),
                  "buffer_load_dwordx4 v%d, %s, s%d offen lds" % (10 + h, sr(SX, 4), S_SOA), "A%d" % S,
                  adv(S_SOA, 128, 1280) if h == 1 else [])] for h in range(2)]

    pre = ["v_and_b32 v25, 1, v4", "s_mov_b32 s66, %d" % ACT_MT, "v_mul_lo_u32 v25, v25, s66",
           "v_lshrrev_b32 v1, 1, v4", "v_lshl_add_u32 v25, v1, 8, v25", "v_and_b32 v1, 15, v2", "v_lshl_add_u32 v25, v1, 4, v25",
           "s_mul_i32 s66, s%d, %d" % (S_WM, 4 * ACT_MT), "s_mul_i32 s67, s%d, %d" % (S_WN, 6 * 256),
           "s_add_u32 s66, s66, s67", "v_add_u32 v25, s66, v25",
           "s_mul_i32 s70, s%d, %d" % (S_RB, 8 * ACT_MT), "s_mul_i32 s67, s%d, %d" % (S_FB, 24 * 256),
           "s_add_u32 s70, s70, s67", "s_add_u32 s70, s70, %d" % (80 * 256), "s_add_u32 s71, s70, %d" % (2 * ACT_MT),
           "s_lshl_b32 s66, s%d, 1" % S_RB, "s_add_u32 s66, s66, s%d" % S_WM, "s_lshl_b32 s66, s66, 10",
           "v_and_b32 v26, 7, v2", "v_lshl_add_u32 v26, v26, 3, s66", "v_bfe_u32 v1, v2, 3, 1", "v_lshl_add_u32 v26, v1, 7, v26",
           "v_cmp_gt_u32 vcc, 48, v2", "v_mov_b32 v1, 0x%x" % BIG, "s_nop 0", "v_cndmask_b32 v27, v1, v3, vcc",
           "s_mul_i32 s72, s%d, 768" % S_FB, "s_add_u32 s72, s72, %d" % (ST_CS + 1920 * 4),
           "s_add_u32 s73, s72, %d" % (1728 * 4),
           "s_mul_i32 s66, s%d, 192" % S_WN, "s_add_u32 s66, s66, %d" % CSL, "v_lshl_add_u32 v28, v4, 4, s66",
           "v_mov_b32 v%d, 240" % (TT + 1)]
    RS = 36
    CS0 = 44
    t17 = [("buffer_load_dwordx2 %s, v26, %s, 0 offen offset:%d sc1" % (vr(RS + 2 * i, 2), sr(SST, 4), 256 * i), "TL") for i in range(4)]
    for mat in range(2):
        t17.append(["s_mov_b32 m0, %d" % (CSL + 1024 * mat), "s_nop 0",
                    ("buffer_load_dwordx4 v27, %s, s%d offen sc1 lds" % (sr(SST, 4), 72 + mat), "TL")])

    def csreg(t):
        return CS0 + 4 * t if t < 5 else 240
    t19 = ["ds_read_b128 %s, v28 offset:%d" % (vr(csreg(t), 4), (t // 3) * 1024 + (t % 3) * 64) for t in range(6)]
    bg, top = std_bg(pre, t17, t19)
    P = dict(nI=2, nJ=3, name="ffn", bdma=bdma, adma=adma, bg=bg, toptags=top,
             a_addr=lambda S3, q, i: (15 + q, S3 * 16384 + i * 2048),
             b_addr=lambda slot, j: (19 + 3 * (slot // 2) + j % 3, (slot % 2) * 24576 + (j // 3) * 12288))
    k1_mainloop(a, P)
    p2_early(a)

    c1 = -2.0 * LOG2E * 0.7978845608028654
    RC = 5
    for i in range(4):
        a("v_rcp_f32 v%d, v%d" % (RC + 3 * i, RS + 2 * i + 1))
    a("s_nop 0")
    for i in range(4):
        a("v_mul_f32 v%d, v%d, v%d" % (RC + 3 * i + 2, RS + 2 * i + 1, RS + 2 * i + 1))
        a("v_mul_f32 v%d, v%d, v%d" % (RC + 3 * i + 1, RC + 3 * i, RC + 3 * i))
        a("v_mul_f32 v%d, 0x%x, v%d" % (RC + 3 * i, f2u(c1), RC + 3 * i))
        a("v_mul_f32 v%d, 0x%x, v%d" % (RC + 3 * i + 1, f2u(0.044715), RC + 3 * i + 1))
        a("v_mul_f32 v%d, v%d, v%d" % (RC + 3 * i + 1, RC + 3 * i + 1, RC + 3 * i))
    a("s_waitcnt lgkmcnt(0)")
    T0 = FR0
    OUT = FR0 + 16
    n = 0
    for ip in (0, 2):
        for j in range(3):
            el = []
            for ii in (ip, ip + 1):
                for r in range(4):
                    el.append((ACC + 4 * (ii * 6 + j) + r, ACC + 4 * (ii * 6 + 3 + j) + r, csreg(j) + r, csreg(3 + j) + r,
                               RS + 2 * ii, RC + 3 * ii, RC + 3 * ii + 1, RC + 3 * ii + 2))
            for q, (x, u, cg, cu, m_, k1_, k3_, s2_) in enumerate(el):
                a("v_fma_f32 v%d, -v%d, v%d, v%d" % (x, m_, cg, x))
            for q, (x, u, cg, cu, m_, k1_, k3_, s2_) in enumerate(el):
                a("v_mul_f32 v%d, v%d, v%d" % (T0 + q, x, x))
            for q, (x, u, cg, cu, m_, k1_, k3_, s2_) in enumerate(el):
                a("v_fma_f32 v%d, v%d, v%d, v%d" % (T0 + q, T0 + q, k3_, k1_))
            for q, (x, u, cg, cu, m_, k1_, k3_, s2_) in enumerate(el):
                a("v_mul_f32 v%d, v%d, v%d" % (T0 + q, x, T0 + q))
            for q, (x, u, cg, cu, m_, k1_, k3_, s2_) in enumerate(el):
                a("v_exp_f32 v%d, v%d" % (T0 + q, T0 + q))
            for q, (x, u, cg, cu, m_, k1_, k3_, s2_) in enumerate(el):
                a("v_fma_f32 v%d, -v%d, v%d, v%d" % (u, m_, cu, u))
            for q, (x, u, cg, cu, m_, k1_, k3_, s2_) in enumerate(el):
                a("v_fma_f32 v%d, v%d, v%d, v%d" % (T0 + q, T0 + q, s2_, s2_))
            for q, (x, u, cg, cu, m_, k1_, k3_, s2_) in enumerate(el):
                a("v_rcp_f32 v%d, v%d" % (T0 + q, T0 + q))
            for q, (x, u, cg, cu, m_, k1_, k3_, s2_) in enumerate(el):
                a("v_mul_f32 v%d, v%d, v%d" % (u, x, u))
            for q, (x, u, cg, cu, m_, k1_, k3_, s2_) in enumerate(el):
                a("v_mul_f32 v%d, v%d, v%d" % (u, u, T0 + q))
            o = OUT + 4 * (n % 3)
            n += 1
            for q in range(4):
                a("v_cvt_pk_bf16_f32 v%d, v%d, v%d" % (o + q, el[2 * q][1], el[2 * q + 1][1]))
            a("s_nop 1")
            a("v_permlane16_swap_b32 v%d, v%d" % (o, o + 2))
            a("v_permlane16_swap_b32 v%d, v%d" % (o + 1, o + 3))
            a("s_nop 1")
            a("buffer_store_dwordx4 %s, v25, %s, s%d offen offset:%d sc1" % (vr(o, 4), sr(SACT, 4), 70 + ip // 2, 512 * j))
    stamp(a, 7)
    p1_done(a, ["s_cmp_eq_u32 s%d, 8" % S_FB, "s_cselect_b32 s64, 0, 64", "s_lshl_b32 s3, s%d, 2" % S_RB, "s_add_u32 s3, s3, s64"])

    a.label("L_k1_att")
    a.vm = list(VM0)
    a("s_cmp_lt_u32 s%d, 31" % S_SLOT)
    a("s_cbranch_scc0 L_k1_extra")
    a("s_sub_u32 s%d, s%d, 18" % (S_RB, S_SLOT))
    make_srd(a, SW, 6, 7, 640 * 3840)
    ARING = 65536
    ASLOT = 22528
    a("s_add_u32 s66, s%d, s%d" % (S_RB, S_XCD))
    for _ in range(2):
        a("s_cmp_ge_u32 s66, 10")
        a("s_cselect_b32 s67, 10, 0")
        a("s_sub_u32 s66, s66, s67")
    if not ROT:
        a("s_mov_b32 s66, 0")
    a("s_lshl_b32 s%d, s66, 7" % S_SOA)
    a("s_mul_i32 s%d, s66, 245760" % S_SOB)
    a("s_mul_i32 s70, s%d, 160" % S_XCD)
    a("v_mul_u32_u24 v16, 3840, v7")
    a("v_add_u32 v16, s70, v16")
    a("s_lshr_b32 s66, s%d, 1" % S_W)
    a("s_lshl_b32 s66, s66, 2")
    a("v_mov_b32 v17, 1120")
    for j in range(2):
        if j:
            a("v_xor_b32 v1, 2, v8")
            a("v_add_u32 v1, s66, v1")
        else:
            a("v_add_u32 v1, s66, v8")
        a("v_min_u32 v1, 14, v1")
        a("v_lshlrev_b32 v%d, 5, v1" % (13 + j))
        a("v_lshl_add_u32 v%d, v9, 4, v%d" % (13 + j, 13 + j))
        a("v_cmp_le_u32 vcc, 5, v1")
        a("v_add_u32 v%d, v%d, v16" % (13 + j, 13 + j))
        a("s_and_b32 s67, s%d, 1" % S_W)
        a("v_cndmask_b32 v18, 0, v17, vcc")
        a("v_cmp_le_u32 vcc, 10, v1")
        a("v_add_u32 v%d, v%d, v18" % (13 + j, 13 + j))
        a("s_lshl_b32 s67, s67, 1")
        a("v_cndmask_b32 v18, 0, v17, vcc")
        a("s_add_u32 s67, s67, %d" % j)
        a("s_mul_i32 s67, s67, %d" % (8 * 3840))
        a("v_add3_u32 v%d, v%d, v18, s67" % (13 + j, 13 + j))
    a("s_and_b32 s66, s%d, 1" % S_W)
    a("s_lshl_b32 s66, s66, 6")
    a("v_xor_b32 v1, s66, v10")
    a("s_mul_i32 s66, s%d, 20" % S_RB)
    a("s_add_u32 s66, s66, s%d" % S_W)
    a("s_max_u32 s67, s66, 2")
    a("s_sub_u32 s67, s67, 2")
    a("s_min_u32 s67, s67, 255")
    a("s_mul_i32 s67, s67, %d" % (8 * 1280))
    a("v_add_u32 v10, s67, v1")
    a("s_add_u32 s67, s66, 6")
    a("s_min_u32 s68, s67, 255")
    a("s_mul_i32 s68, s68, %d" % (8 * 1280))
    a("v_add_u32 v11, s68, v1")
    a("s_add_u32 s67, s66, 14")
    a("s_min_u32 s67, s67, 255")
    a("s_mul_i32 s67, s67, %d" % (8 * 1280))
    a("s_cmp_lt_u32 s%d, 6" % S_W)
    a("s_cselect_b32 s68, s67, s68")
    a("s_cselect_b32 s78, 16384, 8192")
    a("v_add_u32 v12, s68, v1")
    a("s_lshl_b32 s79, s%d, 10" % S_W)
    a("s_add_u32 s78, s78, s79")
    a("s_lshl_b32 s3, s%d, 11" % S_W)
    a("s_mul_i32 s66, s%d, %d" % (S_WM, 6 * 2048))
    a("s_add_u32 s66, s66, %d" % ARING)
    for c in ((3, 2, 1, 0) if MF == 32 else (1, 0)):
        if c:
            a("v_xor_b32 v%d, %d, v15" % (15 + c, (32 if MF == 32 else 64) * c))
        a("v_add_u32 v%d, s66, v%d" % (15 + c, 15 + c))
    a("s_lshl_b32 s66, s%d, 12" % S_WN)
    for j in range(4):
        a("v_xor_b32 v%d, %d, v6" % (17 + j, j))
        a("v_lshl_add_u32 v%d, v%d, 5, v5" % (17 + j, 17 + j))
        a("v_add_u32 v%d, s66, v%d" % (17 + j, 17 + j))

    def bdma2(st):
        return [("s_add_u32 m0, s3, 0x%x" % ((st % 4) * 16384 + 1024 * j),
                 "buffer_load_dwordx4 v%d, %s, s%d offen lds" % (13 + j, sr(SW, 4), S_SOB), "B%d" % st,
                 adv(S_SOB, 32 * 3840, 640 * 3840) if j == 1 else []) for j in range(2)]

    def adma2(S):
        b = ARING + (S % 3) * ASLOT
        ld = "buffer_load_dwordx4 v%d, %s, s%d offen lds"
        return [[("s_add_u32 m0, s79, 0x%x" % b, ld % (10, sr(SX, 4), S_SOA), "A%d" % S, []),
                 ("s_add_u32 m0, s79, 0x%x" % (b + 8192), ld % (11, sr(SX, 4), S_SOA), "A%d" % S, [])],
                [("s_add_u32 m0, s78, 0x%x" % b, ld % (12, sr(SX, 4), S_SOA), "A%d" % S,
                  adv(S_SOA, 128, 1280))]]

    pre = ["v_and_b32 v1, 15, v2", "s_mul_i32 s66, s%d, 96" % S_WM, "v_add_u32 v5, s66, v1",
           "v_mul_u32_u24 v5, %d, v5" % PITCH, "v_lshl_add_u32 v5, v4, 3, v5", "v_lshlrev_b32 v6, 4, v4",
           "s_mul_i32 s67, s%d, 160" % S_RB, "s_add_u32 s66, s66, s67", "s_sub_u32 s66, s66, 16", "s_lshl_b32 s66, s66, 4",
           "v_and_b32 v63, 7, v2", "v_lshl_add_u32 v63, v63, 3, s66", "v_bfe_u32 v7, v2, 3, 1", "v_lshl_add_u32 v63, v7, 7, v63"]
    for t in range(4):
        pre += ["s_lshl_b32 s66, s%d, 2" % S_WN, "s_add_u32 s66, s66, %d" % t, "s_min_u32 s66, s66, 14",
                ["s_cmp_ge_u32 s66, 5", "s_cselect_b32 s67, 5, 0", "s_cselect_b32 s68, %d, %d" % (REG_K, REG_Q),
                 "s_cselect_b32 s69, 1024, 0"],
                ["s_cmp_ge_u32 s66, 10", "s_cselect_b32 s67, 10, s67", "s_cselect_b32 s68, %d, s68" % REG_V,
                 "s_cselect_b32 s69, 2048, s69"],
                "s_sub_u32 s66, s66, s67", "s_lshl_b32 s67, s66, 5", "s_add_u32 s67, s67, s68",
                "v_add_u32 v%d, s67, v5" % (21 + t),
                "s_lshl_b32 s66, s66, 6", "s_add_u32 s66, s66, s69", "s_add_u32 s66, s66, %d" % CSL,
                "v_add_u32 v%d, s66, v6" % (52 + t)]
    pre += ["v_and_b32 v1, 15, v2", "v_lshrrev_b32 v26, 4, v2", "v_lshlrev_b32 v6, 2, v26", "v_sub_u32 v6, v1, v6"]
    for T in range(2):
        for r in range(4):
            pre += ["v_add_u32 v7, %d, v6" % (16 - 16 * T - r), "v_alignbit_b32 v7, v7, v7, 1",
                    "v_cmp_ge_u32 %s, 7, v7" % sr(4 + 2 * (4 * T + r), 2)]
    pre += ["s_mul_i32 s66, s%d, %d" % (S_WM, 80 * PITCH), "s_mul_i32 s67, s%d, 40" % S_WN, "s_add_u32 s66, s66, s67",
            "v_mul_u32_u24 v5, %d, v1" % PITCH, "v_add_u32 v5, s66, v5",
            "v_lshlrev_b32 v6, 4, v26", "v_add_u32 v7, 8, v6",
            "v_cmp_gt_u32 s[76:77], 3, v26", "v_cmp_gt_u32 s[74:75], 2, v26", "s_nop 1",
            "v_cndmask_b32 v6, 0, v6, s[76:77]", "v_cndmask_b32 v7, 0, v7, s[74:75]",
            "v_add_u32 v56, v5, v6", "v_add_u32 v57, v5, v7",
            "v_add_u32 v58, %d, v56" % (REG_Q + 16 * PITCH), "v_add_u32 v59, %d, v57" % (REG_Q + 16 * PITCH),
            "v_lshrrev_b32 v60, 2, v2", "v_mul_u32_u24 v60, %d, v60" % PITCH, "v_and_b32 v6, 3, v2",
            "v_lshl_add_u32 v60, v6, 3, v60", "s_add_u32 s66, s66, %d" % REG_V, "v_add_u32 v60, s66, v60",
            "s_mul_i32 s66, s%d, 5" % S_WN, "s_mul_i32 s67, s%d, %d" % (S_WM, 5 * 2560)]
    for Dd in range(2):
        pre += ["v_add_u32 v6, s66, v26"] + (["v_add_u32 v6, 4, v6"] if Dd else []) + \
               ["v_lshrrev_b32 v7, 1, v6", "v_lshlrev_b32 v7, 8, v7", "v_and_b32 v6, 1, v6",
                "v_lshl_add_u32 v7, v6, 3, v7", "v_lshl_add_u32 v7, v1, 4, v7", "v_add_u32 v%d, s67, v7" % (61 + Dd)]
    pre += ["v_cmp_gt_u32 vcc, 16, v2", "v_mov_b32 v6, %d" % 26624, "s_nop 1", "v_cndmask_b32 v62, v6, v62, vcc",
            "v_mov_b32 v6, 0x%x" % BIG, "s_mov_b32 s67, 26215", "s_mov_b32 s68, %d" % (ACT_MT - 2560)]
    for nn in range(4):
        pre += ["s_lshl_b32 s66, s%d, 10" % S_W, "s_add_u32 s66, s66, %d" % (8192 * nn), "v_add_u32 v7, s66, v3",
                "v_mul_lo_u32 v5, v7, s67", "v_lshrrev_b32 v5, 26, v5", "v_mul_lo_u32 v5, v5, s68",
                "v_cmp_gt_u32 vcc, 25600, v7", "v_add_u32 v5, v5, v7", "s_nop 0", "v_cndmask_b32 v%d, v6, v5, vcc" % (48 + nn)]
    pre += ["v_cmp_gt_u32 vcc, 20, v2", "s_nop 1", "v_cndmask_b32 v27, v6, v3, vcc",
            "s_mul_i32 s69, s%d, %d" % (S_RB, 10 * ACT_MT), "s_mul_i32 s67, s%d, 2560" % S_XCD, "s_add_u32 s69, s69, s67",
            "s_mul_i32 s70, s%d, 320" % S_XCD, "s_add_u32 s70, s70, %d" % ST_CS, "s_add_u32 s71, s70, 2560", "s_add_u32 s72, s70, 5120",
            "v_mov_b32 v%d, 240" % (TT + 1)]
    RS = 36
    t17 = ["v_add_u32 v1, 256, v63",
           ("buffer_load_dwordx2 %s, v63, %s, 0 offen sc1" % (vr(RS, 2), sr(SST, 4)), "TL")]
    for i in range(1, 6):
        t17.append(("buffer_load_dwordx2 %s, v1, %s, 0 offen offset:%d sc1" % (vr(RS + 2 * i, 2), sr(SST, 4), 256 * (i - 1)), "TL"))
    for sec in range(3):
        t17.append(["s_mov_b32 m0, %d" % (CSL + 1024 * sec), "s_nop 0",
                    ("buffer_load_dwordx4 v27, %s, s%d offen sc1 lds" % (sr(SST, 4), 70 + sec), "TL")])

    def csreg2(t):
        return 240 + 4 * t
    t19 = ["ds_read_b128 %s, v%d" % (vr(csreg2(t), 4), 52 + t) for t in range(4)]
    bg, top = std_bg(pre, t17, t19)
    P = dict(nI=3, nJ=2, name="att", bdma=bdma2, adma=adma2, bg=bg, toptags=top,
             a_addr=lambda S3, q, i: (15 + q, S3 * ASLOT + i * 2048),
             b_addr=lambda slot, j: (17 + j, slot * 16384))
    k1_mainloop(a, P)
    FM = [28, 30, 40, 42]
    a("s_or_b32 s66, s%d, s%d" % (S_WM, S_RB))
    a("s_cmp_eq_u32 s66, 0")
    for r in range(4):
        a("s_cselect_b64 %s, 0, %s" % (sr(FM[r], 2), sr(4 + 2 * r, 2)))
    a("s_mov_b32 s63, s69")
    p2_early(a)

    for i in range(6):
        a("v_max_f32 v%d, 0x%x, v%d" % (RS + 2 * i + 1, f2u(1e-3), RS + 2 * i + 1))
    for i in range(6):
        a("v_rcp_f32 v%d, v%d" % (RS + 2 * i + 1, RS + 2 * i + 1))
    a("s_waitcnt lgkmcnt(0)")
    W0 = FR0
    n = 0
    for i in range(6):
        for j in range(4):
            acc = ACC + 4 * (i * 4 + j)
            for r in range(4):
                a("v_fma_f32 v%d, -v%d, v%d, v%d" % (acc + r, RS + 2 * i, csreg2(j) + r, acc + r))
        for j in range(4):
            acc = ACC + 4 * (i * 4 + j)
            for r in range(4):
                a("v_mul_f32 v%d, v%d, v%d" % (acc + r, acc + r, RS + 2 * i + 1))
        for j in range(4):
            acc = ACC + 4 * (i * 4 + j)
            o = W0 + 2 * (n % 8)
            n += 1
            a("v_cvt_pk_bf16_f32 v%d, v%d, v%d" % (o, acc, acc + 1))
            a("v_cvt_pk_bf16_f32 v%d, v%d, v%d" % (o + 1, acc + 2, acc + 3))
            a("ds_write_b64 v%d, %s offset:%d" % (21 + j, vr(o, 2), i * 16 * PITCH))
    a("s_waitcnt lgkmcnt(0)")
    a("s_barrier")
    IB = ACC
    SB = FR0 + 8
    TB = FR0 + 48
    for n in range(5):
        b = IB + 20 * n
        off = n * 16 * PITCH
        a("ds_read_b64 %s, v58 offset:%d" % (vr(b, 2), off))
        a("ds_read_b64 %s, v59 offset:%d" % (vr(b + 2, 2), off))
        for T in range(2):
            a("ds_read_b64 %s, v56 offset:%d" % (vr(b + 4 + 4 * T, 2), off + T * 16 * PITCH))
            a("ds_read_b64 %s, v57 offset:%d" % (vr(b + 6 + 4 * T, 2), off + T * 16 * PITCH))
    for n in range(5):
        b = IB + 20 * n
        off = n * 16 * PITCH
        for Dd in range(2):
            for e in range(2):
                a("ds_read_b64_tr_b16 %s, v60 offset:%d" % (vr(b + 12 + 4 * Dd + 2 * e, 2), off + e * 16 * PITCH + Dd * 32))
    SC = (20 ** -0.5) * LOG2E
    a("v_mov_b32 v5, 0x%x" % f2u(SC))
    a("v_mov_b32 v6, 0x%x" % f2u(-1e9))
    a("s_waitcnt lgkmcnt(0)")
    for n in range(5):
        b = IB + 20 * n
        a("v_cndmask_b32 v%d, 0, v%d, s[76:77]" % (b, b))
        a("v_cndmask_b32 v%d, 0, v%d, s[76:77]" % (b + 1, b + 1))
        a("v_cndmask_b32 v%d, 0, v%d, s[74:75]" % (b + 2, b + 2))
        a("v_cndmask_b32 v%d, 0, v%d, s[74:75]" % (b + 3, b + 3))
    a("s_nop 1")
    for n in range(5):
        b = IB + 20 * n
        for T in range(2):
            a("v_mfma_f32_16x16x32_bf16 %s, %s, %s, 0" % (vr(SB + 8 * n + 4 * T, 4), vr(b + 4 + 4 * T, 4), vr(b, 4)))
    a("s_nop 0")
    for n in range(5):
        s = SB + 8 * n
        for q in range(8):
            a("v_mul_f32 v%d, v5, v%d" % (s + q, s + q))
        for q in range(8):
            m = sr(FM[q], 2) if (n == 0 and q < 4) else sr(4 + 2 * q, 2)
            a("v_cndmask_b32 v%d, v6, v%d, %s" % (s + q, s + q, m))
        t = TB + 2 * n
        a("v_max3_f32 v%d, v%d, v%d, v%d" % (t, s, s + 1, s + 2))
        a("v_max3_f32 v%d, v%d, v%d, v%d" % (t + 1, s + 3, s + 4, s + 5))
        a("v_max3_f32 v%d, v%d, v%d, v%d" % (t, t, s + 6, s + 7))
        a("v_max_f32 v%d, v%d, v%d" % (t, t, t + 1))
    tr = [TB + 2 * n for n in range(5)]
    tt = [TB + 2 * n + 1 for n in range(5)]
    for x in xreduce(tr, tt, "v_max_f32"):
        a(x)
    for n in range(5):
        s = SB + 8 * n
        t = TB + 2 * n
        for q in range(8):
            a("v_sub_f32 v%d, v%d, v%d" % (s + q, s + q, t))
        for q in range(8):
            a("v_exp_f32 v%d, v%d" % (s + q, s + q))
        a("s_nop 0")
        a("v_add_f32 v%d, v%d, v%d" % (t, s, s + 1))
        a("v_add_f32 v%d, v%d, v%d" % (t + 1, s + 2, s + 3))
        a("v_add_f32 v%d, v%d, v%d" % (t, t, s + 4))
        a("v_add_f32 v%d, v%d, v%d" % (t + 1, t + 1, s + 5))
        a("v_add_f32 v%d, v%d, v%d" % (t, t, s + 6))
        a("v_add_f32 v%d, v%d, v%d" % (t + 1, t + 1, s + 7))
        a("v_add_f32 v%d, v%d, v%d" % (t, t, t + 1))
    for x in xreduce(tr, tt, "v_add_f32"):
        a(x)
    for n in range(5):
        t = TB + 2 * n
        a("v_rcp_f32 v%d, v%d" % (t, t))
    a("s_nop 0")
    for n in range(5):
        s = SB + 8 * n
        t = TB + 2 * n
        b = IB + 20 * n
        for q in range(8):
            a("v_mul_f32 v%d, v%d, v%d" % (s + q, s + q, t))
        for q in range(4):
            a("v_cvt_pk_bf16_f32 v%d, v%d, v%d" % (b + q, s + 2 * q, s + 2 * q + 1))
    a("s_waitcnt lgkmcnt(0)")
    a("s_barrier")
    for n in range(5):
        b = IB + 20 * n
        for Dd in range(2):
            a("v_mfma_f32_16x16x32_bf16 %s, %s, %s, 0" % (vr(SB + 8 * n + 4 * Dd, 4), vr(b + 12 + 4 * Dd, 4), vr(b, 4)))
    a("s_nop 0")
    for n in range(5):
        s = SB + 8 * n
        b = IB + 20 * n
        for Dd in range(2):
            a("v_cvt_pk_bf16_f32 v%d, v%d, v%d" % (b + 4 + 2 * Dd, s + 4 * Dd, s + 4 * Dd + 1))
            a("v_cvt_pk_bf16_f32 v%d, v%d, v%d" % (b + 5 + 2 * Dd, s + 4 * Dd + 2, s + 4 * Dd + 3))
        for Dd in range(2):
            a("ds_write_b64 v%d, %s offset:%d" % (61 + Dd, vr(b + 4 + 2 * Dd, 2), 2560 * n))
    a("s_lshl_b32 s3, s%d, 10" % S_W)
    a("v_add_u32 v5, s3, v3")
    a("s_waitcnt lgkmcnt(0)")
    a("s_barrier")
    for nn in range(4):
        a("ds_read_b128 %s, v5 offset:%d" % (vr(ACC + 4 * nn, 4), 8192 * nn))
    for nn in range(4):
        a("s_waitcnt lgkmcnt(%d)" % (3 - nn))
        a("buffer_store_dwordx4 %s, v%d, %s, s63 offen sc1" % (vr(ACC + 4 * nn, 4), 48 + nn, sr(SACT, 4)))
    stamp(a, 7)
    p1_done(a, ["s_lshl_b32 s3, s%d, 2" % S_RB, "s_add_u32 s3, s3, 128"])

    a.label("L_k1_extra")
    a.vm = list(VM0)
    for x in stats_loads() + k2_prefetch():
        emit(a, x)
    a("s_waitcnt vmcnt(0)")
    for x in stats_segA():
        emit(a, x)
    a("s_waitcnt lgkmcnt(0)")
    a("s_barrier")
    for x in stats_segB():
        emit(a, x)
    a("s_waitcnt lgkmcnt(0)")
    for x in stats_segC():
        emit(a, x)
    tlb_warm_act(a)
    a("s_barrier")
    for x in stats_signal():
        emit(a, x)
    p2_early(a)
    a("s_waitcnt vmcnt(0)")
    gen_phase2(a)
    a.label("L_k1_end")
    a("s_endpgm")
    a.label("L_code_end")
    return (name, 256, 102 if STAMP else 80)


K2_NS = 7
K2_NST = 37


def p2_poll(a, nm, lo_reg, exp_reg):
    a("s_cmp_lg_u32 s20, 0")
    a("s_cbranch_scc1 L_p2ok_%s" % nm)
    a("v_cmp_lt_u32 vcc, 0, v%d" % exp_reg)
    a("v_mov_b32 v25, 0x%x" % BIG)
    a("s_mov_b32 s21, 0")
    a("v_cndmask_b32 v25, v25, v21, vcc")
    a.label("L_p2poll_%s" % nm)
    a.l.append("    buffer_load_dword v22, v25, %s, 0 offen sc1" % sr(SDBG, 4))
    a("s_waitcnt vmcnt(0)")
    a("v_cmp_lt_u32 vcc, v22, v%d" % exp_reg)
    a("s_add_u32 s21, s21, 1")
    a("s_nop 2")
    a("s_cmp_eq_u64 vcc, 0")
    a("s_cbranch_scc1 L_p2ok_%s" % nm)
    a("s_cmp_ge_u32 s21, 0x20000")
    a("s_cbranch_scc1 L_p2ok_%s" % nm)
    a("v_cmp_lt_u32 vcc, 0, v22")
    a("s_sleep 4")
    a("s_nop 2")
    a("s_cmp_lg_u64 vcc, 0")
    a("s_cbranch_scc1 L_p2poll_%s" % nm)
    a("s_sleep 40")
    a("s_branch L_p2poll_%s" % nm)
    a.label("L_p2ok_%s" % nm)


def gen_phase2(a):
    a.label("L_phase2")
    a("s_load_dwordx2 s[4:5], s[0:1], 0")
    a("s_load_dwordx2 s[30:31], s[0:1], 56")
    p2_map(a, 24)
    a("s_cmp_eq_u32 s28, 1")
    a("s_cbranch_scc1 L_p2_end")
    a("s_mov_b32 s20, s%d" % S_W)
    a("v_lshrrev_b32 v4, 4, v2")
    a("v_lshlrev_b32 v5, 10, v4")
    a("v_bfe_u32 v6, v2, 2, 2")
    a("v_lshl_add_u32 v5, v6, 7, v5")
    a("v_and_b32 v6, 3, v2")
    a("v_lshl_add_u32 v5, v6, 3, v5")
    a("v_bfe_u32 v6, v2, 3, 2")
    a("s_lshr_b32 s34, s20, 2")
    a("s_lshl_b32 s36, s26, 4")
    a("s_add_u32 s37, s26, s27")
    a("s_lshl_b32 s37, s37, 4")
    a("s_sub_u32 s37, s37, 1")
    a("s_lshr_b32 s38, s36, 7")
    a("s_lshr_b32 s39, s37, 7")
    a("s_add_u32 s38, s38, 16")
    a("s_add_u32 s39, s39, 16")
    a("v_lshlrev_b32 v21, 2, v2")
    a("v_cmp_eq_u32 vcc, s38, v2")
    a("v_cmp_eq_u32 s[40:41], s39, v2")
    a("s_mul_i32 s38, s36, 6554")
    a("s_mul_i32 s39, s37, 6554")
    a("s_or_b64 vcc, vcc, s[40:41]")
    a("s_lshr_b32 s38, s38, 20")
    a("s_lshr_b32 s39, s39, 20")
    a("v_cndmask_b32 v23, 0, 8, vcc")
    a("s_lshr_b64 s[42:43], vcc, 16")
    a("s_add_u32 s38, s38, 32")
    a("s_add_u32 s39, s39, 32")
    a("v_cmp_eq_u32 vcc, s38, v2")
    a("v_cmp_eq_u32 s[40:41], s39, v2")
    a("s_nop 1")
    a("s_or_b64 vcc, vcc, s[40:41]")
    a("s_nop 0")
    a("v_cndmask_b32 v24, 0, 8, vcc")
    a("v_cndmask_b32 v24, v24, 1, s[42:43]")
    return_sact = True
    a("s_bfe_u32 s35, s20, 0x10001")
    a("s_and_b32 s36, s20, 1")
    a("s_waitcnt lgkmcnt(0)")
    make_srd(a, 40, 4, 5, 2048 * 1280)
    make_srd(a, 8, 30, 31, 2048 * 1280)
    make_srd(a, 12, 22, 23, ACT_BYTES, ACT_OFF)
    a("s_mul_i32 s37, s35, 3")
    a("s_add_u32 s37, s37, s26")
    a("s_mul_i32 s37, s37, %d" % (16 * 1280))
    a("s_lshl_b32 s38, s25, 7")
    a("s_add_u32 s37, s37, s38")
    a("s_lshl_b32 s38, s36, 1")
    a("s_add_u32 s38, s38, s34")
    a("s_lshl_b32 s38, s38, 5")
    a("s_add_u32 s37, s37, s38")
    a("v_and_b32 v26, 15, v2")
    a("v_mul_u32_u24 v26, 1280, v26")
    a("v_lshl_add_u32 v26, v4, 3, v26")
    a("v_add_u32 v26, s37, v26")
    a("s_mov_b32 s38, %d" % (16 * 1280))
    a("s_mov_b32 s39, %d" % (32 * 1280))
    a("buffer_load_dwordx2 v[28:29], v26, s[40:43], 0 offen")
    a("buffer_load_dwordx2 v[30:31], v26, s[40:43], s38 offen")
    a("buffer_load_dwordx2 v[32:33], v26, s[40:43], s39 offen")
    a("s_add_u32 s37, s26, s20")
    a("s_mul_i32 s37, s37, %d" % ACT_MT)
    a("v_add_u32 v10, s37, v3")
    a("s_mov_b32 s16, %d" % (20 * 1024))
    a("s_mov_b32 s17, %d" % (6 * 64 * 1280))
    a("s_lshl_b32 s18, s20, 11")
    a("s_lshl_b32 s19, s20, 10")
    a("s_mul_i32 s37, s35, 6144")
    a("s_lshl_b32 s29, s34, 10")
    a("s_add_u32 s37, s37, s29")
    a("v_add_u32 v12, s37, v3")
    a("v_add_u32 v13, 0x10000, v12")
    a("s_lshl_b32 s29, s34, 12")
    a("s_add_u32 s29, s29, %d" % P2_B)
    for jj in range(2):
        a("s_lshl_b32 s37, s36, 1")
        a("s_add_u32 s37, s37, %d" % jj)
        a("v_xor_b32 v%d, s37, v6" % (15 + jj))
        a("v_lshl_add_u32 v%d, v%d, 5, v5" % (15 + jj, 15 + jj))
        a("v_add_u32 v%d, s29, v%d" % (15 + jj, 15 + jj))
    AC = 64
    FRB = 96
    NS = K2_NS
    p2_poll(a, "f", 21, 23)
    a("s_barrier")
    stamp(a, 1)

    def read_ops(st):
        p = st % 2
        ops = []
        for jj in range(2):
            for e in range(2):
                ops.append("ds_read_b64_tr_b16 %s, v%d offset:%d" % (vr(FRB + 20 * p + 12 + 4 * jj + 2 * e, 2), 15 + jj, (st % NS) * 8192 + e * 512))
        for i in range(3):
            off = (st % NS) * 12288 + i * 2048
            ops.append("ds_read_b128 %s, v%d offset:%d" % (vr(FRB + 20 * p + 4 * i, 4), 12 + (off >> 16), off & 0xffff))
        return ops

    def body(loader):
        a.vm = []
        tag = "l" if loader else "n"

        def dma_ops(st, doB=True):
            ops = []
            if loader:
                if st == 27:
                    ops.append(["s_mov_b32 s16, 0"])
                ops.append(["s_add_u32 m0, s18, 0x%x" % ((st % NS) * 12288)])
                ops.append([("buffer_load_dwordx4 v10, s[12:15], s16 offen lds", "S%d" % st)])
                ops.append([("buffer_load_dwordx4 v10, s[12:15], s16 offen offset:1024 lds", "S%d" % st), "s_add_u32 s16, s16, 2048"])
            if doB:
                srd = SPF1 if st < 27 else SPF2
                if st == 27:
                    ops.append(["s_mov_b32 s17, 0"])
                ops.append(["s_add_u32 m0, s19, 0x%x" % (P2_B + (st % NS) * 8192)])
                ops.append([("buffer_load_dwordx4 v%d, %s, s17 offen lds" % (P2V, sr(srd, 4)), "S%d" % st), "s_add_u32 s17, s17, %d" % (64 * 1280)])
            return ops
        for st in range(NS):
            for o in dma_ops(st, st >= 6):
                emit(a, o)
                if isinstance(o[0], str) and o[0].startswith("s_add_u32 m0"):
                    a("s_nop 0")
        n = a.vmwait({"S0"})
        a("s_waitcnt vmcnt(%d)" % (n if n is not None else 63))
        a("s_barrier")
        stamp(a, 2)
        for x in read_ops(0):
            a(x)
        for it in range(K2_NST):
            if it in (10, 20, 30):
                stamp(a, 2 + it // 10)
            p = it % 2
            n = a.vmwait({"S%d" % (it + 1)}) if it + 1 < K2_NST else None
            if it + NS == 24 and loader:
                p2_poll(a, "a" + tag, 21, 24)
            if n is not None:
                a("s_waitcnt vmcnt(%d) lgkmcnt(0)" % n)
            else:
                a("s_waitcnt lgkmcnt(0)")
            a("s_barrier")
            fillers = dma_ops(it + NS) if it + NS < K2_NST else []
            rd = read_ops(it + 1) if it + 1 < K2_NST else []
            gaps = [[] for _ in range(6)]
            for q, o in enumerate(fillers):
                gaps[min(q, 5)].append(o)
                if q >= 5 and isinstance(o[0], str) and o[0].startswith("s_add_u32 m0"):
                    gaps[5].append("s_nop 0")
            for q, x in enumerate(rd):
                gaps[min(q, 5)].append(x)
            k = 0
            for i in range(3):
                for jj in range(2):
                    acc = AC + 4 * (2 * i + jj)
                    c = "0" if it == 0 else vr(acc, 4)
                    a("v_mfma_f32_16x16x32_bf16 %s, %s, %s, %s" % (vr(acc, 4), vr(FRB + 20 * p + 12 + 4 * jj, 4), vr(FRB + 20 * p + 4 * i, 4), c))
                    emit(a, gaps[k])
                    k += 1
    a("s_cmp_lt_u32 s20, s27")
    a("s_cbranch_scc0 L_k2_nl")
    body(True)
    a("s_branch L_k2_epi")
    a.label("L_k2_nl")
    body(False)
    a.label("L_k2_epi")
    stamp(a, 6)
    a("s_mul_i32 s37, s20, 3072")
    a("v_add_u32 v12, s37, v3")
    a("s_xor_b32 s37, s20, 4")
    a("s_mul_i32 s37, s37, 3072")
    a("v_add_u32 v13, s37, v3")
    a("s_nop 4")
    a("s_cmp_eq_u32 s34, 0")
    a("s_cbranch_scc0 L_k2_x1")
    for kq in range(2):
        for i in range(3):
            a("ds_write_b128 v12, %s offset:%d" % (vr(AC + 4 * (2 * i + 1 - kq), 4), 1024 * i))
        for i in range(3):
            for r in range(4):
                a("v_mov_b32 v%d, v%d" % (FRB + 4 * i + r, AC + 4 * (2 * i + kq) + r))
        if kq == 0:
            a("s_branch L_k2_x2")
            a.label("L_k2_x1")
    a.label("L_k2_x2")
    a("s_waitcnt lgkmcnt(0)")
    a("s_barrier")
    for i in range(3):
        a("ds_read_b128 %s, v13 offset:%d" % (vr(AC + 4 * i, 4), 1024 * i))
    a("s_mov_b32 s37, 0xffff0000")
    a("s_waitcnt vmcnt(0) lgkmcnt(0)")
    for i in range(3):
        for r in range(4):
            a("v_add_f32 v%d, v%d, v%d" % (FRB + 4 * i + r, FRB + 4 * i + r, AC + 4 * i + r))
        for d in range(2):
            a("v_lshlrev_b32 v%d, 16, v%d" % (AC + 4 * i, 28 + 2 * i + d))
            a("v_and_b32 v%d, s37, v%d" % (AC + 4 * i + 1, 28 + 2 * i + d))
            a("v_add_f32 v%d, v%d, v%d" % (FRB + 4 * i + 2 * d, FRB + 4 * i + 2 * d, AC + 4 * i))
            a("v_add_f32 v%d, v%d, v%d" % (FRB + 4 * i + 2 * d + 1, FRB + 4 * i + 2 * d + 1, AC + 4 * i + 1))
        for d in range(2):
            a("v_cvt_pk_bf16_f32 v%d, v%d, v%d" % (28 + 2 * i + d, FRB + 4 * i + 2 * d, FRB + 4 * i + 2 * d + 1))
    a("buffer_store_dwordx2 v[28:29], v26, s[8:11], 0 offen")
    a("buffer_store_dwordx2 v[30:31], v26, s[8:11], s38 offen")
    a("s_sub_u32 s37, s27, s35")
    a("s_cmp_eq_u32 s37, 4")
    a("s_cbranch_scc1 L_k2_fl")
    a("buffer_store_dwordx2 v[32:33], v26, s[8:11], s39 offen")
    a.label("L_k2_fl")
    a.label("L_p2_end")
    if STAMP:
        a("s_waitcnt vmcnt(0)")
        stamp_dump(a, 2, "L_sd_end")


def main():
    a = Asm()
    hdr = open("cdna_kernels/%s.s.ref" % NAME).read().splitlines()
    for l in hdr:
        if l.startswith(";") and "@launch" not in l:
            a.raw(l)
    if "--list" in sys.argv:
        a.raw("; @launch kernel=%s_kernel grid=(256,1,1) block=(512,1,1) lds=%d" % (NAME, K1_LDS))
    else:
        a.raw("; @launch grid=(256,1,1) block=(512,1,1) lds=%d" % K1_LDS)
    a.raw('.amdgcn_target "amdgcn-amd-amdhsa--gfx950"')
    ks = [gen_k1(a)]
    for (n, v, s) in ks:
        kernel_desc(a, n, v, s)
    av = [x for x in sys.argv[1:] if not x.startswith("--")]
    out = av[0] if av else "cdna_kernels/%s.s" % NAME
    open(out, "w").write(a.text())


main()
```

```python
import sys, struct, re

NAME = "parallel_sum__sliding_local_dilated__geglu_ffn__prompt"
ST_OFF = 0
ST_CS = 256 * 128
FLG = 65536
ST_BYTES = FLG + 256 * 128
ACT_OFF = 4 << 20
ACT_MT = 75 * 1024
ACT_BYTES = 128 * ACT_MT
BIG = 0x40000000
LOG2E = 1.4426950408889634
STAMP = "--stamp" in sys.argv
STAMP_OFF = 32 << 20
MF = 32 if "--mf32" in sys.argv else 16
ROT = 0 if "--norot" in sys.argv else 1
RP = int(sys.argv[sys.argv.index("--rp") + 1]) if "--rp" in sys.argv else 5


def f2u(x):
    return struct.unpack("<I", struct.pack("<f", x))[0]


class Asm:
    def __init__(self):
        self.l = []
        self.vm = []

    def __call__(self, s, tag=None):
        m = re.match(r"s_cselect_b32 (s\d+), (\d+|0x[0-9a-f]+), (\d+|0x[0-9a-f]+)$", s)
        if m and int(m.group(2), 0) > 64 and int(m.group(3), 0) > 64:
            self.l.append("    s_mov_b32 %s, %s" % (m.group(1), m.group(3)))
            s = "s_cselect_b32 %s, %s, %s" % (m.group(1), m.group(2), m.group(1))
        self.l.append("    " + s)
        if s.startswith("buffer_") or s.startswith("global_"):
            kind = "D" if s.endswith(" lds") else ("L" if ("_load" in s or ("atomic" in s and " sc0" in s)) else "S")
            self.vm.append((tag, kind))

    def vmwait(self, tags):
        best = None
        for kind in "DLS":
            idx = [i for i, (t, k) in enumerate(self.vm) if t in tags and k == kind]
            if not idx:
                continue
            if kind == "S":
                n = sum(1 for (t, k) in self.vm[max(idx) + 1:] if k == "D")
            else:
                n = sum(1 for (t, k) in self.vm[max(idx) + 1:] if k == kind)
            best = n if best is None else min(best, n)
        return None if best is None else min(63, best)

    def label(self, s):
        self.l.append(s + ":")

    def raw(self, s):
        self.l.append(s)

    def text(self):
        return "\n".join(self.l) + "\n"


def vr(a, n):
    return "v[%d:%d]" % (a, a + n - 1)


def sr(a, n):
    return "s[%d:%d]" % (a, a + n - 1)


def kernel_header(a, name):
    a.raw(".text")
    a.raw(".globl %s" % name)
    a.raw(".p2align 8")
    a.raw(".type %s,@function" % name)
    a.label(name)


def kernel_desc(a, name, vgpr, sgpr):
    a.raw('.section .rodata,"a"')
    a.raw(".p2align 6")
    a.raw(".amdhsa_kernel %s" % name)
    a.raw("  .amdhsa_next_free_vgpr %d" % vgpr)
    a.raw("  .amdhsa_next_free_sgpr %d" % sgpr)
    a.raw("  .amdhsa_accum_offset %d" % ((vgpr + 3) // 4 * 4))
    a.raw("  .amdhsa_group_segment_fixed_size 0")
    a.raw("  .amdhsa_kernarg_size 80")
    a.raw("  .amdhsa_user_sgpr_count 2")
    a.raw("  .amdhsa_user_sgpr_kernarg_segment_ptr 1")
    a.raw("  .amdhsa_system_sgpr_workgroup_id_x 1")
    a.raw(".end_amdhsa_kernel")


def stamp_e(a, idx):
    if STAMP and "--epi" in sys.argv:
        a("s_memtime %s" % sr(80 + 2 * idx, 2))


def stamp(a, idx):
    if STAMP and not ("--epi" in sys.argv and idx in (1, 2, 3, 4, 5) and not getattr(a, "p2", False)):
        a("s_memtime %s" % sr(80 + 2 * idx, 2))


def stamp_start(a):
    if STAMP:
        a("s_memtime s[80:81]")
        a("s_memrealtime s[98:99]")


def stamp_flush(a, wave_sgpr, wslo, wshi, kidx, endlabel):
    if not STAMP:
        return
    stamp(a, 7)
    a("s_waitcnt vmcnt(0)")
    a("s_memtime s[96:97]")
    a("s_memrealtime s[100:101]")
    a("s_waitcnt lgkmcnt(0)")
    a("s_cmp_lg_u32 s%d, 0" % wave_sgpr)
    a("s_cbranch_scc1 %s" % endlabel)
    make_srd(a, 76, wslo, wshi, 1 << 20, STAMP_OFF + kidx * 65536)
    a("s_lshl_b32 s3, s2, 6")
    a("v_mov_b32 v0, s3")
    for i in range(9):
        a("v_mov_b32 v1, s%d" % (80 + 2 * i))
        a("buffer_store_dword v1, v0, s[76:79], 0 offen offset:%d" % (4 * i))
    a("v_mov_b32 v1, s98")
    a("buffer_store_dword v1, v0, s[76:79], 0 offen offset:56")
    a("v_mov_b32 v1, s100")
    a("buffer_store_dword v1, v0, s[76:79], 0 offen offset:60")


def stamp_dump(a, kidx, lbl):
    if not STAMP:
        return
    a("s_memtime s[96:97]")
    a("s_memrealtime s[100:101]")
    a("s_waitcnt lgkmcnt(0)")
    a("s_cmp_lg_u32 s56, 0")
    a("s_cbranch_scc1 %s" % lbl)
    make_srd(a, 76, 22, 23, 1 << 20, STAMP_OFF + kidx * 65536)
    a("s_lshl_b32 s3, s2, 6")
    a("v_mov_b32 v7, s3")
    for i in range(9):
        a("v_mov_b32 v1, s%d" % (80 + 2 * i))
        a.l.append("    buffer_store_dword v1, v7, s[76:79], 0 offen offset:%d" % (4 * i))
    a("v_mov_b32 v1, s98")
    a.l.append("    buffer_store_dword v1, v7, s[76:79], 0 offen offset:56")
    a("v_mov_b32 v1, s100")
    a.l.append("    buffer_store_dword v1, v7, s[76:79], 0 offen offset:60")
    a.label(lbl)


def make_srd(a, d, lo, hi, nbytes, off=0):
    if off:
        a("s_add_u32 s%d, s%d, 0x%x" % (d, lo, off))
        a("s_addc_u32 s%d, s%d, 0" % (d + 1, hi))
    else:
        a("s_mov_b32 s%d, s%d" % (d, lo))
        a("s_mov_b32 s%d, s%d" % (d + 1, hi))
    a("s_mov_b32 s%d, 0x%x" % (d + 2, nbytes))
    a("s_mov_b32 s%d, 0x00020000" % (d + 3))


ACC = 64
FR0 = 160
PITCH = 168
REG_K = 0
REG_V = 192 * PITCH
REG_Q = 2 * 192 * PITCH
SCR = 148480
CSL = SCR + 2048
P2_B = 98304
OSTG = P2_B + 3 * 8192
K1_LDS = P2_B + 7 * 8192
SX, SW, SACT, SST, SCS, SPF1, SPF2, SDBG = 24, 28, 32, 36, 40, 44, 48, 52
S_W, S_XCD, S_SLOT, S_WM, S_WN, S_FB, S_RB = 56, 57, 58, 59, 60, 61, 62
S_SOA, S_SOB = 64, 65
V_RLO, V_CLO = 30, 31
V_RSO, V_CSO, V_ATO, V_SCW, V_SCR = 32, 33, 34, 35, 29
RL = 36
CL = 44
SEL = 240
CD = 244
TT = 248


def k2_prefetch():
    D = TT + 4
    return [["s_lshl_b32 s66, s2, 3", "s_add_u32 s66, s66, s%d" % S_W, "s_lshl_b32 s66, s66, 10",
             ("buffer_load_dwordx4 %s, v3, %s, s66 offen" % (vr(D, 4), sr(SPF1, 4)), "PF"),
             ("buffer_load_dwordx4 %s, v3, %s, s66 offen" % (vr(D, 4), sr(SPF2, 4)), "PF"),
             "s_add_u32 s66, s66, 0x200000",
             ("buffer_load_dwordx4 %s, v3, %s, s66 offen" % (vr(D, 4), sr(SPF1, 4)), "PF")]]


def tlb_warm(a):
    tab = [(4, 2048 * 1280), (6, 640 * 3840), (12, 640 * 3456), (14, 640 * 3456), (16, 1728 * 1280), (8, 640 * 1280),
           (18, 2048 * 1280)]
    a("s_cmp_eq_u32 s%d, 7" % S_W)
    a("s_cbranch_scc1 L_tw7")
    make_srd(a, SCS, tab[0][0], tab[0][0] + 1, tab[0][1])
    for w in range(1, 7):
        a("s_cmp_eq_u32 s%d, %d" % (S_W, w))
        a("s_cselect_b32 s%d, s%d, s%d" % (SCS, tab[w][0], SCS))
        a("s_cselect_b32 s%d, s%d, s%d" % (SCS + 1, tab[w][0] + 1, SCS + 1))
        a("s_cselect_b32 s%d, %d, s%d" % (SCS + 2, tab[w][1], SCS + 2))
    a("v_lshlrev_b32 v1, 16, v2")
    a("buffer_load_dword v%d, v1, %s, 0 offen" % (TT + 7, sr(SCS, 4)), "TW")
    a("s_branch L_tw_done")
    a.label("L_tw7")
    make_srd(a, SCS, 22, 23, ACT_OFF + ACT_BYTES)
    a("s_and_b32 s66, s2, 1")
    a("s_lshl_b32 s66, s66, 6")
    a("v_add_u32 v1, s66, v2")
    a("v_mul_u32_u24 v1, %d, v1" % ACT_MT)
    a("v_add_u32 v1, %d, v1" % (ACT_OFF + 74 * 1024))
    a("v_cmp_eq_u32 vcc, 0, v2")
    a("v_mov_b32 v%d, 61440" % (TT + 7))
    a("s_nop 0")
    a("v_cndmask_b32 v1, v1, v%d, vcc" % (TT + 7))
    a.l.append("    buffer_load_dword v%d, v1, %s, 0 offen" % (TT + 7, sr(SCS, 4)))
    a.label("L_tw_done")


def tlb_warm_act(a):
    if "--act" not in sys.argv:
        a("s_waitcnt vmcnt(0)")
        return
    make_srd(a, SCS, 22, 23, ACT_OFF + ACT_BYTES)
    a("v_mul_u32_u24 v1, 0x5000, v0")
    a("v_add_u32 v1, %d, v1" % ACT_OFF)
    a("buffer_store_dword v1, v1, %s, 0 offen sc1" % sr(SCS, 4))
    a("s_waitcnt vmcnt(0)")


def l2_warm(a):
    D = TT + 6
    a("s_lshr_b32 s66, s2, 3")
    a("s_lshl_b32 s66, s66, 3")
    a("s_add_u32 s66, s66, s%d" % S_W)
    a("v_mul_u32_u24 v5, 43, v2")
    a("v_lshrrev_b32 v5, 8, v5")
    a("v_mul_u32_u24 v6, 6, v5")
    a("v_sub_u32 v6, v2, v6")
    a("v_lshlrev_b32 v5, 8, v5")
    a("v_add_u32 v5, s66, v5")
    a("v_mov_b32 v9, 0x%x" % BIG)
    a("v_cmp_gt_u32 vcc, 18, v2")
    a("v_cmp_gt_u32 s[68:69], 3, v6")
    a("v_mul_u32_u24 v7, 3840, v5")
    a("v_lshrrev_b32 v8, 1, v6")
    a("v_mul_u32_u24 v8, 1280, v8")
    a("v_and_b32 v1, 1, v6")
    a("v_lshl_add_u32 v8, v1, 7, v8")
    a("v_add_u32 v7, v7, v8")
    a("v_cndmask_b32 v7, v9, v7, vcc")
    a("s_mul_i32 s67, s78, 160")
    a("s_and_b32 s67, s67, 0xffffff80")
    make_srd(a, SCS, 6, 7, 640 * 3840)
    a("buffer_load_dword v%d, v7, %s, s67 offen" % (D, sr(SCS, 4)), "LW")
    a("s_and_b64 vcc, vcc, s[68:69]")
    a("v_mul_u32_u24 v7, 3456, v5")
    a("v_lshl_add_u32 v7, v6, 7, v7")
    a("s_mul_i32 s67, s78, 384")
    a("v_cndmask_b32 v7, v9, v7, vcc")
    make_srd(a, SCS, 12, 13, 640 * 3456)
    a("buffer_load_dword v%d, v7, %s, s67 offen" % (D, sr(SCS, 4)), "LW")
    make_srd(a, SCS, 14, 15, 640 * 3456)
    a("buffer_load_dword v%d, v7, %s, s67 offen" % (D, sr(SCS, 4)), "LW")


def p2_map(a, d):
    a("s_and_b32 s%d, s2, 7" % d)
    a("s_lshr_b32 s%d, s2, 3" % (d + 1))
    a("s_cmp_ge_u32 s%d, 2" % d)
    a("s_cselect_b32 s%d, 30, 31" % (d + 2))
    a("s_cselect_b32 s%d, 30, 99" % (d + 3))
    a("s_cmp_eq_u32 s%d, s%d" % (d + 1, d + 3))
    a("s_cselect_b32 s%d, 1, 0" % (d + 4))
    a("s_min_u32 s%d, s%d, s%d" % (d + 1, d + 1, d + 2))
    a("s_min_u32 s%d, s%d, 2" % (d + 2, d))
    a("s_mul_i32 s%d, s%d, 31" % (d, d))
    a("s_add_u32 s%d, s%d, s%d" % (d, d, d + 2))
    a("s_add_u32 s%d, s%d, s%d" % (d + 1, d, d + 1))
    a("s_mul_i32 s%d, s%d, 205" % (d, d + 1))
    a("s_lshr_b32 s%d, s%d, 11" % (d, d))
    a("s_mul_i32 s%d, s%d, 10" % (d + 2, d))
    a("s_sub_u32 s%d, s%d, s%d" % (d + 1, d + 1, d + 2))
    a("s_mul_i32 s%d, s%d, 6" % (d + 2, d))
    a("s_mul_i32 s%d, s%d, 5" % (d + 3, d))
    a("s_add_u32 s%d, s%d, 3" % (d + 3, d + 3))
    a("s_cmp_lt_u32 s%d, 3" % d)
    a("s_cselect_b32 s%d, s%d, s%d" % (d + 2, d + 2, d + 3))
    a("s_cselect_b32 s%d, 6, 5" % (d + 3))


P2V = 20


def p2_early(a, split=False):
    p2_map(a, 64)
    a("v_bfe_u32 v17, v2, 1, 2")
    a("v_bfe_u32 v18, v2, 4, 1")
    a("v_xor_b32 v17, v17, v18")
    a("v_and_b32 v18, 1, v2")
    a("v_lshlrev_b32 v17, 5, v17")
    a("v_lshl_add_u32 v17, v18, 4, v17")
    a("s_and_b32 s3, s%d, 1" % S_W)
    a("s_lshl_b32 s3, s3, 6")
    a("v_xor_b32 v17, s3, v17")
    a("v_lshrrev_b32 v18, 3, v2")
    a("v_mul_u32_u24 v18, 1280, v18")
    a("s_mul_i32 s3, s%d, %d" % (S_W, 8 * 1280))
    a("s_lshl_b32 s64, s65, 7")
    a("s_add_u32 s3, s3, s64")
    a("v_add3_u32 v%d, v17, v18, s3" % P2V)
    a("s_lshl_b32 s65, s%d, 10" % S_W)
    a("s_mov_b32 s64, 0")
    p2_early_b(a, range(3 if split else 6))


def p2_early_b(a, sts):
    for st in sts:
        a("s_add_u32 m0, s65, 0x%x" % (P2_B + st * 8192))
        a("s_nop 0")
        a("buffer_load_dwordx4 v%d, %s, s64 offen lds" % (P2V, sr(SPF1, 4)))
        a("s_add_u32 s64, s64, %d" % (64 * 1280))


def p1_done(a, cnt_sgpr_expr):
    a("s_lshl_b32 s3, s2, 7")
    a("s_add_u32 s3, s3, %d" % FLG)
    a("v_mov_b32 v1, 0x%x" % BIG)
    a("v_mov_b32 v5, s3")
    a("v_cmp_eq_u32 vcc, 0, v0")
    a("v_mov_b32 v6, 1")
    a("s_waitcnt vmcnt(0)")
    a("s_barrier")
    a("v_cndmask_b32 v1, v1, v5, vcc")
    a("buffer_store_dword v6, v1, %s, 0 offen sc1" % sr(SST, 4))
    stamp_dump(a, 1, "L_sd_%d" % len(a.l))
    a("s_branch L_phase2")


def stats_setup(a):
    a("s_lshl_b32 s66, s2, 3")
    a("s_add_u32 s66, s66, s%d" % S_W)
    a("s_mul_i32 s67, s66, 1280")
    a("v_mov_b32 v9, 0x%x" % BIG)
    a("v_add_u32 v1, s67, v3")
    a("v_cmp_gt_u32 vcc, 40, v2")
    a("s_lshl_b32 s67, s2, 7")
    a("v_lshl_add_u32 v5, v2, 3, s67")
    a("v_cndmask_b32 v%d, v9, v1, vcc" % V_RLO)
    a("v_cmp_gt_u32 vcc, 16, v0")
    a("s_cmp_ge_u32 s%d, 6" % S_SLOT)
    a("s_cselect_b32 s68, 2, 1")
    a("v_cndmask_b32 v%d, v9, v5, vcc" % V_RSO)
    a("s_cselect_b32 s67, 6, 0")
    a("s_sub_u32 s66, s%d, s67" % S_SLOT)
    a("s_mul_i32 s69, s%d, 6" % S_XCD)
    a("s_add_u32 s69, s69, s66")
    a("s_sub_u32 s66, s%d, 12" % S_SLOT)
    a("s_lshl_b32 s66, s66, 3")
    a("s_add_u32 s66, s66, s%d" % S_XCD)
    a("s_mov_b32 s73, 0")
    a("s_cmp_ge_u32 s66, 60")
    a("s_cselect_b32 s73, 1, s73")
    a("s_cselect_b32 s75, 12, 0")
    a("s_sub_u32 s74, s66, s75")
    a("s_cmp_ge_u32 s66, 66")
    a("s_cselect_b32 s73, 2, s73")
    a("s_cselect_b32 s75, 6, 0")
    a("s_sub_u32 s74, s74, s75")
    a("s_cmp_ge_u32 s%d, 12" % S_SLOT)
    a("s_cselect_b32 s68, s73, s68")
    a("s_cselect_b32 s69, s74, s69")
    a("s_cmp_ge_u32 s%d, 21" % S_SLOT)
    a("s_cselect_b32 s71, 1, 0")
    a("s_cmp_eq_u32 s68, 1")
    a("s_cselect_b32 s%d, s12, s14" % SCS)
    a("s_cselect_b32 s%d, s13, s15" % (SCS + 1))
    a("s_cselect_b32 s72, 1920, 3648")
    a("s_cmp_eq_u32 s68, 0")
    a("s_cselect_b32 s%d, s6, s%d" % (SCS, SCS))
    a("s_cselect_b32 s%d, s7, s%d" % (SCS + 1, SCS + 1))
    a("s_cselect_b32 s72, 0, s72")
    a("s_cselect_b32 s73, 3840, 3456")
    a("s_mul_i32 s%d, s73, 640" % (SCS + 2))
    a("s_mov_b32 s%d, 0x00020000" % (SCS + 3))
    a("v_lshrrev_b32 v1, 4, v2")
    a("v_bfe_u32 v5, v2, 2, 2")
    a("v_lshl_add_u32 v1, v1, 2, v5")
    a("s_lshl_b32 s75, s%d, 4" % S_W)
    a("v_add_u32 v1, s75, v1")
    a("v_mul_lo_u32 v1, v1, s73")
    a("v_and_b32 v5, 3, v2")
    a("v_lshl_add_u32 v1, v5, 4, v1")
    a("s_lshl_b32 s74, s69, 6")
    a("s_cmp_eq_u32 s71, 1")
    a("s_cselect_b32 s74, 0x%x, s74" % BIG)
    a("v_add_u32 v%d, s74, v1" % V_CLO)
    a("s_lshl_b32 s77, s73, 7")
    a("s_lshl_b32 s75, s69, 5")
    a("s_add_u32 s74, s72, s75")
    a("s_lshl_b32 s74, s74, 2")
    a("s_add_u32 s74, s74, %d" % ST_CS)
    a("s_or_b32 s75, s71, s%d" % S_W)
    a("s_cmp_eq_u32 s75, 0")
    a("s_cselect_b32 s74, s74, 0x%x" % BIG)
    a("v_lshl_add_u32 v1, v2, 2, s74")
    a("v_cmp_gt_u32 vcc, 32, v2")
    a("v_and_b32 v5, 15, v2")
    a("v_lshlrev_b32 v6, 4, v5")
    a("v_cndmask_b32 v%d, v9, v1, vcc" % V_CSO)
    a("v_cmp_gt_u32 vcc, 8, v5")
    a("s_lshl_b32 s74, s%d, 7" % S_W)
    a("s_add_u32 s74, s74, %d" % SCR)
    a("v_add_u32 v7, s74, v6")
    a("v_add_u32 v6, %d, v6" % (SCR + 1024))
    a("v_cndmask_b32 v%d, v6, v7, vcc" % V_SCW)
    for d in range(4):
        a("v_cmp_eq_u32 vcc, %d, v5" % (2 * d))
        a("v_mov_b32 v6, 0x3f80")
        a("v_cmp_eq_u32 s[68:69], %d, v5" % (2 * d + 1))
        a("v_cndmask_b32 v%d, 0, v6, vcc" % (SEL + d))
        a("v_mov_b32 v6, 0x3f800000")
        a("v_cndmask_b32 v%d, v%d, v6, s[68:69]" % (SEL + d, SEL + d))
    a("v_and_b32 v5, 7, v2")
    a("v_bfe_u32 v6, v2, 3, 2")
    a("v_lshlrev_b32 v6, 2, v6")
    a("v_lshl_add_u32 v5, v5, 4, v6")
    a("v_cmp_eq_u32 vcc, 0, v0")
    a("v_add_u32 v%d, %d, v5" % (V_SCR, SCR))
    a("s_lshl_b32 s76, s77, 1")
    a("v_mov_b32 v5, 240")
    a("v_cndmask_b32 v%d, v9, v5, vcc" % V_ATO)
    a("s_add_u32 s75, s76, s77")
    a("s_lshl_b32 s74, s77, 2")


def stats_loads():
    o = [("buffer_load_dwordx4 %s, v%d, %s, 0 offen" % (vr(RL, 4), V_RLO, sr(SX, 4)), "SL"),
         ("buffer_load_dwordx4 %s, v%d, %s, 0 offen offset:640" % (vr(RL + 4, 4), V_RLO, sr(SX, 4)), "SL")]
    for i in (1, 2, 0, 3, 4):
        so = ["0", "s77", "s76", "s75", "s74"][i]
        o.append(("buffer_load_dwordx4 %s, v%d, %s, %s offen" % (vr(CL + 4 * i, 4), V_CLO, sr(SCS, 4), so), "SL"))
    return o


def xreduce(regs, tmps, op="v_add_f32", swaps=("v_permlane16_swap_b32", "v_permlane32_swap_b32")):
    o = []
    for swp in swaps:
        for v, t in zip(regs, tmps):
            o.append("v_mov_b32 v%d, v%d" % (t, v))
        o.append("s_nop 1")
        for v, t in zip(regs, tmps):
            o.append("%s v%d, v%d" % (swp, v, t))
        o.append("s_nop 1")
        for v, t in zip(regs, tmps):
            o.append("%s v%d, v%d, v%d" % (op, v, v, t))
    return o


def stats_segA():
    o = []
    T = TT
    for i in range(5):
        o.append("v_mfma_f32_16x16x32_bf16 %s, %s, %s, %s" % (vr(CD, 4), vr(CL + 4 * i, 4), vr(SEL, 4), "0" if i == 0 else vr(CD, 4)))
    o.append("v_mov_b32 v%d, 0x3f803f80" % (T + 4))
    for d in range(8):
        c = "0" if d < 2 else "v%d" % (T + d % 2)
        o.append("v_dot2_f32_bf16 v%d, v%d, v%d, %s" % (T + d % 2, RL + d, T + 4, c))
        c = "0" if d < 2 else "v%d" % (T + 2 + d % 2)
        o.append("v_dot2_f32_bf16 v%d, v%d, v%d, %s" % (T + 2 + d % 2, RL + d, RL + d, c))
    o.append("s_nop 2")
    o.append("v_add_f32 v%d, v%d, v%d" % (T, T, T + 1))
    o.append("v_add_f32 v%d, v%d, v%d" % (T + 2, T + 2, T + 3))
    for sh in (8, 4, 2, 1):
        o.append("s_nop 1")
        for v in (T, T + 2):
            o.append("v_add_f32_dpp v%d, v%d, v%d row_ror:%d row_mask:0xf bank_mask:0xf" % (v, v, v, sh))
    o += xreduce([T, T + 2, CD, CD + 1, CD + 2, CD + 3], [T + 1, T + 3, CL, CL + 1, CL + 2, CL + 3])
    o.append("ds_write_b128 v%d, %s" % (V_SCW, vr(CD, 4)))
    o.append("v_mul_f32 v%d, 0x%x, v%d" % (T, f2u(1.0 / 640.0), T))
    o.append("v_mul_f32 v%d, 0x%x, v%d" % (T + 2, f2u(1.0 / 640.0), T + 2))
    o.append("v_fma_f32 v%d, -v%d, v%d, v%d" % (T + 2, T, T, T + 2))
    o.append("v_max_f32 v%d, 0, v%d" % (T + 2, T + 2))
    o.append("v_cvt_pk_bf16_f32 v%d, v%d, v%d" % (T + 1, T, T + 2))
    o.append("v_lshlrev_b32 v%d, 16, v%d" % (T + 4, T + 1))
    o.append("v_and_b32 v%d, 0xffff0000, v%d" % (T + 5, T + 1))
    o.append("v_add_f32 v%d, 0x%x, v%d" % (T + 5, f2u(1e-5), T + 5))
    o.append("v_cvt_pk_bf16_f32 v%d, v%d, v%d" % (T + 5, T + 5, T + 5))
    o.append("v_lshlrev_b32 v%d, 16, v%d" % (T + 5, T + 5))
    o.append("v_sqrt_f32 v%d, v%d" % (T + 5, T + 5))
    o.append("s_nop 0")
    o.append("v_cvt_pk_bf16_f32 v%d, v%d, v%d" % (T + 5, T + 5, T + 5))
    o.append("v_lshlrev_b32 v%d, 16, v%d" % (T + 5, T + 5))
    o.append(["s_lshl_b32 s66, s%d, 3" % S_W, "s_add_u32 s66, s66, %d" % (SCR + 1536), "v_mov_b32 v%d, s66" % T])
    o.append("ds_write_b64 v%d, %s offset:%d" % (T, vr(T + 4, 2), 0))
    return o


def stats_segB():
    return ["ds_read_b32 v%d, v%d offset:%d" % (CL + w, V_SCR, 128 * w) for w in range(8)] + \
           ["v_and_b32 v%d, 7, v2" % TT, "v_lshlrev_b32 v%d, 3, v%d" % (TT, TT), "v_add_u32 v%d, %d, v%d" % (TT, SCR + 1536, TT),
            "ds_read_b64 %s, v%d" % (vr(TT + 2, 2), TT)]


def stats_segC():
    o = []
    for (x, y) in ((0, 1), (2, 3), (4, 5), (6, 7), (0, 2), (4, 6), (0, 4)):
        o.append("v_add_f32 v%d, v%d, v%d" % (CL + x, CL + x, CL + y))
    o.append(("buffer_store_dword v%d, v%d, %s, 0 offen sc1" % (CL, V_CSO, sr(SST, 4)), "ST"))
    o.append(("buffer_store_dwordx2 %s, v%d, %s, 0 offen sc1" % (vr(TT + 2, 2), V_RSO, sr(SST, 4)), "ST"))
    return o


def stats_signal():
    return ["v_mov_b32 v%d, 1" % TT,
            ("buffer_atomic_add v%d, v%d, %s, 0 offen" % (TT, V_ATO, sr(SDBG, 4)), "AT")]


def emit(a, x):
    if isinstance(x, list):
        for y in x:
            emit(a, y)
    elif isinstance(x, tuple):
        a(x[0], x[1])
    else:
        a(x)


IT_SIG, IT_POLL, IT_CHK = 8, 15, 17


def k1_mainloop(a, P):
    nI, nJ = P["nI"], P["nJ"]
    NST = 20
    nA, nB = 2 * nI, 2 * nJ

    def fx(p, I, hh):
        return FR0 + 40 * p + 8 * I + 4 * hh

    def fw(p, j, hh):
        return FR0 + 40 * p + 8 * nI + 8 * j + 4 * hh

    def read_ops(stage):
        p = stage % 2
        ops = []
        if MF == 32:
            for hh in range(2):
                for j in range(nJ):
                    for e in range(2):
                        v, imm = P["b_addr"](stage % 4, j)
                        ops.append("ds_read_b64_tr_b16 %s, v%d offset:%d" % (vr(fw(p, j, hh) + 2 * e, 2), v, imm + hh * 2048 + e * 512))
                for I in range(nI):
                    v, imm = P["a_addr"]((stage // 2) % 3, 2 * (stage % 2) + hh, I)
                    ops.append("ds_read_b128 %s, v%d offset:%d" % (vr(fx(p, I, hh), 4), v, imm))
        else:
            for j in range(nB):
                for e in range(2):
                    v, imm = P["b_addr"](stage % 4, j)
                    ops.append("ds_read_b64_tr_b16 %s, v%d offset:%d" % (vr(FR0 + 40 * p + 4 * nA + 4 * j + 2 * e, 2), v, imm + e * 512))
            for i in range(nA):
                v, imm = P["a_addr"]((stage // 2) % 3, stage % 2, i)
                ops.append("ds_read_b128 %s, v%d offset:%d" % (vr(FR0 + 40 * p + 4 * i, 4), v, imm))
        return ops

    def mfmas(it):
        p = it % 2
        o = []
        if MF == 32:
            for hh in range(2):
                for I in range(nI):
                    for j in range(nJ):
                        acc = ACC + 16 * (I * nJ + j)
                        c = "0" if (it == 0 and hh == 0) else vr(acc, 16)
                        o.append("v_mfma_f32_32x32x16_bf16 %s, %s, %s, %s" % (vr(acc, 16), vr(fw(p, j, hh), 4), vr(fx(p, I, hh), 4), c))
        else:
            for i in range(nA):
                for j in range(nB):
                    acc = ACC + 4 * (i * nB + j)
                    c = "0" if it == 0 else vr(acc, 4)
                    o.append("v_mfma_f32_16x16x32_bf16 %s, %s, %s, %s" % (vr(acc, 4), vr(FR0 + 40 * p + 4 * nA + 4 * j, 4), vr(FR0 + 40 * p + 4 * i, 4), c))
        return o

    def pro(ops):
        for (m, d, tag, adv) in ops:
            a(m)
            a("s_nop 0")
            a(d, tag)
            for x in adv:
                a(x)
    B, A = P["bdma"], P["adma"]
    pro(B(0))
    pro(sum(A(0), []))
    pro(B(1))
    pro(sum(A(1), []))
    for x in stats_loads()[:3]:
        emit(a, x)
    stamp(a, 4)
    a("s_waitcnt vmcnt(%d)" % a.vmwait({"B0", "A0"}))
    a("s_barrier")
    stamp(a, 5)
    for x in read_ops(0):
        a(x)
    for it in range(NST):

        p = it % 2
        tags = set()
        if it + 1 < NST:
            tags |= {"B%d" % (it + 1), "A%d" % ((it + 1) // 2)}
        tags |= P["toptags"].get(it, set())
        n = a.vmwait(tags)
        if n is not None:
            a("s_waitcnt vmcnt(%d) lgkmcnt(0)" % n)
        else:
            a("s_waitcnt lgkmcnt(0)")
        if it == IT_CHK:
            nm = P["name"]
            a("s_mov_b32 s66, 0")
            a.label("L_poll_%s" % nm)
            a("v_readfirstlane_b32 s67, v%d" % TT)
            a("s_add_u32 s66, s66, 1")
            a("s_cmp_ge_u32 s67, 256")
            a("s_cbranch_scc1 L_pollok_%s" % nm)
            a("s_cmp_ge_u32 s66, 0x40000")
            a("s_cbranch_scc1 L_pollok_%s" % nm)
            a("s_sleep 2")
            a.l.append("    buffer_load_dword v%d, v%d, %s, 0 offen sc1" % (TT, TT + 1, sr(SDBG, 4)))
            a("s_waitcnt vmcnt(0)")
            a("s_branch L_poll_%s" % nm)
            a.label("L_pollok_%s" % nm)
        a("s_barrier")
        dm = []
        if it == 0:
            dm = B(2) + B(3) + A(2)[0]
        elif it == 1:
            dm = B(4) + B(5) + A(2)[1]
        elif it == 2:
            dm = B(6) + A(3)[0] + A(3)[1]
        else:
            if it + 4 < NST:
                dm += B(it + 4)
            S = (it - 1) // 2 + 3
            if S < 10:
                dm += A(S)[(it - 1) % 2]
        rd = read_ops(it + 1) if it + 1 < NST else []
        stream = []
        for (m, d, tag, adv) in dm:
            mid = rd.pop(0) if rd else "s_nop 0"
            stream.append([m, mid, (d, tag)] + adv)
        stream += [[x] for x in rd]
        stream += [[x] for x in P["bg"].get(it, [])]
        mf = mfmas(it)
        ngap = len(mf)
        for gi, x in enumerate(mf):
            a(x)
            k = (len(stream) + (ngap - gi) - 1) // (ngap - gi) if MF == 32 else min(len(stream), max(1, (len(stream) + (ngap - gi) - 1) // (ngap - gi)))
            for _ in range(k):
                if stream:
                    emit(a, stream.pop(0))
        for x in stream:
            emit(a, x)
    stamp(a, 6)


def adv(r, inc, tot):
    return ["s_add_u32 s%d, s%d, %d" % (r, r, inc), "s_cmp_ge_u32 s%d, %d" % (r, tot), "s_cselect_b32 s%d, 0, s%d" % (r, r)]


def split_bg(lst, its):
    n = (len(lst) + len(its) - 1) // len(its)
    return {it: lst[i * n:(i + 1) * n] for i, it in enumerate(its)}


def std_bg(pre, tail17, tail19):
    sl = stats_loads()
    bg = {0: sl[3:7]}
    bg.update(split_bg(stats_segA(), [2, 3]))
    bg[9] = k2_prefetch()
    bg[4] = stats_segB()
    bg[5] = stats_segC()
    bg[IT_SIG] = stats_signal()
    bg.update(split_bg(pre, [12, 13, 14]))
    bg[IT_POLL] = [("buffer_load_dword v%d, v%d, %s, 0 offen sc1" % (TT, TT + 1, sr(SDBG, 4)), "POLL")]
    bg[IT_CHK] = tail17
    bg[19] = tail19
    top = {2: {"SL"}, IT_SIG: {"ST"}, IT_CHK: {"POLL"}, 19: {"TL"}}
    return bg, top


def gen_k1(a):
    name = NAME + "_kernel"
    kernel_header(a, name)
    a("s_cmp_ge_u32 s2, 256")
    a("s_cbranch_scc1 L_k1_end")
    stamp_start(a)
    a("s_load_dwordx4 s[20:23], s[0:1], 64")
    a("s_load_dwordx4 s[4:7], s[0:1], 0")
    a("s_load_dwordx2 s[8:9], s[0:1], 16")
    a("s_load_dwordx4 s[12:15], s[0:1], 32")
    a("s_load_dwordx4 s[16:19], s[0:1], 48")
    a("v_lshrrev_b32 v1, 6, v0")
    a("v_and_b32 v2, 63, v0")
    a("v_readfirstlane_b32 s%d, v1" % S_W)
    a("v_lshlrev_b32 v3, 4, v2")
    a("s_getreg_b32 s78, hwreg(HW_REG_XCC_ID)")
    a("s_and_b32 s%d, s2, 7" % S_XCD)
    a("s_lshr_b32 s%d, s2, 3" % S_SLOT)
    a("s_and_b32 s78, s78, 7")
    a("s_lshl_b32 s66, s78, 5")
    a("v_mov_b32 v17, s66")
    a("v_mov_b32 v1, 0x%x" % BIG)
    a("v_cmp_eq_u32 vcc, 0, v0")
    a("v_mov_b32 v18, 1")
    a("s_lshr_b32 s%d, s%d, 2" % (S_WM, S_W))
    a("s_and_b32 s%d, s%d, 3" % (S_WN, S_W))
    a("v_cndmask_b32 v17, v1, v17, vcc")
    a("s_waitcnt lgkmcnt(0)")
    stamp(a, 1)
    make_srd(a, SDBG, 20, 21, 256)
    a.vm = []
    a("s_cmp_lg_u32 s%d, 0" % S_W)
    a("s_cbranch_scc1 L_tk_skip")
    a("buffer_atomic_add v18, v17, %s, 0 offen sc0" % sr(SDBG, 4), "TK")
    a.label("L_tk_skip")
    make_srd(a, SX, 4, 5, 2048 * 1280)
    make_srd(a, SACT, 22, 23, ACT_BYTES, ACT_OFF)
    make_srd(a, SST, 22, 23, ST_BYTES, ST_OFF)
    make_srd(a, SPF1, 16, 17, 1728 * 1280)
    make_srd(a, SPF2, 8, 9, 640 * 1280)
    tlb_warm(a)
    if "--lw" in sys.argv:
        l2_warm(a)
    stats_setup(a)
    a("v_lshrrev_b32 v4, 4, v2")
    a("v_lshlrev_b32 v5, 10, v4")
    a("v_bfe_u32 v6, v2, 2, 2")
    a("v_lshl_add_u32 v5, v6, 7, v5")
    a("v_and_b32 v6, 3, v2")
    a("v_lshl_add_u32 v5, v6, 3, v5")
    a("v_bfe_u32 v6, v2, 3, 2")
    a("v_bfe_u32 v26, v2, 4, 1")
    a("v_lshrrev_b32 v7, 3, v2")
    a("v_bfe_u32 v8, v2, 1, 2")
    a("v_xor_b32 v8, v8, v26")
    a("v_and_b32 v9, 1, v2")
    a("v_and_b32 v10, 7, v2")
    a("v_lshrrev_b32 v11, 4, v2")
    a("v_xor_b32 v10, v10, v11")
    a("v_lshlrev_b32 v10, 4, v10")
    a("v_mul_u32_u24 v11, 1280, v7")
    a("v_add_u32 v10, v10, v11")
    a("v_bfe_u32 v15, v2, 1, 3")
    a("v_xor_b32 v15, v15, v4")
    a("v_lshlrev_b32 v15, 4, v15")
    a("v_and_b32 v16, 7, v2")
    a("v_lshl_add_u32 v15, v16, 7, v15")
    a("v_bfe_u32 v16, v2, 3, 1")
    a("v_lshl_add_u32 v15, v16, 10, v15")
    a("s_cmp_lg_u32 s%d, 0" % S_W)
    a("s_cbranch_scc1 L_tk_done")
    a("s_mov_b32 s67, 0")
    a("s_waitcnt vmcnt(%d)" % a.vmwait({"TK"}))
    a.label("L_tk_loop")
    a("v_readfirstlane_b32 s68, v18")
    a("s_add_u32 s67, s67, 1")
    a("s_nop 2")
    a("s_cmp_lt_u32 s68, 32")
    a("s_cbranch_scc1 L_tk_got")
    a("s_cmp_ge_u32 s67, 16")
    a("s_cbranch_scc1 L_tk_got")
    a("s_add_u32 s78, s78, 1")
    a("s_and_b32 s78, s78, 7")
    a("s_lshl_b32 s68, s78, 5")
    a("v_writelane_b32 v17, s68, 0")
    a("v_mov_b32 v18, 1")
    a.l.append("    buffer_atomic_add v18, v17, %s, 0 offen sc0" % sr(SDBG, 4))
    a("s_waitcnt vmcnt(0)")
    a("s_branch L_tk_loop")
    a.label("L_tk_got")
    a("s_and_b32 s68, s68, 31")
    a("s_lshl_b32 s68, s68, 3")
    a("s_add_u32 s68, s68, s78")
    a("v_mov_b32 v17, %d" % (SCR + 2044))
    a("v_mov_b32 v18, s68")
    a("ds_write_b32 v17, v18")
    a("s_waitcnt lgkmcnt(0)")
    a.label("L_tk_done")
    stamp(a, 2)
    a("s_barrier")
    stamp(a, 3)
    a("v_mov_b32 v1, %d" % (SCR + 2044))
    a("ds_read_b32 v1, v1")
    a("s_waitcnt lgkmcnt(0)")
    a("v_readfirstlane_b32 s2, v1")
    a("s_nop 3")
    a("s_and_b32 s%d, s2, 7" % S_XCD)
    a("s_lshr_b32 s%d, s2, 3" % S_SLOT)
    a("s_lshl_b32 s66, s2, 7")
    a("s_add_u32 s66, s66, %d" % FLG)
    a("v_mov_b32 v17, s66")
    a("v_mov_b32 v1, 0x%x" % BIG)
    a("v_cmp_eq_u32 vcc, 0, v0")
    a("v_mov_b32 v18, 0")
    a("s_nop 0")
    a("v_cndmask_b32 v17, v1, v17, vcc")
    a("buffer_store_dword v18, v17, %s, 0 offen sc1" % sr(SST, 4), "ST")
    VM0 = list(a.vm)
    a("s_cmp_lt_u32 s%d, 18" % S_SLOT)
    a("s_cbranch_scc0 L_k1_att")

    a.vm = list(VM0)
    a("s_lshl_b32 s66, s%d, 1" % S_XCD)
    a("s_add_u32 s66, s66, s%d" % S_SLOT)
    a("s_sub_u32 s66, s66, 16")
    a("s_cmp_lt_u32 s%d, 16" % S_SLOT)
    a("s_cselect_b32 s%d, s%d, 8" % (S_FB, S_XCD))
    a("s_cselect_b32 s%d, s%d, s66" % (S_RB, S_SLOT))
    a("s_cmp_lt_u32 s%d, 4" % S_W)
    a("s_cselect_b32 s%d, s12, s14" % SW)
    a("s_cselect_b32 s%d, s13, s15" % (SW + 1))
    a("s_mov_b32 s%d, %d" % (SW + 2, 640 * 3456))
    a("s_mov_b32 s%d, 0x00020000" % (SW + 3))
    a("s_add_u32 s66, s%d, s%d" % (S_RB, S_FB))
    for _ in range(2):
        a("s_cmp_ge_u32 s66, 10")
        a("s_cselect_b32 s67, 10, 0")
        a("s_sub_u32 s66, s66, s67")
    if not ROT:
        a("s_mov_b32 s66, 0")
    if RP == 5:
        a("s_and_b32 s66, s66, 14")
    if RP == 2:
        a("s_and_b32 s66, s66, 1")
        a("s_mul_i32 s66, s66, 5")
    if RP == 3:
        a("s_mul_i32 s66, s66, 22")
        a("s_lshr_b32 s66, s66, 6")
        a("s_mul_i32 s66, s66, 3")
        a("s_min_u32 s66, s66, 6")
    a("s_lshl_b32 s%d, s66, 7" % S_SOA)
    a("s_mul_i32 s%d, s66, 221184" % S_SOB)
    a("s_mul_i32 s70, s%d, 384" % S_FB)
    a("v_mul_u32_u24 v16, 3456, v7")
    a("v_add_u32 v16, s70, v16")
    a("v_lshlrev_b32 v1, 5, v8")
    a("v_lshl_add_u32 v1, v9, 4, v1")
    for j in range(3):
        a("s_mul_i32 s66, s%d, 3" % S_W)
        a("s_add_u32 s66, s66, %d" % j)
        a("s_and_b32 s67, s66, 3")
        a("s_lshr_b32 s68, s66, 2")
        a("s_cmp_ge_u32 s68, 3")
        a("s_cselect_b32 s69, 3, 0")
        a("s_sub_u32 s68, s68, s69")
        if MF == 32:
            a("s_xor_b32 s69, s67, s%d" % S_WM)
            a("s_and_b32 s69, s69, 1")
        else:
            a("s_and_b32 s69, s67, 1")
        a("s_lshl_b32 s69, s69, 6")
        a("v_xor_b32 v%d, s69, v1" % (12 + j))
        a("s_mul_i32 s67, s67, %d" % (8 * 3456))
        a("s_lshl_b32 s68, s68, 7")
        a("s_add_u32 s67, s67, s68")
        a("v_add3_u32 v%d, v%d, v16, s67" % (12 + j, 12 + j))
    a("s_lshl_b32 s66, s%d, 3" % S_RB)
    a("s_add_u32 s66, s66, s%d" % S_W)
    a("s_mul_i32 s66, s66, %d" % (16 * 1280))
    a("v_xor_b32 v11, 64, v10")
    a("v_add_u32 v10, s66, v10")
    a("s_add_u32 s66, s66, %d" % (8 * 1280))
    a("v_add_u32 v11, s66, v11")
    a("s_mul_i32 s3, s%d, 3072" % S_W)
    a("s_lshl_b32 s79, s%d, 11" % S_W)
    ARING = 98304
    a("s_lshl_b32 s66, s%d, 13" % S_WM)
    a("s_add_u32 s66, s66, %d" % ARING)
    for c in ((3, 2, 1, 0) if MF == 32 else (1, 0)):
        if c:
            a("v_xor_b32 v%d, %d, v15" % (15 + c, (32 if MF == 32 else 64) * c))
        a("v_add_u32 v%d, s66, v%d" % (15 + c, 15 + c))
    if MF == 32:
        a("v_lshlrev_b32 v1, 1, v26")
        a("v_xor_b32 v6, v6, v1")
        a("v_mul_u32_u24 v1, 12288, v26")
        a("v_add_u32 v5, v5, v1")
    for j in range(3):
        a("s_mul_i32 s66, s%d, 3" % S_WN)
        a("s_add_u32 s66, s66, %d" % j)
        a("s_and_b32 s67, s66, 3")
        a("s_lshr_b32 s66, s66, 2")
        a("s_lshl_b32 s66, s66, 12")
        a("v_xor_b32 v%d, s67, v6" % (19 + j))
        a("v_lshl_add_u32 v%d, v%d, 5, v5" % (19 + j, 19 + j))
        a("v_add_u32 v%d, s66, v%d" % (19 + j, 19 + j))
        a("v_add_u32 v%d, 0x%x, v%d" % (22 + j, 2 * 24576, 19 + j))

    def bdma(st):
        o = []
        for j in range(3):
            o.append(("s_add_u32 m0, s3, 0x%x" % ((st % 4) * 24576 + 1024 * j),
                      "buffer_load_dwordx4 v%d, %s, s%d offen lds" % (12 + j, sr(SW, 4), S_SOB), "B%d" % st,
                      adv(S_SOB, 32 * 3456, 640 * 3456) if j == 2 else []))
        return o

    def adma(S):
        return [[("s_add_u32 m0, s79, 0x%x" % (ARING + (S % 3) * 16384 + 1024 * h),
                  "buffer_load_dwordx4 v%d, %s, s%d offen lds" % (10 + h, sr(SX, 4), S_SOA), "A%d" % S,
                  adv(S_SOA, 128, 1280) if h == 1 else [])] for h in range(2)]

    pre = ["v_and_b32 v25, 1, v4", "s_mov_b32 s66, %d" % ACT_MT, "v_mul_lo_u32 v25, v25, s66",
           "v_lshrrev_b32 v1, 1, v4", "v_lshl_add_u32 v25, v1, 8, v25", "v_and_b32 v1, 15, v2", "v_lshl_add_u32 v25, v1, 4, v25",
           "s_mul_i32 s66, s%d, %d" % (S_WM, 4 * ACT_MT), "s_mul_i32 s67, s%d, %d" % (S_WN, 6 * 256),
           "s_add_u32 s66, s66, s67", "v_add_u32 v25, s66, v25",
           "s_mul_i32 s70, s%d, %d" % (S_RB, 8 * ACT_MT), "s_mul_i32 s67, s%d, %d" % (S_FB, 24 * 256),
           "s_add_u32 s70, s70, s67", "s_add_u32 s70, s70, %d" % (80 * 256), "s_add_u32 s71, s70, %d" % (2 * ACT_MT),
           "s_lshl_b32 s66, s%d, 1" % S_RB, "s_add_u32 s66, s66, s%d" % S_WM, "s_lshl_b32 s66, s66, 10",
           "v_and_b32 v26, 7, v2", "v_lshl_add_u32 v26, v26, 3, s66", "v_bfe_u32 v1, v2, 3, 1", "v_lshl_add_u32 v26, v1, 7, v26",
           "v_cmp_gt_u32 vcc, 48, v2", "v_mov_b32 v1, 0x%x" % BIG, "s_nop 0", "v_cndmask_b32 v27, v1, v3, vcc",
           "s_mul_i32 s72, s%d, 768" % S_FB, "s_add_u32 s72, s72, %d" % (ST_CS + 1920 * 4),
           "s_add_u32 s73, s72, %d" % (1728 * 4),
           "s_mul_i32 s66, s%d, 192" % S_WN, "s_add_u32 s66, s66, %d" % CSL, "v_lshl_add_u32 v28, v4, 4, s66",
           "v_mov_b32 v%d, 240" % (TT + 1)]
    RS = 36
    CS0 = 44
    t17 = [("buffer_load_dwordx2 %s, v26, %s, 0 offen offset:%d sc1" % (vr(RS + 2 * i, 2), sr(SST, 4), 256 * i), "TL") for i in range(4)]
    for mat in range(2):
        t17.append(["s_mov_b32 m0, %d" % (CSL + 1024 * mat), "s_nop 0",
                    ("buffer_load_dwordx4 v27, %s, s%d offen sc1 lds" % (sr(SST, 4), 72 + mat), "TL")])

    def csreg(t):
        return CS0 + 4 * t if t < 5 else 240
    t19 = ["ds_read_b128 %s, v28 offset:%d" % (vr(csreg(t), 4), (t // 3) * 1024 + (t % 3) * 64) for t in range(6)]
    bg, top = std_bg(pre, t17, t19)
    P = dict(nI=2, nJ=3, name="ffn", bdma=bdma, adma=adma, bg=bg, toptags=top,
             a_addr=lambda S3, q, i: (15 + q, S3 * 16384 + i * 2048),
             b_addr=lambda slot, j: (19 + 3 * (slot // 2) + j % 3, (slot % 2) * 24576 + (j // 3) * 12288))
    k1_mainloop(a, P)
    p2_early(a)

    c1 = -2.0 * LOG2E * 0.7978845608028654
    RC = 5
    for i in range(4):
        a("v_rcp_f32 v%d, v%d" % (RC + 3 * i, RS + 2 * i + 1))
    a("s_nop 0")
    for i in range(4):
        a("v_mul_f32 v%d, v%d, v%d" % (RC + 3 * i + 2, RS + 2 * i + 1, RS + 2 * i + 1))
        a("v_mul_f32 v%d, v%d, v%d" % (RC + 3 * i + 1, RC + 3 * i, RC + 3 * i))
        a("v_mul_f32 v%d, 0x%x, v%d" % (RC + 3 * i, f2u(c1), RC + 3 * i))
        a("v_mul_f32 v%d, 0x%x, v%d" % (RC + 3 * i + 1, f2u(0.044715), RC + 3 * i + 1))
        a("v_mul_f32 v%d, v%d, v%d" % (RC + 3 * i + 1, RC + 3 * i + 1, RC + 3 * i))
    a("s_waitcnt lgkmcnt(0)")
    T0 = FR0
    OUT = FR0 + 16
    n = 0
    for ip in (0, 2):
        for j in range(3):
            el = []
            for ii in (ip, ip + 1):
                for r in range(4):
                    el.append((ACC + 4 * (ii * 6 + j) + r, ACC + 4 * (ii * 6 + 3 + j) + r, csreg(j) + r, csreg(3 + j) + r,
                               RS + 2 * ii, RC + 3 * ii, RC + 3 * ii + 1, RC + 3 * ii + 2))
            for q, (x, u, cg, cu, m_, k1_, k3_, s2_) in enumerate(el):
                a("v_fma_f32 v%d, -v%d, v%d, v%d" % (x, m_, cg, x))
            for q, (x, u, cg, cu, m_, k1_, k3_, s2_) in enumerate(el):
                a("v_mul_f32 v%d, v%d, v%d" % (T0 + q, x, x))
            for q, (x, u, cg, cu, m_, k1_, k3_, s2_) in enumerate(el):
                a("v_fma_f32 v%d, v%d, v%d, v%d" % (T0 + q, T0 + q, k3_, k1_))
            for q, (x, u, cg, cu, m_, k1_, k3_, s2_) in enumerate(el):
                a("v_mul_f32 v%d, v%d, v%d" % (T0 + q, x, T0 + q))
            for q, (x, u, cg, cu, m_, k1_, k3_, s2_) in enumerate(el):
                a("v_exp_f32 v%d, v%d" % (T0 + q, T0 + q))
            for q, (x, u, cg, cu, m_, k1_, k3_, s2_) in enumerate(el):
                a("v_fma_f32 v%d, -v%d, v%d, v%d" % (u, m_, cu, u))
            for q, (x, u, cg, cu, m_, k1_, k3_, s2_) in enumerate(el):
                a("v_fma_f32 v%d, v%d, v%d, v%d" % (T0 + q, T0 + q, s2_, s2_))
            for q, (x, u, cg, cu, m_, k1_, k3_, s2_) in enumerate(el):
                a("v_rcp_f32 v%d, v%d" % (T0 + q, T0 + q))
            for q, (x, u, cg, cu, m_, k1_, k3_, s2_) in enumerate(el):
                a("v_mul_f32 v%d, v%d, v%d" % (u, x, u))
            for q, (x, u, cg, cu, m_, k1_, k3_, s2_) in enumerate(el):
                a("v_mul_f32 v%d, v%d, v%d" % (u, u, T0 + q))
            o = OUT + 4 * (n % 3)
            n += 1
            for q in range(4):
                a("v_cvt_pk_bf16_f32 v%d, v%d, v%d" % (o + q, el[2 * q][1], el[2 * q + 1][1]))
            a("s_nop 1")
            a("v_permlane16_swap_b32 v%d, v%d" % (o, o + 2))
            a("v_permlane16_swap_b32 v%d, v%d" % (o + 1, o + 3))
            a("s_nop 1")
            a("buffer_store_dwordx4 %s, v25, %s, s%d offen offset:%d sc1" % (vr(o, 4), sr(SACT, 4), 70 + ip // 2, 512 * j))
    stamp(a, 7)
    p1_done(a, ["s_cmp_eq_u32 s%d, 8" % S_FB, "s_cselect_b32 s64, 0, 64", "s_lshl_b32 s3, s%d, 2" % S_RB, "s_add_u32 s3, s3, s64"])

    a.label("L_k1_att")
    a.vm = list(VM0)
    a("s_cmp_lt_u32 s%d, 31" % S_SLOT)
    a("s_cbranch_scc0 L_k1_extra")
    a("s_sub_u32 s%d, s%d, 18" % (S_RB, S_SLOT))
    make_srd(a, SW, 6, 7, 640 * 3840)
    ARING = 65536
    ASLOT = 22528
    a("s_add_u32 s66, s%d, s%d" % (S_RB, S_XCD))
    for _ in range(2):
        a("s_cmp_ge_u32 s66, 10")
        a("s_cselect_b32 s67, 10, 0")
        a("s_sub_u32 s66, s66, s67")
    if not ROT:
        a("s_mov_b32 s66, 0")
    if RP == 5:
        a("s_and_b32 s66, s66, 14")
    if RP == 2:
        a("s_and_b32 s66, s66, 1")
        a("s_mul_i32 s66, s66, 5")
    if RP == 3:
        a("s_mul_i32 s66, s66, 22")
        a("s_lshr_b32 s66, s66, 6")
        a("s_mul_i32 s66, s66, 3")
        a("s_min_u32 s66, s66, 6")
    a("s_lshl_b32 s%d, s66, 7" % S_SOA)
    a("s_mul_i32 s%d, s66, 245760" % S_SOB)
    a("s_mul_i32 s70, s%d, 160" % S_XCD)
    a("v_mul_u32_u24 v16, 3840, v7")
    a("v_add_u32 v16, s70, v16")
    a("s_lshr_b32 s66, s%d, 1" % S_W)
    a("s_lshl_b32 s66, s66, 2")
    a("v_mov_b32 v17, 1120")
    for j in range(2):
        if j:
            a("v_xor_b32 v1, 2, v8")
            a("v_add_u32 v1, s66, v1")
        else:
            a("v_add_u32 v1, s66, v8")
        a("v_min_u32 v1, 14, v1")
        a("v_lshlrev_b32 v%d, 5, v1" % (13 + j))
        a("v_lshl_add_u32 v%d, v9, 4, v%d" % (13 + j, 13 + j))
        a("v_cmp_le_u32 vcc, 5, v1")
        a("v_add_u32 v%d, v%d, v16" % (13 + j, 13 + j))
        a("s_and_b32 s67, s%d, 1" % S_W)
        a("v_cndmask_b32 v18, 0, v17, vcc")
        a("v_cmp_le_u32 vcc, 10, v1")
        a("v_add_u32 v%d, v%d, v18" % (13 + j, 13 + j))
        a("s_lshl_b32 s67, s67, 1")
        a("v_cndmask_b32 v18, 0, v17, vcc")
        a("s_add_u32 s67, s67, %d" % j)
        a("s_mul_i32 s67, s67, %d" % (8 * 3840))
        a("v_add3_u32 v%d, v%d, v18, s67" % (13 + j, 13 + j))
    a("s_and_b32 s66, s%d, 1" % S_W)
    a("s_lshl_b32 s66, s66, 6")
    a("v_xor_b32 v1, s66, v10")
    a("s_mul_i32 s66, s%d, 20" % S_RB)
    a("s_add_u32 s66, s66, s%d" % S_W)
    a("s_max_u32 s67, s66, 2")
    a("s_sub_u32 s67, s67, 2")
    a("s_min_u32 s67, s67, 255")
    a("s_mul_i32 s67, s67, %d" % (8 * 1280))
    a("v_add_u32 v10, s67, v1")
    a("s_add_u32 s67, s66, 6")
    a("s_min_u32 s68, s67, 255")
    a("s_mul_i32 s68, s68, %d" % (8 * 1280))
    a("v_add_u32 v11, s68, v1")
    a("s_add_u32 s67, s66, 14")
    a("s_min_u32 s67, s67, 255")
    a("s_mul_i32 s67, s67, %d" % (8 * 1280))
    a("s_cmp_lt_u32 s%d, 6" % S_W)
    a("s_cselect_b32 s68, s67, s68")
    a("s_cselect_b32 s78, 16384, 8192")
    a("v_add_u32 v12, s68, v1")
    a("s_lshl_b32 s79, s%d, 10" % S_W)
    a("s_add_u32 s78, s78, s79")
    a("s_lshl_b32 s3, s%d, 11" % S_W)
    a("s_mul_i32 s66, s%d, %d" % (S_WM, 6 * 2048))
    a("s_add_u32 s66, s66, %d" % ARING)
    for c in ((3, 2, 1, 0) if MF == 32 else (1, 0)):
        if c:
            a("v_xor_b32 v%d, %d, v15" % (15 + c, (32 if MF == 32 else 64) * c))
        a("v_add_u32 v%d, s66, v%d" % (15 + c, 15 + c))
    a("s_lshl_b32 s66, s%d, 12" % S_WN)
    for j in range(4):
        a("v_xor_b32 v%d, %d, v6" % (17 + j, j))
        a("v_lshl_add_u32 v%d, v%d, 5, v5" % (17 + j, 17 + j))
        a("v_add_u32 v%d, s66, v%d" % (17 + j, 17 + j))

    def bdma2(st):
        return [("s_add_u32 m0, s3, 0x%x" % ((st % 4) * 16384 + 1024 * j),
                 "buffer_load_dwordx4 v%d, %s, s%d offen lds" % (13 + j, sr(SW, 4), S_SOB), "B%d" % st,
                 adv(S_SOB, 32 * 3840, 640 * 3840) if j == 1 else []) for j in range(2)]

    def adma2(S):
        b = ARING + (S % 3) * ASLOT
        ld = "buffer_load_dwordx4 v%d, %s, s%d offen lds"
        return [[("s_add_u32 m0, s79, 0x%x" % b, ld % (10, sr(SX, 4), S_SOA), "A%d" % S, []),
                 ("s_add_u32 m0, s79, 0x%x" % (b + 8192), ld % (11, sr(SX, 4), S_SOA), "A%d" % S, [])],
                [("s_add_u32 m0, s78, 0x%x" % b, ld % (12, sr(SX, 4), S_SOA), "A%d" % S,
                  adv(S_SOA, 128, 1280))]]

    pre = ["v_and_b32 v1, 15, v2", "s_mul_i32 s66, s%d, 96" % S_WM, "v_add_u32 v5, s66, v1",
           "v_mul_u32_u24 v5, %d, v5" % PITCH, "v_lshl_add_u32 v5, v4, 3, v5", "v_lshlrev_b32 v6, 4, v4",
           "s_mul_i32 s67, s%d, 160" % S_RB, "s_add_u32 s66, s66, s67", "s_sub_u32 s66, s66, 16", "s_lshl_b32 s66, s66, 4",
           "v_and_b32 v63, 7, v2", "v_lshl_add_u32 v63, v63, 3, s66", "v_bfe_u32 v7, v2, 3, 1", "v_lshl_add_u32 v63, v7, 7, v63"]
    for t in range(4):
        pre += ["s_lshl_b32 s66, s%d, 2" % S_WN, "s_add_u32 s66, s66, %d" % t, "s_min_u32 s66, s66, 14",
                ["s_cmp_ge_u32 s66, 5", "s_cselect_b32 s67, 5, 0", "s_cselect_b32 s68, %d, %d" % (REG_K, REG_Q),
                 "s_cselect_b32 s69, 1024, 0"],
                ["s_cmp_ge_u32 s66, 10", "s_cselect_b32 s67, 10, s67", "s_cselect_b32 s68, %d, s68" % REG_V,
                 "s_cselect_b32 s69, 2048, s69"],
                "s_sub_u32 s66, s66, s67", "s_lshl_b32 s67, s66, 5", "s_add_u32 s67, s67, s68",
                "v_add_u32 v%d, s67, v5" % (21 + t),
                "s_lshl_b32 s66, s66, 6", "s_add_u32 s66, s66, s69", "s_add_u32 s66, s66, %d" % CSL,
                "v_add_u32 v%d, s66, v6" % (52 + t)]
    pre += ["v_and_b32 v1, 15, v2", "v_lshrrev_b32 v26, 4, v2", "v_lshlrev_b32 v6, 2, v26", "v_sub_u32 v6, v1, v6"]
    for T in range(2):
        for r in range(4):
            pre += ["v_add_u32 v7, %d, v6" % (16 - 16 * T - r), "v_alignbit_b32 v7, v7, v7, 1",
                    "v_cmp_ge_u32 %s, 7, v7" % sr(4 + 2 * (4 * T + r), 2)]
    pre += ["s_mul_i32 s66, s%d, %d" % (S_WM, 80 * PITCH), "s_mul_i32 s67, s%d, 40" % S_WN, "s_add_u32 s66, s66, s67",
            "v_mul_u32_u24 v5, %d, v1" % PITCH, "v_add_u32 v5, s66, v5",
            "v_lshlrev_b32 v6, 4, v26",
            "v_cmp_gt_u32 s[76:77], 3, v26", "v_cmp_gt_u32 s[74:75], 2, v26", "s_nop 1",
            "v_cndmask_b32 v6, 0, v6, s[76:77]",
            "v_add_u32 v56, v5, v6",
            "v_add_u32 v58, %d, v56" % (REG_Q + 16 * PITCH),
            "v_min_u32 v57, 191, v0", "v_mul_u32_u24 v57, %d, v57" % PITCH, "v_add_u32 v57, 160, v57",
            "v_lshrrev_b32 v60, 2, v2", "v_mul_u32_u24 v60, %d, v60" % PITCH, "v_and_b32 v6, 3, v2",
            "v_lshl_add_u32 v60, v6, 3, v60", "s_add_u32 s66, s66, %d" % REG_V, "v_add_u32 v60, s66, v60",
            "s_mul_i32 s66, s%d, 5" % S_WN, "s_mul_i32 s67, s%d, %d" % (S_WM, 5 * 2560), "s_add_u32 s67, s67, %d" % OSTG]
    for Dd in range(2):
        pre += ["v_add_u32 v6, s66, v26"] + (["v_add_u32 v6, 4, v6"] if Dd else []) + \
               ["v_lshrrev_b32 v7, 1, v6", "v_lshlrev_b32 v7, 8, v7", "v_and_b32 v6, 1, v6",
                "v_lshl_add_u32 v7, v6, 3, v7", "v_lshl_add_u32 v7, v1, 4, v7", "v_add_u32 v%d, s67, v7" % (61 + Dd)]
    pre += ["v_cmp_gt_u32 vcc, 16, v2", "v_mov_b32 v6, %d" % (REG_Q + 176 * PITCH - 4 * 2560), "s_nop 1", "v_cndmask_b32 v62, v6, v62, vcc",
            "v_mov_b32 v6, 0x%x" % BIG, "s_mov_b32 s67, 26215", "s_mov_b32 s68, %d" % (ACT_MT - 2560)]
    for nn in range(4):
        pre += ["s_lshl_b32 s66, s%d, 10" % S_W, "s_add_u32 s66, s66, %d" % (8192 * nn), "v_add_u32 v7, s66, v3",
                "v_mul_lo_u32 v5, v7, s67", "v_lshrrev_b32 v5, 26, v5", "v_mul_lo_u32 v5, v5, s68",
                "v_cmp_gt_u32 vcc, 25600, v7", "v_add_u32 v5, v5, v7", "s_nop 0", "v_cndmask_b32 v%d, v6, v5, vcc" % (48 + nn)]
    pre += ["v_cmp_gt_u32 vcc, 20, v2", "s_nop 1", "v_cndmask_b32 v27, v6, v3, vcc",
            "s_mul_i32 s69, s%d, %d" % (S_RB, 10 * ACT_MT), "s_mul_i32 s67, s%d, 2560" % S_XCD, "s_add_u32 s69, s69, s67",
            "s_mul_i32 s70, s%d, 320" % S_XCD, "s_add_u32 s70, s70, %d" % ST_CS, "s_add_u32 s71, s70, 2560", "s_add_u32 s72, s70, 5120",
            "v_mov_b32 v%d, 240" % (TT + 1)]
    RS = 36
    t17 = ["v_add_u32 v1, 256, v63",
           ("buffer_load_dwordx2 %s, v63, %s, 0 offen sc1" % (vr(RS, 2), sr(SST, 4)), "TL")]
    for i in range(1, 6):
        t17.append(("buffer_load_dwordx2 %s, v1, %s, 0 offen offset:%d sc1" % (vr(RS + 2 * i, 2), sr(SST, 4), 256 * (i - 1)), "TL"))
    for sec in range(3):
        t17.append(["s_mov_b32 m0, %d" % (CSL + 1024 * sec), "s_nop 0",
                    ("buffer_load_dwordx4 v27, %s, s%d offen sc1 lds" % (sr(SST, 4), 70 + sec), "TL")])

    def csreg2(t):
        return 240 + 4 * t
    t19 = ["ds_read_b128 %s, v%d" % (vr(csreg2(t), 4), 52 + t) for t in range(4)]
    bg, top = std_bg(pre, t17, t19)
    P = dict(nI=3, nJ=2, name="att", bdma=bdma2, adma=adma2, bg=bg, toptags=top,
             a_addr=lambda S3, q, i: (15 + q, S3 * ASLOT + i * 2048),
             b_addr=lambda slot, j: (17 + j, slot * 16384))
    k1_mainloop(a, P)
    FM = [28, 30, 40, 42]
    a("s_or_b32 s66, s%d, s%d" % (S_WM, S_RB))
    a("s_cmp_eq_u32 s66, 0")
    for r in range(4):
        a("s_cselect_b64 %s, 0, %s" % (sr(FM[r], 2), sr(4 + 2 * r, 2)))
    a("s_mov_b32 s63, s69")
    p2_early(a, True)

    stamp_e(a, 1)
    for i in range(6):
        a("v_max_f32 v%d, 0x%x, v%d" % (RS + 2 * i + 1, f2u(1e-3), RS + 2 * i + 1))
    for i in range(6):
        a("v_rcp_f32 v%d, v%d" % (RS + 2 * i + 1, RS + 2 * i + 1))
    a("s_waitcnt lgkmcnt(0)")
    W0 = FR0
    n = 0
    a("v_mov_b32 v8, 0")
    a("v_mov_b32 v9, 0")
    a("ds_write_b64 v57, v[8:9]")
    for i in range(6):
        for j in range(4):
            acc = ACC + 4 * (i * 4 + j)
            for r in range(4):
                a("v_fma_f32 v%d, -v%d, v%d, v%d" % (acc + r, RS + 2 * i, csreg2(j) + r, acc + r))
        for j in range(4):
            acc = ACC + 4 * (i * 4 + j)
            for r in range(4):
                a("v_mul_f32 v%d, v%d, v%d" % (acc + r, acc + r, RS + 2 * i + 1))
        for j in range(4):
            acc = ACC + 4 * (i * 4 + j)
            o = W0 + 2 * (n % 8)
            n += 1
            a("v_cvt_pk_bf16_f32 v%d, v%d, v%d" % (o, acc, acc + 1))
            a("v_cvt_pk_bf16_f32 v%d, v%d, v%d" % (o + 1, acc + 2, acc + 3))
            a("ds_write_b64 v%d, %s offset:%d" % (21 + j, vr(o, 2), i * 16 * PITCH))
    stamp_e(a, 2)
    a("s_waitcnt lgkmcnt(0)")
    a("s_barrier")
    stamp_e(a, 3)
    IB = ACC
    SB = FR0 + 8
    TB = FR0 + 48
    for n in range(5):
        b = IB + 20 * n
        off = n * 16 * PITCH
        a("v_add_u32 v7, %d, v58" % off)
        a("v_add_u32 v8, %d, v56" % off)
        a("v_add_u32 v9, %d, v56" % (off + 16 * PITCH))
        a("ds_read2_b64 %s, v7 offset0:0 offset1:1" % vr(b, 4))
        a("ds_read2_b64 %s, v8 offset0:0 offset1:1" % vr(b + 4, 4))
        a("ds_read2_b64 %s, v9 offset0:0 offset1:1" % vr(b + 8, 4))
    for n in range(5):
        b = IB + 20 * n
        off = n * 16 * PITCH
        for Dd in range(2):
            for e in range(2):
                a("ds_read_b64_tr_b16 %s, v60 offset:%d" % (vr(b + 12 + 4 * Dd + 2 * e, 2), off + e * 16 * PITCH + Dd * 32))
    SC = (20 ** -0.5) * LOG2E
    a("v_mov_b32 v5, 0x%x" % f2u(SC))
    a("v_mov_b32 v6, 0x%x" % f2u(-1e9))
    a("s_waitcnt lgkmcnt(0)")
    for n in range(5):
        b = IB + 20 * n
        a("v_cndmask_b32 v%d, 0, v%d, s[76:77]" % (b, b))
        a("v_cndmask_b32 v%d, 0, v%d, s[76:77]" % (b + 1, b + 1))
        a("v_cndmask_b32 v%d, 0, v%d, s[74:75]" % (b + 2, b + 2))
        a("v_cndmask_b32 v%d, 0, v%d, s[74:75]" % (b + 3, b + 3))
    a("s_nop 1")
    stamp_e(a, 4)
    for n in range(5):
        b = IB + 20 * n
        for T in range(2):
            a("v_mfma_f32_16x16x32_bf16 %s, %s, %s, 0" % (vr(SB + 8 * n + 4 * T, 4), vr(b + 4 + 4 * T, 4), vr(b, 4)))
    a("s_nop 0")
    for n in range(5):
        s = SB + 8 * n
        for q in range(8):
            a("v_mul_f32 v%d, v5, v%d" % (s + q, s + q))
        for q in range(8):
            m = sr(FM[q], 2) if (n == 0 and q < 4) else sr(4 + 2 * q, 2)
            a("v_cndmask_b32 v%d, v6, v%d, %s" % (s + q, s + q, m))
        t = TB + 2 * n
        a("v_max3_f32 v%d, v%d, v%d, v%d" % (t, s, s + 1, s + 2))
        a("v_max3_f32 v%d, v%d, v%d, v%d" % (t + 1, s + 3, s + 4, s + 5))
        a("v_max3_f32 v%d, v%d, v%d, v%d" % (t, t, s + 6, s + 7))
        a("v_max_f32 v%d, v%d, v%d" % (t, t, t + 1))
    tr = [TB + 2 * n for n in range(5)]
    tt = [TB + 2 * n + 1 for n in range(5)]
    for x in xreduce(tr, tt, "v_max_f32"):
        a(x)
    for n in range(5):
        s = SB + 8 * n
        t = TB + 2 * n
        for q in range(8):
            a("v_sub_f32 v%d, v%d, v%d" % (s + q, s + q, t))
        for q in range(8):
            a("v_exp_f32 v%d, v%d" % (s + q, s + q))
        a("s_nop 0")
        a("v_add_f32 v%d, v%d, v%d" % (t, s, s + 1))
        a("v_add_f32 v%d, v%d, v%d" % (t + 1, s + 2, s + 3))
        a("v_add_f32 v%d, v%d, v%d" % (t, t, s + 4))
        a("v_add_f32 v%d, v%d, v%d" % (t + 1, t + 1, s + 5))
        a("v_add_f32 v%d, v%d, v%d" % (t, t, s + 6))
        a("v_add_f32 v%d, v%d, v%d" % (t + 1, t + 1, s + 7))
        a("v_add_f32 v%d, v%d, v%d" % (t, t, t + 1))
    for x in xreduce(tr, tt, "v_add_f32"):
        a(x)
    for n in range(5):
        t = TB + 2 * n
        a("v_rcp_f32 v%d, v%d" % (t, t))
    a("s_nop 0")
    for n in range(5):
        s = SB + 8 * n
        t = TB + 2 * n
        b = IB + 20 * n
        for q in range(8):
            a("v_mul_f32 v%d, v%d, v%d" % (s + q, s + q, t))
        for q in range(4):
            a("v_cvt_pk_bf16_f32 v%d, v%d, v%d" % (b + q, s + 2 * q, s + 2 * q + 1))
    stamp_e(a, 5)
    a("s_nop 1")
    for n in range(5):
        b = IB + 20 * n
        for Dd in range(2):
            a("v_mfma_f32_16x16x32_bf16 %s, %s, %s, 0" % (vr(SB + 8 * n + 4 * Dd, 4), vr(b + 12 + 4 * Dd, 4), vr(b, 4)))
    a("s_nop 0")
    for n in range(5):
        s = SB + 8 * n
        b = IB + 20 * n
        for Dd in range(2):
            a("v_cvt_pk_bf16_f32 v%d, v%d, v%d" % (b + 4 + 2 * Dd, s + 4 * Dd, s + 4 * Dd + 1))
            a("v_cvt_pk_bf16_f32 v%d, v%d, v%d" % (b + 5 + 2 * Dd, s + 4 * Dd + 2, s + 4 * Dd + 3))
        a("ds_write_b64 v61, %s offset:%d" % (vr(b + 4, 2), 2560 * n))
    a("s_mov_b64 exec, 0xffff")
    for n in range(5):
        a("ds_write_b64 v62, %s offset:%d" % (vr(IB + 20 * n + 6, 2), 2560 * n))
    a("s_mov_b64 exec, -1")
    a("s_add_u32 s3, s65, %d" % OSTG)
    a("v_add_u32 v5, s3, v3")
    a("s_waitcnt lgkmcnt(0)")
    a("s_barrier")
    for nn in range(4):
        a("ds_read_b128 %s, v5 offset:%d" % (vr(ACC + 4 * nn, 4), 8192 * nn))
    for nn in range(4):
        a("s_waitcnt lgkmcnt(%d)" % (3 - nn))
        a("buffer_store_dwordx4 %s, v%d, %s, s63 offen sc1" % (vr(ACC + 4 * nn, 4), 48 + nn, sr(SACT, 4)))
    p2_early_b(a, range(3, 6))
    stamp(a, 7)
    p1_done(a, ["s_lshl_b32 s3, s%d, 2" % S_RB, "s_add_u32 s3, s3, 128"])

    a.label("L_k1_extra")
    a.vm = list(VM0)
    for x in stats_loads() + k2_prefetch():
        emit(a, x)
    a("s_waitcnt vmcnt(0)")
    for x in stats_segA():
        emit(a, x)
    a("s_waitcnt lgkmcnt(0)")
    a("s_barrier")
    for x in stats_segB():
        emit(a, x)
    a("s_waitcnt lgkmcnt(0)")
    for x in stats_segC():
        emit(a, x)
    tlb_warm_act(a)
    a("s_barrier")
    for x in stats_signal():
        emit(a, x)
    p2_early(a)
    a("v_mov_b32 v%d, 240" % (TT + 1))
    a("s_mov_b32 s66, 0")
    a("s_waitcnt vmcnt(0)")
    a("s_cmp_lg_u32 s%d, 0" % S_W)
    a("s_cbranch_scc1 L_xpoll_ok")
    a.label("L_xpoll")
    a("s_sleep 100")
    a("buffer_load_dword v%d, v%d, %s, 0 offen sc1" % (TT, TT + 1, sr(SDBG, 4)))
    a("s_waitcnt vmcnt(0)")
    a("v_readfirstlane_b32 s67, v%d" % TT)
    a("s_add_u32 s66, s66, 1")
    a("s_nop 2")
    a("s_cmp_ge_u32 s67, 256")
    a("s_cbranch_scc1 L_xpoll_ok")
    a("s_cmp_lt_u32 s66, 0x20000")
    a("s_cbranch_scc1 L_xpoll")
    a.label("L_xpoll_ok")
    gen_phase2(a)
    a.label("L_k1_end")
    a("s_endpgm")
    a.label("L_code_end")
    return (name, 256, 102 if STAMP else 80)


K2_NS = 7
K2_NST = 37


def p2_poll(a, nm, off_reg, pre=False):
    a("s_cmp_lg_u32 s20, 0")
    a("s_cbranch_scc1 L_p2ok_%s" % nm)
    a("v_cmp_gt_u32 s[58:59], 0x%x, v%d" % (BIG, off_reg))
    a("s_mov_b32 s21, 0")
    if pre:
        a("s_branch L_p2chk_%s" % nm)
    a.label("L_p2poll_%s" % nm)
    a.l.append("    buffer_load_dword v22, v%d, s[60:63], 0 offen sc1" % off_reg)
    a("s_waitcnt vmcnt(0)")
    a.label("L_p2chk_%s" % nm)
    a("v_cmp_eq_u32 vcc, 0, v22")
    a("s_add_u32 s21, s21, 1")
    a("s_nop 2")
    a("s_and_b64 vcc, vcc, s[58:59]")
    a("s_cbranch_scc0 L_p2ok_%s" % nm)
    a("s_cmp_ge_u32 s21, 0x20000")
    a("s_cbranch_scc1 L_p2ok_%s" % nm)
    a("s_sleep 2")
    a("s_cmp_lg_u64 vcc, s[58:59]")
    a("s_cbranch_scc1 L_p2poll_%s" % nm)
    a("s_sleep 30")
    a("s_branch L_p2poll_%s" % nm)
    a.label("L_p2ok_%s" % nm)


def gen_phase2(a):
    a.p2 = True
    a.label("L_phase2")
    a("s_load_dwordx2 s[4:5], s[0:1], 0")
    a("s_load_dwordx2 s[30:31], s[0:1], 56")
    p2_map(a, 24)
    a("s_cmp_eq_u32 s28, 1")
    a("s_cbranch_scc1 L_p2_end")
    a("s_mov_b32 s20, s%d" % S_W)
    a("v_lshrrev_b32 v4, 4, v2")
    a("v_lshlrev_b32 v5, 10, v4")
    a("v_bfe_u32 v6, v2, 2, 2")
    a("v_lshl_add_u32 v5, v6, 7, v5")
    a("v_and_b32 v6, 3, v2")
    a("v_lshl_add_u32 v5, v6, 3, v5")
    a("v_bfe_u32 v6, v2, 3, 2")
    a("s_lshr_b32 s34, s20, 2")
    make_srd(a, 60, 22, 23, ST_BYTES, ST_OFF)
    a("s_lshl_b32 s36, s26, 4")
    a("s_add_u32 s37, s26, s27")
    a("s_lshl_b32 s37, s37, 4")
    a("s_sub_u32 s37, s37, 1")
    a("s_lshr_b32 s38, s36, 7")
    a("s_lshr_b32 s39, s37, 7")
    a("v_mov_b32 v21, s38")
    a("v_mov_b32 v22, s39")
    a("v_cmp_gt_u32 vcc, 8, v2")
    a("v_cmp_gt_u32 s[40:41], 16, v2")
    a("v_and_b32 v25, 7, v2")
    a("v_cndmask_b32 v21, v22, v21, vcc")
    a("v_mov_b32 v22, 0x%x" % BIG)
    a("v_lshl_add_u32 v23, v21, 3, v25")
    a("v_lshlrev_b32 v23, 7, v23")
    a("v_add_u32 v23, %d, v23" % FLG)
    a("v_cndmask_b32 v23, v22, v23, s[40:41]")
    a("s_mul_i32 s36, s36, 6554")
    a("s_mul_i32 s37, s37, 6554")
    a("s_lshr_b32 s36, s36, 20")
    a("s_lshr_b32 s37, s37, 20")
    a("v_mov_b32 v21, s36")
    a("v_mov_b32 v24, s37")
    a("v_cndmask_b32 v21, v24, v21, vcc")
    a("v_add_u32 v21, 18, v21")
    a("v_lshl_add_u32 v24, v21, 3, v25")
    a("v_lshlrev_b32 v24, 7, v24")
    a("v_add_u32 v24, %d, v24" % FLG)
    a("v_cndmask_b32 v24, v22, v24, s[40:41]")
    for lane, r in ((16, 38), (17, 39)):
        a("s_and_b32 s36, s%d, 1" % r)
        a("s_add_u32 s36, s36, 16")
        a("s_lshl_b32 s36, s36, 3")
        a("s_lshr_b32 s37, s%d, 1" % r)
        a("s_add_u32 s36, s36, s37")
        a("s_lshl_b32 s36, s36, 7")
        a("s_add_u32 s36, s36, %d" % FLG)
        a("v_writelane_b32 v24, s36, %d" % lane)
    a("s_bfe_u32 s35, s20, 0x10001")
    a("s_and_b32 s36, s20, 1")
    a("s_waitcnt lgkmcnt(0)")
    make_srd(a, 40, 4, 5, 2048 * 1280)
    make_srd(a, 8, 30, 31, 2048 * 1280)
    make_srd(a, 12, 22, 23, ACT_BYTES, ACT_OFF)
    a("s_mul_i32 s37, s35, 3")
    a("s_add_u32 s37, s37, s26")
    a("s_mul_i32 s37, s37, %d" % (16 * 1280))
    a("s_lshl_b32 s38, s25, 7")
    a("s_add_u32 s37, s37, s38")
    a("s_lshl_b32 s38, s36, 1")
    a("s_add_u32 s38, s38, s34")
    a("s_lshl_b32 s38, s38, 5")
    a("s_add_u32 s37, s37, s38")
    a("v_and_b32 v26, 15, v2")
    a("v_mul_u32_u24 v26, 1280, v26")
    a("v_lshl_add_u32 v26, v4, 3, v26")
    a("v_add_u32 v26, s37, v26")
    a("s_mov_b32 s38, %d" % (16 * 1280))
    a("s_mov_b32 s39, %d" % (32 * 1280))
    a("buffer_load_dwordx2 v[28:29], v26, s[40:43], 0 offen")
    a("buffer_load_dwordx2 v[30:31], v26, s[40:43], s38 offen")
    a("buffer_load_dwordx2 v[32:33], v26, s[40:43], s39 offen")
    a("s_add_u32 s37, s26, s20")
    a("s_mul_i32 s37, s37, %d" % ACT_MT)
    a("v_add_u32 v10, s37, v3")
    a("s_mov_b32 s16, %d" % (20 * 1024))
    a("s_mov_b32 s17, %d" % (6 * 64 * 1280))
    a("s_lshl_b32 s18, s20, 11")
    a("s_lshl_b32 s19, s20, 10")
    a("s_mul_i32 s37, s35, 6144")
    a("s_lshl_b32 s29, s34, 10")
    a("s_add_u32 s37, s37, s29")
    a("v_add_u32 v12, s37, v3")
    a("v_add_u32 v13, 0x10000, v12")
    a("s_lshl_b32 s29, s34, 12")
    a("s_add_u32 s29, s29, %d" % P2_B)
    for jj in range(2):
        a("s_lshl_b32 s37, s36, 1")
        a("s_add_u32 s37, s37, %d" % jj)
        a("v_xor_b32 v%d, s37, v6" % (15 + jj))
        a("v_lshl_add_u32 v%d, v%d, 5, v5" % (15 + jj, 15 + jj))
        a("v_add_u32 v%d, s29, v%d" % (15 + jj, 15 + jj))
    AC = 64
    FRB = 96
    NS = K2_NS
    p2_poll(a, "f", 23)
    a("s_barrier")
    stamp(a, 1)

    def read_ops(st):
        p = st % 2
        ops = []
        for jj in range(2):
            for e in range(2):
                ops.append("ds_read_b64_tr_b16 %s, v%d offset:%d" % (vr(FRB + 20 * p + 12 + 4 * jj + 2 * e, 2), 15 + jj, (st % NS) * 8192 + e * 512))
        for i in range(3):
            off = (st % NS) * 12288 + i * 2048
            ops.append("ds_read_b128 %s, v%d offset:%d" % (vr(FRB + 20 * p + 4 * i, 4), 12 + (off >> 16), off & 0xffff))
        return ops

    def body(loader):
        a.vm = []
        tag = "l" if loader else "n"

        def dma_ops(st, doB=True):
            ops = []
            if loader:
                if st == 27:
                    ops.append(["s_mov_b32 s16, 0"])
                ops.append(["s_add_u32 m0, s18, 0x%x" % ((st % NS) * 12288)])
                ops.append([("buffer_load_dwordx4 v10, s[12:15], s16 offen lds", "S%d" % st)])
                ops.append([("buffer_load_dwordx4 v10, s[12:15], s16 offen offset:1024 lds", "S%d" % st), "s_add_u32 s16, s16, 2048"])
            if doB:
                srd = SPF1 if st < 27 else SPF2
                if st == 27:
                    ops.append(["s_mov_b32 s17, 0"])
                ops.append(["s_add_u32 m0, s19, 0x%x" % (P2_B + (st % NS) * 8192)])
                ops.append([("buffer_load_dwordx4 v%d, %s, s17 offen lds" % (P2V, sr(srd, 4)), "S%d" % st), "s_add_u32 s17, s17, %d" % (64 * 1280)])
            return ops
        for st in range(NS):
            for o in dma_ops(st, st >= 6):
                emit(a, o)
                if isinstance(o[0], str) and o[0].startswith("s_add_u32 m0"):
                    a("s_nop 0")
        n = a.vmwait({"S0"})
        a("s_waitcnt vmcnt(%d)" % (n if n is not None else 63))
        a("s_barrier")
        stamp(a, 2)
        for x in read_ops(0):
            a(x)
        for it in range(K2_NST):
            if it in (10, 20, 30):
                stamp(a, 2 + it // 10)
            p = it % 2
            n = a.vmwait({"S%d" % (it + 1)}) if it + 1 < K2_NST else None
            if it + NS == 24 and loader:
                p2_poll(a, "a" + tag, 24, True)
            if n is not None:
                a("s_waitcnt vmcnt(%d) lgkmcnt(0)" % n)
            else:
                a("s_waitcnt lgkmcnt(0)")
            a("s_barrier")
            if it + NS == 20 and loader:
                a("v_mov_b32 v22, 0")
                a("buffer_load_dword v22, v24, s[60:63], 0 offen sc1", "P2P")
            fillers = dma_ops(it + NS) if it + NS < K2_NST else []
            rd = read_ops(it + 1) if it + 1 < K2_NST else []
            gaps = [[] for _ in range(6)]
            for q, o in enumerate(fillers):
                gaps[min(q, 5)].append(o)
                if q >= 5 and isinstance(o[0], str) and o[0].startswith("s_add_u32 m0"):
                    gaps[5].append("s_nop 0")
            for q, x in enumerate(rd):
                gaps[min(q, 5)].append(x)
            k = 0
            for i in range(3):
                for jj in range(2):
                    acc = AC + 4 * (2 * i + jj)
                    c = "0" if it == 0 else vr(acc, 4)
                    a("v_mfma_f32_16x16x32_bf16 %s, %s, %s, %s" % (vr(acc, 4), vr(FRB + 20 * p + 12 + 4 * jj, 4), vr(FRB + 20 * p + 4 * i, 4), c))
                    emit(a, gaps[k])
                    k += 1
    a("s_cmp_lt_u32 s20, s27")
    a("s_cbranch_scc0 L_k2_nl")
    body(True)
    a("s_branch L_k2_epi")
    a.label("L_k2_nl")
    body(False)
    a.label("L_k2_epi")
    stamp(a, 6)
    a("s_mul_i32 s37, s20, 3072")
    a("v_add_u32 v12, s37, v3")
    a("s_xor_b32 s37, s20, 4")
    a("s_mul_i32 s37, s37, 3072")
    a("v_add_u32 v13, s37, v3")
    a("s_nop 4")
    a("s_cmp_eq_u32 s34, 0")
    a("s_cbranch_scc0 L_k2_x1")
    for kq in range(2):
        for i in range(3):
            a("ds_write_b128 v12, %s offset:%d" % (vr(AC + 4 * (2 * i + 1 - kq), 4), 1024 * i))
        for i in range(3):
            for r in range(4):
                a("v_mov_b32 v%d, v%d" % (FRB + 4 * i + r, AC + 4 * (2 * i + kq) + r))
        if kq == 0:
            a("s_branch L_k2_x2")
            a.label("L_k2_x1")
    a.label("L_k2_x2")
    a("s_waitcnt lgkmcnt(0)")
    a("s_barrier")
    for i in range(3):
        a("ds_read_b128 %s, v13 offset:%d" % (vr(AC + 4 * i, 4), 1024 * i))
    a("s_mov_b32 s37, 0xffff0000")
    a("s_waitcnt vmcnt(0) lgkmcnt(0)")
    for i in range(3):
        for r in range(4):
            a("v_add_f32 v%d, v%d, v%d" % (FRB + 4 * i + r, FRB + 4 * i + r, AC + 4 * i + r))
        for d in range(2):
            a("v_lshlrev_b32 v%d, 16, v%d" % (AC + 4 * i, 28 + 2 * i + d))
            a("v_and_b32 v%d, s37, v%d" % (AC + 4 * i + 1, 28 + 2 * i + d))
            a("v_add_f32 v%d, v%d, v%d" % (FRB + 4 * i + 2 * d, FRB + 4 * i + 2 * d, AC + 4 * i))
            a("v_add_f32 v%d, v%d, v%d" % (FRB + 4 * i + 2 * d + 1, FRB + 4 * i + 2 * d + 1, AC + 4 * i + 1))
        for d in range(2):
            a("v_cvt_pk_bf16_f32 v%d, v%d, v%d" % (28 + 2 * i + d, FRB + 4 * i + 2 * d, FRB + 4 * i + 2 * d + 1))
    a("buffer_store_dwordx2 v[28:29], v26, s[8:11], 0 offen")
    a("buffer_store_dwordx2 v[30:31], v26, s[8:11], s38 offen")
    a("s_sub_u32 s37, s27, s35")
    a("s_cmp_eq_u32 s37, 4")
    a("s_cbranch_scc1 L_k2_fl")
    a("buffer_store_dwordx2 v[32:33], v26, s[8:11], s39 offen")
    a.label("L_k2_fl")
    a.label("L_p2_end")
    if STAMP:
        a("s_waitcnt vmcnt(0)")
        stamp_dump(a, 2, "L_sd_end")


def main():
    a = Asm()
    hdr = open("cdna_kernels/%s.s.ref" % NAME).read().splitlines()
    for l in hdr:
        if l.startswith(";") and "@launch" not in l:
            a.raw(l)
    if "--list" in sys.argv:
        a.raw("; @launch kernel=%s_kernel grid=(256,1,1) block=(512,1,1) lds=%d" % (NAME, K1_LDS))
    else:
        a.raw("; @launch grid=(256,1,1) block=(512,1,1) lds=%d" % K1_LDS)
    a.raw('.amdgcn_target "amdgcn-amd-amdhsa--gfx950"')
    ks = [gen_k1(a)]
    for (n, v, s) in ks:
        kernel_desc(a, n, v, s)
    av = [x for x in sys.argv[1:] if x.endswith(".s")]
    out = av[0] if av else "cdna_kernels/%s.s" % NAME
    open(out, "w").write(a.text())


main()
```

```python
import sys, struct, re

NAME = "parallel_sum__sliding_local_dilated__geglu_ffn__prompt"
ST_OFF = 0
ST_CS = 256 * 128
FLG = 65536
ST_BYTES = FLG + 256 * 128
ACT_OFF = 4 << 20
ACT_MT = 75 * 1024
ACT_BYTES = 128 * ACT_MT
BIG = 0x40000000
LOG2E = 1.4426950408889634
STAMP = "--stamp" in sys.argv
STAMP_OFF = 32 << 20
MF = 32 if "--mf32" in sys.argv else 16
ROT = 0 if "--norot" in sys.argv else 1
RP = int(sys.argv[sys.argv.index("--rp") + 1]) if "--rp" in sys.argv else 5


def f2u(x):
    return struct.unpack("<I", struct.pack("<f", x))[0]


class Asm:
    def __init__(self):
        self.l = []
        self.vm = []

    def __call__(self, s, tag=None):
        m = re.match(r"s_cselect_b32 (s\d+), (\d+|0x[0-9a-f]+), (\d+|0x[0-9a-f]+)$", s)
        if m and int(m.group(2), 0) > 64 and int(m.group(3), 0) > 64:
            self.l.append("    s_mov_b32 %s, %s" % (m.group(1), m.group(3)))
            s = "s_cselect_b32 %s, %s, %s" % (m.group(1), m.group(2), m.group(1))
        self.l.append("    " + s)
        if s.startswith("buffer_") or s.startswith("global_"):
            kind = "D" if s.endswith(" lds") else ("L" if ("_load" in s or ("atomic" in s and " sc0" in s)) else "S")
            self.vm.append((tag, kind))

    def vmwait(self, tags):
        best = None
        for kind in "DLS":
            idx = [i for i, (t, k) in enumerate(self.vm) if t in tags and k == kind]
            if not idx:
                continue
            if kind == "S":
                n = sum(1 for (t, k) in self.vm[max(idx) + 1:] if k == "D")
            else:
                n = sum(1 for (t, k) in self.vm[max(idx) + 1:] if k == kind)
            best = n if best is None else min(best, n)
        return None if best is None else min(63, best)

    def label(self, s):
        self.l.append(s + ":")

    def raw(self, s):
        self.l.append(s)

    def text(self):
        return "\n".join(self.l) + "\n"


def vr(a, n):
    return "v[%d:%d]" % (a, a + n - 1)


def sr(a, n):
    return "s[%d:%d]" % (a, a + n - 1)


def kernel_header(a, name):
    a.raw(".text")
    a.raw(".globl %s" % name)
    a.raw(".p2align 8")
    a.raw(".type %s,@function" % name)
    a.label(name)


def kernel_desc(a, name, vgpr, sgpr):
    a.raw('.section .rodata,"a"')
    a.raw(".p2align 6")
    a.raw(".amdhsa_kernel %s" % name)
    a.raw("  .amdhsa_next_free_vgpr %d" % vgpr)
    a.raw("  .amdhsa_next_free_sgpr %d" % sgpr)
    a.raw("  .amdhsa_accum_offset %d" % ((vgpr + 3) // 4 * 4))
    a.raw("  .amdhsa_group_segment_fixed_size 0")
    a.raw("  .amdhsa_kernarg_size 80")
    a.raw("  .amdhsa_user_sgpr_count 2")
    a.raw("  .amdhsa_user_sgpr_kernarg_segment_ptr 1")
    a.raw("  .amdhsa_system_sgpr_workgroup_id_x 1")
    a.raw(".end_amdhsa_kernel")


def stamp_e(a, idx):
    if STAMP and "--epi" in sys.argv:
        a("s_memtime %s" % sr(80 + 2 * idx, 2))


def stamp(a, idx):
    if STAMP and not ("--epi" in sys.argv and idx in (1, 2, 3, 4, 5) and not getattr(a, "p2", False)):
        a("s_memtime %s" % sr(80 + 2 * idx, 2))


def stamp_start(a):
    if STAMP:
        a("s_memtime s[80:81]")
        a("s_memrealtime s[98:99]")


def stamp_flush(a, wave_sgpr, wslo, wshi, kidx, endlabel):
    if not STAMP:
        return
    stamp(a, 7)
    a("s_waitcnt vmcnt(0)")
    a("s_memtime s[96:97]")
    a("s_memrealtime s[100:101]")
    a("s_waitcnt lgkmcnt(0)")
    a("s_cmp_lg_u32 s%d, 0" % wave_sgpr)
    a("s_cbranch_scc1 %s" % endlabel)
    make_srd(a, 76, wslo, wshi, 1 << 20, STAMP_OFF + kidx * 65536)
    a("s_lshl_b32 s3, s2, 6")
    a("v_mov_b32 v0, s3")
    for i in range(9):
        a("v_mov_b32 v1, s%d" % (80 + 2 * i))
        a("buffer_store_dword v1, v0, s[76:79], 0 offen offset:%d" % (4 * i))
    a("v_mov_b32 v1, s98")
    a("buffer_store_dword v1, v0, s[76:79], 0 offen offset:56")
    a("v_mov_b32 v1, s100")
    a("buffer_store_dword v1, v0, s[76:79], 0 offen offset:60")


def stamp_dump(a, kidx, lbl):
    if not STAMP:
        return
    a("s_memtime s[96:97]")
    a("s_memrealtime s[100:101]")
    a("s_waitcnt lgkmcnt(0)")
    a("s_cmp_lg_u32 s56, 0")
    a("s_cbranch_scc1 %s" % lbl)
    make_srd(a, 76, 22, 23, 1 << 20, STAMP_OFF + kidx * 65536)
    a("s_lshl_b32 s3, s2, 6")
    a("v_mov_b32 v7, s3")
    for i in range(9):
        a("v_mov_b32 v1, s%d" % (80 + 2 * i))
        a.l.append("    buffer_store_dword v1, v7, s[76:79], 0 offen offset:%d" % (4 * i))
    a("v_mov_b32 v1, s98")
    a.l.append("    buffer_store_dword v1, v7, s[76:79], 0 offen offset:56")
    a("v_mov_b32 v1, s100")
    a.l.append("    buffer_store_dword v1, v7, s[76:79], 0 offen offset:60")
    a.label(lbl)


def make_srd(a, d, lo, hi, nbytes, off=0):
    if off:
        a("s_add_u32 s%d, s%d, 0x%x" % (d, lo, off))
        a("s_addc_u32 s%d, s%d, 0" % (d + 1, hi))
    else:
        a("s_mov_b32 s%d, s%d" % (d, lo))
        a("s_mov_b32 s%d, s%d" % (d + 1, hi))
    a("s_mov_b32 s%d, 0x%x" % (d + 2, nbytes))
    a("s_mov_b32 s%d, 0x00020000" % (d + 3))


ACC = 64
FR0 = 160
PITCH = 168
REG_K = 0
REG_V = 192 * PITCH
REG_Q = 2 * 192 * PITCH
SCR = 148480
CSL = SCR + 2048
P2_B = 98304
OSTG = P2_B + 3 * 8192
K1_LDS = P2_B + 7 * 8192
SX, SW, SACT, SST, SCS, SPF1, SPF2, SDBG = 24, 28, 32, 36, 40, 44, 48, 52
S_W, S_XCD, S_SLOT, S_WM, S_WN, S_FB, S_RB = 56, 57, 58, 59, 60, 61, 62
S_SOA, S_SOB = 64, 65
V_RLO, V_CLO = 30, 31
V_RSO, V_CSO, V_ATO, V_SCW, V_SCR = 32, 33, 34, 35, 29
RL = 36
CL = 44
SEL = 240
CD = 244
TT = 248


def k2_prefetch():
    D = TT + 4
    return [["s_lshl_b32 s66, s2, 3", "s_add_u32 s66, s66, s%d" % S_W, "s_lshl_b32 s66, s66, 10",
             ("buffer_load_dwordx4 %s, v3, %s, s66 offen" % (vr(D, 4), sr(SPF1, 4)), "PF"),
             ("buffer_load_dwordx4 %s, v3, %s, s66 offen" % (vr(D, 4), sr(SPF2, 4)), "PF"),
             "s_add_u32 s66, s66, 0x200000",
             ("buffer_load_dwordx4 %s, v3, %s, s66 offen" % (vr(D, 4), sr(SPF1, 4)), "PF")]]


def tlb_warm(a):
    tab = [(4, 2048 * 1280), (6, 640 * 3840), (12, 640 * 3456), (14, 640 * 3456), (16, 1728 * 1280), (8, 640 * 1280),
           (18, 2048 * 1280)]
    a("s_cmp_eq_u32 s%d, 7" % S_W)
    a("s_cbranch_scc1 L_tw7")
    make_srd(a, SCS, tab[0][0], tab[0][0] + 1, tab[0][1])
    for w in range(1, 7):
        a("s_cmp_eq_u32 s%d, %d" % (S_W, w))
        a("s_cselect_b32 s%d, s%d, s%d" % (SCS, tab[w][0], SCS))
        a("s_cselect_b32 s%d, s%d, s%d" % (SCS + 1, tab[w][0] + 1, SCS + 1))
        a("s_cselect_b32 s%d, %d, s%d" % (SCS + 2, tab[w][1], SCS + 2))
    a("v_lshlrev_b32 v1, 16, v2")
    a("buffer_load_dword v%d, v1, %s, 0 offen" % (TT + 7, sr(SCS, 4)), "TW")
    a("s_branch L_tw_done")
    a.label("L_tw7")
    make_srd(a, SCS, 22, 23, ACT_OFF + ACT_BYTES)
    a("s_and_b32 s66, s2, 1")
    a("s_lshl_b32 s66, s66, 6")
    a("v_add_u32 v1, s66, v2")
    a("v_mul_u32_u24 v1, %d, v1" % ACT_MT)
    a("v_add_u32 v1, %d, v1" % (ACT_OFF + 74 * 1024))
    a("v_cmp_eq_u32 vcc, 0, v2")
    a("v_mov_b32 v%d, 61440" % (TT + 7))
    a("s_nop 0")
    a("v_cndmask_b32 v1, v1, v%d, vcc" % (TT + 7))
    a.l.append("    buffer_load_dword v%d, v1, %s, 0 offen" % (TT + 7, sr(SCS, 4)))
    a.label("L_tw_done")


def tlb_warm_act(a):
    if "--act" not in sys.argv:
        a("s_waitcnt vmcnt(0)")
        return
    make_srd(a, SCS, 22, 23, ACT_OFF + ACT_BYTES)
    a("v_mul_u32_u24 v1, 0x5000, v0")
    a("v_add_u32 v1, %d, v1" % ACT_OFF)
    a("buffer_store_dword v1, v1, %s, 0 offen sc1" % sr(SCS, 4))
    a("s_waitcnt vmcnt(0)")


def l2_warm(a):
    D = TT + 6
    a("s_lshr_b32 s66, s2, 3")
    a("s_lshl_b32 s66, s66, 3")
    a("s_add_u32 s66, s66, s%d" % S_W)
    a("v_mul_u32_u24 v5, 43, v2")
    a("v_lshrrev_b32 v5, 8, v5")
    a("v_mul_u32_u24 v6, 6, v5")
    a("v_sub_u32 v6, v2, v6")
    a("v_lshlrev_b32 v5, 8, v5")
    a("v_add_u32 v5, s66, v5")
    a("v_mov_b32 v9, 0x%x" % BIG)
    a("v_cmp_gt_u32 vcc, 18, v2")
    a("v_cmp_gt_u32 s[68:69], 3, v6")
    a("v_mul_u32_u24 v7, 3840, v5")
    a("v_lshrrev_b32 v8, 1, v6")
    a("v_mul_u32_u24 v8, 1280, v8")
    a("v_and_b32 v1, 1, v6")
    a("v_lshl_add_u32 v8, v1, 7, v8")
    a("v_add_u32 v7, v7, v8")
    a("v_cndmask_b32 v7, v9, v7, vcc")
    a("s_mul_i32 s67, s78, 160")
    a("s_and_b32 s67, s67, 0xffffff80")
    make_srd(a, SCS, 6, 7, 640 * 3840)
    a("buffer_load_dword v%d, v7, %s, s67 offen" % (D, sr(SCS, 4)), "LW")
    a("s_and_b64 vcc, vcc, s[68:69]")
    a("v_mul_u32_u24 v7, 3456, v5")
    a("v_lshl_add_u32 v7, v6, 7, v7")
    a("s_mul_i32 s67, s78, 384")
    a("v_cndmask_b32 v7, v9, v7, vcc")
    make_srd(a, SCS, 12, 13, 640 * 3456)
    a("buffer_load_dword v%d, v7, %s, s67 offen" % (D, sr(SCS, 4)), "LW")
    make_srd(a, SCS, 14, 15, 640 * 3456)
    a("buffer_load_dword v%d, v7, %s, s67 offen" % (D, sr(SCS, 4)), "LW")


def p2_map(a, d):
    a("s_and_b32 s%d, s2, 7" % d)
    a("s_lshr_b32 s%d, s2, 3" % (d + 1))
    a("s_cmp_ge_u32 s%d, 2" % d)
    a("s_cselect_b32 s%d, 12, 31" % (d + 2))
    a("s_cselect_b32 s%d, 12, 99" % (d + 3))
    a("s_cmp_eq_u32 s%d, s%d" % (d + 1, d + 3))
    a("s_cselect_b32 s%d, 1, 0" % (d + 4))
    a("s_cmp_eq_u32 s%d, 31" % (d + 1))
    a("s_cselect_b32 s%d, s%d, s%d" % (d + 1, d + 2, d + 1))
    a("s_min_u32 s%d, s%d, 2" % (d + 2, d))
    a("s_mul_i32 s%d, s%d, 31" % (d, d))
    a("s_add_u32 s%d, s%d, s%d" % (d, d, d + 2))
    a("s_add_u32 s%d, s%d, s%d" % (d + 1, d, d + 1))
    a("s_mul_i32 s%d, s%d, 205" % (d, d + 1))
    a("s_lshr_b32 s%d, s%d, 11" % (d, d))
    a("s_mul_i32 s%d, s%d, 10" % (d + 2, d))
    a("s_sub_u32 s%d, s%d, s%d" % (d + 1, d + 1, d + 2))
    a("s_mul_i32 s%d, s%d, 6" % (d + 2, d))
    a("s_mul_i32 s%d, s%d, 5" % (d + 3, d))
    a("s_add_u32 s%d, s%d, 3" % (d + 3, d + 3))
    a("s_cmp_lt_u32 s%d, 3" % d)
    a("s_cselect_b32 s%d, s%d, s%d" % (d + 2, d + 2, d + 3))
    a("s_cselect_b32 s%d, 6, 5" % (d + 3))


P2V = 20


def p2_early(a, split=False):
    p2_map(a, 64)
    a("v_bfe_u32 v17, v2, 1, 2")
    a("v_bfe_u32 v18, v2, 4, 1")
    a("v_xor_b32 v17, v17, v18")
    a("v_and_b32 v18, 1, v2")
    a("v_lshlrev_b32 v17, 5, v17")
    a("v_lshl_add_u32 v17, v18, 4, v17")
    a("s_and_b32 s3, s%d, 1" % S_W)
    a("s_lshl_b32 s3, s3, 6")
    a("v_xor_b32 v17, s3, v17")
    a("v_lshrrev_b32 v18, 3, v2")
    a("v_mul_u32_u24 v18, 1280, v18")
    a("s_mul_i32 s3, s%d, %d" % (S_W, 8 * 1280))
    a("s_lshl_b32 s64, s65, 7")
    a("s_add_u32 s3, s3, s64")
    a("v_add3_u32 v%d, v17, v18, s3" % P2V)
    a("s_lshl_b32 s65, s%d, 10" % S_W)
    a("s_mov_b32 s64, 0")
    p2_early_b(a, range(3 if split else 6))


def p2_early_b(a, sts):
    for st in sts:
        a("s_add_u32 m0, s65, 0x%x" % (P2_B + st * 8192))
        a("s_nop 0")
        a("buffer_load_dwordx4 v%d, %s, s64 offen lds" % (P2V, sr(SPF1, 4)))
        a("s_add_u32 s64, s64, %d" % (64 * 1280))


def p1_done(a, cnt_sgpr_expr):
    a("s_lshl_b32 s3, s2, 7")
    a("s_add_u32 s3, s3, %d" % FLG)
    a("v_mov_b32 v1, 0x%x" % BIG)
    a("v_mov_b32 v5, s3")
    a("v_cmp_eq_u32 vcc, 0, v0")
    a("v_mov_b32 v6, 1")
    a("s_waitcnt vmcnt(0)")
    a("s_barrier")
    a("v_cndmask_b32 v1, v1, v5, vcc")
    a("buffer_store_dword v6, v1, %s, 0 offen sc1" % sr(SST, 4))
    stamp_dump(a, 1, "L_sd_%d" % len(a.l))
    a("s_branch L_phase2")


def stats_setup(a):
    a("s_lshl_b32 s66, s2, 3")
    a("s_add_u32 s66, s66, s%d" % S_W)
    a("s_mul_i32 s67, s66, 1280")
    a("v_mov_b32 v9, 0x%x" % BIG)
    a("v_add_u32 v1, s67, v3")
    a("v_cmp_gt_u32 vcc, 40, v2")
    a("s_lshl_b32 s67, s2, 7")
    a("v_lshl_add_u32 v5, v2, 3, s67")
    a("v_cndmask_b32 v%d, v9, v1, vcc" % V_RLO)
    a("v_cmp_gt_u32 vcc, 16, v0")
    a("s_cmp_ge_u32 s%d, 6" % S_SLOT)
    a("s_cselect_b32 s68, 2, 1")
    a("v_cndmask_b32 v%d, v9, v5, vcc" % V_RSO)
    a("s_cselect_b32 s67, 6, 0")
    a("s_sub_u32 s66, s%d, s67" % S_SLOT)
    a("s_mul_i32 s69, s%d, 6" % S_XCD)
    a("s_add_u32 s69, s69, s66")
    a("s_sub_u32 s66, s%d, 12" % S_SLOT)
    a("s_lshl_b32 s66, s66, 3")
    a("s_add_u32 s66, s66, s%d" % S_XCD)
    a("s_mov_b32 s73, 0")
    a("s_cmp_ge_u32 s66, 60")
    a("s_cselect_b32 s73, 1, s73")
    a("s_cselect_b32 s75, 12, 0")
    a("s_sub_u32 s74, s66, s75")
    a("s_cmp_ge_u32 s66, 66")
    a("s_cselect_b32 s73, 2, s73")
    a("s_cselect_b32 s75, 6, 0")
    a("s_sub_u32 s74, s74, s75")
    a("s_cmp_ge_u32 s%d, 12" % S_SLOT)
    a("s_cselect_b32 s68, s73, s68")
    a("s_cselect_b32 s69, s74, s69")
    a("s_cmp_ge_u32 s%d, 21" % S_SLOT)
    a("s_cselect_b32 s71, 1, 0")
    a("s_cmp_eq_u32 s68, 1")
    a("s_cselect_b32 s%d, s12, s14" % SCS)
    a("s_cselect_b32 s%d, s13, s15" % (SCS + 1))
    a("s_cselect_b32 s72, 1920, 3648")
    a("s_cmp_eq_u32 s68, 0")
    a("s_cselect_b32 s%d, s6, s%d" % (SCS, SCS))
    a("s_cselect_b32 s%d, s7, s%d" % (SCS + 1, SCS + 1))
    a("s_cselect_b32 s72, 0, s72")
    a("s_cselect_b32 s73, 3840, 3456")
    a("s_mul_i32 s%d, s73, 640" % (SCS + 2))
    a("s_mov_b32 s%d, 0x00020000" % (SCS + 3))
    a("v_lshrrev_b32 v1, 4, v2")
    a("v_bfe_u32 v5, v2, 2, 2")
    a("v_lshl_add_u32 v1, v1, 2, v5")
    a("s_lshl_b32 s75, s%d, 4" % S_W)
    a("v_add_u32 v1, s75, v1")
    a("v_mul_lo_u32 v1, v1, s73")
    a("v_and_b32 v5, 3, v2")
    a("v_lshl_add_u32 v1, v5, 4, v1")
    a("s_lshl_b32 s74, s69, 6")
    a("s_cmp_eq_u32 s71, 1")
    a("s_cselect_b32 s74, 0x%x, s74" % BIG)
    a("v_add_u32 v%d, s74, v1" % V_CLO)
    a("s_lshl_b32 s77, s73, 7")
    a("s_lshl_b32 s75, s69, 5")
    a("s_add_u32 s74, s72, s75")
    a("s_lshl_b32 s74, s74, 2")
    a("s_add_u32 s74, s74, %d" % ST_CS)
    a("s_or_b32 s75, s71, s%d" % S_W)
    a("s_cmp_eq_u32 s75, 0")
    a("s_cselect_b32 s74, s74, 0x%x" % BIG)
    a("v_lshl_add_u32 v1, v2, 2, s74")
    a("v_cmp_gt_u32 vcc, 32, v2")
    a("v_and_b32 v5, 15, v2")
    a("v_lshlrev_b32 v6, 4, v5")
    a("v_cndmask_b32 v%d, v9, v1, vcc" % V_CSO)
    a("v_cmp_gt_u32 vcc, 8, v5")
    a("s_lshl_b32 s74, s%d, 7" % S_W)
    a("s_add_u32 s74, s74, %d" % SCR)
    a("v_add_u32 v7, s74, v6")
    a("v_add_u32 v6, %d, v6" % (SCR + 1024))
    a("v_cndmask_b32 v%d, v6, v7, vcc" % V_SCW)
    for d in range(4):
        a("v_cmp_eq_u32 vcc, %d, v5" % (2 * d))
        a("v_mov_b32 v6, 0x3f80")
        a("v_cmp_eq_u32 s[68:69], %d, v5" % (2 * d + 1))
        a("v_cndmask_b32 v%d, 0, v6, vcc" % (SEL + d))
        a("v_mov_b32 v6, 0x3f800000")
        a("v_cndmask_b32 v%d, v%d, v6, s[68:69]" % (SEL + d, SEL + d))
    a("v_and_b32 v5, 7, v2")
    a("v_bfe_u32 v6, v2, 3, 2")
    a("v_lshlrev_b32 v6, 2, v6")
    a("v_lshl_add_u32 v5, v5, 4, v6")
    a("v_cmp_eq_u32 vcc, 0, v0")
    a("v_add_u32 v%d, %d, v5" % (V_SCR, SCR))
    a("s_lshl_b32 s76, s77, 1")
    a("v_mov_b32 v5, 240")
    a("v_cndmask_b32 v%d, v9, v5, vcc" % V_ATO)
    a("s_add_u32 s75, s76, s77")
    a("s_lshl_b32 s74, s77, 2")


def stats_loads():
    o = [("buffer_load_dwordx4 %s, v%d, %s, 0 offen" % (vr(RL, 4), V_RLO, sr(SX, 4)), "SL"),
         ("buffer_load_dwordx4 %s, v%d, %s, 0 offen offset:640" % (vr(RL + 4, 4), V_RLO, sr(SX, 4)), "SL")]
    for i in (1, 2, 0, 3, 4):
        so = ["0", "s77", "s76", "s75", "s74"][i]
        o.append(("buffer_load_dwordx4 %s, v%d, %s, %s offen" % (vr(CL + 4 * i, 4), V_CLO, sr(SCS, 4), so), "SL"))
    return o


def xreduce(regs, tmps, op="v_add_f32", swaps=("v_permlane16_swap_b32", "v_permlane32_swap_b32")):
    o = []
    for swp in swaps:
        for v, t in zip(regs, tmps):
            o.append("v_mov_b32 v%d, v%d" % (t, v))
        o.append("s_nop 1")
        for v, t in zip(regs, tmps):
            o.append("%s v%d, v%d" % (swp, v, t))
        o.append("s_nop 1")
        for v, t in zip(regs, tmps):
            o.append("%s v%d, v%d, v%d" % (op, v, v, t))
    return o


def stats_segA():
    o = []
    T = TT
    for i in range(5):
        o.append("v_mfma_f32_16x16x32_bf16 %s, %s, %s, %s" % (vr(CD, 4), vr(CL + 4 * i, 4), vr(SEL, 4), "0" if i == 0 else vr(CD, 4)))
    o.append("v_mov_b32 v%d, 0x3f803f80" % (T + 4))
    for d in range(8):
        c = "0" if d < 2 else "v%d" % (T + d % 2)
        o.append("v_dot2_f32_bf16 v%d, v%d, v%d, %s" % (T + d % 2, RL + d, T + 4, c))
        c = "0" if d < 2 else "v%d" % (T + 2 + d % 2)
        o.append("v_dot2_f32_bf16 v%d, v%d, v%d, %s" % (T + 2 + d % 2, RL + d, RL + d, c))
    o.append("s_nop 2")
    o.append("v_add_f32 v%d, v%d, v%d" % (T, T, T + 1))
    o.append("v_add_f32 v%d, v%d, v%d" % (T + 2, T + 2, T + 3))
    for sh in (8, 4, 2, 1):
        o.append("s_nop 1")
        for v in (T, T + 2):
            o.append("v_add_f32_dpp v%d, v%d, v%d row_ror:%d row_mask:0xf bank_mask:0xf" % (v, v, v, sh))
    o += xreduce([T, T + 2, CD, CD + 1, CD + 2, CD + 3], [T + 1, T + 3, CL, CL + 1, CL + 2, CL + 3])
    o.append("ds_write_b128 v%d, %s" % (V_SCW, vr(CD, 4)))
    o.append("v_mul_f32 v%d, 0x%x, v%d" % (T, f2u(1.0 / 640.0), T))
    o.append("v_mul_f32 v%d, 0x%x, v%d" % (T + 2, f2u(1.0 / 640.0), T + 2))
    o.append("v_fma_f32 v%d, -v%d, v%d, v%d" % (T + 2, T, T, T + 2))
    o.append("v_max_f32 v%d, 0, v%d" % (T + 2, T + 2))
    o.append("v_cvt_pk_bf16_f32 v%d, v%d, v%d" % (T + 1, T, T + 2))
    o.append("v_lshlrev_b32 v%d, 16, v%d" % (T + 4, T + 1))
    o.append("v_and_b32 v%d, 0xffff0000, v%d" % (T + 5, T + 1))
    o.append("v_add_f32 v%d, 0x%x, v%d" % (T + 5, f2u(1e-5), T + 5))
    o.append("v_cvt_pk_bf16_f32 v%d, v%d, v%d" % (T + 5, T + 5, T + 5))
    o.append("v_lshlrev_b32 v%d, 16, v%d" % (T + 5, T + 5))
    o.append("v_sqrt_f32 v%d, v%d" % (T + 5, T + 5))
    o.append("s_nop 0")
    o.append("v_cvt_pk_bf16_f32 v%d, v%d, v%d" % (T + 5, T + 5, T + 5))
    o.append("v_lshlrev_b32 v%d, 16, v%d" % (T + 5, T + 5))
    o.append(["s_lshl_b32 s66, s%d, 3" % S_W, "s_add_u32 s66, s66, %d" % (SCR + 1536), "v_mov_b32 v%d, s66" % T])
    o.append("ds_write_b64 v%d, %s offset:%d" % (T, vr(T + 4, 2), 0))
    return o


def stats_segB():
    return ["ds_read_b32 v%d, v%d offset:%d" % (CL + w, V_SCR, 128 * w) for w in range(8)] + \
           ["v_and_b32 v%d, 7, v2" % TT, "v_lshlrev_b32 v%d, 3, v%d" % (TT, TT), "v_add_u32 v%d, %d, v%d" % (TT, SCR + 1536, TT),
            "ds_read_b64 %s, v%d" % (vr(TT + 2, 2), TT)]


def stats_segC():
    o = []
    for (x, y) in ((0, 1), (2, 3), (4, 5), (6, 7), (0, 2), (4, 6), (0, 4)):
        o.append("v_add_f32 v%d, v%d, v%d" % (CL + x, CL + x, CL + y))
    o.append(("buffer_store_dword v%d, v%d, %s, 0 offen sc1" % (CL, V_CSO, sr(SST, 4)), "ST"))
    o.append(("buffer_store_dwordx2 %s, v%d, %s, 0 offen sc1" % (vr(TT + 2, 2), V_RSO, sr(SST, 4)), "ST"))
    return o


def stats_signal():
    return ["v_mov_b32 v%d, 1" % TT,
            ("buffer_atomic_add v%d, v%d, %s, 0 offen" % (TT, V_ATO, sr(SDBG, 4)), "AT")]


def emit(a, x):
    if isinstance(x, list):
        for y in x:
            emit(a, y)
    elif isinstance(x, tuple):
        a(x[0], x[1])
    else:
        a(x)


IT_SIG, IT_POLL, IT_CHK = 8, 15, 17


def k1_mainloop(a, P):
    nI, nJ = P["nI"], P["nJ"]
    NST = 20
    nA, nB = 2 * nI, 2 * nJ

    def fx(p, I, hh):
        return FR0 + 40 * p + 8 * I + 4 * hh

    def fw(p, j, hh):
        return FR0 + 40 * p + 8 * nI + 8 * j + 4 * hh

    def read_ops(stage):
        p = stage % 2
        ops = []
        if MF == 32:
            for hh in range(2):
                for j in range(nJ):
                    for e in range(2):
                        v, imm = P["b_addr"](stage % 4, j)
                        ops.append("ds_read_b64_tr_b16 %s, v%d offset:%d" % (vr(fw(p, j, hh) + 2 * e, 2), v, imm + hh * 2048 + e * 512))
                for I in range(nI):
                    v, imm = P["a_addr"]((stage // 2) % 3, 2 * (stage % 2) + hh, I)
                    ops.append("ds_read_b128 %s, v%d offset:%d" % (vr(fx(p, I, hh), 4), v, imm))
        else:
            for j in range(nB):
                for e in range(2):
                    v, imm = P["b_addr"](stage % 4, j)
                    ops.append("ds_read_b64_tr_b16 %s, v%d offset:%d" % (vr(FR0 + 40 * p + 4 * nA + 4 * j + 2 * e, 2), v, imm + e * 512))
            for i in range(nA):
                v, imm = P["a_addr"]((stage // 2) % 3, stage % 2, i)
                ops.append("ds_read_b128 %s, v%d offset:%d" % (vr(FR0 + 40 * p + 4 * i, 4), v, imm))
        return ops

    def mfmas(it):
        p = it % 2
        o = []
        if MF == 32:
            for hh in range(2):
                for I in range(nI):
                    for j in range(nJ):
                        acc = ACC + 16 * (I * nJ + j)
                        c = "0" if (it == 0 and hh == 0) else vr(acc, 16)
                        o.append("v_mfma_f32_32x32x16_bf16 %s, %s, %s, %s" % (vr(acc, 16), vr(fw(p, j, hh), 4), vr(fx(p, I, hh), 4), c))
        else:
            for i in range(nA):
                for j in range(nB):
                    acc = ACC + 4 * (i * nB + j)
                    c = "0" if it == 0 else vr(acc, 4)
                    o.append("v_mfma_f32_16x16x32_bf16 %s, %s, %s, %s" % (vr(acc, 4), vr(FR0 + 40 * p + 4 * nA + 4 * j, 4), vr(FR0 + 40 * p + 4 * i, 4), c))
        return o

    def pro(ops):
        for (m, d, tag, adv) in ops:
            a(m)
            a("s_nop 0")
            a(d, tag)
            for x in adv:
                a(x)
    B, A = P["bdma"], P["adma"]
    pro(B(0))
    pro(sum(A(0), []))
    pro(B(1))
    pro(sum(A(1), []))
    for x in stats_loads()[:3]:
        emit(a, x)
    stamp(a, 4)
    a("s_waitcnt vmcnt(%d)" % a.vmwait({"B0", "A0"}))
    a("s_barrier")
    stamp(a, 5)
    for x in read_ops(0):
        a(x)
    for it in range(NST):

        p = it % 2
        tags = set()
        if it + 1 < NST:
            tags |= {"B%d" % (it + 1), "A%d" % ((it + 1) // 2)}
        tags |= P["toptags"].get(it, set())
        n = a.vmwait(tags)
        if n is not None:
            a("s_waitcnt vmcnt(%d) lgkmcnt(0)" % n)
        else:
            a("s_waitcnt lgkmcnt(0)")
        if it == IT_CHK:
            nm = P["name"]
            a("s_mov_b32 s66, 0")
            a.label("L_poll_%s" % nm)
            a("v_readfirstlane_b32 s67, v%d" % TT)
            a("s_add_u32 s66, s66, 1")
            a("s_cmp_ge_u32 s67, 256")
            a("s_cbranch_scc1 L_pollok_%s" % nm)
            a("s_cmp_ge_u32 s66, 0x40000")
            a("s_cbranch_scc1 L_pollok_%s" % nm)
            a("s_sleep 2")
            a.l.append("    buffer_load_dword v%d, v%d, %s, 0 offen sc1" % (TT, TT + 1, sr(SDBG, 4)))
            a("s_waitcnt vmcnt(0)")
            a("s_branch L_poll_%s" % nm)
            a.label("L_pollok_%s" % nm)
        a("s_barrier")
        dm = []
        if it == 0:
            dm = B(2) + B(3) + A(2)[0]
        elif it == 1:
            dm = B(4) + B(5) + A(2)[1]
        elif it == 2:
            dm = B(6) + A(3)[0] + A(3)[1]
        else:
            if it + 4 < NST:
                dm += B(it + 4)
            S = (it - 1) // 2 + 3
            if S < 10:
                dm += A(S)[(it - 1) % 2]
        rd = read_ops(it + 1) if it + 1 < NST else []
        stream = []
        for (m, d, tag, adv) in dm:
            mid = rd.pop(0) if rd else "s_nop 0"
            stream.append([m, mid, (d, tag)] + adv)
        stream += [[x] for x in rd]
        stream += [[x] for x in P["bg"].get(it, [])]
        mf = mfmas(it)
        ngap = len(mf)
        for gi, x in enumerate(mf):
            a(x)
            k = (len(stream) + (ngap - gi) - 1) // (ngap - gi) if MF == 32 else min(len(stream), max(1, (len(stream) + (ngap - gi) - 1) // (ngap - gi)))
            for _ in range(k):
                if stream:
                    emit(a, stream.pop(0))
        for x in stream:
            emit(a, x)
    stamp(a, 6)


def adv(r, inc, tot):
    return ["s_add_u32 s%d, s%d, %d" % (r, r, inc), "s_cmp_ge_u32 s%d, %d" % (r, tot), "s_cselect_b32 s%d, 0, s%d" % (r, r)]


def split_bg(lst, its):
    n = (len(lst) + len(its) - 1) // len(its)
    return {it: lst[i * n:(i + 1) * n] for i, it in enumerate(its)}


def std_bg(pre, tail17, tail19):
    sl = stats_loads()
    bg = {0: sl[3:7]}
    bg.update(split_bg(stats_segA(), [2, 3]))
    bg[9] = k2_prefetch()
    bg[4] = stats_segB()
    bg[5] = stats_segC()
    bg[IT_SIG] = stats_signal()
    bg.update(split_bg(pre, [12, 13, 14]))
    bg[IT_POLL] = [("buffer_load_dword v%d, v%d, %s, 0 offen sc1" % (TT, TT + 1, sr(SDBG, 4)), "POLL")]
    bg[IT_CHK] = tail17
    bg[19] = tail19
    top = {2: {"SL"}, IT_SIG: {"ST"}, IT_CHK: {"POLL"}, 19: {"TL"}}
    return bg, top


def gen_k1(a):
    name = NAME + "_kernel"
    kernel_header(a, name)
    a("s_cmp_ge_u32 s2, 256")
    a("s_cbranch_scc1 L_k1_end")
    stamp_start(a)
    a("s_load_dwordx4 s[20:23], s[0:1], 64")
    a("s_load_dwordx4 s[4:7], s[0:1], 0")
    a("s_load_dwordx2 s[8:9], s[0:1], 16")
    a("s_load_dwordx4 s[12:15], s[0:1], 32")
    a("s_load_dwordx4 s[16:19], s[0:1], 48")
    a("v_lshrrev_b32 v1, 6, v0")
    a("v_and_b32 v2, 63, v0")
    a("v_readfirstlane_b32 s%d, v1" % S_W)
    a("v_lshlrev_b32 v3, 4, v2")
    a("s_getreg_b32 s78, hwreg(HW_REG_XCC_ID)")
    a("s_and_b32 s%d, s2, 7" % S_XCD)
    a("s_lshr_b32 s%d, s2, 3" % S_SLOT)
    a("s_and_b32 s78, s78, 7")
    a("s_lshl_b32 s66, s78, 5")
    a("v_mov_b32 v17, s66")
    a("v_mov_b32 v1, 0x%x" % BIG)
    a("v_cmp_eq_u32 vcc, 0, v0")
    a("v_mov_b32 v18, 1")
    a("s_lshr_b32 s%d, s%d, 2" % (S_WM, S_W))
    a("s_and_b32 s%d, s%d, 3" % (S_WN, S_W))
    a("v_cndmask_b32 v17, v1, v17, vcc")
    a("s_waitcnt lgkmcnt(0)")
    stamp(a, 1)
    make_srd(a, SDBG, 20, 21, 256)
    a.vm = []
    a("s_cmp_lg_u32 s%d, 0" % S_W)
    a("s_cbranch_scc1 L_tk_skip")
    a("buffer_atomic_add v18, v17, %s, 0 offen sc0" % sr(SDBG, 4), "TK")
    a.label("L_tk_skip")
    make_srd(a, SX, 4, 5, 2048 * 1280)
    make_srd(a, SACT, 22, 23, ACT_BYTES, ACT_OFF)
    make_srd(a, SST, 22, 23, ST_BYTES, ST_OFF)
    make_srd(a, SPF1, 16, 17, 1728 * 1280)
    make_srd(a, SPF2, 8, 9, 640 * 1280)
    tlb_warm(a)
    if "--lw" in sys.argv:
        l2_warm(a)
    stats_setup(a)
    a("v_lshrrev_b32 v4, 4, v2")
    a("v_lshlrev_b32 v5, 10, v4")
    a("v_bfe_u32 v6, v2, 2, 2")
    a("v_lshl_add_u32 v5, v6, 7, v5")
    a("v_and_b32 v6, 3, v2")
    a("v_lshl_add_u32 v5, v6, 3, v5")
    a("v_bfe_u32 v6, v2, 3, 2")
    a("v_bfe_u32 v26, v2, 4, 1")
    a("v_lshrrev_b32 v7, 3, v2")
    a("v_bfe_u32 v8, v2, 1, 2")
    a("v_xor_b32 v8, v8, v26")
    a("v_and_b32 v9, 1, v2")
    a("v_and_b32 v10, 7, v2")
    a("v_lshrrev_b32 v11, 4, v2")
    a("v_xor_b32 v10, v10, v11")
    a("v_lshlrev_b32 v10, 4, v10")
    a("v_mul_u32_u24 v11, 1280, v7")
    a("v_add_u32 v10, v10, v11")
    a("v_bfe_u32 v15, v2, 1, 3")
    a("v_xor_b32 v15, v15, v4")
    a("v_lshlrev_b32 v15, 4, v15")
    a("v_and_b32 v16, 7, v2")
    a("v_lshl_add_u32 v15, v16, 7, v15")
    a("v_bfe_u32 v16, v2, 3, 1")
    a("v_lshl_add_u32 v15, v16, 10, v15")
    a("s_cmp_lg_u32 s%d, 0" % S_W)
    a("s_cbranch_scc1 L_tk_done")
    a("s_mov_b32 s67, 0")
    a("s_waitcnt vmcnt(%d)" % a.vmwait({"TK"}))
    a.label("L_tk_loop")
    a("v_readfirstlane_b32 s68, v18")
    a("s_add_u32 s67, s67, 1")
    a("s_nop 2")
    a("s_cmp_lt_u32 s68, 32")
    a("s_cbranch_scc1 L_tk_got")
    a("s_cmp_ge_u32 s67, 16")
    a("s_cbranch_scc1 L_tk_got")
    a("s_add_u32 s78, s78, 1")
    a("s_and_b32 s78, s78, 7")
    a("s_lshl_b32 s68, s78, 5")
    a("v_writelane_b32 v17, s68, 0")
    a("v_mov_b32 v18, 1")
    a.l.append("    buffer_atomic_add v18, v17, %s, 0 offen sc0" % sr(SDBG, 4))
    a("s_waitcnt vmcnt(0)")
    a("s_branch L_tk_loop")
    a.label("L_tk_got")
    a("s_and_b32 s68, s68, 31")
    a("s_lshl_b32 s68, s68, 3")
    a("s_add_u32 s68, s68, s78")
    a("v_mov_b32 v17, %d" % (SCR + 2044))
    a("v_mov_b32 v18, s68")
    a("ds_write_b32 v17, v18")
    a("s_waitcnt lgkmcnt(0)")
    a.label("L_tk_done")
    stamp(a, 2)
    a("s_barrier")
    stamp(a, 3)
    a("v_mov_b32 v1, %d" % (SCR + 2044))
    a("ds_read_b32 v1, v1")
    a("s_waitcnt lgkmcnt(0)")
    a("v_readfirstlane_b32 s2, v1")
    a("s_nop 3")
    a("s_and_b32 s%d, s2, 7" % S_XCD)
    a("s_lshr_b32 s%d, s2, 3" % S_SLOT)
    a("s_lshl_b32 s66, s2, 7")
    a("s_add_u32 s66, s66, %d" % FLG)
    a("v_mov_b32 v17, s66")
    a("v_mov_b32 v1, 0x%x" % BIG)
    a("v_cmp_eq_u32 vcc, 0, v0")
    a("v_mov_b32 v18, 0")
    a("s_nop 0")
    a("v_cndmask_b32 v17, v1, v17, vcc")
    a("buffer_store_dword v18, v17, %s, 0 offen sc1" % sr(SST, 4), "ST")
    VM0 = list(a.vm)
    a("s_cmp_lt_u32 s%d, 13" % S_SLOT)
    a("s_cbranch_scc1 L_k1_att")
    a("s_cmp_lt_u32 s%d, 31" % S_SLOT)
    a("s_cbranch_scc0 L_k1_extra")
    a("s_sub_u32 s%d, s%d, 13" % (S_SLOT, S_SLOT))

    a.vm = list(VM0)
    a("s_lshl_b32 s66, s%d, 1" % S_XCD)
    a("s_add_u32 s66, s66, s%d" % S_SLOT)
    a("s_sub_u32 s66, s66, 16")
    a("s_cmp_lt_u32 s%d, 16" % S_SLOT)
    a("s_cselect_b32 s%d, s%d, 8" % (S_FB, S_XCD))
    a("s_cselect_b32 s%d, s%d, s66" % (S_RB, S_SLOT))
    a("s_cmp_lt_u32 s%d, 4" % S_W)
    a("s_cselect_b32 s%d, s12, s14" % SW)
    a("s_cselect_b32 s%d, s13, s15" % (SW + 1))
    a("s_mov_b32 s%d, %d" % (SW + 2, 640 * 3456))
    a("s_mov_b32 s%d, 0x00020000" % (SW + 3))
    a("s_add_u32 s66, s%d, s%d" % (S_RB, S_FB))
    for _ in range(2):
        a("s_cmp_ge_u32 s66, 10")
        a("s_cselect_b32 s67, 10, 0")
        a("s_sub_u32 s66, s66, s67")
    if not ROT:
        a("s_mov_b32 s66, 0")
    if RP == 5:
        a("s_and_b32 s66, s66, 14")
    if RP == 2:
        a("s_and_b32 s66, s66, 1")
        a("s_mul_i32 s66, s66, 5")
    if RP == 3:
        a("s_mul_i32 s66, s66, 22")
        a("s_lshr_b32 s66, s66, 6")
        a("s_mul_i32 s66, s66, 3")
        a("s_min_u32 s66, s66, 6")
    a("s_lshl_b32 s%d, s66, 7" % S_SOA)
    a("s_mul_i32 s%d, s66, 221184" % S_SOB)
    a("s_mul_i32 s70, s%d, 384" % S_FB)
    a("v_mul_u32_u24 v16, 3456, v7")
    a("v_add_u32 v16, s70, v16")
    a("v_lshlrev_b32 v1, 5, v8")
    a("v_lshl_add_u32 v1, v9, 4, v1")
    for j in range(3):
        a("s_mul_i32 s66, s%d, 3" % S_W)
        a("s_add_u32 s66, s66, %d" % j)
        a("s_and_b32 s67, s66, 3")
        a("s_lshr_b32 s68, s66, 2")
        a("s_cmp_ge_u32 s68, 3")
        a("s_cselect_b32 s69, 3, 0")
        a("s_sub_u32 s68, s68, s69")
        if MF == 32:
            a("s_xor_b32 s69, s67, s%d" % S_WM)
            a("s_and_b32 s69, s69, 1")
        else:
            a("s_and_b32 s69, s67, 1")
        a("s_lshl_b32 s69, s69, 6")
        a("v_xor_b32 v%d, s69, v1" % (12 + j))
        a("s_mul_i32 s67, s67, %d" % (8 * 3456))
        a("s_lshl_b32 s68, s68, 7")
        a("s_add_u32 s67, s67, s68")
        a("v_add3_u32 v%d, v%d, v16, s67" % (12 + j, 12 + j))
    a("s_lshl_b32 s66, s%d, 3" % S_RB)
    a("s_add_u32 s66, s66, s%d" % S_W)
    a("s_mul_i32 s66, s66, %d" % (16 * 1280))
    a("v_xor_b32 v11, 64, v10")
    a("v_add_u32 v10, s66, v10")
    a("s_add_u32 s66, s66, %d" % (8 * 1280))
    a("v_add_u32 v11, s66, v11")
    a("s_mul_i32 s3, s%d, 3072" % S_W)
    a("s_lshl_b32 s79, s%d, 11" % S_W)
    ARING = 98304
    a("s_lshl_b32 s66, s%d, 13" % S_WM)
    a("s_add_u32 s66, s66, %d" % ARING)
    for c in ((3, 2, 1, 0) if MF == 32 else (1, 0)):
        if c:
            a("v_xor_b32 v%d, %d, v15" % (15 + c, (32 if MF == 32 else 64) * c))
        a("v_add_u32 v%d, s66, v%d" % (15 + c, 15 + c))
    if MF == 32:
        a("v_lshlrev_b32 v1, 1, v26")
        a("v_xor_b32 v6, v6, v1")
        a("v_mul_u32_u24 v1, 12288, v26")
        a("v_add_u32 v5, v5, v1")
    for j in range(3):
        a("s_mul_i32 s66, s%d, 3" % S_WN)
        a("s_add_u32 s66, s66, %d" % j)
        a("s_and_b32 s67, s66, 3")
        a("s_lshr_b32 s66, s66, 2")
        a("s_lshl_b32 s66, s66, 12")
        a("v_xor_b32 v%d, s67, v6" % (19 + j))
        a("v_lshl_add_u32 v%d, v%d, 5, v5" % (19 + j, 19 + j))
        a("v_add_u32 v%d, s66, v%d" % (19 + j, 19 + j))
        a("v_add_u32 v%d, 0x%x, v%d" % (22 + j, 2 * 24576, 19 + j))

    def bdma(st):
        o = []
        for j in range(3):
            o.append(("s_add_u32 m0, s3, 0x%x" % ((st % 4) * 24576 + 1024 * j),
                      "buffer_load_dwordx4 v%d, %s, s%d offen lds" % (12 + j, sr(SW, 4), S_SOB), "B%d" % st,
                      adv(S_SOB, 32 * 3456, 640 * 3456) if j == 2 else []))
        return o

    def adma(S):
        return [[("s_add_u32 m0, s79, 0x%x" % (ARING + (S % 3) * 16384 + 1024 * h),
                  "buffer_load_dwordx4 v%d, %s, s%d offen lds" % (10 + h, sr(SX, 4), S_SOA), "A%d" % S,
                  adv(S_SOA, 128, 1280) if h == 1 else [])] for h in range(2)]

    pre = ["v_and_b32 v25, 1, v4", "s_mov_b32 s66, %d" % ACT_MT, "v_mul_lo_u32 v25, v25, s66",
           "v_lshrrev_b32 v1, 1, v4", "v_lshl_add_u32 v25, v1, 8, v25", "v_and_b32 v1, 15, v2", "v_lshl_add_u32 v25, v1, 4, v25",
           "s_mul_i32 s66, s%d, %d" % (S_WM, 4 * ACT_MT), "s_mul_i32 s67, s%d, %d" % (S_WN, 6 * 256),
           "s_add_u32 s66, s66, s67", "v_add_u32 v25, s66, v25",
           "s_mul_i32 s70, s%d, %d" % (S_RB, 8 * ACT_MT), "s_mul_i32 s67, s%d, %d" % (S_FB, 24 * 256),
           "s_add_u32 s70, s70, s67", "s_add_u32 s70, s70, %d" % (80 * 256), "s_add_u32 s71, s70, %d" % (2 * ACT_MT),
           "s_lshl_b32 s66, s%d, 1" % S_RB, "s_add_u32 s66, s66, s%d" % S_WM, "s_lshl_b32 s66, s66, 10",
           "v_and_b32 v26, 7, v2", "v_lshl_add_u32 v26, v26, 3, s66", "v_bfe_u32 v1, v2, 3, 1", "v_lshl_add_u32 v26, v1, 7, v26",
           "v_cmp_gt_u32 vcc, 48, v2", "v_mov_b32 v1, 0x%x" % BIG, "s_nop 0", "v_cndmask_b32 v27, v1, v3, vcc",
           "s_mul_i32 s72, s%d, 768" % S_FB, "s_add_u32 s72, s72, %d" % (ST_CS + 1920 * 4),
           "s_add_u32 s73, s72, %d" % (1728 * 4),
           "s_mul_i32 s66, s%d, 192" % S_WN, "s_add_u32 s66, s66, %d" % CSL, "v_lshl_add_u32 v28, v4, 4, s66",
           "v_mov_b32 v%d, 240" % (TT + 1)]
    RS = 36
    CS0 = 44
    t17 = [("buffer_load_dwordx2 %s, v26, %s, 0 offen offset:%d sc1" % (vr(RS + 2 * i, 2), sr(SST, 4), 256 * i), "TL") for i in range(4)]
    for mat in range(2):
        t17.append(["s_mov_b32 m0, %d" % (CSL + 1024 * mat), "s_nop 0",
                    ("buffer_load_dwordx4 v27, %s, s%d offen sc1 lds" % (sr(SST, 4), 72 + mat), "TL")])

    def csreg(t):
        return CS0 + 4 * t if t < 5 else 240
    t19 = ["ds_read_b128 %s, v28 offset:%d" % (vr(csreg(t), 4), (t // 3) * 1024 + (t % 3) * 64) for t in range(6)]
    bg, top = std_bg(pre, t17, t19)
    P = dict(nI=2, nJ=3, name="ffn", bdma=bdma, adma=adma, bg=bg, toptags=top,
             a_addr=lambda S3, q, i: (15 + q, S3 * 16384 + i * 2048),
             b_addr=lambda slot, j: (19 + 3 * (slot // 2) + j % 3, (slot % 2) * 24576 + (j // 3) * 12288))
    k1_mainloop(a, P)

    c1 = -2.0 * LOG2E * 0.7978845608028654
    RC = 5
    for i in range(4):
        a("v_rcp_f32 v%d, v%d" % (RC + 3 * i, RS + 2 * i + 1))
    a("s_nop 0")
    for i in range(4):
        a("v_mul_f32 v%d, v%d, v%d" % (RC + 3 * i + 2, RS + 2 * i + 1, RS + 2 * i + 1))
        a("v_mul_f32 v%d, v%d, v%d" % (RC + 3 * i + 1, RC + 3 * i, RC + 3 * i))
        a("v_mul_f32 v%d, 0x%x, v%d" % (RC + 3 * i, f2u(c1), RC + 3 * i))
        a("v_mul_f32 v%d, 0x%x, v%d" % (RC + 3 * i + 1, f2u(0.044715), RC + 3 * i + 1))
        a("v_mul_f32 v%d, v%d, v%d" % (RC + 3 * i + 1, RC + 3 * i + 1, RC + 3 * i))
    a("s_waitcnt lgkmcnt(0)")
    T0 = FR0
    OUT = FR0 + 16
    n = 0
    for ip in (0, 2):
        for j in range(3):
            el = []
            for ii in (ip, ip + 1):
                for r in range(4):
                    el.append((ACC + 4 * (ii * 6 + j) + r, ACC + 4 * (ii * 6 + 3 + j) + r, csreg(j) + r, csreg(3 + j) + r,
                               RS + 2 * ii, RC + 3 * ii, RC + 3 * ii + 1, RC + 3 * ii + 2))
            for q, (x, u, cg, cu, m_, k1_, k3_, s2_) in enumerate(el):
                a("v_fma_f32 v%d, -v%d, v%d, v%d" % (x, m_, cg, x))
            for q, (x, u, cg, cu, m_, k1_, k3_, s2_) in enumerate(el):
                a("v_mul_f32 v%d, v%d, v%d" % (T0 + q, x, x))
            for q, (x, u, cg, cu, m_, k1_, k3_, s2_) in enumerate(el):
                a("v_fma_f32 v%d, v%d, v%d, v%d" % (T0 + q, T0 + q, k3_, k1_))
            for q, (x, u, cg, cu, m_, k1_, k3_, s2_) in enumerate(el):
                a("v_mul_f32 v%d, v%d, v%d" % (T0 + q, x, T0 + q))
            for q, (x, u, cg, cu, m_, k1_, k3_, s2_) in enumerate(el):
                a("v_exp_f32 v%d, v%d" % (T0 + q, T0 + q))
            for q, (x, u, cg, cu, m_, k1_, k3_, s2_) in enumerate(el):
                a("v_fma_f32 v%d, -v%d, v%d, v%d" % (u, m_, cu, u))
            for q, (x, u, cg, cu, m_, k1_, k3_, s2_) in enumerate(el):
                a("v_fma_f32 v%d, v%d, v%d, v%d" % (T0 + q, T0 + q, s2_, s2_))
            for q, (x, u, cg, cu, m_, k1_, k3_, s2_) in enumerate(el):
                a("v_rcp_f32 v%d, v%d" % (T0 + q, T0 + q))
            for q, (x, u, cg, cu, m_, k1_, k3_, s2_) in enumerate(el):
                a("v_mul_f32 v%d, v%d, v%d" % (u, x, u))
            for q, (x, u, cg, cu, m_, k1_, k3_, s2_) in enumerate(el):
                a("v_mul_f32 v%d, v%d, v%d" % (u, u, T0 + q))
            o = OUT + 4 * (n % 3)
            n += 1
            for q in range(4):
                a("v_cvt_pk_bf16_f32 v%d, v%d, v%d" % (o + q, el[2 * q][1], el[2 * q + 1][1]))
            a("s_nop 1")
            a("v_permlane16_swap_b32 v%d, v%d" % (o, o + 2))
            a("v_permlane16_swap_b32 v%d, v%d" % (o + 1, o + 3))
            a("s_nop 1")
            a("buffer_store_dwordx4 %s, v25, %s, s%d offen offset:%d sc1" % (vr(o, 4), sr(SACT, 4), 70 + ip // 2, 512 * j))
    stamp(a, 7)
    p2_early(a)
    p1_done(a, ["s_cmp_eq_u32 s%d, 8" % S_FB, "s_cselect_b32 s64, 0, 64", "s_lshl_b32 s3, s%d, 2" % S_RB, "s_add_u32 s3, s3, s64"])

    a.label("L_k1_att")
    a.vm = list(VM0)
    a("s_mov_b32 s%d, s%d" % (S_RB, S_SLOT))
    make_srd(a, SW, 6, 7, 640 * 3840)
    ARING = 65536
    ASLOT = 22528
    a("s_add_u32 s66, s%d, s%d" % (S_RB, S_XCD))
    for _ in range(2):
        a("s_cmp_ge_u32 s66, 10")
        a("s_cselect_b32 s67, 10, 0")
        a("s_sub_u32 s66, s66, s67")
    if not ROT:
        a("s_mov_b32 s66, 0")
    if RP == 5:
        a("s_and_b32 s66, s66, 14")
    if RP == 2:
        a("s_and_b32 s66, s66, 1")
        a("s_mul_i32 s66, s66, 5")
    if RP == 3:
        a("s_mul_i32 s66, s66, 22")
        a("s_lshr_b32 s66, s66, 6")
        a("s_mul_i32 s66, s66, 3")
        a("s_min_u32 s66, s66, 6")
    a("s_lshl_b32 s%d, s66, 7" % S_SOA)
    a("s_mul_i32 s%d, s66, 245760" % S_SOB)
    a("s_mul_i32 s70, s%d, 160" % S_XCD)
    a("v_mul_u32_u24 v16, 3840, v7")
    a("v_add_u32 v16, s70, v16")
    a("s_lshr_b32 s66, s%d, 1" % S_W)
    a("s_lshl_b32 s66, s66, 2")
    a("v_mov_b32 v17, 1120")
    for j in range(2):
        if j:
            a("v_xor_b32 v1, 2, v8")
            a("v_add_u32 v1, s66, v1")
        else:
            a("v_add_u32 v1, s66, v8")
        a("v_min_u32 v1, 14, v1")
        a("v_lshlrev_b32 v%d, 5, v1" % (13 + j))
        a("v_lshl_add_u32 v%d, v9, 4, v%d" % (13 + j, 13 + j))
        a("v_cmp_le_u32 vcc, 5, v1")
        a("v_add_u32 v%d, v%d, v16" % (13 + j, 13 + j))
        a("s_and_b32 s67, s%d, 1" % S_W)
        a("v_cndmask_b32 v18, 0, v17, vcc")
        a("v_cmp_le_u32 vcc, 10, v1")
        a("v_add_u32 v%d, v%d, v18" % (13 + j, 13 + j))
        a("s_lshl_b32 s67, s67, 1")
        a("v_cndmask_b32 v18, 0, v17, vcc")
        a("s_add_u32 s67, s67, %d" % j)
        a("s_mul_i32 s67, s67, %d" % (8 * 3840))
        a("v_add3_u32 v%d, v%d, v18, s67" % (13 + j, 13 + j))
    a("s_and_b32 s66, s%d, 1" % S_W)
    a("s_lshl_b32 s66, s66, 6")
    a("v_xor_b32 v1, s66, v10")
    a("s_mul_i32 s66, s%d, 20" % S_RB)
    a("s_add_u32 s66, s66, s%d" % S_W)
    a("s_max_u32 s67, s66, 2")
    a("s_sub_u32 s67, s67, 2")
    a("s_min_u32 s67, s67, 255")
    a("s_mul_i32 s67, s67, %d" % (8 * 1280))
    a("v_add_u32 v10, s67, v1")
    a("s_add_u32 s67, s66, 6")
    a("s_min_u32 s68, s67, 255")
    a("s_mul_i32 s68, s68, %d" % (8 * 1280))
    a("v_add_u32 v11, s68, v1")
    a("s_add_u32 s67, s66, 14")
    a("s_min_u32 s67, s67, 255")
    a("s_mul_i32 s67, s67, %d" % (8 * 1280))
    a("s_cmp_lt_u32 s%d, 6" % S_W)
    a("s_cselect_b32 s68, s67, s68")
    a("s_cselect_b32 s78, 16384, 8192")
    a("v_add_u32 v12, s68, v1")
    a("s_lshl_b32 s79, s%d, 10" % S_W)
    a("s_add_u32 s78, s78, s79")
    a("s_lshl_b32 s3, s%d, 11" % S_W)
    a("s_mul_i32 s66, s%d, %d" % (S_WM, 6 * 2048))
    a("s_add_u32 s66, s66, %d" % ARING)
    for c in ((3, 2, 1, 0) if MF == 32 else (1, 0)):
        if c:
            a("v_xor_b32 v%d, %d, v15" % (15 + c, (32 if MF == 32 else 64) * c))
        a("v_add_u32 v%d, s66, v%d" % (15 + c, 15 + c))
    a("s_lshl_b32 s66, s%d, 12" % S_WN)
    for j in range(4):
        a("v_xor_b32 v%d, %d, v6" % (17 + j, j))
        a("v_lshl_add_u32 v%d, v%d, 5, v5" % (17 + j, 17 + j))
        a("v_add_u32 v%d, s66, v%d" % (17 + j, 17 + j))

    def bdma2(st):
        return [("s_add_u32 m0, s3, 0x%x" % ((st % 4) * 16384 + 1024 * j),
                 "buffer_load_dwordx4 v%d, %s, s%d offen lds" % (13 + j, sr(SW, 4), S_SOB), "B%d" % st,
                 adv(S_SOB, 32 * 3840, 640 * 3840) if j == 1 else []) for j in range(2)]

    def adma2(S):
        b = ARING + (S % 3) * ASLOT
        ld = "buffer_load_dwordx4 v%d, %s, s%d offen lds"
        return [[("s_add_u32 m0, s79, 0x%x" % b, ld % (10, sr(SX, 4), S_SOA), "A%d" % S, []),
                 ("s_add_u32 m0, s79, 0x%x" % (b + 8192), ld % (11, sr(SX, 4), S_SOA), "A%d" % S, [])],
                [("s_add_u32 m0, s78, 0x%x" % b, ld % (12, sr(SX, 4), S_SOA), "A%d" % S,
                  adv(S_SOA, 128, 1280))]]

    pre = ["v_and_b32 v1, 15, v2", "s_mul_i32 s66, s%d, 96" % S_WM, "v_add_u32 v5, s66, v1",
           "v_mul_u32_u24 v5, %d, v5" % PITCH, "v_lshl_add_u32 v5, v4, 3, v5", "v_lshlrev_b32 v6, 4, v4",
           "s_mul_i32 s67, s%d, 160" % S_RB, "s_add_u32 s66, s66, s67", "s_sub_u32 s66, s66, 16", "s_lshl_b32 s66, s66, 4",
           "v_and_b32 v63, 7, v2", "v_lshl_add_u32 v63, v63, 3, s66", "v_bfe_u32 v7, v2, 3, 1", "v_lshl_add_u32 v63, v7, 7, v63"]
    for t in range(4):
        pre += ["s_lshl_b32 s66, s%d, 2" % S_WN, "s_add_u32 s66, s66, %d" % t, "s_min_u32 s66, s66, 14",
                ["s_cmp_ge_u32 s66, 5", "s_cselect_b32 s67, 5, 0", "s_cselect_b32 s68, %d, %d" % (REG_K, REG_Q),
                 "s_cselect_b32 s69, 1024, 0"],
                ["s_cmp_ge_u32 s66, 10", "s_cselect_b32 s67, 10, s67", "s_cselect_b32 s68, %d, s68" % REG_V,
                 "s_cselect_b32 s69, 2048, s69"],
                "s_sub_u32 s66, s66, s67", "s_lshl_b32 s67, s66, 5", "s_add_u32 s67, s67, s68",
                "v_add_u32 v%d, s67, v5" % (21 + t),
                "s_lshl_b32 s66, s66, 6", "s_add_u32 s66, s66, s69", "s_add_u32 s66, s66, %d" % CSL,
                "v_add_u32 v%d, s66, v6" % (52 + t)]
    pre += ["v_and_b32 v1, 15, v2", "v_lshrrev_b32 v26, 4, v2", "v_lshlrev_b32 v6, 2, v26", "v_sub_u32 v6, v1, v6"]
    for T in range(2):
        for r in range(4):
            pre += ["v_add_u32 v7, %d, v6" % (16 - 16 * T - r), "v_alignbit_b32 v7, v7, v7, 1",
                    "v_cmp_ge_u32 %s, 7, v7" % sr(4 + 2 * (4 * T + r), 2)]
    pre += ["s_mul_i32 s66, s%d, %d" % (S_WM, 80 * PITCH), "s_mul_i32 s67, s%d, 40" % S_WN, "s_add_u32 s66, s66, s67",
            "v_mul_u32_u24 v5, %d, v1" % PITCH, "v_add_u32 v5, s66, v5",
            "v_lshlrev_b32 v6, 4, v26",
            "v_cmp_gt_u32 s[76:77], 3, v26", "v_cmp_gt_u32 s[74:75], 2, v26", "s_nop 1",
            "v_cndmask_b32 v6, 0, v6, s[76:77]",
            "v_add_u32 v56, v5, v6",
            "v_add_u32 v58, %d, v56" % (REG_Q + 16 * PITCH),
            "v_min_u32 v57, 191, v0", "v_mul_u32_u24 v57, %d, v57" % PITCH, "v_add_u32 v57, 160, v57",
            "v_lshrrev_b32 v60, 2, v2", "v_mul_u32_u24 v60, %d, v60" % PITCH, "v_and_b32 v6, 3, v2",
            "v_lshl_add_u32 v60, v6, 3, v60", "s_add_u32 s66, s66, %d" % REG_V, "v_add_u32 v60, s66, v60",
            "s_mul_i32 s66, s%d, 5" % S_WN, "s_mul_i32 s67, s%d, %d" % (S_WM, 5 * 2560), "s_add_u32 s67, s67, %d" % OSTG]
    for Dd in range(2):
        pre += ["v_add_u32 v6, s66, v26"] + (["v_add_u32 v6, 4, v6"] if Dd else []) + \
               ["v_lshrrev_b32 v7, 1, v6", "v_lshlrev_b32 v7, 8, v7", "v_and_b32 v6, 1, v6",
                "v_lshl_add_u32 v7, v6, 3, v7", "v_lshl_add_u32 v7, v1, 4, v7", "v_add_u32 v%d, s67, v7" % (61 + Dd)]
    pre += ["v_cmp_gt_u32 vcc, 16, v2", "v_mov_b32 v6, %d" % (REG_Q + 176 * PITCH - 4 * 2560), "s_nop 1", "v_cndmask_b32 v62, v6, v62, vcc",
            "v_mov_b32 v6, 0x%x" % BIG, "s_mov_b32 s67, 26215", "s_mov_b32 s68, %d" % (ACT_MT - 2560)]
    for nn in range(4):
        pre += ["s_lshl_b32 s66, s%d, 10" % S_W, "s_add_u32 s66, s66, %d" % (8192 * nn), "v_add_u32 v7, s66, v3",
                "v_mul_lo_u32 v5, v7, s67", "v_lshrrev_b32 v5, 26, v5", "v_mul_lo_u32 v5, v5, s68",
                "v_cmp_gt_u32 vcc, 25600, v7", "v_add_u32 v5, v5, v7", "s_nop 0", "v_cndmask_b32 v%d, v6, v5, vcc" % (48 + nn)]
    pre += ["v_cmp_gt_u32 vcc, 20, v2", "s_nop 1", "v_cndmask_b32 v27, v6, v3, vcc",
            "s_mul_i32 s69, s%d, %d" % (S_RB, 10 * ACT_MT), "s_mul_i32 s67, s%d, 2560" % S_XCD, "s_add_u32 s69, s69, s67",
            "s_mul_i32 s70, s%d, 320" % S_XCD, "s_add_u32 s70, s70, %d" % ST_CS, "s_add_u32 s71, s70, 2560", "s_add_u32 s72, s70, 5120",
            "v_mov_b32 v%d, 240" % (TT + 1)]
    RS = 36
    t17 = ["v_add_u32 v1, 256, v63",
           ("buffer_load_dwordx2 %s, v63, %s, 0 offen sc1" % (vr(RS, 2), sr(SST, 4)), "TL")]
    for i in range(1, 6):
        t17.append(("buffer_load_dwordx2 %s, v1, %s, 0 offen offset:%d sc1" % (vr(RS + 2 * i, 2), sr(SST, 4), 256 * (i - 1)), "TL"))
    for sec in range(3):
        t17.append(["s_mov_b32 m0, %d" % (CSL + 1024 * sec), "s_nop 0",
                    ("buffer_load_dwordx4 v27, %s, s%d offen sc1 lds" % (sr(SST, 4), 70 + sec), "TL")])

    def csreg2(t):
        return 240 + 4 * t
    t19 = ["ds_read_b128 %s, v%d" % (vr(csreg2(t), 4), 52 + t) for t in range(4)]
    bg, top = std_bg(pre, t17, t19)
    P = dict(nI=3, nJ=2, name="att", bdma=bdma2, adma=adma2, bg=bg, toptags=top,
             a_addr=lambda S3, q, i: (15 + q, S3 * ASLOT + i * 2048),
             b_addr=lambda slot, j: (17 + j, slot * 16384))
    k1_mainloop(a, P)
    FM = [28, 30, 40, 42]
    a("s_or_b32 s66, s%d, s%d" % (S_WM, S_RB))
    a("s_cmp_eq_u32 s66, 0")
    for r in range(4):
        a("s_cselect_b64 %s, 0, %s" % (sr(FM[r], 2), sr(4 + 2 * r, 2)))
    a("s_mov_b32 s63, s69")

    stamp_e(a, 1)
    for i in range(6):
        a("v_max_f32 v%d, 0x%x, v%d" % (RS + 2 * i + 1, f2u(1e-3), RS + 2 * i + 1))
    for i in range(6):
        a("v_rcp_f32 v%d, v%d" % (RS + 2 * i + 1, RS + 2 * i + 1))
    a("s_waitcnt lgkmcnt(0)")
    W0 = FR0
    n = 0
    a("v_mov_b32 v8, 0")
    a("v_mov_b32 v9, 0")
    a("ds_write_b64 v57, v[8:9]")
    for i in range(6):
        for j in range(4):
            acc = ACC + 4 * (i * 4 + j)
            for r in range(4):
                a("v_fma_f32 v%d, -v%d, v%d, v%d" % (acc + r, RS + 2 * i, csreg2(j) + r, acc + r))
        for j in range(4):
            acc = ACC + 4 * (i * 4 + j)
            for r in range(4):
                a("v_mul_f32 v%d, v%d, v%d" % (acc + r, acc + r, RS + 2 * i + 1))
        for j in range(4):
            acc = ACC + 4 * (i * 4 + j)
            o = W0 + 2 * (n % 8)
            n += 1
            a("v_cvt_pk_bf16_f32 v%d, v%d, v%d" % (o, acc, acc + 1))
            a("v_cvt_pk_bf16_f32 v%d, v%d, v%d" % (o + 1, acc + 2, acc + 3))
            a("ds_write_b64 v%d, %s offset:%d" % (21 + j, vr(o, 2), i * 16 * PITCH))
    stamp_e(a, 2)
    p2_early(a, True)
    a("s_waitcnt lgkmcnt(0)")
    a("s_barrier")
    stamp_e(a, 3)
    IB = ACC
    SB = FR0 + 8
    TB = FR0 + 48
    for n in range(5):
        b = IB + 20 * n
        off = n * 16 * PITCH
        a("v_add_u32 v7, %d, v58" % off)
        a("v_add_u32 v8, %d, v56" % off)
        a("v_add_u32 v9, %d, v56" % (off + 16 * PITCH))
        a("ds_read2_b64 %s, v7 offset0:0 offset1:1" % vr(b, 4))
        a("ds_read2_b64 %s, v8 offset0:0 offset1:1" % vr(b + 4, 4))
        a("ds_read2_b64 %s, v9 offset0:0 offset1:1" % vr(b + 8, 4))
    for n in range(5):
        b = IB + 20 * n
        off = n * 16 * PITCH
        for Dd in range(2):
            for e in range(2):
                a("ds_read_b64_tr_b16 %s, v60 offset:%d" % (vr(b + 12 + 4 * Dd + 2 * e, 2), off + e * 16 * PITCH + Dd * 32))
    SC = (20 ** -0.5) * LOG2E
    a("v_mov_b32 v5, 0x%x" % f2u(SC))
    a("v_mov_b32 v6, 0x%x" % f2u(-1e9))
    a("s_waitcnt lgkmcnt(0)")
    for n in range(5):
        b = IB + 20 * n
        a("v_cndmask_b32 v%d, 0, v%d, s[76:77]" % (b, b))
        a("v_cndmask_b32 v%d, 0, v%d, s[76:77]" % (b + 1, b + 1))
        a("v_cndmask_b32 v%d, 0, v%d, s[74:75]" % (b + 2, b + 2))
        a("v_cndmask_b32 v%d, 0, v%d, s[74:75]" % (b + 3, b + 3))
    a("s_nop 1")
    stamp_e(a, 4)
    for n in range(5):
        b = IB + 20 * n
        for T in range(2):
            a("v_mfma_f32_16x16x32_bf16 %s, %s, %s, 0" % (vr(SB + 8 * n + 4 * T, 4), vr(b + 4 + 4 * T, 4), vr(b, 4)))
    a("s_nop 0")
    for n in range(5):
        s = SB + 8 * n
        for q in range(8):
            a("v_mul_f32 v%d, v5, v%d" % (s + q, s + q))
        for q in range(8):
            m = sr(FM[q], 2) if (n == 0 and q < 4) else sr(4 + 2 * q, 2)
            a("v_cndmask_b32 v%d, v6, v%d, %s" % (s + q, s + q, m))
        t = TB + 2 * n
        a("v_max3_f32 v%d, v%d, v%d, v%d" % (t, s, s + 1, s + 2))
        a("v_max3_f32 v%d, v%d, v%d, v%d" % (t + 1, s + 3, s + 4, s + 5))
        a("v_max3_f32 v%d, v%d, v%d, v%d" % (t, t, s + 6, s + 7))
        a("v_max_f32 v%d, v%d, v%d" % (t, t, t + 1))
    tr = [TB + 2 * n for n in range(5)]
    tt = [TB + 2 * n + 1 for n in range(5)]
    for x in xreduce(tr, tt, "v_max_f32"):
        a(x)
    for n in range(5):
        s = SB + 8 * n
        t = TB + 2 * n
        for q in range(8):
            a("v_sub_f32 v%d, v%d, v%d" % (s + q, s + q, t))
        for q in range(8):
            a("v_exp_f32 v%d, v%d" % (s + q, s + q))
        a("s_nop 0")
        a("v_add_f32 v%d, v%d, v%d" % (t, s, s + 1))
        a("v_add_f32 v%d, v%d, v%d" % (t + 1, s + 2, s + 3))
        a("v_add_f32 v%d, v%d, v%d" % (t, t, s + 4))
        a("v_add_f32 v%d, v%d, v%d" % (t + 1, t + 1, s + 5))
        a("v_add_f32 v%d, v%d, v%d" % (t, t, s + 6))
        a("v_add_f32 v%d, v%d, v%d" % (t + 1, t + 1, s + 7))
        a("v_add_f32 v%d, v%d, v%d" % (t, t, t + 1))
    for x in xreduce(tr, tt, "v_add_f32"):
        a(x)
    for n in range(5):
        t = TB + 2 * n
        a("v_rcp_f32 v%d, v%d" % (t, t))
    a("s_nop 0")
    for n in range(5):
        s = SB + 8 * n
        t = TB + 2 * n
        b = IB + 20 * n
        for q in range(8):
            a("v_mul_f32 v%d, v%d, v%d" % (s + q, s + q, t))
        for q in range(4):
            a("v_cvt_pk_bf16_f32 v%d, v%d, v%d" % (b + q, s + 2 * q, s + 2 * q + 1))
    stamp_e(a, 5)
    a("s_nop 1")
    for n in range(5):
        b = IB + 20 * n
        for Dd in range(2):
            a("v_mfma_f32_16x16x32_bf16 %s, %s, %s, 0" % (vr(SB + 8 * n + 4 * Dd, 4), vr(b + 12 + 4 * Dd, 4), vr(b, 4)))
    a("s_nop 0")
    for n in range(5):
        s = SB + 8 * n
        b = IB + 20 * n
        for Dd in range(2):
            a("v_cvt_pk_bf16_f32 v%d, v%d, v%d" % (b + 4 + 2 * Dd, s + 4 * Dd, s + 4 * Dd + 1))
            a("v_cvt_pk_bf16_f32 v%d, v%d, v%d" % (b + 5 + 2 * Dd, s + 4 * Dd + 2, s + 4 * Dd + 3))
        a("ds_write_b64 v61, %s offset:%d" % (vr(b + 4, 2), 2560 * n))
    a("s_mov_b64 exec, 0xffff")
    for n in range(5):
        a("ds_write_b64 v62, %s offset:%d" % (vr(IB + 20 * n + 6, 2), 2560 * n))
    a("s_mov_b64 exec, -1")
    a("s_add_u32 s3, s65, %d" % OSTG)
    a("v_add_u32 v5, s3, v3")
    a("s_waitcnt lgkmcnt(0)")
    a("s_barrier")
    for nn in range(4):
        a("ds_read_b128 %s, v5 offset:%d" % (vr(ACC + 4 * nn, 4), 8192 * nn))
    for nn in range(4):
        a("s_waitcnt lgkmcnt(%d)" % (3 - nn))
        a("buffer_store_dwordx4 %s, v%d, %s, s63 offen sc1" % (vr(ACC + 4 * nn, 4), 48 + nn, sr(SACT, 4)))
    p2_early_b(a, range(3, 6))
    stamp(a, 7)
    p1_done(a, ["s_lshl_b32 s3, s%d, 2" % S_RB, "s_add_u32 s3, s3, 128"])

    a.label("L_k1_extra")
    a.vm = list(VM0)
    for x in stats_loads() + k2_prefetch():
        emit(a, x)
    a("s_waitcnt vmcnt(0)")
    for x in stats_segA():
        emit(a, x)
    a("s_waitcnt lgkmcnt(0)")
    a("s_barrier")
    for x in stats_segB():
        emit(a, x)
    a("s_waitcnt lgkmcnt(0)")
    for x in stats_segC():
        emit(a, x)
    tlb_warm_act(a)
    a("s_barrier")
    for x in stats_signal():
        emit(a, x)
    p2_early(a)
    a("v_mov_b32 v%d, 240" % (TT + 1))
    a("s_mov_b32 s66, 0")
    a("s_waitcnt vmcnt(0)")
    a("s_cmp_lg_u32 s%d, 0" % S_W)
    a("s_cbranch_scc1 L_xpoll_ok")
    a.label("L_xpoll")
    a("s_sleep 100")
    a("buffer_load_dword v%d, v%d, %s, 0 offen sc1" % (TT, TT + 1, sr(SDBG, 4)))
    a("s_waitcnt vmcnt(0)")
    a("v_readfirstlane_b32 s67, v%d" % TT)
    a("s_add_u32 s66, s66, 1")
    a("s_nop 2")
    a("s_cmp_ge_u32 s67, 256")
    a("s_cbranch_scc1 L_xpoll_ok")
    a("s_cmp_lt_u32 s66, 0x20000")
    a("s_cbranch_scc1 L_xpoll")
    a.label("L_xpoll_ok")
    gen_phase2(a)
    a.label("L_k1_end")
    a("s_endpgm")
    a.label("L_code_end")
    return (name, 256, 102 if STAMP else 80)


K2_NS = 7
K2_NST = 37


def p2_poll(a, nm, off_reg, pre=False):
    a("s_cmp_lg_u32 s20, 0")
    a("s_cbranch_scc1 L_p2ok_%s" % nm)
    a("v_cmp_gt_u32 s[58:59], 0x%x, v%d" % (BIG, off_reg))
    a("s_mov_b32 s21, 0")
    if pre:
        a("s_branch L_p2chk_%s" % nm)
    a.label("L_p2poll_%s" % nm)
    a.l.append("    buffer_load_dword v22, v%d, s[60:63], 0 offen sc1" % off_reg)
    a("s_waitcnt vmcnt(0)")
    a.label("L_p2chk_%s" % nm)
    a("v_cmp_eq_u32 vcc, 0, v22")
    a("s_add_u32 s21, s21, 1")
    a("s_nop 2")
    a("s_and_b64 vcc, vcc, s[58:59]")
    a("s_cbranch_scc0 L_p2ok_%s" % nm)
    a("s_cmp_ge_u32 s21, 0x20000")
    a("s_cbranch_scc1 L_p2ok_%s" % nm)
    a("s_sleep 2")
    a("s_cmp_lg_u64 vcc, s[58:59]")
    a("s_cbranch_scc1 L_p2poll_%s" % nm)
    a("s_sleep 30")
    a("s_branch L_p2poll_%s" % nm)
    a.label("L_p2ok_%s" % nm)


def gen_phase2(a):
    a.p2 = True
    a.label("L_phase2")
    a("s_load_dwordx2 s[4:5], s[0:1], 0")
    a("s_load_dwordx2 s[30:31], s[0:1], 56")
    p2_map(a, 24)
    a("s_cmp_eq_u32 s28, 1")
    a("s_cbranch_scc1 L_p2_end")
    a("s_mov_b32 s20, s%d" % S_W)
    a("v_lshrrev_b32 v4, 4, v2")
    a("v_lshlrev_b32 v5, 10, v4")
    a("v_bfe_u32 v6, v2, 2, 2")
    a("v_lshl_add_u32 v5, v6, 7, v5")
    a("v_and_b32 v6, 3, v2")
    a("v_lshl_add_u32 v5, v6, 3, v5")
    a("v_bfe_u32 v6, v2, 3, 2")
    a("s_lshr_b32 s34, s20, 2")
    make_srd(a, 60, 22, 23, ST_BYTES, ST_OFF)
    a("s_lshl_b32 s36, s26, 4")
    a("s_add_u32 s37, s26, s27")
    a("s_lshl_b32 s37, s37, 4")
    a("s_sub_u32 s37, s37, 1")
    a("s_lshr_b32 s38, s36, 7")
    a("s_lshr_b32 s39, s37, 7")
    a("v_mov_b32 v21, s38")
    a("v_mov_b32 v22, s39")
    a("v_cmp_gt_u32 vcc, 8, v2")
    a("v_cmp_gt_u32 s[40:41], 16, v2")
    a("v_and_b32 v25, 7, v2")
    a("v_cndmask_b32 v21, v22, v21, vcc")
    a("v_mov_b32 v22, 0x%x" % BIG)
    a("v_lshl_add_u32 v23, v21, 3, v25")
    a("v_lshlrev_b32 v23, 7, v23")
    a("v_add_u32 v23, %d, v23" % (FLG + 13 * 8 * 128))
    a("v_cndmask_b32 v23, v22, v23, s[40:41]")
    a("s_mul_i32 s36, s36, 6554")
    a("s_mul_i32 s37, s37, 6554")
    a("s_lshr_b32 s36, s36, 20")
    a("s_lshr_b32 s37, s37, 20")
    a("v_mov_b32 v21, s36")
    a("v_mov_b32 v24, s37")
    a("v_cndmask_b32 v21, v24, v21, vcc")
    a("v_lshl_add_u32 v24, v21, 3, v25")
    a("v_lshlrev_b32 v24, 7, v24")
    a("v_add_u32 v24, %d, v24" % FLG)
    a("v_cndmask_b32 v24, v22, v24, s[40:41]")
    for lane, r in ((16, 38), (17, 39)):
        a("s_and_b32 s36, s%d, 1" % r)
        a("s_add_u32 s36, s36, 29")
        a("s_lshl_b32 s36, s36, 3")
        a("s_lshr_b32 s37, s%d, 1" % r)
        a("s_add_u32 s36, s36, s37")
        a("s_lshl_b32 s36, s36, 7")
        a("s_add_u32 s36, s36, %d" % FLG)
        a("v_writelane_b32 v24, s36, %d" % lane)
    a("s_bfe_u32 s35, s20, 0x10001")
    a("s_and_b32 s36, s20, 1")
    a("s_waitcnt lgkmcnt(0)")
    make_srd(a, 40, 4, 5, 2048 * 1280)
    make_srd(a, 8, 30, 31, 2048 * 1280)
    make_srd(a, 12, 22, 23, ACT_BYTES, ACT_OFF)
    a("s_mul_i32 s37, s35, 3")
    a("s_add_u32 s37, s37, s26")
    a("s_mul_i32 s37, s37, %d" % (16 * 1280))
    a("s_lshl_b32 s38, s25, 7")
    a("s_add_u32 s37, s37, s38")
    a("s_lshl_b32 s38, s36, 1")
    a("s_add_u32 s38, s38, s34")
    a("s_lshl_b32 s38, s38, 5")
    a("s_add_u32 s37, s37, s38")
    a("v_and_b32 v26, 15, v2")
    a("v_mul_u32_u24 v26, 1280, v26")
    a("v_lshl_add_u32 v26, v4, 3, v26")
    a("v_add_u32 v26, s37, v26")
    a("s_mov_b32 s38, %d" % (16 * 1280))
    a("s_mov_b32 s39, %d" % (32 * 1280))
    a("buffer_load_dwordx2 v[28:29], v26, s[40:43], 0 offen")
    a("buffer_load_dwordx2 v[30:31], v26, s[40:43], s38 offen")
    a("buffer_load_dwordx2 v[32:33], v26, s[40:43], s39 offen")
    a("s_add_u32 s37, s26, s20")
    a("s_mul_i32 s37, s37, %d" % ACT_MT)
    a("v_add_u32 v10, s37, v3")
    a("s_mov_b32 s16, %d" % (20 * 1024))
    a("s_mov_b32 s17, %d" % (6 * 64 * 1280))
    a("s_lshl_b32 s18, s20, 11")
    a("s_lshl_b32 s19, s20, 10")
    a("s_mul_i32 s37, s35, 6144")
    a("s_lshl_b32 s29, s34, 10")
    a("s_add_u32 s37, s37, s29")
    a("v_add_u32 v12, s37, v3")
    a("v_add_u32 v13, 0x10000, v12")
    a("s_lshl_b32 s29, s34, 12")
    a("s_add_u32 s29, s29, %d" % P2_B)
    for jj in range(2):
        a("s_lshl_b32 s37, s36, 1")
        a("s_add_u32 s37, s37, %d" % jj)
        a("v_xor_b32 v%d, s37, v6" % (15 + jj))
        a("v_lshl_add_u32 v%d, v%d, 5, v5" % (15 + jj, 15 + jj))
        a("v_add_u32 v%d, s29, v%d" % (15 + jj, 15 + jj))
    AC = 64
    FRB = 96
    NS = 6
    groups = [list(range(2 * g, min(2 * g + 2, K2_NST))) for g in range((K2_NST + 1) // 2)]
    NG = len(groups)
    p2_poll(a, "f", 23)
    a("s_barrier")
    stamp(a, 1)

    def freg(g, h):
        return FRB + 40 * (g % 2) + 20 * h

    def read_ops(g):
        ops = []
        for h, st in enumerate(groups[g]):
            f = freg(g, h)
            for jj in range(2):
                for e in range(2):
                    ops.append("ds_read_b64_tr_b16 %s, v%d offset:%d" % (vr(f + 12 + 4 * jj + 2 * e, 2), 15 + jj, (st % NS) * 8192 + e * 512))
            for i in range(3):
                off = (st % NS) * 12288 + i * 2048
                ops.append("ds_read_b128 %s, v%d offset:%d" % (vr(f + 4 * i, 4), 12 + (off >> 16), off & 0xffff))
        return ops

    def body(loader):
        a.vm = []
        tag = "l" if loader else "n"

        def dma_ops(g, doB=True):
            ops = []
            for st in groups[g]:
                if loader:
                    ops.append((["s_mov_b32 s16, 0"] if st == 27 else []) + ["s_add_u32 m0, s18, 0x%x" % ((st % NS) * 12288)])
                    ops.append([("buffer_load_dwordx4 v10, s[12:15], s16 offen lds", "S%d" % g)])
                    ops.append([("buffer_load_dwordx4 v10, s[12:15], s16 offen offset:1024 lds", "S%d" % g), "s_add_u32 s16, s16, 2048"])
                if doB:
                    srd = SPF1 if st < 27 else SPF2
                    ops.append((["s_mov_b32 s17, 0"] if st == 27 else []) + ["s_add_u32 m0, s19, 0x%x" % (P2_B + (st % NS) * 8192)])
                    ops.append([("buffer_load_dwordx4 v%d, %s, s17 offen lds" % (P2V, sr(srd, 4)), "S%d" % g), "s_add_u32 s17, s17, %d" % (64 * 1280)])
            return ops
        for g in range(3):
            for o in dma_ops(g, False):
                emit(a, o)
                if isinstance(o[-1], str) and o[-1].startswith("s_add_u32 m0"):
                    a("s_nop 0")
        n = a.vmwait({"S0"})
        a("s_waitcnt vmcnt(%d)" % (n if n is not None else 63))
        a("s_barrier")
        stamp(a, 2)
        for x in read_ops(0):
            a(x)
        for g in range(NG):
            if g in (5, 10, 15):
                stamp(a, 2 + g // 5)
            n = a.vmwait({"S%d" % (g + 1)}) if g + 1 < NG else None
            if g + 3 == 12 and loader:
                p2_poll(a, "a" + tag, 24, True)
            if n is not None:
                a("s_waitcnt vmcnt(%d) lgkmcnt(0)" % n)
            else:
                a("s_waitcnt lgkmcnt(0)")
            a("s_barrier")
            if g + 3 == 10 and loader:
                a("v_mov_b32 v22, 0")
                a("buffer_load_dword v22, v24, s[60:63], 0 offen sc1", "P2P")
            stream = dma_ops(g + 3) if g + 3 < NG else []
            rd = read_ops(g + 1) if g + 1 < NG else []
            mf = []
            for h, st in enumerate(groups[g]):
                f = freg(g, h)
                for i in range(3):
                    for jj in range(2):
                        acc = AC + 4 * (2 * i + jj)
                        c = "0" if (g == 0 and h == 0) else vr(acc, 4)
                        mf.append("v_mfma_f32_16x16x32_bf16 %s, %s, %s, %s" % (vr(acc, 4), vr(f + 12 + 4 * jj, 4), vr(f + 4 * i, 4), c))
            for gi, x in enumerate(mf):
                a(x)
                left = len(mf) - gi
                for lst in (stream, rd):
                    k = (len(lst) + left - 1) // left
                    for _ in range(k):
                        o = lst.pop(0)
                        emit(a, o)
                        if lst is stream and k > 1 and isinstance(o[-1], str) and o[-1].startswith("s_add_u32 m0"):
                            a("s_nop 0")
    a("s_cmp_lt_u32 s20, s27")
    a("s_cbranch_scc0 L_k2_nl")
    body(True)
    a("s_branch L_k2_epi")
    a.label("L_k2_nl")
    body(False)
    a.label("L_k2_epi")
    stamp(a, 6)
    a("s_mul_i32 s37, s20, 3072")
    a("v_add_u32 v12, s37, v3")
    a("s_xor_b32 s37, s20, 4")
    a("s_mul_i32 s37, s37, 3072")
    a("v_add_u32 v13, s37, v3")
    a("s_nop 4")
    a("s_cmp_eq_u32 s34, 0")
    a("s_cbranch_scc0 L_k2_x1")
    for kq in range(2):
        for i in range(3):
            a("ds_write_b128 v12, %s offset:%d" % (vr(AC + 4 * (2 * i + 1 - kq), 4), 1024 * i))
        for i in range(3):
            for r in range(4):
                a("v_mov_b32 v%d, v%d" % (FRB + 4 * i + r, AC + 4 * (2 * i + kq) + r))
        if kq == 0:
            a("s_branch L_k2_x2")
            a.label("L_k2_x1")
    a.label("L_k2_x2")
    a("s_waitcnt lgkmcnt(0)")
    a("s_barrier")
    for i in range(3):
        a("ds_read_b128 %s, v13 offset:%d" % (vr(AC + 4 * i, 4), 1024 * i))
    a("s_mov_b32 s37, 0xffff0000")
    a("s_waitcnt vmcnt(0) lgkmcnt(0)")
    for i in range(3):
        for r in range(4):
            a("v_add_f32 v%d, v%d, v%d" % (FRB + 4 * i + r, FRB + 4 * i + r, AC + 4 * i + r))
        for d in range(2):
            a("v_lshlrev_b32 v%d, 16, v%d" % (AC + 4 * i, 28 + 2 * i + d))
            a("v_and_b32 v%d, s37, v%d" % (AC + 4 * i + 1, 28 + 2 * i + d))
            a("v_add_f32 v%d, v%d, v%d" % (FRB + 4 * i + 2 * d, FRB + 4 * i + 2 * d, AC + 4 * i))
            a("v_add_f32 v%d, v%d, v%d" % (FRB + 4 * i + 2 * d + 1, FRB + 4 * i + 2 * d + 1, AC + 4 * i + 1))
        for d in range(2):
            a("v_cvt_pk_bf16_f32 v%d, v%d, v%d" % (28 + 2 * i + d, FRB + 4 * i + 2 * d, FRB + 4 * i + 2 * d + 1))
    a("buffer_store_dwordx2 v[28:29], v26, s[8:11], 0 offen")
    a("buffer_store_dwordx2 v[30:31], v26, s[8:11], s38 offen")
    a("s_sub_u32 s37, s27, s35")
    a("s_cmp_eq_u32 s37, 4")
    a("s_cbranch_scc1 L_k2_fl")
    a("buffer_store_dwordx2 v[32:33], v26, s[8:11], s39 offen")
    a.label("L_k2_fl")
    a.label("L_p2_end")
    if STAMP:
        a("s_waitcnt vmcnt(0)")
        stamp_dump(a, 2, "L_sd_end")


def main():
    a = Asm()
    hdr = open("cdna_kernels/%s.s.ref" % NAME).read().splitlines()
    for l in hdr:
        if l.startswith(";") and "@launch" not in l:
            a.raw(l)
    if "--list" in sys.argv:
        a.raw("; @launch kernel=%s_kernel grid=(256,1,1) block=(512,1,1) lds=%d" % (NAME, K1_LDS))
    else:
        a.raw("; @launch grid=(256,1,1) block=(512,1,1) lds=%d" % K1_LDS)
    a.raw('.amdgcn_target "amdgcn-amd-amdhsa--gfx950"')
    ks = [gen_k1(a)]
    for (n, v, s) in ks:
        kernel_desc(a, n, v, s)
    av = [x for x in sys.argv[1:] if x.endswith(".s")]
    out = av[0] if av else "cdna_kernels/%s.s" % NAME
    open(out, "w").write(a.text())


main()
```

```python
import sys, struct, re

NAME = "parallel_sum__sliding_local_dilated__geglu_ffn__prompt"
ST_OFF = 0
ST_CS = 256 * 128
FLG = 65536
ST_BYTES = FLG + 256 * 128
ACT_OFF = 4 << 20
ACT_MT = 75 * 1024
ACT_BYTES = 128 * ACT_MT
BIG = 0x40000000
LOG2E = 1.4426950408889634
STAMP = "--stamp" in sys.argv
STAMP_OFF = 32 << 20
SCF = "sc0 sc1" if "--sc01" in sys.argv else "sc1"
MF = 32 if "--mf32" in sys.argv else 16
ROT = 0 if "--norot" in sys.argv else 1
RP = int(sys.argv[sys.argv.index("--rp") + 1]) if "--rp" in sys.argv else 5


def f2u(x):
    return struct.unpack("<I", struct.pack("<f", x))[0]


class Asm:
    def __init__(self):
        self.l = []
        self.vm = []

    def __call__(self, s, tag=None):
        m = re.match(r"s_cselect_b32 (s\d+), (\d+|0x[0-9a-f]+), (\d+|0x[0-9a-f]+)$", s)
        if m and int(m.group(2), 0) > 64 and int(m.group(3), 0) > 64:
            self.l.append("    s_mov_b32 %s, %s" % (m.group(1), m.group(3)))
            s = "s_cselect_b32 %s, %s, %s" % (m.group(1), m.group(2), m.group(1))
        self.l.append("    " + s)
        if s.startswith("buffer_") or s.startswith("global_"):
            kind = "D" if s.endswith(" lds") else ("L" if ("_load" in s or ("atomic" in s and " sc0" in s)) else "S")
            self.vm.append((tag, kind))

    def vmwait(self, tags):
        best = None
        for kind in "DLS":
            idx = [i for i, (t, k) in enumerate(self.vm) if t in tags and k == kind]
            if not idx:
                continue
            if kind == "S":
                n = sum(1 for (t, k) in self.vm[max(idx) + 1:] if k == "D")
            else:
                n = sum(1 for (t, k) in self.vm[max(idx) + 1:] if k == kind)
            best = n if best is None else min(best, n)
        return None if best is None else min(63, best)

    def label(self, s):
        self.l.append(s + ":")

    def raw(self, s):
        self.l.append(s)

    def text(self):
        return "\n".join(self.l) + "\n"


def vr(a, n):
    return "v[%d:%d]" % (a, a + n - 1)


def sr(a, n):
    return "s[%d:%d]" % (a, a + n - 1)


def kernel_header(a, name):
    a.raw(".text")
    a.raw(".globl %s" % name)
    a.raw(".p2align 8")
    a.raw(".type %s,@function" % name)
    a.label(name)


def kernel_desc(a, name, vgpr, sgpr):
    a.raw('.section .rodata,"a"')
    a.raw(".p2align 6")
    a.raw(".amdhsa_kernel %s" % name)
    a.raw("  .amdhsa_next_free_vgpr %d" % vgpr)
    a.raw("  .amdhsa_next_free_sgpr %d" % sgpr)
    a.raw("  .amdhsa_accum_offset %d" % ((vgpr + 3) // 4 * 4))
    a.raw("  .amdhsa_group_segment_fixed_size 0")
    a.raw("  .amdhsa_kernarg_size 80")
    a.raw("  .amdhsa_user_sgpr_count 2")
    a.raw("  .amdhsa_user_sgpr_kernarg_segment_ptr 1")
    a.raw("  .amdhsa_system_sgpr_workgroup_id_x 1")
    a.raw(".end_amdhsa_kernel")


def stamp_e(a, idx):
    if STAMP and "--epi" in sys.argv:
        a("s_memtime %s" % sr(80 + 2 * idx, 2))


def stamp(a, idx):
    if STAMP and not ("--epi" in sys.argv and idx in (1, 2, 3, 4, 5) and not getattr(a, "p2", False)):
        a("s_memtime %s" % sr(80 + 2 * idx, 2))


def stamp_start(a):
    if STAMP:
        a("s_memtime s[80:81]")
        a("s_memrealtime s[98:99]")


def stamp_flush(a, wave_sgpr, wslo, wshi, kidx, endlabel):
    if not STAMP:
        return
    stamp(a, 7)
    a("s_waitcnt vmcnt(0)")
    a("s_memtime s[96:97]")
    a("s_memrealtime s[100:101]")
    a("s_waitcnt lgkmcnt(0)")
    a("s_cmp_lg_u32 s%d, 0" % wave_sgpr)
    a("s_cbranch_scc1 %s" % endlabel)
    make_srd(a, 76, wslo, wshi, 1 << 20, STAMP_OFF + kidx * 65536)
    a("s_lshl_b32 s3, s2, 6")
    a("v_mov_b32 v0, s3")
    for i in range(9):
        a("v_mov_b32 v1, s%d" % (80 + 2 * i))
        a("buffer_store_dword v1, v0, s[76:79], 0 offen offset:%d" % (4 * i))
    a("v_mov_b32 v1, s98")
    a("buffer_store_dword v1, v0, s[76:79], 0 offen offset:56")
    a("v_mov_b32 v1, s100")
    a("buffer_store_dword v1, v0, s[76:79], 0 offen offset:60")


def stamp_dump(a, kidx, lbl):
    if not STAMP:
        return
    a("s_memtime s[96:97]")
    a("s_memrealtime s[100:101]")
    a("s_waitcnt lgkmcnt(0)")
    a("s_cmp_lg_u32 s56, 0")
    a("s_cbranch_scc1 %s" % lbl)
    make_srd(a, 76, 22, 23, 1 << 20, STAMP_OFF + kidx * 65536)
    a("s_lshl_b32 s3, s2, 6")
    a("v_mov_b32 v7, s3")
    for i in range(9):
        a("v_mov_b32 v1, s%d" % (80 + 2 * i))
        a.l.append("    buffer_store_dword v1, v7, s[76:79], 0 offen offset:%d" % (4 * i))
    a("v_mov_b32 v1, s98")
    a.l.append("    buffer_store_dword v1, v7, s[76:79], 0 offen offset:56")
    a("v_mov_b32 v1, s100")
    a.l.append("    buffer_store_dword v1, v7, s[76:79], 0 offen offset:60")
    a.label(lbl)


def make_srd(a, d, lo, hi, nbytes, off=0):
    if off:
        a("s_add_u32 s%d, s%d, 0x%x" % (d, lo, off))
        a("s_addc_u32 s%d, s%d, 0" % (d + 1, hi))
    else:
        a("s_mov_b32 s%d, s%d" % (d, lo))
        a("s_mov_b32 s%d, s%d" % (d + 1, hi))
    a("s_mov_b32 s%d, 0x%x" % (d + 2, nbytes))
    a("s_mov_b32 s%d, 0x00020000" % (d + 3))


ACC = 64
FR0 = 160
PITCH = 168
REG_K = 0
REG_V = 192 * PITCH
REG_Q = 2 * 192 * PITCH
SCR = 148480
CSL = SCR + 2048
P2_B = 98304
OSTG = P2_B + 3 * 8192
K1_LDS = P2_B + 7 * 8192
SX, SW, SACT, SST, SCS, SPF1, SPF2, SDBG = 24, 28, 32, 36, 40, 44, 48, 52
S_W, S_XCD, S_SLOT, S_WM, S_WN, S_FB, S_RB = 56, 57, 58, 59, 60, 61, 62
S_SOA, S_SOB = 64, 65
V_RLO, V_CLO = 30, 31
V_RSO, V_CSO, V_ATO, V_SCW, V_SCR = 32, 33, 34, 35, 29
RL = 36
CL = 44
SEL = 240
CD = 244
TT = 248


def k2_prefetch():
    D = TT + 4
    return [["s_lshl_b32 s66, s2, 3", "s_add_u32 s66, s66, s%d" % S_W, "s_lshl_b32 s66, s66, 10",
             ("buffer_load_dwordx4 %s, v3, %s, s66 offen" % (vr(D, 4), sr(SPF1, 4)), "PF"),
             ("buffer_load_dwordx4 %s, v3, %s, s66 offen" % (vr(D, 4), sr(SPF2, 4)), "PF"),
             "s_add_u32 s66, s66, 0x200000",
             ("buffer_load_dwordx4 %s, v3, %s, s66 offen" % (vr(D, 4), sr(SPF1, 4)), "PF")]]


def tlb_warm(a):
    tab = [(4, 2048 * 1280), (6, 640 * 3840), (12, 640 * 3456), (14, 640 * 3456), (16, 1728 * 1280), (8, 640 * 1280),
           (18, 2048 * 1280)]
    a("s_cmp_eq_u32 s%d, 7" % S_W)
    a("s_cbranch_scc1 L_tw7")
    make_srd(a, SCS, tab[0][0], tab[0][0] + 1, tab[0][1])
    for w in range(1, 7):
        a("s_cmp_eq_u32 s%d, %d" % (S_W, w))
        a("s_cselect_b32 s%d, s%d, s%d" % (SCS, tab[w][0], SCS))
        a("s_cselect_b32 s%d, s%d, s%d" % (SCS + 1, tab[w][0] + 1, SCS + 1))
        a("s_cselect_b32 s%d, %d, s%d" % (SCS + 2, tab[w][1], SCS + 2))
    a("v_lshlrev_b32 v1, 16, v2")
    a("buffer_load_dword v%d, v1, %s, 0 offen" % (TT + 7, sr(SCS, 4)), "TW")
    a("s_branch L_tw_done")
    a.label("L_tw7")
    make_srd(a, SCS, 22, 23, ACT_OFF + ACT_BYTES)
    a("s_and_b32 s66, s2, 1")
    a("s_lshl_b32 s66, s66, 6")
    a("v_add_u32 v1, s66, v2")
    a("v_mul_u32_u24 v1, %d, v1" % ACT_MT)
    a("v_add_u32 v1, %d, v1" % (ACT_OFF + 74 * 1024))
    a("v_cmp_eq_u32 vcc, 0, v2")
    a("v_mov_b32 v%d, 61440" % (TT + 7))
    a("s_nop 0")
    a("v_cndmask_b32 v1, v1, v%d, vcc" % (TT + 7))
    a.l.append("    buffer_load_dword v%d, v1, %s, 0 offen" % (TT + 7, sr(SCS, 4)))
    a.label("L_tw_done")


def tlb_warm_act(a):
    if "--act" not in sys.argv:
        a("s_waitcnt vmcnt(0)")
        return
    make_srd(a, SCS, 22, 23, ACT_OFF + ACT_BYTES)
    a("v_mul_u32_u24 v1, 0x5000, v0")
    a("v_add_u32 v1, %d, v1" % ACT_OFF)
    a("buffer_store_dword v1, v1, %s, 0 offen sc1" % sr(SCS, 4))
    a("s_waitcnt vmcnt(0)")


def l2_warm(a):
    D = TT + 6
    a("s_lshr_b32 s66, s2, 3")
    a("s_lshl_b32 s66, s66, 3")
    a("s_add_u32 s66, s66, s%d" % S_W)
    a("v_mul_u32_u24 v5, 43, v2")
    a("v_lshrrev_b32 v5, 8, v5")
    a("v_mul_u32_u24 v6, 6, v5")
    a("v_sub_u32 v6, v2, v6")
    a("v_lshlrev_b32 v5, 8, v5")
    a("v_add_u32 v5, s66, v5")
    a("v_mov_b32 v9, 0x%x" % BIG)
    a("v_cmp_gt_u32 vcc, 18, v2")
    a("v_cmp_gt_u32 s[68:69], 3, v6")
    a("v_mul_u32_u24 v7, 3840, v5")
    a("v_lshrrev_b32 v8, 1, v6")
    a("v_mul_u32_u24 v8, 1280, v8")
    a("v_and_b32 v1, 1, v6")
    a("v_lshl_add_u32 v8, v1, 7, v8")
    a("v_add_u32 v7, v7, v8")
    a("v_cndmask_b32 v7, v9, v7, vcc")
    a("s_mul_i32 s67, s78, 160")
    a("s_and_b32 s67, s67, 0xffffff80")
    make_srd(a, SCS, 6, 7, 640 * 3840)
    a("buffer_load_dword v%d, v7, %s, s67 offen" % (D, sr(SCS, 4)), "LW")
    a("s_and_b64 vcc, vcc, s[68:69]")
    a("v_mul_u32_u24 v7, 3456, v5")
    a("v_lshl_add_u32 v7, v6, 7, v7")
    a("s_mul_i32 s67, s78, 384")
    a("v_cndmask_b32 v7, v9, v7, vcc")
    make_srd(a, SCS, 12, 13, 640 * 3456)
    a("buffer_load_dword v%d, v7, %s, s67 offen" % (D, sr(SCS, 4)), "LW")
    make_srd(a, SCS, 14, 15, 640 * 3456)
    a("buffer_load_dword v%d, v7, %s, s67 offen" % (D, sr(SCS, 4)), "LW")


def p2_map(a, d):
    a("s_and_b32 s%d, s2, 7" % d)
    a("s_lshr_b32 s%d, s2, 3" % (d + 1))
    a("s_cmp_ge_u32 s%d, 2" % d)
    a("s_cselect_b32 s%d, 12, 31" % (d + 2))
    a("s_cselect_b32 s%d, 12, 99" % (d + 3))
    a("s_cmp_eq_u32 s%d, s%d" % (d + 1, d + 3))
    a("s_cselect_b32 s%d, 1, 0" % (d + 4))
    a("s_cmp_eq_u32 s%d, 31" % (d + 1))
    a("s_cselect_b32 s%d, s%d, s%d" % (d + 1, d + 2, d + 1))
    a("s_min_u32 s%d, s%d, 2" % (d + 2, d))
    a("s_mul_i32 s%d, s%d, 31" % (d, d))
    a("s_add_u32 s%d, s%d, s%d" % (d, d, d + 2))
    a("s_add_u32 s%d, s%d, s%d" % (d + 1, d, d + 1))
    a("s_mul_i32 s%d, s%d, 205" % (d, d + 1))
    a("s_lshr_b32 s%d, s%d, 11" % (d, d))
    a("s_mul_i32 s%d, s%d, 10" % (d + 2, d))
    a("s_sub_u32 s%d, s%d, s%d" % (d + 1, d + 1, d + 2))
    a("s_mul_i32 s%d, s%d, 6" % (d + 2, d))
    a("s_mul_i32 s%d, s%d, 5" % (d + 3, d))
    a("s_add_u32 s%d, s%d, 3" % (d + 3, d + 3))
    a("s_cmp_lt_u32 s%d, 3" % d)
    a("s_cselect_b32 s%d, s%d, s%d" % (d + 2, d + 2, d + 3))
    a("s_cselect_b32 s%d, 6, 5" % (d + 3))


P2V = 20


def p2_early(a, split=False):
    p2_map(a, 64)
    a("v_bfe_u32 v17, v2, 1, 2")
    a("v_bfe_u32 v18, v2, 4, 1")
    a("v_xor_b32 v17, v17, v18")
    a("v_and_b32 v18, 1, v2")
    a("v_lshlrev_b32 v17, 5, v17")
    a("v_lshl_add_u32 v17, v18, 4, v17")
    a("s_and_b32 s3, s%d, 1" % S_W)
    a("s_lshl_b32 s3, s3, 6")
    a("v_xor_b32 v17, s3, v17")
    a("v_lshrrev_b32 v18, 3, v2")
    a("v_mul_u32_u24 v18, 1280, v18")
    a("s_mul_i32 s3, s%d, %d" % (S_W, 8 * 1280))
    a("s_lshl_b32 s64, s65, 7")
    a("s_add_u32 s3, s3, s64")
    a("v_add3_u32 v%d, v17, v18, s3" % P2V)
    a("s_lshl_b32 s65, s%d, 10" % S_W)
    a("s_mov_b32 s64, 0")
    p2_early_b(a, range(3 if split else 6))


def p2_early_b(a, sts):
    for st in sts:
        a("s_add_u32 m0, s65, 0x%x" % (P2_B + st * 8192))
        a("s_nop 0")
        a("buffer_load_dwordx4 v%d, %s, s64 offen lds" % (P2V, sr(SPF1, 4)))
        a("s_add_u32 s64, s64, %d" % (64 * 1280))


def p1_done(a, cnt_sgpr_expr):
    a("s_lshl_b32 s3, s2, 7")
    a("s_add_u32 s3, s3, %d" % FLG)
    a("v_mov_b32 v1, 0x%x" % BIG)
    a("v_mov_b32 v5, s3")
    a("v_cmp_eq_u32 vcc, 0, v0")
    a("v_mov_b32 v6, 1")
    a("s_waitcnt vmcnt(0)")
    a("s_barrier")
    a("v_cndmask_b32 v1, v1, v5, vcc")
    a("buffer_store_dword v6, v1, %s, 0 offen sc1" % sr(SST, 4))
    stamp_dump(a, 1, "L_sd_%d" % len(a.l))
    a("s_branch L_phase2")


def stats_setup(a):
    a("s_lshl_b32 s66, s2, 3")
    a("s_add_u32 s66, s66, s%d" % S_W)
    a("s_mul_i32 s67, s66, 1280")
    a("v_mov_b32 v9, 0x%x" % BIG)
    a("v_add_u32 v1, s67, v3")
    a("v_cmp_gt_u32 vcc, 40, v2")
    a("s_lshl_b32 s67, s2, 7")
    a("v_lshl_add_u32 v5, v2, 3, s67")
    a("v_cndmask_b32 v%d, v9, v1, vcc" % V_RLO)
    a("v_cmp_gt_u32 vcc, 16, v0")
    a("s_cmp_ge_u32 s%d, 6" % S_SLOT)
    a("s_cselect_b32 s68, 2, 1")
    a("v_cndmask_b32 v%d, v9, v5, vcc" % V_RSO)
    a("s_cselect_b32 s67, 6, 0")
    a("s_sub_u32 s66, s%d, s67" % S_SLOT)
    a("s_mul_i32 s69, s%d, 6" % S_XCD)
    a("s_add_u32 s69, s69, s66")
    a("s_sub_u32 s66, s%d, 12" % S_SLOT)
    a("s_lshl_b32 s66, s66, 3")
    a("s_add_u32 s66, s66, s%d" % S_XCD)
    a("s_mov_b32 s73, 0")
    a("s_cmp_ge_u32 s66, 60")
    a("s_cselect_b32 s73, 1, s73")
    a("s_cselect_b32 s75, 12, 0")
    a("s_sub_u32 s74, s66, s75")
    a("s_cmp_ge_u32 s66, 66")
    a("s_cselect_b32 s73, 2, s73")
    a("s_cselect_b32 s75, 6, 0")
    a("s_sub_u32 s74, s74, s75")
    a("s_cmp_ge_u32 s%d, 12" % S_SLOT)
    a("s_cselect_b32 s68, s73, s68")
    a("s_cselect_b32 s69, s74, s69")
    a("s_cmp_ge_u32 s%d, 21" % S_SLOT)
    a("s_cselect_b32 s71, 1, 0")
    a("s_cmp_eq_u32 s68, 1")
    a("s_cselect_b32 s%d, s12, s14" % SCS)
    a("s_cselect_b32 s%d, s13, s15" % (SCS + 1))
    a("s_cselect_b32 s72, 1920, 3648")
    a("s_cmp_eq_u32 s68, 0")
    a("s_cselect_b32 s%d, s6, s%d" % (SCS, SCS))
    a("s_cselect_b32 s%d, s7, s%d" % (SCS + 1, SCS + 1))
    a("s_cselect_b32 s72, 0, s72")
    a("s_cselect_b32 s73, 3840, 3456")
    a("s_mul_i32 s%d, s73, 640" % (SCS + 2))
    a("s_mov_b32 s%d, 0x00020000" % (SCS + 3))
    a("v_lshrrev_b32 v1, 4, v2")
    a("v_bfe_u32 v5, v2, 2, 2")
    a("v_lshl_add_u32 v1, v1, 2, v5")
    a("s_lshl_b32 s75, s%d, 4" % S_W)
    a("v_add_u32 v1, s75, v1")
    a("v_mul_lo_u32 v1, v1, s73")
    a("v_and_b32 v5, 3, v2")
    a("v_lshl_add_u32 v1, v5, 4, v1")
    a("s_lshl_b32 s74, s69, 6")
    a("s_cmp_eq_u32 s71, 1")
    a("s_cselect_b32 s74, 0x%x, s74" % BIG)
    a("v_add_u32 v%d, s74, v1" % V_CLO)
    a("s_lshl_b32 s77, s73, 7")
    a("s_lshl_b32 s75, s69, 5")
    a("s_add_u32 s74, s72, s75")
    a("s_lshl_b32 s74, s74, 2")
    a("s_add_u32 s74, s74, %d" % ST_CS)
    a("s_or_b32 s75, s71, s%d" % S_W)
    a("s_cmp_eq_u32 s75, 0")
    a("s_cselect_b32 s74, s74, 0x%x" % BIG)
    a("v_lshl_add_u32 v1, v2, 2, s74")
    a("v_cmp_gt_u32 vcc, 32, v2")
    a("v_and_b32 v5, 15, v2")
    a("v_lshlrev_b32 v6, 4, v5")
    a("v_cndmask_b32 v%d, v9, v1, vcc" % V_CSO)
    a("v_cmp_gt_u32 vcc, 8, v5")
    a("s_lshl_b32 s74, s%d, 7" % S_W)
    a("s_add_u32 s74, s74, %d" % SCR)
    a("v_add_u32 v7, s74, v6")
    a("v_add_u32 v6, %d, v6" % (SCR + 1024))
    a("v_cndmask_b32 v%d, v6, v7, vcc" % V_SCW)
    for d in range(4):
        a("v_cmp_eq_u32 vcc, %d, v5" % (2 * d))
        a("v_mov_b32 v6, 0x3f80")
        a("v_cmp_eq_u32 s[68:69], %d, v5" % (2 * d + 1))
        a("v_cndmask_b32 v%d, 0, v6, vcc" % (SEL + d))
        a("v_mov_b32 v6, 0x3f800000")
        a("v_cndmask_b32 v%d, v%d, v6, s[68:69]" % (SEL + d, SEL + d))
    a("v_and_b32 v5, 7, v2")
    a("v_bfe_u32 v6, v2, 3, 2")
    a("v_lshlrev_b32 v6, 2, v6")
    a("v_lshl_add_u32 v5, v5, 4, v6")
    a("v_cmp_eq_u32 vcc, 0, v0")
    a("v_add_u32 v%d, %d, v5" % (V_SCR, SCR))
    a("s_lshl_b32 s76, s77, 1")
    a("v_mov_b32 v5, 240")
    a("v_cndmask_b32 v%d, v9, v5, vcc" % V_ATO)
    a("s_add_u32 s75, s76, s77")
    a("s_lshl_b32 s74, s77, 2")


def stats_loads():
    o = [("buffer_load_dwordx4 %s, v%d, %s, 0 offen" % (vr(RL, 4), V_RLO, sr(SX, 4)), "SL"),
         ("buffer_load_dwordx4 %s, v%d, %s, 0 offen offset:640" % (vr(RL + 4, 4), V_RLO, sr(SX, 4)), "SL")]
    for i in (1, 2, 0, 3, 4):
        so = ["0", "s77", "s76", "s75", "s74"][i]
        o.append(("buffer_load_dwordx4 %s, v%d, %s, %s offen" % (vr(CL + 4 * i, 4), V_CLO, sr(SCS, 4), so), "SL"))
    return o


def xreduce(regs, tmps, op="v_add_f32", swaps=("v_permlane16_swap_b32", "v_permlane32_swap_b32")):
    o = []
    for swp in swaps:
        for v, t in zip(regs, tmps):
            o.append("v_mov_b32 v%d, v%d" % (t, v))
        o.append("s_nop 1")
        for v, t in zip(regs, tmps):
            o.append("%s v%d, v%d" % (swp, v, t))
        o.append("s_nop 1")
        for v, t in zip(regs, tmps):
            o.append("%s v%d, v%d, v%d" % (op, v, v, t))
    return o


def stats_segA():
    o = []
    T = TT
    for i in range(5):
        o.append("v_mfma_f32_16x16x32_bf16 %s, %s, %s, %s" % (vr(CD, 4), vr(CL + 4 * i, 4), vr(SEL, 4), "0" if i == 0 else vr(CD, 4)))
    o.append("v_mov_b32 v%d, 0x3f803f80" % (T + 4))
    for d in range(8):
        c = "0" if d < 2 else "v%d" % (T + d % 2)
        o.append("v_dot2_f32_bf16 v%d, v%d, v%d, %s" % (T + d % 2, RL + d, T + 4, c))
        c = "0" if d < 2 else "v%d" % (T + 2 + d % 2)
        o.append("v_dot2_f32_bf16 v%d, v%d, v%d, %s" % (T + 2 + d % 2, RL + d, RL + d, c))
    o.append("s_nop 2")
    o.append("v_add_f32 v%d, v%d, v%d" % (T, T, T + 1))
    o.append("v_add_f32 v%d, v%d, v%d" % (T + 2, T + 2, T + 3))
    for sh in (8, 4, 2, 1):
        o.append("s_nop 1")
        for v in (T, T + 2):
            o.append("v_add_f32_dpp v%d, v%d, v%d row_ror:%d row_mask:0xf bank_mask:0xf" % (v, v, v, sh))
    o += xreduce([T, T + 2, CD, CD + 1, CD + 2, CD + 3], [T + 1, T + 3, CL, CL + 1, CL + 2, CL + 3])
    o.append("ds_write_b128 v%d, %s" % (V_SCW, vr(CD, 4)))
    o.append("v_mul_f32 v%d, 0x%x, v%d" % (T, f2u(1.0 / 640.0), T))
    o.append("v_mul_f32 v%d, 0x%x, v%d" % (T + 2, f2u(1.0 / 640.0), T + 2))
    o.append("v_fma_f32 v%d, -v%d, v%d, v%d" % (T + 2, T, T, T + 2))
    o.append("v_max_f32 v%d, 0, v%d" % (T + 2, T + 2))
    o.append("v_cvt_pk_bf16_f32 v%d, v%d, v%d" % (T + 1, T, T + 2))
    o.append("v_lshlrev_b32 v%d, 16, v%d" % (T + 4, T + 1))
    o.append("v_and_b32 v%d, 0xffff0000, v%d" % (T + 5, T + 1))
    o.append("v_add_f32 v%d, 0x%x, v%d" % (T + 5, f2u(1e-5), T + 5))
    o.append("v_cvt_pk_bf16_f32 v%d, v%d, v%d" % (T + 5, T + 5, T + 5))
    o.append("v_lshlrev_b32 v%d, 16, v%d" % (T + 5, T + 5))
    o.append("v_sqrt_f32 v%d, v%d" % (T + 5, T + 5))
    o.append("s_nop 0")
    o.append("v_cvt_pk_bf16_f32 v%d, v%d, v%d" % (T + 5, T + 5, T + 5))
    o.append("v_lshlrev_b32 v%d, 16, v%d" % (T + 5, T + 5))
    o.append(["s_lshl_b32 s66, s%d, 3" % S_W, "s_add_u32 s66, s66, %d" % (SCR + 1536), "v_mov_b32 v%d, s66" % T])
    o.append("ds_write_b64 v%d, %s offset:%d" % (T, vr(T + 4, 2), 0))
    return o


def stats_segB():
    return ["ds_read_b32 v%d, v%d offset:%d" % (CL + w, V_SCR, 128 * w) for w in range(8)] + \
           ["v_and_b32 v%d, 7, v2" % TT, "v_lshlrev_b32 v%d, 3, v%d" % (TT, TT), "v_add_u32 v%d, %d, v%d" % (TT, SCR + 1536, TT),
            "ds_read_b64 %s, v%d" % (vr(TT + 2, 2), TT)]


def stats_segC():
    o = []
    for (x, y) in ((0, 1), (2, 3), (4, 5), (6, 7), (0, 2), (4, 6), (0, 4)):
        o.append("v_add_f32 v%d, v%d, v%d" % (CL + x, CL + x, CL + y))
    o.append(("buffer_store_dword v%d, v%d, %s, 0 offen sc1" % (CL, V_CSO, sr(SST, 4)), "ST"))
    o.append(("buffer_store_dwordx2 %s, v%d, %s, 0 offen sc1" % (vr(TT + 2, 2), V_RSO, sr(SST, 4)), "ST"))
    return o


def stats_signal():
    return ["v_mov_b32 v%d, 1" % TT,
            ("buffer_atomic_add v%d, v%d, %s, 0 offen" % (TT, V_ATO, sr(SDBG, 4)), "AT")]


def emit(a, x):
    if isinstance(x, list):
        for y in x:
            emit(a, y)
    elif isinstance(x, tuple):
        a(x[0], x[1])
    else:
        a(x)


IT_SIG, IT_POLL, IT_CHK = 8, 15, 17


def k1_mainloop(a, P):
    nI, nJ = P["nI"], P["nJ"]
    NST = 20
    nA, nB = 2 * nI, 2 * nJ

    def fx(p, I, hh):
        return FR0 + 40 * p + 8 * I + 4 * hh

    def fw(p, j, hh):
        return FR0 + 40 * p + 8 * nI + 8 * j + 4 * hh

    def read_ops(stage):
        p = stage % 2
        ops = []
        if MF == 32:
            for hh in range(2):
                for j in range(nJ):
                    for e in range(2):
                        v, imm = P["b_addr"](stage % 4, j)
                        ops.append("ds_read_b64_tr_b16 %s, v%d offset:%d" % (vr(fw(p, j, hh) + 2 * e, 2), v, imm + hh * 2048 + e * 512))
                for I in range(nI):
                    v, imm = P["a_addr"]((stage // 2) % 3, 2 * (stage % 2) + hh, I)
                    ops.append("ds_read_b128 %s, v%d offset:%d" % (vr(fx(p, I, hh), 4), v, imm))
        else:
            for j in range(nB):
                for e in range(2):
                    v, imm = P["b_addr"](stage % 4, j)
                    ops.append("ds_read_b64_tr_b16 %s, v%d offset:%d" % (vr(FR0 + 40 * p + 4 * nA + 4 * j + 2 * e, 2), v, imm + e * 512))
            for i in range(nA - P.get("skipA", 0)):
                v, imm = P["a_addr"]((stage // 2) % 3, stage % 2, i)
                ops.append("ds_read_b128 %s, v%d offset:%d" % (vr(FR0 + 40 * p + 4 * i, 4), v, imm))
        return ops

    def mfmas(it):
        p = it % 2
        o = []
        if MF == 32:
            for hh in range(2):
                for I in range(nI):
                    for j in range(nJ):
                        acc = ACC + 16 * (I * nJ + j)
                        c = "0" if (it == 0 and hh == 0) else vr(acc, 16)
                        o.append("v_mfma_f32_32x32x16_bf16 %s, %s, %s, %s" % (vr(acc, 16), vr(fw(p, j, hh), 4), vr(fx(p, I, hh), 4), c))
        else:
            for i in range(nA - P.get("skipA", 0)):
                for j in range(nB):
                    acc = ACC + 4 * (i * nB + j)
                    c = "0" if it == 0 else vr(acc, 4)
                    o.append("v_mfma_f32_16x16x32_bf16 %s, %s, %s, %s" % (vr(acc, 4), vr(FR0 + 40 * p + 4 * nA + 4 * j, 4), vr(FR0 + 40 * p + 4 * i, 4), c))
        return o

    def pro(ops):
        for (m, d, tag, adv) in ops:
            a(m)
            a("s_nop 0")
            a(d, tag)
            for x in adv:
                a(x)
    B, A = P["bdma"], P["adma"]
    pro(B(0))
    pro(sum(A(0), []))
    pro(B(1))
    pro(sum(A(1), []))
    for x in stats_loads()[:3]:
        emit(a, x)
    for x in P.get("early", []):
        emit(a, x)
    stamp(a, 4)
    a("s_waitcnt vmcnt(%d)" % a.vmwait({"B0", "A0"}))
    a("s_barrier")
    stamp(a, 5)
    for x in read_ops(0):
        a(x)
    for it in range(NST):

        p = it % 2
        tags = set()
        if it + 1 < NST:
            tags |= {"B%d" % (it + 1), "A%d" % ((it + 1) // 2)}
        tags |= P["toptags"].get(it, set())
        n = a.vmwait(tags)
        if n is not None:
            a("s_waitcnt vmcnt(%d) lgkmcnt(0)" % n)
        else:
            a("s_waitcnt lgkmcnt(0)")
        if it == IT_CHK:
            nm = P["name"]
            a("s_mov_b32 s66, 0")
            a.label("L_poll_%s" % nm)
            a("v_readfirstlane_b32 s67, v%d" % TT)
            a("s_add_u32 s66, s66, 1")
            a("s_cmp_ge_u32 s67, 256")
            a("s_cbranch_scc1 L_pollok_%s" % nm)
            a("s_cmp_ge_u32 s66, 0x40000")
            a("s_cbranch_scc1 L_pollok_%s" % nm)
            a("s_sleep 2")
            a.l.append("    buffer_load_dword v%d, v%d, %s, 0 offen sc1" % (TT, TT + 1, sr(SDBG, 4)))
            a("s_waitcnt vmcnt(0)")
            a("s_branch L_poll_%s" % nm)
            a.label("L_pollok_%s" % nm)
        a("s_barrier")
        dm = []
        if it == 0:
            dm = B(2) + B(3) + A(2)[0]
        elif it == 1:
            dm = B(4) + B(5) + A(2)[1]
        elif it == 2:
            dm = B(6) + A(3)[0] + A(3)[1]
        else:
            if it + 4 < NST:
                dm += B(it + 4)
            S = (it - 1) // 2 + 3
            if S < 10:
                dm += A(S)[(it - 1) % 2]
        rd = read_ops(it + 1) if it + 1 < NST else []
        stream = []
        for (m, d, tag, adv) in dm:
            mid = rd.pop(0) if rd else "s_nop 0"
            stream.append([m, mid, (d, tag)] + adv)
        stream += [[x] for x in rd]
        stream += [[x] for x in P["bg"].get(it, [])]
        mf = mfmas(it)
        ngap = len(mf)
        for gi, x in enumerate(mf):
            a(x)
            k = (len(stream) + (ngap - gi) - 1) // (ngap - gi) if MF == 32 else min(len(stream), max(1, (len(stream) + (ngap - gi) - 1) // (ngap - gi)))
            for _ in range(k):
                if stream:
                    emit(a, stream.pop(0))
        for x in stream:
            emit(a, x)
    stamp(a, 6)


def adv(r, inc, tot):
    return ["s_add_u32 s%d, s%d, %d" % (r, r, inc), "s_cmp_ge_u32 s%d, %d" % (r, tot), "s_cselect_b32 s%d, 0, s%d" % (r, r)]


def split_bg(lst, its):
    n = (len(lst) + len(its) - 1) // len(its)
    return {it: lst[i * n:(i + 1) * n] for i, it in enumerate(its)}


def std_bg(pre, tail17, tail19):
    sl = stats_loads()
    bg = {0: sl[3:7]}
    bg.update(split_bg(stats_segA(), [2, 3]))
    bg[9] = k2_prefetch()
    bg[4] = stats_segB()
    bg[5] = stats_segC()
    bg[IT_SIG] = stats_signal()
    bg.update(split_bg(pre, [12, 13, 14]))
    bg[IT_POLL] = [("buffer_load_dword v%d, v%d, %s, 0 offen sc1" % (TT, TT + 1, sr(SDBG, 4)), "POLL")]
    bg[IT_CHK] = tail17
    bg[19] = tail19
    top = {2: {"SL"}, IT_SIG: {"ST"}, IT_CHK: {"POLL"}, 19: {"TL"}}
    return bg, top


def gen_k1(a):
    name = NAME + "_kernel"
    kernel_header(a, name)
    a("s_cmp_ge_u32 s2, 256")
    a("s_cbranch_scc1 L_k1_end")
    stamp_start(a)
    a("s_load_dwordx4 s[20:23], s[0:1], 64")
    a("s_load_dwordx4 s[4:7], s[0:1], 0")
    a("s_load_dwordx2 s[8:9], s[0:1], 16")
    a("s_load_dwordx4 s[12:15], s[0:1], 32")
    a("s_load_dwordx4 s[16:19], s[0:1], 48")
    a("v_lshrrev_b32 v1, 6, v0")
    a("v_and_b32 v2, 63, v0")
    a("v_readfirstlane_b32 s%d, v1" % S_W)
    a("v_lshlrev_b32 v3, 4, v2")
    a("s_getreg_b32 s78, hwreg(HW_REG_XCC_ID)")
    a("s_and_b32 s%d, s2, 7" % S_XCD)
    a("s_lshr_b32 s%d, s2, 3" % S_SLOT)
    a("s_and_b32 s78, s78, 7")
    a("s_lshl_b32 s66, s78, 5")
    a("v_mov_b32 v17, s66")
    a("v_mov_b32 v1, 0x%x" % BIG)
    a("v_cmp_eq_u32 vcc, 0, v0")
    a("v_mov_b32 v18, 1")
    a("s_lshr_b32 s%d, s%d, 2" % (S_WM, S_W))
    a("s_and_b32 s%d, s%d, 3" % (S_WN, S_W))
    a("v_cndmask_b32 v17, v1, v17, vcc")
    a("s_waitcnt lgkmcnt(0)")
    stamp(a, 1)
    make_srd(a, SDBG, 20, 21, 256)
    a.vm = []
    a("s_cmp_lg_u32 s%d, 0" % S_W)
    a("s_cbranch_scc1 L_tk_skip")
    a("buffer_atomic_add v18, v17, %s, 0 offen sc0" % sr(SDBG, 4), "TK")
    a.label("L_tk_skip")
    make_srd(a, SX, 4, 5, 2048 * 1280)
    make_srd(a, SACT, 22, 23, ACT_BYTES, ACT_OFF)
    make_srd(a, SST, 22, 23, ST_BYTES, ST_OFF)
    make_srd(a, SPF1, 16, 17, 1728 * 1280)
    make_srd(a, SPF2, 8, 9, 640 * 1280)
    tlb_warm(a)
    if "--lw" in sys.argv:
        l2_warm(a)
    stats_setup(a)
    a("v_lshrrev_b32 v4, 4, v2")
    a("v_lshlrev_b32 v5, 10, v4")
    a("v_bfe_u32 v6, v2, 2, 2")
    a("v_lshl_add_u32 v5, v6, 7, v5")
    a("v_and_b32 v6, 3, v2")
    a("v_lshl_add_u32 v5, v6, 3, v5")
    a("v_bfe_u32 v6, v2, 3, 2")
    a("v_bfe_u32 v26, v2, 4, 1")
    a("v_lshrrev_b32 v7, 3, v2")
    a("v_bfe_u32 v8, v2, 1, 2")
    a("v_xor_b32 v8, v8, v26")
    a("v_and_b32 v9, 1, v2")
    a("v_and_b32 v10, 7, v2")
    a("v_lshrrev_b32 v11, 4, v2")
    a("v_xor_b32 v10, v10, v11")
    a("v_lshlrev_b32 v10, 4, v10")
    a("v_mul_u32_u24 v11, 1280, v7")
    a("v_add_u32 v10, v10, v11")
    a("v_bfe_u32 v15, v2, 1, 3")
    a("v_xor_b32 v15, v15, v4")
    a("v_lshlrev_b32 v15, 4, v15")
    a("v_and_b32 v16, 7, v2")
    a("v_lshl_add_u32 v15, v16, 7, v15")
    a("v_bfe_u32 v16, v2, 3, 1")
    a("v_lshl_add_u32 v15, v16, 10, v15")
    a("s_cmp_lg_u32 s%d, 0" % S_W)
    a("s_cbranch_scc1 L_tk_done")
    a("s_mov_b32 s67, 0")
    a("s_waitcnt vmcnt(%d)" % a.vmwait({"TK"}))
    a.label("L_tk_loop")
    a("v_readfirstlane_b32 s68, v18")
    a("s_add_u32 s67, s67, 1")
    a("s_nop 2")
    a("s_cmp_lt_u32 s68, 32")
    a("s_cbranch_scc1 L_tk_got")
    a("s_cmp_ge_u32 s67, 16")
    a("s_cbranch_scc1 L_tk_got")
    a("s_add_u32 s78, s78, 1")
    a("s_and_b32 s78, s78, 7")
    a("s_lshl_b32 s68, s78, 5")
    a("v_writelane_b32 v17, s68, 0")
    a("v_mov_b32 v18, 1")
    a.l.append("    buffer_atomic_add v18, v17, %s, 0 offen sc0" % sr(SDBG, 4))
    a("s_waitcnt vmcnt(0)")
    a("s_branch L_tk_loop")
    a.label("L_tk_got")
    a("s_and_b32 s68, s68, 31")
    a("s_lshl_b32 s68, s68, 3")
    a("s_add_u32 s68, s68, s78")
    a("v_mov_b32 v17, %d" % (SCR + 2044))
    a("v_mov_b32 v18, s68")
    a("ds_write_b32 v17, v18")
    a("s_waitcnt lgkmcnt(0)")
    a.label("L_tk_done")
    stamp(a, 2)
    a("s_barrier")
    stamp(a, 3)
    a("v_mov_b32 v1, %d" % (SCR + 2044))
    a("ds_read_b32 v1, v1")
    a("s_waitcnt lgkmcnt(0)")
    a("v_readfirstlane_b32 s2, v1")
    a("s_nop 3")
    a("s_and_b32 s%d, s2, 7" % S_XCD)
    a("s_lshr_b32 s%d, s2, 3" % S_SLOT)
    a("s_lshl_b32 s66, s2, 7")
    a("s_add_u32 s66, s66, %d" % FLG)
    a("v_mov_b32 v17, s66")
    a("v_mov_b32 v1, 0x%x" % BIG)
    a("v_cmp_eq_u32 vcc, 0, v0")
    a("v_mov_b32 v18, 0")
    a("s_nop 0")
    a("v_cndmask_b32 v17, v1, v17, vcc")
    a("buffer_store_dword v18, v17, %s, 0 offen sc1" % sr(SST, 4), "ST")
    VM0 = list(a.vm)
    a("s_cmp_lt_u32 s%d, 13" % S_SLOT)
    a("s_cbranch_scc1 L_k1_att")
    a("s_cmp_lt_u32 s%d, 31" % S_SLOT)
    a("s_cbranch_scc0 L_k1_extra")
    a("s_sub_u32 s%d, s%d, 13" % (S_SLOT, S_SLOT))

    a.vm = list(VM0)
    a("s_lshl_b32 s66, s%d, 1" % S_XCD)
    a("s_add_u32 s66, s66, s%d" % S_SLOT)
    a("s_sub_u32 s66, s66, 16")
    a("s_cmp_lt_u32 s%d, 16" % S_SLOT)
    a("s_cselect_b32 s%d, s%d, 8" % (S_FB, S_XCD))
    a("s_cselect_b32 s%d, s%d, s66" % (S_RB, S_SLOT))
    a("s_cmp_lt_u32 s%d, 4" % S_W)
    a("s_cselect_b32 s%d, s12, s14" % SW)
    a("s_cselect_b32 s%d, s13, s15" % (SW + 1))
    a("s_mov_b32 s%d, %d" % (SW + 2, 640 * 3456))
    a("s_mov_b32 s%d, 0x00020000" % (SW + 3))
    a("s_add_u32 s66, s%d, s%d" % (S_RB, S_FB))
    for _ in range(2):
        a("s_cmp_ge_u32 s66, 10")
        a("s_cselect_b32 s67, 10, 0")
        a("s_sub_u32 s66, s66, s67")
    if not ROT:
        a("s_mov_b32 s66, 0")
    if RP == 5:
        a("s_and_b32 s66, s66, 14")
    if RP == 2:
        a("s_and_b32 s66, s66, 1")
        a("s_mul_i32 s66, s66, 5")
    if RP == 3:
        a("s_mul_i32 s66, s66, 22")
        a("s_lshr_b32 s66, s66, 6")
        a("s_mul_i32 s66, s66, 3")
        a("s_min_u32 s66, s66, 6")
    a("s_lshl_b32 s%d, s66, 7" % S_SOA)
    a("s_mul_i32 s%d, s66, 221184" % S_SOB)
    a("s_mul_i32 s70, s%d, 384" % S_FB)
    a("v_mul_u32_u24 v16, 3456, v7")
    a("v_add_u32 v16, s70, v16")
    a("v_lshlrev_b32 v1, 5, v8")
    a("v_lshl_add_u32 v1, v9, 4, v1")
    for j in range(3):
        a("s_mul_i32 s66, s%d, 3" % S_W)
        a("s_add_u32 s66, s66, %d" % j)
        a("s_and_b32 s67, s66, 3")
        a("s_lshr_b32 s68, s66, 2")
        a("s_cmp_ge_u32 s68, 3")
        a("s_cselect_b32 s69, 3, 0")
        a("s_sub_u32 s68, s68, s69")
        if MF == 32:
            a("s_xor_b32 s69, s67, s%d" % S_WM)
            a("s_and_b32 s69, s69, 1")
        else:
            a("s_and_b32 s69, s67, 1")
        a("s_lshl_b32 s69, s69, 6")
        a("v_xor_b32 v%d, s69, v1" % (12 + j))
        a("s_mul_i32 s67, s67, %d" % (8 * 3456))
        a("s_lshl_b32 s68, s68, 7")
        a("s_add_u32 s67, s67, s68")
        a("v_add3_u32 v%d, v%d, v16, s67" % (12 + j, 12 + j))
    a("s_lshl_b32 s66, s%d, 3" % S_RB)
    a("s_add_u32 s66, s66, s%d" % S_W)
    a("s_mul_i32 s66, s66, %d" % (16 * 1280))
    a("v_xor_b32 v11, 64, v10")
    a("v_add_u32 v10, s66, v10")
    a("s_add_u32 s66, s66, %d" % (8 * 1280))
    a("v_add_u32 v11, s66, v11")
    a("s_mul_i32 s3, s%d, 3072" % S_W)
    a("s_lshl_b32 s79, s%d, 11" % S_W)
    ARING = 98304
    a("s_lshl_b32 s66, s%d, 13" % S_WM)
    a("s_add_u32 s66, s66, %d" % ARING)
    for c in ((3, 2, 1, 0) if MF == 32 else (1, 0)):
        if c:
            a("v_xor_b32 v%d, %d, v15" % (15 + c, (32 if MF == 32 else 64) * c))
        a("v_add_u32 v%d, s66, v%d" % (15 + c, 15 + c))
    if MF == 32:
        a("v_lshlrev_b32 v1, 1, v26")
        a("v_xor_b32 v6, v6, v1")
        a("v_mul_u32_u24 v1, 12288, v26")
        a("v_add_u32 v5, v5, v1")
    for j in range(3):
        a("s_mul_i32 s66, s%d, 3" % S_WN)
        a("s_add_u32 s66, s66, %d" % j)
        a("s_and_b32 s67, s66, 3")
        a("s_lshr_b32 s66, s66, 2")
        a("s_lshl_b32 s66, s66, 12")
        a("v_xor_b32 v%d, s67, v6" % (19 + j))
        a("v_lshl_add_u32 v%d, v%d, 5, v5" % (19 + j, 19 + j))
        a("v_add_u32 v%d, s66, v%d" % (19 + j, 19 + j))
        a("v_add_u32 v%d, 0x%x, v%d" % (22 + j, 2 * 24576, 19 + j))

    def bdma(st):
        o = []
        for j in range(3):
            o.append(("s_add_u32 m0, s3, 0x%x" % ((st % 4) * 24576 + 1024 * j),
                      "buffer_load_dwordx4 v%d, %s, s%d offen lds" % (12 + j, sr(SW, 4), S_SOB), "B%d" % st,
                      adv(S_SOB, 32 * 3456, 640 * 3456) if j == 2 else []))
        return o

    def adma(S):
        return [[("s_add_u32 m0, s79, 0x%x" % (ARING + (S % 3) * 16384 + 1024 * h),
                  "buffer_load_dwordx4 v%d, %s, s%d offen lds" % (10 + h, sr(SX, 4), S_SOA), "A%d" % S,
                  adv(S_SOA, 128, 1280) if h == 1 else [])] for h in range(2)]

    pre = ["v_and_b32 v25, 1, v4", "s_mov_b32 s66, %d" % ACT_MT, "v_mul_lo_u32 v25, v25, s66",
           "v_lshrrev_b32 v1, 1, v4", "v_lshl_add_u32 v25, v1, 8, v25", "v_and_b32 v1, 15, v2", "v_lshl_add_u32 v25, v1, 4, v25",
           "s_mul_i32 s66, s%d, %d" % (S_WM, 4 * ACT_MT), "s_mul_i32 s67, s%d, %d" % (S_WN, 6 * 256),
           "s_add_u32 s66, s66, s67", "v_add_u32 v25, s66, v25",
           "s_mul_i32 s70, s%d, %d" % (S_RB, 8 * ACT_MT), "s_mul_i32 s67, s%d, %d" % (S_FB, 24 * 256),
           "s_add_u32 s70, s70, s67", "s_add_u32 s70, s70, %d" % (80 * 256), "s_add_u32 s71, s70, %d" % (2 * ACT_MT),
           "s_lshl_b32 s66, s%d, 1" % S_RB, "s_add_u32 s66, s66, s%d" % S_WM, "s_lshl_b32 s66, s66, 10",
           "v_and_b32 v26, 7, v2", "v_lshl_add_u32 v26, v26, 3, s66", "v_bfe_u32 v1, v2, 3, 1", "v_lshl_add_u32 v26, v1, 7, v26",
           "v_cmp_gt_u32 vcc, 48, v2", "v_mov_b32 v1, 0x%x" % BIG, "s_nop 0", "v_cndmask_b32 v27, v1, v3, vcc",
           "s_mul_i32 s72, s%d, 768" % S_FB, "s_add_u32 s72, s72, %d" % (ST_CS + 1920 * 4),
           "s_add_u32 s73, s72, %d" % (1728 * 4),
           "s_mul_i32 s66, s%d, 192" % S_WN, "s_add_u32 s66, s66, %d" % CSL, "v_lshl_add_u32 v28, v4, 4, s66",
           "v_mov_b32 v%d, 240" % (TT + 1)]
    RS = 36
    CS0 = 44
    t17 = [("buffer_load_dwordx2 %s, v26, %s, 0 offen offset:%d sc1" % (vr(RS + 2 * i, 2), sr(SST, 4), 256 * i), "TL") for i in range(4)]
    for mat in range(2):
        t17.append(["s_mov_b32 m0, %d" % (CSL + 1024 * mat), "s_nop 0",
                    ("buffer_load_dwordx4 v27, %s, s%d offen sc1 lds" % (sr(SST, 4), 72 + mat), "TL")])

    def csreg(t):
        return CS0 + 4 * t if t < 5 else 240
    t19 = ["ds_read_b128 %s, v28 offset:%d" % (vr(csreg(t), 4), (t // 3) * 1024 + (t % 3) * 64) for t in range(6)]
    bg, top = std_bg(pre[-1:], t17, t19)
    P = dict(nI=2, nJ=3, name="ffn", bdma=bdma, adma=adma, bg=bg, toptags=top, early=pre[:-1],
             a_addr=lambda S3, q, i: (15 + q, S3 * 16384 + i * 2048),
             b_addr=lambda slot, j: (19 + 3 * (slot // 2) + j % 3, (slot % 2) * 24576 + (j // 3) * 12288))
    k1_mainloop(a, P)

    c1 = -2.0 * LOG2E * 0.7978845608028654
    RC = 5
    for i in range(4):
        a("v_rcp_f32 v%d, v%d" % (RC + 3 * i, RS + 2 * i + 1))
    a("s_nop 0")
    for i in range(4):
        a("v_mul_f32 v%d, v%d, v%d" % (RC + 3 * i + 2, RS + 2 * i + 1, RS + 2 * i + 1))
        a("v_mul_f32 v%d, v%d, v%d" % (RC + 3 * i + 1, RC + 3 * i, RC + 3 * i))
        a("v_mul_f32 v%d, 0x%x, v%d" % (RC + 3 * i, f2u(c1), RC + 3 * i))
        a("v_mul_f32 v%d, 0x%x, v%d" % (RC + 3 * i + 1, f2u(0.044715), RC + 3 * i + 1))
        a("v_mul_f32 v%d, v%d, v%d" % (RC + 3 * i + 1, RC + 3 * i + 1, RC + 3 * i))
    a("s_waitcnt lgkmcnt(0)")
    T0 = FR0
    OUT = FR0 + 16
    n = 0
    for ip in (0, 2):
        for j in range(3):
            el = []
            for ii in (ip, ip + 1):
                for r in range(4):
                    el.append((ACC + 4 * (ii * 6 + j) + r, ACC + 4 * (ii * 6 + 3 + j) + r, csreg(j) + r, csreg(3 + j) + r,
                               RS + 2 * ii, RC + 3 * ii, RC + 3 * ii + 1, RC + 3 * ii + 2))
            for q, (x, u, cg, cu, m_, k1_, k3_, s2_) in enumerate(el):
                a("v_fma_f32 v%d, -v%d, v%d, v%d" % (x, m_, cg, x))
            for q, (x, u, cg, cu, m_, k1_, k3_, s2_) in enumerate(el):
                a("v_mul_f32 v%d, v%d, v%d" % (T0 + q, x, x))
            for q, (x, u, cg, cu, m_, k1_, k3_, s2_) in enumerate(el):
                a("v_fma_f32 v%d, v%d, v%d, v%d" % (T0 + q, T0 + q, k3_, k1_))
            for q, (x, u, cg, cu, m_, k1_, k3_, s2_) in enumerate(el):
                a("v_mul_f32 v%d, v%d, v%d" % (T0 + q, x, T0 + q))
            for q, (x, u, cg, cu, m_, k1_, k3_, s2_) in enumerate(el):
                a("v_exp_f32 v%d, v%d" % (T0 + q, T0 + q))
            for q, (x, u, cg, cu, m_, k1_, k3_, s2_) in enumerate(el):
                a("v_fma_f32 v%d, -v%d, v%d, v%d" % (u, m_, cu, u))
            for q, (x, u, cg, cu, m_, k1_, k3_, s2_) in enumerate(el):
                a("v_fma_f32 v%d, v%d, v%d, v%d" % (T0 + q, T0 + q, s2_, s2_))
            for q, (x, u, cg, cu, m_, k1_, k3_, s2_) in enumerate(el):
                a("v_rcp_f32 v%d, v%d" % (T0 + q, T0 + q))
            for q, (x, u, cg, cu, m_, k1_, k3_, s2_) in enumerate(el):
                a("v_mul_f32 v%d, v%d, v%d" % (u, x, u))
            for q, (x, u, cg, cu, m_, k1_, k3_, s2_) in enumerate(el):
                a("v_mul_f32 v%d, v%d, v%d" % (u, u, T0 + q))
            o = OUT + 4 * (n % 3)
            n += 1
            for q in range(4):
                a("v_cvt_pk_bf16_f32 v%d, v%d, v%d" % (o + q, el[2 * q][1], el[2 * q + 1][1]))
            a("s_nop 1")
            a("v_permlane16_swap_b32 v%d, v%d" % (o, o + 2))
            a("v_permlane16_swap_b32 v%d, v%d" % (o + 1, o + 3))
            a("s_nop 1")
            a("buffer_store_dwordx4 %s, v25, %s, s%d offen offset:%d %s" % (vr(o, 4), sr(SACT, 4), 70 + ip // 2, 512 * j, SCF))
    stamp(a, 7)
    p2_early(a)
    p1_done(a, ["s_cmp_eq_u32 s%d, 8" % S_FB, "s_cselect_b32 s64, 0, 64", "s_lshl_b32 s3, s%d, 2" % S_RB, "s_add_u32 s3, s3, s64"])

    a.label("L_k1_att")
    a.vm = list(VM0)
    a("s_mov_b32 s%d, s%d" % (S_RB, S_SLOT))
    make_srd(a, SW, 6, 7, 640 * 3840)
    ARING = 65536
    ASLOT = 22528
    a("s_add_u32 s66, s%d, s%d" % (S_RB, S_XCD))
    for _ in range(2):
        a("s_cmp_ge_u32 s66, 10")
        a("s_cselect_b32 s67, 10, 0")
        a("s_sub_u32 s66, s66, s67")
    if not ROT:
        a("s_mov_b32 s66, 0")
    if RP == 5:
        a("s_and_b32 s66, s66, 14")
    if RP == 2:
        a("s_and_b32 s66, s66, 1")
        a("s_mul_i32 s66, s66, 5")
    if RP == 3:
        a("s_mul_i32 s66, s66, 22")
        a("s_lshr_b32 s66, s66, 6")
        a("s_mul_i32 s66, s66, 3")
        a("s_min_u32 s66, s66, 6")
    a("s_lshl_b32 s%d, s66, 7" % S_SOA)
    a("s_mul_i32 s%d, s66, 245760" % S_SOB)
    a("s_mul_i32 s70, s%d, 160" % S_XCD)
    a("v_mul_u32_u24 v16, 3840, v7")
    a("v_add_u32 v16, s70, v16")
    a("s_lshr_b32 s66, s%d, 1" % S_W)
    a("s_lshl_b32 s66, s66, 2")
    a("v_mov_b32 v17, 1120")
    for j in range(2):
        if j:
            a("v_xor_b32 v1, 2, v8")
            a("v_add_u32 v1, s66, v1")
        else:
            a("v_add_u32 v1, s66, v8")
        a("v_min_u32 v1, 14, v1")
        a("v_lshlrev_b32 v%d, 5, v1" % (13 + j))
        a("v_lshl_add_u32 v%d, v9, 4, v%d" % (13 + j, 13 + j))
        a("v_cmp_le_u32 vcc, 5, v1")
        a("v_add_u32 v%d, v%d, v16" % (13 + j, 13 + j))
        a("s_and_b32 s67, s%d, 1" % S_W)
        a("v_cndmask_b32 v18, 0, v17, vcc")
        a("v_cmp_le_u32 vcc, 10, v1")
        a("v_add_u32 v%d, v%d, v18" % (13 + j, 13 + j))
        a("s_lshl_b32 s67, s67, 1")
        a("v_cndmask_b32 v18, 0, v17, vcc")
        a("s_add_u32 s67, s67, %d" % j)
        a("s_mul_i32 s67, s67, %d" % (8 * 3840))
        a("v_add3_u32 v%d, v%d, v18, s67" % (13 + j, 13 + j))
    a("s_and_b32 s66, s%d, 1" % S_W)
    a("s_lshl_b32 s66, s66, 6")
    a("v_xor_b32 v1, s66, v10")
    a("s_mul_i32 s66, s%d, 20" % S_RB)
    a("s_add_u32 s66, s66, s%d" % S_W)
    a("s_max_u32 s67, s66, 2")
    a("s_sub_u32 s67, s67, 2")
    a("s_min_u32 s67, s67, 255")
    a("s_mul_i32 s67, s67, %d" % (8 * 1280))
    a("v_add_u32 v10, s67, v1")
    a("s_add_u32 s67, s66, 6")
    a("s_min_u32 s68, s67, 255")
    a("s_mul_i32 s68, s68, %d" % (8 * 1280))
    a("v_add_u32 v11, s68, v1")
    a("s_add_u32 s67, s66, 14")
    a("s_min_u32 s67, s67, 255")
    a("s_mul_i32 s67, s67, %d" % (8 * 1280))
    a("s_cmp_lt_u32 s%d, 6" % S_W)
    a("s_cselect_b32 s68, s67, s68")
    a("s_cselect_b32 s78, 16384, 8192")
    a("v_add_u32 v12, s68, v1")
    a("s_lshl_b32 s79, s%d, 10" % S_W)
    a("s_add_u32 s78, s78, s79")
    a("s_lshl_b32 s3, s%d, 11" % S_W)
    a("s_mul_i32 s66, s%d, %d" % (S_WM, 6 * 2048))
    a("s_add_u32 s66, s66, %d" % ARING)
    for c in ((3, 2, 1, 0) if MF == 32 else (1, 0)):
        if c:
            a("v_xor_b32 v%d, %d, v15" % (15 + c, (32 if MF == 32 else 64) * c))
        a("v_add_u32 v%d, s66, v%d" % (15 + c, 15 + c))
    a("s_lshl_b32 s66, s%d, 12" % S_WN)
    for j in range(4):
        a("v_xor_b32 v%d, %d, v6" % (17 + j, j))
        a("v_lshl_add_u32 v%d, v%d, 5, v5" % (17 + j, 17 + j))
        a("v_add_u32 v%d, s66, v%d" % (17 + j, 17 + j))

    def bdma2(st):
        return [("s_add_u32 m0, s3, 0x%x" % ((st % 4) * 16384 + 1024 * j),
                 "buffer_load_dwordx4 v%d, %s, s%d offen lds" % (13 + j, sr(SW, 4), S_SOB), "B%d" % st,
                 adv(S_SOB, 32 * 3840, 640 * 3840) if j == 1 else []) for j in range(2)]

    def adma2(S):
        b = ARING + (S % 3) * ASLOT
        ld = "buffer_load_dwordx4 v%d, %s, s%d offen lds"
        return [[("s_add_u32 m0, s79, 0x%x" % b, ld % (10, sr(SX, 4), S_SOA), "A%d" % S, []),
                 ("s_add_u32 m0, s79, 0x%x" % (b + 8192), ld % (11, sr(SX, 4), S_SOA), "A%d" % S, [])],
                [("s_add_u32 m0, s78, 0x%x" % b, ld % (12, sr(SX, 4), S_SOA), "A%d" % S,
                  adv(S_SOA, 128, 1280))]]

    pre = ["v_and_b32 v1, 15, v2", "s_mul_i32 s66, s%d, 96" % S_WM, "v_add_u32 v5, s66, v1",
           "v_mul_u32_u24 v5, %d, v5" % PITCH, "v_lshl_add_u32 v5, v4, 3, v5", "v_lshlrev_b32 v6, 4, v4",
           "s_mul_i32 s67, s%d, 160" % S_RB, "s_add_u32 s66, s66, s67", "s_sub_u32 s66, s66, 16", "s_lshl_b32 s66, s66, 4",
           "v_and_b32 v63, 7, v2", "v_lshl_add_u32 v63, v63, 3, s66", "v_bfe_u32 v7, v2, 3, 1", "v_lshl_add_u32 v63, v7, 7, v63"]
    early = pre[:5]
    pre = ["v_lshlrev_b32 v6, 4, v4", "s_mul_i32 s66, s%d, 96" % S_WM] + pre[6:]
    for t in range(4):
        early += ["s_lshl_b32 s66, s%d, 2" % S_WN, "s_add_u32 s66, s66, %d" % t, "s_min_u32 s66, s66, 14",
                  ["s_cmp_ge_u32 s66, 5", "s_cselect_b32 s67, 5, 0", "s_cselect_b32 s68, %d, %d" % (REG_K, REG_Q),
                   "s_cselect_b32 s69, 1024, 0"],
                  ["s_cmp_ge_u32 s66, 10", "s_cselect_b32 s67, 10, s67", "s_cselect_b32 s68, %d, s68" % REG_V,
                   "s_cselect_b32 s69, 2048, s69"],
                  "s_sub_u32 s66, s66, s67", "s_lshl_b32 s67, s66, 5", "s_add_u32 s67, s67, s68",
                  "v_add_u32 v%d, s67, v5" % (21 + t),
                  "s_lshl_b32 s66, s66, 6", "s_add_u32 s66, s66, s69", "s_add_u32 s66, s66, %d" % CSL,
                  "v_writelane_b32 v25, s66, %d" % t]
        pre += [["v_readlane_b32 s67, v25, %d" % t, "s_nop 1", "v_add_u32 v%d, s67, v6" % (52 + t)]]
    early += ["v_lshrrev_b32 v26, 4, v2", "v_lshlrev_b32 v6, 2, v26", "v_sub_u32 v6, v1, v6"]
    for T in range(2):
        for r in range(4):
            early += ["v_add_u32 v7, %d, v6" % (16 - 16 * T - r), "v_alignbit_b32 v7, v7, v7, 1",
                      "v_cmp_ge_u32 %s, 7, v7" % sr(4 + 2 * (4 * T + r), 2)]
    pre += ["v_and_b32 v1, 15, v2"]
    pre += ["s_mul_i32 s66, s%d, %d" % (S_WM, 80 * PITCH), "s_mul_i32 s67, s%d, 40" % S_WN, "s_add_u32 s66, s66, s67",
            "v_mul_u32_u24 v5, %d, v1" % PITCH, "v_add_u32 v5, s66, v5",
            "v_lshlrev_b32 v6, 4, v26",
            "v_cmp_gt_u32 s[76:77], 3, v26", "v_cmp_gt_u32 s[74:75], 2, v26", "s_nop 1",
            "v_cndmask_b32 v6, 0, v6, s[76:77]",
            "v_add_u32 v56, v5, v6",
            "v_add_u32 v58, %d, v56" % (REG_Q + 16 * PITCH),
            "v_min_u32 v57, 191, v0", "v_mul_u32_u24 v57, %d, v57" % PITCH, "v_add_u32 v57, 160, v57",
            "v_lshrrev_b32 v60, 2, v2", "v_mul_u32_u24 v60, %d, v60" % PITCH, "v_and_b32 v6, 3, v2",
            "v_lshl_add_u32 v60, v6, 3, v60", "s_add_u32 s66, s66, %d" % REG_V, "v_add_u32 v60, s66, v60",
            "s_mul_i32 s66, s%d, 5" % S_WN, "s_mul_i32 s67, s%d, %d" % (S_WM, 5 * 2560), "s_add_u32 s67, s67, %d" % OSTG]
    for Dd in range(2):
        pre += ["v_add_u32 v6, s66, v26"] + (["v_add_u32 v6, 4, v6"] if Dd else []) + \
               ["v_lshrrev_b32 v7, 1, v6", "v_lshlrev_b32 v7, 8, v7", "v_and_b32 v6, 1, v6",
                "v_lshl_add_u32 v7, v6, 3, v7", "v_lshl_add_u32 v7, v1, 4, v7", "v_add_u32 v%d, s67, v7" % (61 + Dd)]
    pre += ["v_cmp_gt_u32 vcc, 16, v2", "v_mov_b32 v6, %d" % (REG_Q + 176 * PITCH - 4 * 2560), "s_nop 1", "v_cndmask_b32 v62, v6, v62, vcc",
            "v_mov_b32 v6, 0x%x" % BIG, "s_mov_b32 s67, 26215", "s_mov_b32 s68, %d" % (ACT_MT - 2560)]
    for nn in range(4):
        pre += ["s_lshl_b32 s66, s%d, 10" % S_W, "s_add_u32 s66, s66, %d" % (8192 * nn), "v_add_u32 v7, s66, v3",
                "v_mul_lo_u32 v5, v7, s67", "v_lshrrev_b32 v5, 26, v5", "v_mul_lo_u32 v5, v5, s68",
                "v_cmp_gt_u32 vcc, 25600, v7", "v_add_u32 v5, v5, v7", "s_nop 0", "v_cndmask_b32 v%d, v6, v5, vcc" % (48 + nn)]
    pre += ["v_cmp_gt_u32 vcc, 20, v2", "s_nop 1", "v_cndmask_b32 v27, v6, v3, vcc",
            "s_mul_i32 s69, s%d, %d" % (S_RB, 10 * ACT_MT), "s_mul_i32 s67, s%d, 2560" % S_XCD, "s_add_u32 s69, s69, s67",
            "s_mul_i32 s70, s%d, 320" % S_XCD, "s_add_u32 s70, s70, %d" % ST_CS, "s_add_u32 s71, s70, 2560", "s_add_u32 s72, s70, 5120",
            "v_mov_b32 v%d, 240" % (TT + 1)]
    RS = 36
    t17 = ["v_add_u32 v1, 256, v63",
           ("buffer_load_dwordx2 %s, v63, %s, 0 offen sc1" % (vr(RS, 2), sr(SST, 4)), "TL")]
    for i in range(1, 6):
        t17.append(("buffer_load_dwordx2 %s, v1, %s, 0 offen offset:%d sc1" % (vr(RS + 2 * i, 2), sr(SST, 4), 256 * (i - 1)), "TL"))
    for sec in range(3):
        t17.append(["s_mov_b32 m0, %d" % (CSL + 1024 * sec), "s_nop 0",
                    ("buffer_load_dwordx4 v27, %s, s%d offen sc1 lds" % (sr(SST, 4), 70 + sec), "TL")])

    def csreg2(t):
        return 240 + 4 * t
    t19 = ["ds_read_b128 %s, v%d" % (vr(csreg2(t), 4), 52 + t) for t in range(4)]
    bg, top = std_bg(pre, t17, t19)
    P = dict(nI=3, nJ=2, name="att", bdma=bdma2, adma=adma2, bg=bg, toptags=top, early=early,
             a_addr=lambda S3, q, i: (15 + q, S3 * ASLOT + i * 2048),
             b_addr=lambda slot, j: (17 + j, slot * 16384))
    a("s_cmp_eq_u32 s%d, 1" % S_WM)
    a("s_cbranch_scc1 L_att_wm1")
    vm_save = list(a.vm)
    k1_mainloop(a, P)
    a("s_branch L_att_epi")
    a.label("L_att_wm1")
    a.vm = vm_save
    bg, top = std_bg(pre, t17, t19)
    P = dict(P, name="att1", skipA=1, bg=bg, toptags=top)
    k1_mainloop(a, P)
    a.label("L_att_epi")
    FM = [28, 30, 40, 42]
    a("s_or_b32 s66, s%d, s%d" % (S_WM, S_RB))
    a("s_cmp_eq_u32 s66, 0")
    for r in range(4):
        a("s_cselect_b64 %s, 0, %s" % (sr(FM[r], 2), sr(4 + 2 * r, 2)))
    a("s_mov_b32 s63, s69")

    stamp_e(a, 1)
    for i in range(6):
        a("v_max_f32 v%d, 0x%x, v%d" % (RS + 2 * i + 1, f2u(1e-3), RS + 2 * i + 1))
    for i in range(6):
        a("v_rcp_f32 v%d, v%d" % (RS + 2 * i + 1, RS + 2 * i + 1))
    a("s_waitcnt lgkmcnt(0)")
    W0 = FR0
    n = 0
    a("v_mov_b32 v8, 0")
    a("v_mov_b32 v9, 0")
    a("ds_write_b64 v57, v[8:9]")
    for i in range(6):
        if i == 5:
            a("s_cmp_eq_u32 s%d, 1" % S_WM)
            a("s_cbranch_scc1 L_att_wdone")
        for j in range(4):
            acc = ACC + 4 * (i * 4 + j)
            for r in range(4):
                a("v_fma_f32 v%d, -v%d, v%d, v%d" % (acc + r, RS + 2 * i, csreg2(j) + r, acc + r))
        for j in range(4):
            acc = ACC + 4 * (i * 4 + j)
            for r in range(4):
                a("v_mul_f32 v%d, v%d, v%d" % (acc + r, acc + r, RS + 2 * i + 1))
        for j in range(4):
            acc = ACC + 4 * (i * 4 + j)
            o = W0 + 2 * (n % 8)
            n += 1
            a("v_cvt_pk_bf16_f32 v%d, v%d, v%d" % (o, acc, acc + 1))
            a("v_cvt_pk_bf16_f32 v%d, v%d, v%d" % (o + 1, acc + 2, acc + 3))
            a("ds_write_b64 v%d, %s offset:%d" % (21 + j, vr(o, 2), i * 16 * PITCH))
    a.label("L_att_wdone")
    stamp_e(a, 2)
    p2_early(a, True)
    a("s_waitcnt lgkmcnt(0)")
    a("s_barrier")
    stamp_e(a, 3)
    IB = ACC
    SB = FR0 + 8
    TB = FR0 + 48
    for n in range(5):
        b = IB + 20 * n
        off = n * 16 * PITCH
        a("v_add_u32 v7, %d, v58" % off)
        a("v_add_u32 v8, %d, v56" % off)
        a("v_add_u32 v9, %d, v56" % (off + 16 * PITCH))
        a("ds_read2_b64 %s, v7 offset0:0 offset1:1" % vr(b, 4))
        a("ds_read2_b64 %s, v8 offset0:0 offset1:1" % vr(b + 4, 4))
        a("ds_read2_b64 %s, v9 offset0:0 offset1:1" % vr(b + 8, 4))
    for n in range(5):
        b = IB + 20 * n
        off = n * 16 * PITCH
        for Dd in range(2):
            for e in range(2):
                a("ds_read_b64_tr_b16 %s, v60 offset:%d" % (vr(b + 12 + 4 * Dd + 2 * e, 2), off + e * 16 * PITCH + Dd * 32))
    SC = (20 ** -0.5) * LOG2E
    a("v_mov_b32 v5, 0x%x" % f2u(SC))
    a("v_mov_b32 v6, 0x%x" % f2u(-1e9))
    a("s_waitcnt lgkmcnt(0)")
    for n in range(5):
        b = IB + 20 * n
        a("v_cndmask_b32 v%d, 0, v%d, s[76:77]" % (b, b))
        a("v_cndmask_b32 v%d, 0, v%d, s[76:77]" % (b + 1, b + 1))
        a("v_cndmask_b32 v%d, 0, v%d, s[74:75]" % (b + 2, b + 2))
        a("v_cndmask_b32 v%d, 0, v%d, s[74:75]" % (b + 3, b + 3))
    a("s_nop 1")
    stamp_e(a, 4)
    for n in range(5):
        b = IB + 20 * n
        for T in range(2):
            a("v_mfma_f32_16x16x32_bf16 %s, %s, %s, 0" % (vr(SB + 8 * n + 4 * T, 4), vr(b + 4 + 4 * T, 4), vr(b, 4)))
    a("s_nop 0")
    for n in range(5):
        s = SB + 8 * n
        for q in range(8):
            a("v_mul_f32 v%d, v5, v%d" % (s + q, s + q))
        for q in range(8):
            m = sr(FM[q], 2) if (n == 0 and q < 4) else sr(4 + 2 * q, 2)
            a("v_cndmask_b32 v%d, v6, v%d, %s" % (s + q, s + q, m))
        t = TB + 2 * n
        a("v_max3_f32 v%d, v%d, v%d, v%d" % (t, s, s + 1, s + 2))
        a("v_max3_f32 v%d, v%d, v%d, v%d" % (t + 1, s + 3, s + 4, s + 5))
        a("v_max3_f32 v%d, v%d, v%d, v%d" % (t, t, s + 6, s + 7))
        a("v_max_f32 v%d, v%d, v%d" % (t, t, t + 1))
    tr = [TB + 2 * n for n in range(5)]
    tt = [TB + 2 * n + 1 for n in range(5)]
    for x in xreduce(tr, tt, "v_max_f32"):
        a(x)
    for n in range(5):
        s = SB + 8 * n
        t = TB + 2 * n
        for q in range(8):
            a("v_sub_f32 v%d, v%d, v%d" % (s + q, s + q, t))
        for q in range(8):
            a("v_exp_f32 v%d, v%d" % (s + q, s + q))
        a("s_nop 0")
        a("v_add_f32 v%d, v%d, v%d" % (t, s, s + 1))
        a("v_add_f32 v%d, v%d, v%d" % (t + 1, s + 2, s + 3))
        a("v_add_f32 v%d, v%d, v%d" % (t, t, s + 4))
        a("v_add_f32 v%d, v%d, v%d" % (t + 1, t + 1, s + 5))
        a("v_add_f32 v%d, v%d, v%d" % (t, t, s + 6))
        a("v_add_f32 v%d, v%d, v%d" % (t + 1, t + 1, s + 7))
        a("v_add_f32 v%d, v%d, v%d" % (t, t, t + 1))
    for x in xreduce(tr, tt, "v_add_f32"):
        a(x)
    for n in range(5):
        t = TB + 2 * n
        a("v_rcp_f32 v%d, v%d" % (t, t))
    a("s_nop 0")
    for n in range(5):
        s = SB + 8 * n
        t = TB + 2 * n
        b = IB + 20 * n
        for q in range(8):
            a("v_mul_f32 v%d, v%d, v%d" % (s + q, s + q, t))
        for q in range(4):
            a("v_cvt_pk_bf16_f32 v%d, v%d, v%d" % (b + q, s + 2 * q, s + 2 * q + 1))
    stamp_e(a, 5)
    a("s_nop 1")
    for n in range(5):
        b = IB + 20 * n
        for Dd in range(2):
            a("v_mfma_f32_16x16x32_bf16 %s, %s, %s, 0" % (vr(SB + 8 * n + 4 * Dd, 4), vr(b + 12 + 4 * Dd, 4), vr(b, 4)))
    a("s_nop 0")
    for n in range(5):
        s = SB + 8 * n
        b = IB + 20 * n
        for Dd in range(2):
            a("v_cvt_pk_bf16_f32 v%d, v%d, v%d" % (b + 4 + 2 * Dd, s + 4 * Dd, s + 4 * Dd + 1))
            a("v_cvt_pk_bf16_f32 v%d, v%d, v%d" % (b + 5 + 2 * Dd, s + 4 * Dd + 2, s + 4 * Dd + 3))
        a("ds_write_b64 v61, %s offset:%d" % (vr(b + 4, 2), 2560 * n))
    a("s_mov_b64 exec, 0xffff")
    for n in range(5):
        a("ds_write_b64 v62, %s offset:%d" % (vr(IB + 20 * n + 6, 2), 2560 * n))
    a("s_mov_b64 exec, -1")
    a("s_add_u32 s3, s65, %d" % OSTG)
    a("v_add_u32 v5, s3, v3")
    a("s_waitcnt lgkmcnt(0)")
    a("s_barrier")
    for nn in range(4):
        a("ds_read_b128 %s, v5 offset:%d" % (vr(ACC + 4 * nn, 4), 8192 * nn))
    for nn in range(4):
        a("s_waitcnt lgkmcnt(%d)" % (3 - nn))
        a("buffer_store_dwordx4 %s, v%d, %s, s63 offen %s" % (vr(ACC + 4 * nn, 4), 48 + nn, sr(SACT, 4), SCF))
    p2_early_b(a, range(3, 6))
    stamp(a, 7)
    p1_done(a, ["s_lshl_b32 s3, s%d, 2" % S_RB, "s_add_u32 s3, s3, 128"])

    a.label("L_k1_extra")
    a.vm = list(VM0)
    for x in stats_loads() + k2_prefetch():
        emit(a, x)
    a("s_waitcnt vmcnt(0)")
    for x in stats_segA():
        emit(a, x)
    a("s_waitcnt lgkmcnt(0)")
    a("s_barrier")
    for x in stats_segB():
        emit(a, x)
    a("s_waitcnt lgkmcnt(0)")
    for x in stats_segC():
        emit(a, x)
    tlb_warm_act(a)
    a("s_barrier")
    for x in stats_signal():
        emit(a, x)
    p2_early(a)
    a("v_mov_b32 v%d, 240" % (TT + 1))
    a("s_mov_b32 s66, 0")
    a("s_waitcnt vmcnt(0)")
    a("s_cmp_lg_u32 s%d, 0" % S_W)
    a("s_cbranch_scc1 L_xpoll_ok")
    a.label("L_xpoll")
    a("s_sleep 100")
    a("buffer_load_dword v%d, v%d, %s, 0 offen sc1" % (TT, TT + 1, sr(SDBG, 4)))
    a("s_waitcnt vmcnt(0)")
    a("v_readfirstlane_b32 s67, v%d" % TT)
    a("s_add_u32 s66, s66, 1")
    a("s_nop 2")
    a("s_cmp_ge_u32 s67, 256")
    a("s_cbranch_scc1 L_xpoll_ok")
    a("s_cmp_lt_u32 s66, 0x20000")
    a("s_cbranch_scc1 L_xpoll")
    a.label("L_xpoll_ok")
    gen_phase2(a)
    a.label("L_k1_end")
    a("s_endpgm")
    a.label("L_code_end")
    return (name, 256, 102 if STAMP else 80)


K2_NS = 7
K2_NST = 37


def p2_poll(a, nm, off_reg, pre=False):
    a("s_cmp_lg_u32 s20, 0")
    a("s_cbranch_scc1 L_p2ok_%s" % nm)
    a("v_cmp_gt_u32 s[58:59], 0x%x, v%d" % (BIG, off_reg))
    a("s_mov_b32 s21, 0")
    if pre:
        a("s_branch L_p2chk_%s" % nm)
    a.label("L_p2poll_%s" % nm)
    a.l.append("    buffer_load_dword v22, v%d, s[60:63], 0 offen sc1" % off_reg)
    a("s_waitcnt vmcnt(0)")
    a.label("L_p2chk_%s" % nm)
    a("v_cmp_eq_u32 vcc, 0, v22")
    a("s_add_u32 s21, s21, 1")
    a("s_nop 2")
    a("s_and_b64 vcc, vcc, s[58:59]")
    a("s_cbranch_scc0 L_p2ok_%s" % nm)
    a("s_cmp_ge_u32 s21, 0x20000")
    a("s_cbranch_scc1 L_p2ok_%s" % nm)
    a("s_sleep 2")
    a("s_cmp_lg_u64 vcc, s[58:59]")
    a("s_cbranch_scc1 L_p2poll_%s" % nm)
    a("s_sleep 30")
    a("s_branch L_p2poll_%s" % nm)
    a.label("L_p2ok_%s" % nm)


def gen_phase2(a):
    a.p2 = True
    a.label("L_phase2")
    a("s_load_dwordx2 s[4:5], s[0:1], 0")
    a("s_load_dwordx2 s[30:31], s[0:1], 56")
    p2_map(a, 24)
    a("s_cmp_eq_u32 s28, 1")
    a("s_cbranch_scc1 L_p2_end")
    a("s_mov_b32 s20, s%d" % S_W)
    a("v_lshrrev_b32 v4, 4, v2")
    a("v_lshlrev_b32 v5, 10, v4")
    a("v_bfe_u32 v6, v2, 2, 2")
    a("v_lshl_add_u32 v5, v6, 7, v5")
    a("v_and_b32 v6, 3, v2")
    a("v_lshl_add_u32 v5, v6, 3, v5")
    a("v_bfe_u32 v6, v2, 3, 2")
    a("s_lshr_b32 s34, s20, 2")
    make_srd(a, 60, 22, 23, ST_BYTES, ST_OFF)
    a("s_lshl_b32 s36, s26, 4")
    a("s_add_u32 s37, s26, s27")
    a("s_lshl_b32 s37, s37, 4")
    a("s_sub_u32 s37, s37, 1")
    a("s_lshr_b32 s38, s36, 7")
    a("s_lshr_b32 s39, s37, 7")
    a("v_mov_b32 v21, s38")
    a("v_mov_b32 v22, s39")
    a("v_cmp_gt_u32 vcc, 8, v2")
    a("v_cmp_gt_u32 s[40:41], 16, v2")
    a("v_and_b32 v25, 7, v2")
    a("v_cndmask_b32 v21, v22, v21, vcc")
    a("v_mov_b32 v22, 0x%x" % BIG)
    a("v_lshl_add_u32 v23, v21, 3, v25")
    a("v_lshlrev_b32 v23, 7, v23")
    a("v_add_u32 v23, %d, v23" % (FLG + 13 * 8 * 128))
    a("v_cndmask_b32 v23, v22, v23, s[40:41]")
    a("s_mul_i32 s36, s36, 6554")
    a("s_mul_i32 s37, s37, 6554")
    a("s_lshr_b32 s36, s36, 20")
    a("s_lshr_b32 s37, s37, 20")
    a("v_mov_b32 v21, s36")
    a("v_mov_b32 v24, s37")
    a("v_cndmask_b32 v21, v24, v21, vcc")
    a("v_lshl_add_u32 v24, v21, 3, v25")
    a("v_lshlrev_b32 v24, 7, v24")
    a("v_add_u32 v24, %d, v24" % FLG)
    a("v_cndmask_b32 v24, v22, v24, s[40:41]")
    for lane, r in ((16, 38), (17, 39)):
        a("s_and_b32 s36, s%d, 1" % r)
        a("s_add_u32 s36, s36, 29")
        a("s_lshl_b32 s36, s36, 3")
        a("s_lshr_b32 s37, s%d, 1" % r)
        a("s_add_u32 s36, s36, s37")
        a("s_lshl_b32 s36, s36, 7")
        a("s_add_u32 s36, s36, %d" % FLG)
        a("v_writelane_b32 v24, s36, %d" % lane)
    a("s_bfe_u32 s35, s20, 0x10001")
    a("s_and_b32 s36, s20, 1")
    a("s_waitcnt lgkmcnt(0)")
    make_srd(a, 40, 4, 5, 2048 * 1280)
    make_srd(a, 8, 30, 31, 2048 * 1280)
    make_srd(a, 12, 22, 23, ACT_BYTES, ACT_OFF)
    a("s_mul_i32 s37, s35, 3")
    a("s_add_u32 s37, s37, s26")
    a("s_mul_i32 s37, s37, %d" % (16 * 1280))
    a("s_lshl_b32 s38, s25, 7")
    a("s_add_u32 s37, s37, s38")
    a("s_lshl_b32 s38, s36, 1")
    a("s_add_u32 s38, s38, s34")
    a("s_lshl_b32 s38, s38, 5")
    a("s_add_u32 s37, s37, s38")
    a("v_and_b32 v26, 15, v2")
    a("v_mul_u32_u24 v26, 1280, v26")
    a("v_lshl_add_u32 v26, v4, 3, v26")
    a("v_add_u32 v26, s37, v26")
    a("s_mov_b32 s38, %d" % (16 * 1280))
    a("s_mov_b32 s39, %d" % (32 * 1280))
    a("buffer_load_dwordx2 v[28:29], v26, s[40:43], 0 offen")
    a("buffer_load_dwordx2 v[30:31], v26, s[40:43], s38 offen")
    a("buffer_load_dwordx2 v[32:33], v26, s[40:43], s39 offen")
    a("s_add_u32 s37, s26, s20")
    a("s_mul_i32 s37, s37, %d" % ACT_MT)
    a("v_add_u32 v10, s37, v3")
    a("s_mov_b32 s16, %d" % (20 * 1024))
    a("s_mov_b32 s17, %d" % (6 * 64 * 1280))
    a("s_lshl_b32 s18, s20, 11")
    a("s_lshl_b32 s19, s20, 10")
    a("s_mul_i32 s37, s35, 6144")
    a("s_lshl_b32 s29, s34, 10")
    a("s_add_u32 s37, s37, s29")
    a("v_add_u32 v12, s37, v3")
    a("v_add_u32 v13, 0x10000, v12")
    a("s_lshl_b32 s29, s34, 12")
    a("s_add_u32 s29, s29, %d" % P2_B)
    for jj in range(2):
        a("s_lshl_b32 s37, s36, 1")
        a("s_add_u32 s37, s37, %d" % jj)
        a("v_xor_b32 v%d, s37, v6" % (15 + jj))
        a("v_lshl_add_u32 v%d, v%d, 5, v5" % (15 + jj, 15 + jj))
        a("v_add_u32 v%d, s29, v%d" % (15 + jj, 15 + jj))
    AC = 64
    FRB = 96
    NS = 6
    groups = [list(range(2 * g, min(2 * g + 2, K2_NST))) for g in range((K2_NST + 1) // 2)]
    NG = len(groups)
    p2_poll(a, "f", 23)
    a("s_barrier")
    stamp(a, 1)

    def freg(g, h):
        return FRB + 40 * (g % 2) + 20 * h

    def read_ops(g):
        ops = []
        for h, st in enumerate(groups[g]):
            f = freg(g, h)
            for jj in range(2):
                for e in range(2):
                    ops.append("ds_read_b64_tr_b16 %s, v%d offset:%d" % (vr(f + 12 + 4 * jj + 2 * e, 2), 15 + jj, (st % NS) * 8192 + e * 512))
            for i in range(3):
                off = (st % NS) * 12288 + i * 2048
                ops.append("ds_read_b128 %s, v%d offset:%d" % (vr(f + 4 * i, 4), 12 + (off >> 16), off & 0xffff))
        return ops

    def body(loader):
        a.vm = []
        tag = "l" if loader else "n"

        def dma_ops(g, doB=True):
            ops = []
            for st in groups[g]:
                if loader:
                    ops.append((["s_mov_b32 s16, 0"] if st == 27 else []) + ["s_add_u32 m0, s18, 0x%x" % ((st % NS) * 12288)])
                    ops.append([("buffer_load_dwordx4 v10, s[12:15], s16 offen lds", "S%d" % g)])
                    ops.append([("buffer_load_dwordx4 v10, s[12:15], s16 offen offset:1024 lds", "S%d" % g), "s_add_u32 s16, s16, 2048"])
                if doB:
                    srd = SPF1 if st < 27 else SPF2
                    ops.append((["s_mov_b32 s17, 0"] if st == 27 else []) + ["s_add_u32 m0, s19, 0x%x" % (P2_B + (st % NS) * 8192)])
                    ops.append([("buffer_load_dwordx4 v%d, %s, s17 offen lds" % (P2V, sr(srd, 4)), "S%d" % g), "s_add_u32 s17, s17, %d" % (64 * 1280)])
            return ops
        for g in range(3):
            for o in dma_ops(g, False):
                emit(a, o)
                if isinstance(o[-1], str) and o[-1].startswith("s_add_u32 m0"):
                    a("s_nop 0")
        n = a.vmwait({"S0"})
        a("s_waitcnt vmcnt(%d)" % (n if n is not None else 63))
        a("s_barrier")
        stamp(a, 2)
        for x in read_ops(0):
            a(x)
        for g in range(NG):
            if g in (5, 10, 15):
                stamp(a, 2 + g // 5)
            n = a.vmwait({"S%d" % (g + 1)}) if g + 1 < NG else None
            if g + 3 == 12 and loader:
                p2_poll(a, "a" + tag, 24, True)
            if n is not None:
                a("s_waitcnt vmcnt(%d) lgkmcnt(0)" % n)
            else:
                a("s_waitcnt lgkmcnt(0)")
            a("s_barrier")
            if g + 3 == 10 and loader:
                a("v_mov_b32 v22, 0")
                a("buffer_load_dword v22, v24, s[60:63], 0 offen sc1", "P2P")
            stream = dma_ops(g + 3) if g + 3 < NG else []
            rd = read_ops(g + 1) if g + 1 < NG else []
            mf = []
            for h, st in enumerate(groups[g]):
                f = freg(g, h)
                for i in range(3):
                    for jj in range(2):
                        acc = AC + 4 * (2 * i + jj)
                        c = "0" if (g == 0 and h == 0) else vr(acc, 4)
                        mf.append("v_mfma_f32_16x16x32_bf16 %s, %s, %s, %s" % (vr(acc, 4), vr(f + 12 + 4 * jj, 4), vr(f + 4 * i, 4), c))
            for gi, x in enumerate(mf):
                a(x)
                left = len(mf) - gi
                for lst in (stream, rd):
                    k = (len(lst) + left - 1) // left
                    for _ in range(k):
                        o = lst.pop(0)
                        emit(a, o)
                        if lst is stream and k > 1 and isinstance(o[-1], str) and o[-1].startswith("s_add_u32 m0"):
                            a("s_nop 0")
    a("s_cmp_lt_u32 s20, s27")
    a("s_cbranch_scc0 L_k2_nl")
    body(True)
    a("s_branch L_k2_epi")
    a.label("L_k2_nl")
    body(False)
    a.label("L_k2_epi")
    stamp(a, 6)
    a("s_mul_i32 s37, s20, 3072")
    a("v_add_u32 v12, s37, v3")
    a("s_xor_b32 s37, s20, 4")
    a("s_mul_i32 s37, s37, 3072")
    a("v_add_u32 v13, s37, v3")
    a("s_nop 4")
    a("s_cmp_eq_u32 s34, 0")
    a("s_cbranch_scc0 L_k2_x1")
    for kq in range(2):
        for i in range(3):
            a("ds_write_b128 v12, %s offset:%d" % (vr(AC + 4 * (2 * i + 1 - kq), 4), 1024 * i))
        for i in range(3):
            for r in range(4):
                a("v_mov_b32 v%d, v%d" % (FRB + 4 * i + r, AC + 4 * (2 * i + kq) + r))
        if kq == 0:
            a("s_branch L_k2_x2")
            a.label("L_k2_x1")
    a.label("L_k2_x2")
    a("s_waitcnt lgkmcnt(0)")
    a("s_barrier")
    for i in range(3):
        a("ds_read_b128 %s, v13 offset:%d" % (vr(AC + 4 * i, 4), 1024 * i))
    a("s_mov_b32 s37, 0xffff0000")
    a("s_waitcnt vmcnt(0) lgkmcnt(0)")
    for i in range(3):
        for r in range(4):
            a("v_add_f32 v%d, v%d, v%d" % (FRB + 4 * i + r, FRB + 4 * i + r, AC + 4 * i + r))
        for d in range(2):
            a("v_lshlrev_b32 v%d, 16, v%d" % (AC + 4 * i, 28 + 2 * i + d))
            a("v_and_b32 v%d, s37, v%d" % (AC + 4 * i + 1, 28 + 2 * i + d))
            a("v_add_f32 v%d, v%d, v%d" % (FRB + 4 * i + 2 * d, FRB + 4 * i + 2 * d, AC + 4 * i))
            a("v_add_f32 v%d, v%d, v%d" % (FRB + 4 * i + 2 * d + 1, FRB + 4 * i + 2 * d + 1, AC + 4 * i + 1))
        for d in range(2):
            a("v_cvt_pk_bf16_f32 v%d, v%d, v%d" % (28 + 2 * i + d, FRB + 4 * i + 2 * d, FRB + 4 * i + 2 * d + 1))
    a("buffer_store_dwordx2 v[28:29], v26, s[8:11], 0 offen")
    a("buffer_store_dwordx2 v[30:31], v26, s[8:11], s38 offen")
    a("s_sub_u32 s37, s27, s35")
    a("s_cmp_eq_u32 s37, 4")
    a("s_cbranch_scc1 L_k2_fl")
    a("buffer_store_dwordx2 v[32:33], v26, s[8:11], s39 offen")
    a.label("L_k2_fl")
    a.label("L_p2_end")
    if STAMP:
        a("s_waitcnt vmcnt(0)")
        stamp_dump(a, 2, "L_sd_end")


def main():
    a = Asm()
    hdr = open("cdna_kernels/%s.s.ref" % NAME).read().splitlines()
    for l in hdr:
        if l.startswith(";") and "@launch" not in l:
            a.raw(l)
    if "--list" in sys.argv:
        a.raw("; @launch kernel=%s_kernel grid=(256,1,1) block=(512,1,1) lds=%d" % (NAME, K1_LDS))
    else:
        a.raw("; @launch grid=(256,1,1) block=(512,1,1) lds=%d" % K1_LDS)
    a.raw('.amdgcn_target "amdgcn-amd-amdhsa--gfx950"')
    ks = [gen_k1(a)]
    for (n, v, s) in ks:
        kernel_desc(a, n, v, s)
    av = [x for x in sys.argv[1:] if x.endswith(".s")]
    out = av[0] if av else "cdna_kernels/%s.s" % NAME
    open(out, "w").write(a.text())


main()
```

```python
import sys, struct, re

NAME = "parallel_sum__sliding_local_dilated__geglu_ffn__prompt"
ST_OFF = 0
ST_CS = 256 * 128
FLG = 65536
ST_BYTES = FLG + 256 * 128
ACT_OFF = 4 << 20
ACT_MT = 75 * 1024
ACT_BYTES = 128 * ACT_MT
BIG = 0x40000000
LOG2E = 1.4426950408889634
STAMP = "--stamp" in sys.argv
STAMP_OFF = 32 << 20
SCF = "sc0 sc1" if "--sc01" in sys.argv else "sc1"
OSF = " sc1" if "--osc1" in sys.argv else (" nt" if "--ont" in sys.argv else "")
MF = 32 if "--mf32" in sys.argv else 16
ROT = 0 if "--norot" in sys.argv else 1
RP = int(sys.argv[sys.argv.index("--rp") + 1]) if "--rp" in sys.argv else 5


def f2u(x):
    return struct.unpack("<I", struct.pack("<f", x))[0]


class Asm:
    def __init__(self):
        self.l = []
        self.vm = []

    def __call__(self, s, tag=None):
        m = re.match(r"s_cselect_b32 (s\d+), (\d+|0x[0-9a-f]+), (\d+|0x[0-9a-f]+)$", s)
        if m and int(m.group(2), 0) > 64 and int(m.group(3), 0) > 64:
            self.l.append("    s_mov_b32 %s, %s" % (m.group(1), m.group(3)))
            s = "s_cselect_b32 %s, %s, %s" % (m.group(1), m.group(2), m.group(1))
        self.l.append("    " + s)
        if s.startswith("buffer_") or s.startswith("global_"):
            kind = "D" if s.endswith(" lds") else ("L" if ("_load" in s or ("atomic" in s and " sc0" in s)) else "S")
            self.vm.append((tag, kind))

    def vmwait(self, tags):
        best = None
        for kind in "DLS":
            idx = [i for i, (t, k) in enumerate(self.vm) if t in tags and k == kind]
            if not idx:
                continue
            if kind == "S":
                n = sum(1 for (t, k) in self.vm[max(idx) + 1:] if k == "D")
            else:
                n = sum(1 for (t, k) in self.vm[max(idx) + 1:] if k == kind)
            best = n if best is None else min(best, n)
        return None if best is None else min(63, best)

    def label(self, s):
        self.l.append(s + ":")

    def raw(self, s):
        self.l.append(s)

    def text(self):
        return "\n".join(self.l) + "\n"


def vr(a, n):
    return "v[%d:%d]" % (a, a + n - 1)


def sr(a, n):
    return "s[%d:%d]" % (a, a + n - 1)


def pk(op, dst, *srcs):
    ops, lo, hi, neg = [], [], [], []
    for x in srcs:
        if isinstance(x, tuple):
            r = x[1]
            ops.append(vr(r & ~1, 2))
            lo.append(r & 1)
            hi.append(r & 1)
            neg.append(1 if x[0] == "nb" else 0)
        else:
            assert x % 2 == 0
            ops.append(vr(x, 2))
            lo.append(0)
            hi.append(1)
            neg.append(0)
    f = lambda l: "[" + ",".join(map(str, l)) + "]"
    t = "v_pk_%s_f32 %s, %s op_sel:%s op_sel_hi:%s" % (op, vr(dst, 2), ", ".join(ops), f(lo), f(hi))
    if any(neg):
        t += " neg_lo:%s neg_hi:%s" % (f(neg), f(neg))
    return t


def kernel_header(a, name):
    a.raw(".text")
    a.raw(".globl %s" % name)
    a.raw(".p2align 8")
    a.raw(".type %s,@function" % name)
    a.label(name)


def kernel_desc(a, name, vgpr, sgpr):
    a.raw('.section .rodata,"a"')
    a.raw(".p2align 6")
    a.raw(".amdhsa_kernel %s" % name)
    a.raw("  .amdhsa_next_free_vgpr %d" % vgpr)
    a.raw("  .amdhsa_next_free_sgpr %d" % sgpr)
    a.raw("  .amdhsa_accum_offset %d" % ((vgpr + 3) // 4 * 4))
    a.raw("  .amdhsa_group_segment_fixed_size 0")
    a.raw("  .amdhsa_kernarg_size 80")
    a.raw("  .amdhsa_user_sgpr_count 2")
    a.raw("  .amdhsa_user_sgpr_kernarg_segment_ptr 1")
    a.raw("  .amdhsa_system_sgpr_workgroup_id_x 1")
    a.raw(".end_amdhsa_kernel")


def stamp_e(a, idx):
    if STAMP and "--epi" in sys.argv:
        a("s_memtime %s" % sr(80 + 2 * idx, 2))


def stamp(a, idx):
    if STAMP and not ("--epi" in sys.argv and idx in (1, 2, 3, 4, 5) and not getattr(a, "p2", False)):
        a("s_memtime %s" % sr(80 + 2 * idx, 2))


def stamp_start(a):
    if STAMP:
        a("s_memtime s[80:81]")
        a("s_memrealtime s[98:99]")


def stamp_flush(a, wave_sgpr, wslo, wshi, kidx, endlabel):
    if not STAMP:
        return
    stamp(a, 7)
    a("s_waitcnt vmcnt(0)")
    a("s_memtime s[96:97]")
    a("s_memrealtime s[100:101]")
    a("s_waitcnt lgkmcnt(0)")
    a("s_cmp_lg_u32 s%d, 0" % wave_sgpr)
    a("s_cbranch_scc1 %s" % endlabel)
    make_srd(a, 76, wslo, wshi, 1 << 20, STAMP_OFF + kidx * 65536)
    a("s_lshl_b32 s3, s2, 6")
    a("v_mov_b32 v0, s3")
    for i in range(9):
        a("v_mov_b32 v1, s%d" % (80 + 2 * i))
        a("buffer_store_dword v1, v0, s[76:79], 0 offen offset:%d" % (4 * i))
    a("v_mov_b32 v1, s98")
    a("buffer_store_dword v1, v0, s[76:79], 0 offen offset:56")
    a("v_mov_b32 v1, s100")
    a("buffer_store_dword v1, v0, s[76:79], 0 offen offset:60")


def stamp_dump(a, kidx, lbl):
    if not STAMP:
        return
    a("s_memtime s[96:97]")
    a("s_memrealtime s[100:101]")
    a("s_waitcnt lgkmcnt(0)")
    a("s_cmp_lg_u32 s56, 0")
    a("s_cbranch_scc1 %s" % lbl)
    make_srd(a, 76, 22, 23, 1 << 20, STAMP_OFF + kidx * 65536)
    a("s_lshl_b32 s3, s2, 6")
    a("v_mov_b32 v7, s3")
    for i in range(9):
        a("v_mov_b32 v1, s%d" % (80 + 2 * i))
        a.l.append("    buffer_store_dword v1, v7, s[76:79], 0 offen offset:%d" % (4 * i))
    a("v_mov_b32 v1, s98")
    a.l.append("    buffer_store_dword v1, v7, s[76:79], 0 offen offset:56")
    a("v_mov_b32 v1, s100")
    a.l.append("    buffer_store_dword v1, v7, s[76:79], 0 offen offset:60")
    a.label(lbl)


def make_srd(a, d, lo, hi, nbytes, off=0):
    if off:
        a("s_add_u32 s%d, s%d, 0x%x" % (d, lo, off))
        a("s_addc_u32 s%d, s%d, 0" % (d + 1, hi))
    else:
        a("s_mov_b32 s%d, s%d" % (d, lo))
        a("s_mov_b32 s%d, s%d" % (d + 1, hi))
    a("s_mov_b32 s%d, 0x%x" % (d + 2, nbytes))
    a("s_mov_b32 s%d, 0x00020000" % (d + 3))


ACC = 64
FR0 = 160
PITCH = 168
REG_K = 0
REG_V = 192 * PITCH
REG_Q = 2 * 192 * PITCH
SCR = 148480
CSL = SCR + 2048
P2_B = 98304
OSTG = P2_B + 3 * 8192
K1_LDS = P2_B + 7 * 8192
SX, SW, SACT, SST, SCS, SPF1, SPF2, SDBG = 24, 28, 32, 36, 40, 44, 48, 52
S_W, S_XCD, S_SLOT, S_WM, S_WN, S_FB, S_RB = 56, 57, 58, 59, 60, 61, 62
S_SOA, S_SOB = 64, 65
V_RLO, V_CLO = 30, 31
V_RSO, V_CSO, V_ATO, V_SCW, V_SCR = 32, 33, 34, 35, 29
RL = 36
CL = 44
SEL = 240
CD = 244
TT = 248


def k2_prefetch():
    D = TT + 4
    return [["s_lshl_b32 s66, s2, 3", "s_add_u32 s66, s66, s%d" % S_W, "s_lshl_b32 s66, s66, 10",
             ("buffer_load_dwordx4 %s, v3, %s, s66 offen" % (vr(D, 4), sr(SPF1, 4)), "PF"),
             ("buffer_load_dwordx4 %s, v3, %s, s66 offen" % (vr(D, 4), sr(SPF2, 4)), "PF"),
             "s_add_u32 s66, s66, 0x200000",
             ("buffer_load_dwordx4 %s, v3, %s, s66 offen" % (vr(D, 4), sr(SPF1, 4)), "PF")]]


def tlb_warm(a):
    tab = [(4, 2048 * 1280), (6, 640 * 3840), (12, 640 * 3456), (14, 640 * 3456), (16, 1728 * 1280), (8, 640 * 1280),
           (18, 2048 * 1280)]
    a("s_cmp_eq_u32 s%d, 7" % S_W)
    a("s_cbranch_scc1 L_tw7")
    make_srd(a, SCS, tab[0][0], tab[0][0] + 1, tab[0][1])
    for w in range(1, 7):
        a("s_cmp_eq_u32 s%d, %d" % (S_W, w))
        a("s_cselect_b32 s%d, s%d, s%d" % (SCS, tab[w][0], SCS))
        a("s_cselect_b32 s%d, s%d, s%d" % (SCS + 1, tab[w][0] + 1, SCS + 1))
        a("s_cselect_b32 s%d, %d, s%d" % (SCS + 2, tab[w][1], SCS + 2))
    a("v_lshlrev_b32 v1, 16, v2")
    a("buffer_load_dword v%d, v1, %s, 0 offen" % (TT + 7, sr(SCS, 4)), "TW")
    a("s_branch L_tw_done")
    a.label("L_tw7")
    make_srd(a, SCS, 22, 23, ACT_OFF + ACT_BYTES)
    a("s_and_b32 s66, s2, 1")
    a("s_lshl_b32 s66, s66, 6")
    a("v_add_u32 v1, s66, v2")
    a("v_mul_u32_u24 v1, %d, v1" % ACT_MT)
    a("v_add_u32 v1, %d, v1" % (ACT_OFF + 74 * 1024))
    a("v_cmp_eq_u32 vcc, 0, v2")
    a("v_mov_b32 v%d, 61440" % (TT + 7))
    a("s_nop 0")
    a("v_cndmask_b32 v1, v1, v%d, vcc" % (TT + 7))
    a.l.append("    buffer_load_dword v%d, v1, %s, 0 offen" % (TT + 7, sr(SCS, 4)))
    a.label("L_tw_done")


def tlb_warm_act(a):
    if "--act" not in sys.argv:
        a("s_waitcnt vmcnt(0)")
        return
    make_srd(a, SCS, 22, 23, ACT_OFF + ACT_BYTES)
    a("v_mul_u32_u24 v1, 0x5000, v0")
    a("v_add_u32 v1, %d, v1" % ACT_OFF)
    a("buffer_store_dword v1, v1, %s, 0 offen sc1" % sr(SCS, 4))
    a("s_waitcnt vmcnt(0)")


def l2_warm(a):
    D = TT + 6
    a("s_lshr_b32 s66, s2, 3")
    a("s_lshl_b32 s66, s66, 3")
    a("s_add_u32 s66, s66, s%d" % S_W)
    a("v_mul_u32_u24 v5, 43, v2")
    a("v_lshrrev_b32 v5, 8, v5")
    a("v_mul_u32_u24 v6, 6, v5")
    a("v_sub_u32 v6, v2, v6")
    a("v_lshlrev_b32 v5, 8, v5")
    a("v_add_u32 v5, s66, v5")
    a("v_mov_b32 v9, 0x%x" % BIG)
    a("v_cmp_gt_u32 vcc, 18, v2")
    a("v_cmp_gt_u32 s[68:69], 3, v6")
    a("v_mul_u32_u24 v7, 3840, v5")
    a("v_lshrrev_b32 v8, 1, v6")
    a("v_mul_u32_u24 v8, 1280, v8")
    a("v_and_b32 v1, 1, v6")
    a("v_lshl_add_u32 v8, v1, 7, v8")
    a("v_add_u32 v7, v7, v8")
    a("v_cndmask_b32 v7, v9, v7, vcc")
    a("s_mul_i32 s67, s78, 160")
    a("s_and_b32 s67, s67, 0xffffff80")
    make_srd(a, SCS, 6, 7, 640 * 3840)
    a("buffer_load_dword v%d, v7, %s, s67 offen" % (D, sr(SCS, 4)), "LW")
    a("s_and_b64 vcc, vcc, s[68:69]")
    a("v_mul_u32_u24 v7, 3456, v5")
    a("v_lshl_add_u32 v7, v6, 7, v7")
    a("s_mul_i32 s67, s78, 384")
    a("v_cndmask_b32 v7, v9, v7, vcc")
    make_srd(a, SCS, 12, 13, 640 * 3456)
    a("buffer_load_dword v%d, v7, %s, s67 offen" % (D, sr(SCS, 4)), "LW")
    make_srd(a, SCS, 14, 15, 640 * 3456)
    a("buffer_load_dword v%d, v7, %s, s67 offen" % (D, sr(SCS, 4)), "LW")


def p2_map(a, d):
    a("s_and_b32 s%d, s2, 7" % d)
    a("s_lshr_b32 s%d, s2, 3" % (d + 1))
    a("s_cmp_ge_u32 s%d, 2" % d)
    a("s_cselect_b32 s%d, 12, 31" % (d + 2))
    a("s_cselect_b32 s%d, 12, 99" % (d + 3))
    a("s_cmp_eq_u32 s%d, s%d" % (d + 1, d + 3))
    a("s_cselect_b32 s%d, 1, 0" % (d + 4))
    a("s_cmp_eq_u32 s%d, 31" % (d + 1))
    a("s_cselect_b32 s%d, s%d, s%d" % (d + 1, d + 2, d + 1))
    a("s_min_u32 s%d, s%d, 2" % (d + 2, d))
    a("s_mul_i32 s%d, s%d, 31" % (d, d))
    a("s_add_u32 s%d, s%d, s%d" % (d, d, d + 2))
    a("s_add_u32 s%d, s%d, s%d" % (d + 1, d, d + 1))
    a("s_mul_i32 s%d, s%d, 205" % (d, d + 1))
    a("s_lshr_b32 s%d, s%d, 11" % (d, d))
    a("s_mul_i32 s%d, s%d, 10" % (d + 2, d))
    a("s_sub_u32 s%d, s%d, s%d" % (d + 1, d + 1, d + 2))
    a("s_mul_i32 s%d, s%d, 5" % (d + 2, d))
    a("s_mov_b32 s%d, 5" % (d + 3))
    for t in (2, 5, 8):
        a("s_cmp_gt_u32 s%d, %d" % (d, t))
        a("s_addc_u32 s%d, s%d, 0" % (d + 2, d + 2))
        a("s_cmp_eq_u32 s%d, %d" % (d, t))
        a("s_addc_u32 s%d, s%d, 0" % (d + 3, d + 3))


P2V = 20


def p2_early(a, split=False):
    p2_map(a, 64)
    a("v_bfe_u32 v17, v2, 1, 2")
    a("v_bfe_u32 v18, v2, 4, 1")
    a("v_xor_b32 v17, v17, v18")
    a("v_and_b32 v18, 1, v2")
    a("v_lshlrev_b32 v17, 5, v17")
    a("v_lshl_add_u32 v17, v18, 4, v17")
    a("s_and_b32 s3, s%d, 1" % S_W)
    a("s_lshl_b32 s3, s3, 6")
    a("v_xor_b32 v17, s3, v17")
    a("v_lshrrev_b32 v18, 3, v2")
    a("v_mul_u32_u24 v18, 1280, v18")
    a("s_mul_i32 s3, s%d, %d" % (S_W, 8 * 1280))
    a("s_lshl_b32 s64, s65, 7")
    a("s_add_u32 s3, s3, s64")
    a("v_add3_u32 v%d, v17, v18, s3" % P2V)
    a("s_lshl_b32 s65, s%d, 10" % S_W)
    a("s_mov_b32 s64, 0")
    p2_early_b(a, range(3 if split else 6))


def p2_early_b(a, sts):
    for st in sts:
        a("s_add_u32 m0, s65, 0x%x" % (P2_B + st * 8192))
        a("s_nop 0")
        a("buffer_load_dwordx4 v%d, %s, s64 offen lds" % (P2V, sr(SPF1, 4)))
        a("s_add_u32 s64, s64, %d" % (64 * 1280))


def p1_done(a, cnt_sgpr_expr):
    a("s_lshl_b32 s3, s2, 7")
    a("s_add_u32 s3, s3, %d" % FLG)
    a("v_mov_b32 v1, 0x%x" % BIG)
    a("v_mov_b32 v5, s3")
    a("v_cmp_eq_u32 vcc, 0, v0")
    a("v_mov_b32 v6, 1")
    a("s_waitcnt vmcnt(0)")
    a("s_barrier")
    a("v_cndmask_b32 v1, v1, v5, vcc")
    a("buffer_store_dword v6, v1, %s, 0 offen sc1" % sr(SST, 4))
    stamp_dump(a, 1, "L_sd_%d" % len(a.l))
    a("s_branch L_phase2")


def stats_setup(a):
    a("s_lshl_b32 s66, s2, 3")
    a("s_add_u32 s66, s66, s%d" % S_W)
    a("s_mul_i32 s67, s66, 1280")
    a("v_mov_b32 v9, 0x%x" % BIG)
    a("v_add_u32 v1, s67, v3")
    a("v_cmp_gt_u32 vcc, 40, v2")
    a("s_lshl_b32 s67, s2, 7")
    a("v_lshl_add_u32 v5, v2, 3, s67")
    a("v_cndmask_b32 v%d, v9, v1, vcc" % V_RLO)
    a("v_cmp_gt_u32 vcc, 16, v0")
    a("s_cmp_ge_u32 s%d, 6" % S_SLOT)
    a("s_cselect_b32 s68, 2, 1")
    a("v_cndmask_b32 v%d, v9, v5, vcc" % V_RSO)
    a("s_cselect_b32 s67, 6, 0")
    a("s_sub_u32 s66, s%d, s67" % S_SLOT)
    a("s_mul_i32 s69, s%d, 6" % S_XCD)
    a("s_add_u32 s69, s69, s66")
    a("s_sub_u32 s66, s%d, 12" % S_SLOT)
    a("s_lshl_b32 s66, s66, 3")
    a("s_add_u32 s66, s66, s%d" % S_XCD)
    a("s_mov_b32 s73, 0")
    a("s_cmp_ge_u32 s66, 60")
    a("s_cselect_b32 s73, 1, s73")
    a("s_cselect_b32 s75, 12, 0")
    a("s_sub_u32 s74, s66, s75")
    a("s_cmp_ge_u32 s66, 66")
    a("s_cselect_b32 s73, 2, s73")
    a("s_cselect_b32 s75, 6, 0")
    a("s_sub_u32 s74, s74, s75")
    a("s_cmp_ge_u32 s%d, 12" % S_SLOT)
    a("s_cselect_b32 s68, s73, s68")
    a("s_cselect_b32 s69, s74, s69")
    a("s_cmp_ge_u32 s%d, 21" % S_SLOT)
    a("s_cselect_b32 s71, 1, 0")
    a("s_cmp_eq_u32 s68, 1")
    a("s_cselect_b32 s%d, s12, s14" % SCS)
    a("s_cselect_b32 s%d, s13, s15" % (SCS + 1))
    a("s_cselect_b32 s72, 1920, 3648")
    a("s_cmp_eq_u32 s68, 0")
    a("s_cselect_b32 s%d, s6, s%d" % (SCS, SCS))
    a("s_cselect_b32 s%d, s7, s%d" % (SCS + 1, SCS + 1))
    a("s_cselect_b32 s72, 0, s72")
    a("s_cselect_b32 s73, 3840, 3456")
    a("s_mul_i32 s%d, s73, 640" % (SCS + 2))
    a("s_mov_b32 s%d, 0x00020000" % (SCS + 3))
    a("v_lshrrev_b32 v1, 4, v2")
    a("v_bfe_u32 v5, v2, 2, 2")
    a("v_lshl_add_u32 v1, v1, 2, v5")
    a("s_lshl_b32 s75, s%d, 4" % S_W)
    a("v_add_u32 v1, s75, v1")
    a("v_mul_lo_u32 v1, v1, s73")
    a("v_and_b32 v5, 3, v2")
    a("v_lshl_add_u32 v1, v5, 4, v1")
    a("s_lshl_b32 s74, s69, 6")
    a("s_cmp_eq_u32 s71, 1")
    a("s_cselect_b32 s74, 0x%x, s74" % BIG)
    a("v_add_u32 v%d, s74, v1" % V_CLO)
    a("s_lshl_b32 s77, s73, 7")
    a("s_lshl_b32 s75, s69, 5")
    a("s_add_u32 s74, s72, s75")
    a("s_lshl_b32 s74, s74, 2")
    a("s_add_u32 s74, s74, %d" % ST_CS)
    a("s_or_b32 s75, s71, s%d" % S_W)
    a("s_cmp_eq_u32 s75, 0")
    a("s_cselect_b32 s74, s74, 0x%x" % BIG)
    a("v_lshl_add_u32 v1, v2, 2, s74")
    a("v_cmp_gt_u32 vcc, 32, v2")
    a("v_and_b32 v5, 15, v2")
    a("v_lshlrev_b32 v6, 4, v5")
    a("v_cndmask_b32 v%d, v9, v1, vcc" % V_CSO)
    a("v_cmp_gt_u32 vcc, 8, v5")
    a("s_lshl_b32 s74, s%d, 7" % S_W)
    a("s_add_u32 s74, s74, %d" % SCR)
    a("v_add_u32 v7, s74, v6")
    a("v_add_u32 v6, %d, v6" % (SCR + 1024))
    a("v_cndmask_b32 v%d, v6, v7, vcc" % V_SCW)
    for d in range(4):
        a("v_cmp_eq_u32 vcc, %d, v5" % (2 * d))
        a("v_mov_b32 v6, 0x3f80")
        a("v_cmp_eq_u32 s[68:69], %d, v5" % (2 * d + 1))
        a("v_cndmask_b32 v%d, 0, v6, vcc" % (SEL + d))
        a("v_mov_b32 v6, 0x3f800000")
        a("v_cndmask_b32 v%d, v%d, v6, s[68:69]" % (SEL + d, SEL + d))
    a("v_and_b32 v5, 7, v2")
    a("v_bfe_u32 v6, v2, 3, 2")
    a("v_lshlrev_b32 v6, 2, v6")
    a("v_lshl_add_u32 v5, v5, 4, v6")
    a("v_cmp_eq_u32 vcc, 0, v0")
    a("v_add_u32 v%d, %d, v5" % (V_SCR, SCR))
    a("s_lshl_b32 s76, s77, 1")
    a("v_mov_b32 v5, 240")
    a("v_cndmask_b32 v%d, v9, v5, vcc" % V_ATO)
    a("s_add_u32 s75, s76, s77")
    a("s_lshl_b32 s74, s77, 2")


def stats_loads():
    o = [("buffer_load_dwordx4 %s, v%d, %s, 0 offen" % (vr(RL, 4), V_RLO, sr(SX, 4)), "SL"),
         ("buffer_load_dwordx4 %s, v%d, %s, 0 offen offset:640" % (vr(RL + 4, 4), V_RLO, sr(SX, 4)), "SL")]
    for i in (1, 2, 0, 3, 4):
        so = ["0", "s77", "s76", "s75", "s74"][i]
        o.append(("buffer_load_dwordx4 %s, v%d, %s, %s offen" % (vr(CL + 4 * i, 4), V_CLO, sr(SCS, 4), so), "SL"))
    return o


def xreduce(regs, tmps, op="v_add_f32", swaps=("v_permlane16_swap_b32", "v_permlane32_swap_b32")):
    o = []
    for swp in swaps:
        for v, t in zip(regs, tmps):
            o.append("v_mov_b32 v%d, v%d" % (t, v))
        o.append("s_nop 1")
        for v, t in zip(regs, tmps):
            o.append("%s v%d, v%d" % (swp, v, t))
        o.append("s_nop 1")
        for v, t in zip(regs, tmps):
            o.append("%s v%d, v%d, v%d" % (op, v, v, t))
    return o


def stats_segA():
    o = []
    T = TT
    for i in range(5):
        o.append("v_mfma_f32_16x16x32_bf16 %s, %s, %s, %s" % (vr(CD, 4), vr(CL + 4 * i, 4), vr(SEL, 4), "0" if i == 0 else vr(CD, 4)))
    o.append("v_mov_b32 v%d, 0x3f803f80" % (T + 4))
    for d in range(8):
        c = "0" if d < 2 else "v%d" % (T + d % 2)
        o.append("v_dot2_f32_bf16 v%d, v%d, v%d, %s" % (T + d % 2, RL + d, T + 4, c))
        c = "0" if d < 2 else "v%d" % (T + 2 + d % 2)
        o.append("v_dot2_f32_bf16 v%d, v%d, v%d, %s" % (T + 2 + d % 2, RL + d, RL + d, c))
    o.append("s_nop 2")
    o.append("v_add_f32 v%d, v%d, v%d" % (T, T, T + 1))
    o.append("v_add_f32 v%d, v%d, v%d" % (T + 2, T + 2, T + 3))
    for sh in (8, 4, 2, 1):
        o.append("s_nop 1")
        for v in (T, T + 2):
            o.append("v_add_f32_dpp v%d, v%d, v%d row_ror:%d row_mask:0xf bank_mask:0xf" % (v, v, v, sh))
    o += xreduce([T, T + 2, CD, CD + 1, CD + 2, CD + 3], [T + 1, T + 3, CL, CL + 1, CL + 2, CL + 3])
    o.append("ds_write_b128 v%d, %s" % (V_SCW, vr(CD, 4)))
    o.append("v_mul_f32 v%d, 0x%x, v%d" % (T, f2u(1.0 / 640.0), T))
    o.append("v_mul_f32 v%d, 0x%x, v%d" % (T + 2, f2u(1.0 / 640.0), T + 2))
    o.append("v_fma_f32 v%d, -v%d, v%d, v%d" % (T + 2, T, T, T + 2))
    o.append("v_max_f32 v%d, 0, v%d" % (T + 2, T + 2))
    o.append("v_cvt_pk_bf16_f32 v%d, v%d, v%d" % (T + 1, T, T + 2))
    o.append("v_lshlrev_b32 v%d, 16, v%d" % (T + 4, T + 1))
    o.append("v_and_b32 v%d, 0xffff0000, v%d" % (T + 5, T + 1))
    o.append("v_add_f32 v%d, 0x%x, v%d" % (T + 5, f2u(1e-5), T + 5))
    o.append("v_cvt_pk_bf16_f32 v%d, v%d, v%d" % (T + 5, T + 5, T + 5))
    o.append("v_lshlrev_b32 v%d, 16, v%d" % (T + 5, T + 5))
    o.append("v_sqrt_f32 v%d, v%d" % (T + 5, T + 5))
    o.append("s_nop 0")
    o.append("v_cvt_pk_bf16_f32 v%d, v%d, v%d" % (T + 5, T + 5, T + 5))
    o.append("v_lshlrev_b32 v%d, 16, v%d" % (T + 5, T + 5))
    o.append(["s_lshl_b32 s66, s%d, 3" % S_W, "s_add_u32 s66, s66, %d" % (SCR + 1536), "v_mov_b32 v%d, s66" % T])
    o.append("ds_write_b64 v%d, %s offset:%d" % (T, vr(T + 4, 2), 0))
    return o


def stats_segB():
    return ["ds_read_b32 v%d, v%d offset:%d" % (CL + w, V_SCR, 128 * w) for w in range(8)] + \
           ["v_and_b32 v%d, 7, v2" % TT, "v_lshlrev_b32 v%d, 3, v%d" % (TT, TT), "v_add_u32 v%d, %d, v%d" % (TT, SCR + 1536, TT),
            "ds_read_b64 %s, v%d" % (vr(TT + 2, 2), TT)]


def stats_segC():
    o = []
    for (x, y) in ((0, 1), (2, 3), (4, 5), (6, 7), (0, 2), (4, 6), (0, 4)):
        o.append("v_add_f32 v%d, v%d, v%d" % (CL + x, CL + x, CL + y))
    o.append(("buffer_store_dword v%d, v%d, %s, 0 offen sc1" % (CL, V_CSO, sr(SST, 4)), "ST"))
    o.append(("buffer_store_dwordx2 %s, v%d, %s, 0 offen sc1" % (vr(TT + 2, 2), V_RSO, sr(SST, 4)), "ST"))
    return o


def stats_signal():
    return ["v_mov_b32 v%d, 1" % TT,
            ("buffer_atomic_add v%d, v%d, %s, 0 offen" % (TT, V_ATO, sr(SDBG, 4)), "AT")]


def emit(a, x):
    if isinstance(x, list):
        for y in x:
            emit(a, y)
    elif isinstance(x, tuple):
        a(x[0], x[1])
    else:
        a(x)


IT_SIG, IT_POLL, IT_CHK = 8, 15, 17


def k1_mainloop(a, P):
    nI, nJ = P["nI"], P["nJ"]
    NST = 20
    nA, nB = 2 * nI, 2 * nJ

    def fx(p, I, hh):
        return FR0 + 40 * p + 8 * I + 4 * hh

    def fw(p, j, hh):
        return FR0 + 40 * p + 8 * nI + 8 * j + 4 * hh

    def read_ops(stage):
        p = stage % 2
        ops = []
        if MF == 32:
            for hh in range(2):
                for j in range(nJ):
                    for e in range(2):
                        v, imm = P["b_addr"](stage % 4, j)
                        ops.append("ds_read_b64_tr_b16 %s, v%d offset:%d" % (vr(fw(p, j, hh) + 2 * e, 2), v, imm + hh * 2048 + e * 512))
                for I in range(nI):
                    v, imm = P["a_addr"]((stage // 2) % 3, 2 * (stage % 2) + hh, I)
                    ops.append("ds_read_b128 %s, v%d offset:%d" % (vr(fx(p, I, hh), 4), v, imm))
        else:
            for j in range(nB):
                for e in range(2):
                    v, imm = P["b_addr"](stage % 4, j)
                    ops.append("ds_read_b64_tr_b16 %s, v%d offset:%d" % (vr(FR0 + 40 * p + 4 * nA + 4 * j + 2 * e, 2), v, imm + e * 512))
            for i in range(nA - P.get("skipA", 0)):
                v, imm = P["a_addr"]((stage // 2) % 3, stage % 2, i)
                ops.append("ds_read_b128 %s, v%d offset:%d" % (vr(FR0 + 40 * p + 4 * i, 4), v, imm))
        return ops

    def mfmas(it):
        p = it % 2
        o = []
        if MF == 32:
            for hh in range(2):
                for I in range(nI):
                    for j in range(nJ):
                        acc = ACC + 16 * (I * nJ + j)
                        c = "0" if (it == 0 and hh == 0) else vr(acc, 16)
                        o.append("v_mfma_f32_32x32x16_bf16 %s, %s, %s, %s" % (vr(acc, 16), vr(fw(p, j, hh), 4), vr(fx(p, I, hh), 4), c))
        else:
            for i in range(nA - P.get("skipA", 0)):
                for j in range(nB):
                    acc = ACC + 4 * (i * nB + j)
                    c = "0" if it == 0 else vr(acc, 4)
                    o.append("v_mfma_f32_16x16x32_bf16 %s, %s, %s, %s" % (vr(acc, 4), vr(FR0 + 40 * p + 4 * nA + 4 * j, 4), vr(FR0 + 40 * p + 4 * i, 4), c))
        return o

    def pro(ops):
        for (m, d, tag, adv) in ops:
            a(m)
            a("s_nop 0")
            a(d, tag)
            for x in adv:
                a(x)
    B, A = P["bdma"], P["adma"]
    pro(B(0))
    pro(sum(A(0), []))
    pro(B(1))
    pro(sum(A(1), []))
    for x in stats_loads()[:3]:
        emit(a, x)
    for x in P.get("early", []):
        emit(a, x)
    stamp(a, 4)
    a("s_waitcnt vmcnt(%d)" % a.vmwait({"B0", "A0"}))
    a("s_barrier")
    stamp(a, 5)
    for x in read_ops(0):
        a(x)
    for it in range(NST):

        p = it % 2
        tags = set()
        if it + 1 < NST:
            tags |= {"B%d" % (it + 1), "A%d" % ((it + 1) // 2)}
        tags |= P["toptags"].get(it, set())
        n = a.vmwait(tags)
        if n is not None:
            a("s_waitcnt vmcnt(%d) lgkmcnt(0)" % n)
        else:
            a("s_waitcnt lgkmcnt(0)")
        if it == IT_CHK:
            nm = P["name"]
            a("s_mov_b32 s66, 0")
            a.label("L_poll_%s" % nm)
            a("v_readfirstlane_b32 s67, v%d" % TT)
            a("s_add_u32 s66, s66, 1")
            a("s_cmp_ge_u32 s67, 256")
            a("s_cbranch_scc1 L_pollok_%s" % nm)
            a("s_cmp_ge_u32 s66, 0x40000")
            a("s_cbranch_scc1 L_pollok_%s" % nm)
            a("s_sleep 2")
            a.l.append("    buffer_load_dword v%d, v%d, %s, 0 offen sc1" % (TT, TT + 1, sr(SDBG, 4)))
            a("s_waitcnt vmcnt(0)")
            a("s_branch L_poll_%s" % nm)
            a.label("L_pollok_%s" % nm)
        a("s_barrier")
        dm = []
        if it == 0:
            dm = B(2) + B(3) + A(2)[0]
        elif it == 1:
            dm = B(4) + B(5) + A(2)[1]
        elif it == 2:
            dm = B(6) + A(3)[0] + A(3)[1]
        else:
            if it + 4 < NST:
                dm += B(it + 4)
            S = (it - 1) // 2 + 3
            if S < 10:
                dm += A(S)[(it - 1) % 2]
        rd = read_ops(it + 1) if it + 1 < NST else []
        stream = []
        for (m, d, tag, adv) in dm:
            mid = rd.pop(0) if rd else "s_nop 0"
            stream.append([m, mid, (d, tag)] + adv)
        stream += [[x] for x in rd]
        stream += [[x] for x in P["bg"].get(it, [])]
        mf = mfmas(it)
        ngap = len(mf)
        for gi, x in enumerate(mf):
            a(x)
            k = (len(stream) + (ngap - gi) - 1) // (ngap - gi) if MF == 32 else min(len(stream), max(1, (len(stream) + (ngap - gi) - 1) // (ngap - gi)))
            for _ in range(k):
                if stream:
                    emit(a, stream.pop(0))
        for x in stream:
            emit(a, x)
    stamp(a, 6)


def adv(r, inc, tot):
    return ["s_add_u32 s%d, s%d, %d" % (r, r, inc), "s_cmp_ge_u32 s%d, %d" % (r, tot), "s_cselect_b32 s%d, 0, s%d" % (r, r)]


def split_bg(lst, its):
    n = (len(lst) + len(its) - 1) // len(its)
    return {it: lst[i * n:(i + 1) * n] for i, it in enumerate(its)}


def std_bg(pre, tail17, tail19):
    sl = stats_loads()
    bg = {0: sl[3:7]}
    bg.update(split_bg(stats_segA(), [2, 3]))
    bg[9] = k2_prefetch()
    bg[4] = stats_segB()
    bg[5] = stats_segC()
    bg[IT_SIG] = stats_signal()
    bg.update(split_bg(pre, [12, 13, 14]))
    bg[IT_POLL] = [("buffer_load_dword v%d, v%d, %s, 0 offen sc1" % (TT, TT + 1, sr(SDBG, 4)), "POLL")]
    bg[IT_CHK] = tail17
    bg[19] = tail19
    top = {2: {"SL"}, IT_SIG: {"ST"}, IT_CHK: {"POLL"}, 19: {"TL"}}
    return bg, top


def gen_k1(a):
    name = NAME + "_kernel"
    kernel_header(a, name)
    a("s_cmp_ge_u32 s2, 256")
    a("s_cbranch_scc1 L_k1_end")
    stamp_start(a)
    a("s_load_dwordx4 s[20:23], s[0:1], 64")
    a("s_load_dwordx4 s[4:7], s[0:1], 0")
    a("s_load_dwordx2 s[8:9], s[0:1], 16")
    a("s_load_dwordx4 s[12:15], s[0:1], 32")
    a("s_load_dwordx4 s[16:19], s[0:1], 48")
    a("v_lshrrev_b32 v1, 6, v0")
    a("v_and_b32 v2, 63, v0")
    a("v_readfirstlane_b32 s%d, v1" % S_W)
    a("v_lshlrev_b32 v3, 4, v2")
    a("s_getreg_b32 s78, hwreg(HW_REG_XCC_ID)")
    a("s_and_b32 s%d, s2, 7" % S_XCD)
    a("s_lshr_b32 s%d, s2, 3" % S_SLOT)
    a("s_and_b32 s78, s78, 7")
    a("s_lshl_b32 s66, s78, 5")
    a("v_mov_b32 v17, s66")
    a("v_mov_b32 v1, 0x%x" % BIG)
    a("v_cmp_eq_u32 vcc, 0, v0")
    a("v_mov_b32 v18, 1")
    a("s_lshr_b32 s%d, s%d, 2" % (S_WM, S_W))
    a("s_and_b32 s%d, s%d, 3" % (S_WN, S_W))
    a("v_cndmask_b32 v17, v1, v17, vcc")
    a("s_waitcnt lgkmcnt(0)")
    stamp(a, 1)
    make_srd(a, SDBG, 20, 21, 256)
    a.vm = []
    a("s_cmp_lg_u32 s%d, 0" % S_W)
    a("s_cbranch_scc1 L_tk_skip")
    a("buffer_atomic_add v18, v17, %s, 0 offen sc0" % sr(SDBG, 4), "TK")
    a.label("L_tk_skip")
    make_srd(a, SX, 4, 5, 2048 * 1280)
    make_srd(a, SACT, 22, 23, ACT_BYTES, ACT_OFF)
    make_srd(a, SST, 22, 23, ST_BYTES, ST_OFF)
    make_srd(a, SPF1, 16, 17, 1728 * 1280)
    make_srd(a, SPF2, 8, 9, 640 * 1280)
    tlb_warm(a)
    if "--lw" in sys.argv:
        l2_warm(a)
    stats_setup(a)
    a("v_lshrrev_b32 v4, 4, v2")
    a("v_lshlrev_b32 v5, 10, v4")
    a("v_bfe_u32 v6, v2, 2, 2")
    a("v_lshl_add_u32 v5, v6, 7, v5")
    a("v_and_b32 v6, 3, v2")
    a("v_lshl_add_u32 v5, v6, 3, v5")
    a("v_bfe_u32 v6, v2, 3, 2")
    a("v_bfe_u32 v26, v2, 4, 1")
    a("v_lshrrev_b32 v7, 3, v2")
    a("v_bfe_u32 v8, v2, 1, 2")
    a("v_xor_b32 v8, v8, v26")
    a("v_and_b32 v9, 1, v2")
    a("v_and_b32 v10, 7, v2")
    a("v_lshrrev_b32 v11, 4, v2")
    a("v_xor_b32 v10, v10, v11")
    a("v_lshlrev_b32 v10, 4, v10")
    a("v_mul_u32_u24 v11, 1280, v7")
    a("v_add_u32 v10, v10, v11")
    a("v_bfe_u32 v15, v2, 1, 3")
    a("v_xor_b32 v15, v15, v4")
    a("v_lshlrev_b32 v15, 4, v15")
    a("v_and_b32 v16, 7, v2")
    a("v_lshl_add_u32 v15, v16, 7, v15")
    a("v_bfe_u32 v16, v2, 3, 1")
    a("v_lshl_add_u32 v15, v16, 10, v15")
    a("s_cmp_lg_u32 s%d, 0" % S_W)
    a("s_cbranch_scc1 L_tk_done")
    a("s_mov_b32 s67, 0")
    a("s_waitcnt vmcnt(%d)" % a.vmwait({"TK"}))
    a.label("L_tk_loop")
    a("v_readfirstlane_b32 s68, v18")
    a("s_add_u32 s67, s67, 1")
    a("s_nop 2")
    a("s_cmp_lt_u32 s68, 32")
    a("s_cbranch_scc1 L_tk_got")
    a("s_cmp_ge_u32 s67, 16")
    a("s_cbranch_scc1 L_tk_got")
    a("s_add_u32 s78, s78, 1")
    a("s_and_b32 s78, s78, 7")
    a("s_lshl_b32 s68, s78, 5")
    a("v_writelane_b32 v17, s68, 0")
    a("v_mov_b32 v18, 1")
    a.l.append("    buffer_atomic_add v18, v17, %s, 0 offen sc0" % sr(SDBG, 4))
    a("s_waitcnt vmcnt(0)")
    a("s_branch L_tk_loop")
    a.label("L_tk_got")
    a("s_and_b32 s68, s68, 31")
    a("s_lshl_b32 s68, s68, 3")
    a("s_add_u32 s68, s68, s78")
    a("v_mov_b32 v17, %d" % (SCR + 2044))
    a("v_mov_b32 v18, s68")
    a("ds_write_b32 v17, v18")
    a("s_waitcnt lgkmcnt(0)")
    a.label("L_tk_done")
    stamp(a, 2)
    a("s_barrier")
    stamp(a, 3)
    a("v_mov_b32 v1, %d" % (SCR + 2044))
    a("ds_read_b32 v1, v1")
    a("s_waitcnt lgkmcnt(0)")
    a("v_readfirstlane_b32 s2, v1")
    a("s_nop 3")
    a("s_and_b32 s%d, s2, 7" % S_XCD)
    a("s_lshr_b32 s%d, s2, 3" % S_SLOT)
    a("s_lshl_b32 s66, s2, 7")
    a("s_add_u32 s66, s66, %d" % FLG)
    a("v_mov_b32 v17, s66")
    a("v_mov_b32 v1, 0x%x" % BIG)
    a("v_cmp_eq_u32 vcc, 0, v0")
    a("v_mov_b32 v18, 0")
    a("s_nop 0")
    a("v_cndmask_b32 v17, v1, v17, vcc")
    a("buffer_store_dword v18, v17, %s, 0 offen sc1" % sr(SST, 4), "ST")
    if "--prio" in sys.argv:
        a("s_cmp_lt_u32 s%d, 4" % S_W)
        a("s_cbranch_scc1 L_prio_done")
        a("s_setprio 1")
        a.label("L_prio_done")
    VM0 = list(a.vm)
    a("s_cmp_lt_u32 s%d, 13" % S_SLOT)
    a("s_cbranch_scc1 L_k1_att")
    a("s_cmp_lt_u32 s%d, 31" % S_SLOT)
    a("s_cbranch_scc0 L_k1_extra")
    a("s_sub_u32 s%d, s%d, 13" % (S_SLOT, S_SLOT))

    a.vm = list(VM0)
    a("s_lshl_b32 s66, s%d, 1" % S_XCD)
    a("s_add_u32 s66, s66, s%d" % S_SLOT)
    a("s_sub_u32 s66, s66, 16")
    a("s_cmp_lt_u32 s%d, 16" % S_SLOT)
    a("s_cselect_b32 s%d, s%d, 8" % (S_FB, S_XCD))
    a("s_cselect_b32 s%d, s%d, s66" % (S_RB, S_SLOT))
    a("s_cmp_lt_u32 s%d, 4" % S_W)
    a("s_cselect_b32 s%d, s12, s14" % SW)
    a("s_cselect_b32 s%d, s13, s15" % (SW + 1))
    a("s_mov_b32 s%d, %d" % (SW + 2, 640 * 3456))
    a("s_mov_b32 s%d, 0x00020000" % (SW + 3))
    a("s_add_u32 s66, s%d, s%d" % (S_RB, S_FB))
    for _ in range(2):
        a("s_cmp_ge_u32 s66, 10")
        a("s_cselect_b32 s67, 10, 0")
        a("s_sub_u32 s66, s66, s67")
    if not ROT:
        a("s_mov_b32 s66, 0")
    if RP == 5:
        a("s_and_b32 s66, s66, 14")
    if RP == 2:
        a("s_and_b32 s66, s66, 1")
        a("s_mul_i32 s66, s66, 5")
    if RP == 3:
        a("s_mul_i32 s66, s66, 22")
        a("s_lshr_b32 s66, s66, 6")
        a("s_mul_i32 s66, s66, 3")
        a("s_min_u32 s66, s66, 6")
    a("s_lshl_b32 s%d, s66, 7" % S_SOA)
    a("s_mul_i32 s%d, s66, 221184" % S_SOB)
    a("s_mul_i32 s70, s%d, 384" % S_FB)
    a("v_mul_u32_u24 v16, 3456, v7")
    a("v_add_u32 v16, s70, v16")
    a("v_lshlrev_b32 v1, 5, v8")
    a("v_lshl_add_u32 v1, v9, 4, v1")
    for j in range(3):
        a("s_mul_i32 s66, s%d, 3" % S_W)
        a("s_add_u32 s66, s66, %d" % j)
        a("s_and_b32 s67, s66, 3")
        a("s_lshr_b32 s68, s66, 2")
        a("s_cmp_ge_u32 s68, 3")
        a("s_cselect_b32 s69, 3, 0")
        a("s_sub_u32 s68, s68, s69")
        if MF == 32:
            a("s_xor_b32 s69, s67, s%d" % S_WM)
            a("s_and_b32 s69, s69, 1")
        else:
            a("s_and_b32 s69, s67, 1")
        a("s_lshl_b32 s69, s69, 6")
        a("v_xor_b32 v%d, s69, v1" % (12 + j))
        a("s_mul_i32 s67, s67, %d" % (8 * 3456))
        a("s_lshl_b32 s68, s68, 7")
        a("s_add_u32 s67, s67, s68")
        a("v_add3_u32 v%d, v%d, v16, s67" % (12 + j, 12 + j))
    a("s_lshl_b32 s66, s%d, 3" % S_RB)
    a("s_add_u32 s66, s66, s%d" % S_W)
    a("s_mul_i32 s66, s66, %d" % (16 * 1280))
    a("v_xor_b32 v11, 64, v10")
    a("v_add_u32 v10, s66, v10")
    a("s_add_u32 s66, s66, %d" % (8 * 1280))
    a("v_add_u32 v11, s66, v11")
    a("s_mul_i32 s3, s%d, 3072" % S_W)
    a("s_lshl_b32 s79, s%d, 11" % S_W)
    ARING = 98304
    a("s_lshl_b32 s66, s%d, 13" % S_WM)
    a("s_add_u32 s66, s66, %d" % ARING)
    for c in ((3, 2, 1, 0) if MF == 32 else (1, 0)):
        if c:
            a("v_xor_b32 v%d, %d, v15" % (15 + c, (32 if MF == 32 else 64) * c))
        a("v_add_u32 v%d, s66, v%d" % (15 + c, 15 + c))
    if MF == 32:
        a("v_lshlrev_b32 v1, 1, v26")
        a("v_xor_b32 v6, v6, v1")
        a("v_mul_u32_u24 v1, 12288, v26")
        a("v_add_u32 v5, v5, v1")
    for j in range(3):
        a("s_mul_i32 s66, s%d, 3" % S_WN)
        a("s_add_u32 s66, s66, %d" % j)
        a("s_and_b32 s67, s66, 3")
        a("s_lshr_b32 s66, s66, 2")
        a("s_lshl_b32 s66, s66, 12")
        a("v_xor_b32 v%d, s67, v6" % (19 + j))
        a("v_lshl_add_u32 v%d, v%d, 5, v5" % (19 + j, 19 + j))
        a("v_add_u32 v%d, s66, v%d" % (19 + j, 19 + j))
        a("v_add_u32 v%d, 0x%x, v%d" % (22 + j, 2 * 24576, 19 + j))

    def bdma(st):
        o = []
        for j in range(3):
            o.append(("s_add_u32 m0, s3, 0x%x" % ((st % 4) * 24576 + 1024 * j),
                      "buffer_load_dwordx4 v%d, %s, s%d offen lds" % (12 + j, sr(SW, 4), S_SOB), "B%d" % st,
                      adv(S_SOB, 32 * 3456, 640 * 3456) if j == 2 else []))
        return o

    def adma(S):
        return [[("s_add_u32 m0, s79, 0x%x" % (ARING + (S % 3) * 16384 + 1024 * h),
                  "buffer_load_dwordx4 v%d, %s, s%d offen lds" % (10 + h, sr(SX, 4), S_SOA), "A%d" % S,
                  adv(S_SOA, 128, 1280) if h == 1 else [])] for h in range(2)]

    pre = ["v_and_b32 v25, 1, v4", "s_mov_b32 s66, %d" % ACT_MT, "v_mul_lo_u32 v25, v25, s66",
           "v_lshrrev_b32 v1, 1, v4", "v_lshl_add_u32 v25, v1, 8, v25", "v_and_b32 v1, 15, v2", "v_lshl_add_u32 v25, v1, 4, v25",
           "s_mul_i32 s66, s%d, %d" % (S_WM, 4 * ACT_MT), "s_mul_i32 s67, s%d, %d" % (S_WN, 6 * 256),
           "s_add_u32 s66, s66, s67", "v_add_u32 v25, s66, v25",
           "s_mul_i32 s70, s%d, %d" % (S_RB, 8 * ACT_MT), "s_mul_i32 s67, s%d, %d" % (S_FB, 24 * 256),
           "s_add_u32 s70, s70, s67", "s_add_u32 s70, s70, %d" % (80 * 256), "s_add_u32 s71, s70, %d" % (2 * ACT_MT),
           "s_lshl_b32 s66, s%d, 1" % S_RB, "s_add_u32 s66, s66, s%d" % S_WM, "s_lshl_b32 s66, s66, 10",
           "v_and_b32 v26, 7, v2", "v_lshl_add_u32 v26, v26, 3, s66", "v_bfe_u32 v1, v2, 3, 1", "v_lshl_add_u32 v26, v1, 7, v26",
           "v_cmp_gt_u32 vcc, 48, v2", "v_mov_b32 v1, 0x%x" % BIG, "s_nop 0", "v_cndmask_b32 v27, v1, v3, vcc",
           "s_mul_i32 s72, s%d, 768" % S_FB, "s_add_u32 s72, s72, %d" % (ST_CS + 1920 * 4),
           "s_add_u32 s73, s72, %d" % (1728 * 4),
           "s_mul_i32 s66, s%d, 192" % S_WN, "s_add_u32 s66, s66, %d" % CSL, "v_lshl_add_u32 v28, v4, 4, s66",
           "v_mov_b32 v%d, 240" % (TT + 1)]
    RS = 36
    CS0 = 44
    t17 = [("buffer_load_dwordx2 %s, v26, %s, 0 offen offset:%d sc1" % (vr(RS + 2 * i, 2), sr(SST, 4), 256 * i), "TL") for i in range(4)]
    for mat in range(2):
        t17.append(["s_mov_b32 m0, %d" % (CSL + 1024 * mat), "s_nop 0",
                    ("buffer_load_dwordx4 v27, %s, s%d offen sc1 lds" % (sr(SST, 4), 72 + mat), "TL")])

    def csreg(t):
        return CS0 + 4 * t if t < 5 else 240
    t19 = ["ds_read_b128 %s, v28 offset:%d" % (vr(csreg(t), 4), (t // 3) * 1024 + (t % 3) * 64) for t in range(6)]
    bg, top = std_bg(pre[-1:], t17, t19)
    P = dict(nI=2, nJ=3, name="ffn", bdma=bdma, adma=adma, bg=bg, toptags=top, early=pre[:-1],
             a_addr=lambda S3, q, i: (15 + q, S3 * 16384 + i * 2048),
             b_addr=lambda slot, j: (19 + 3 * (slot // 2) + j % 3, (slot % 2) * 24576 + (j // 3) * 12288))
    k1_mainloop(a, P)

    c1 = -2.0 * LOG2E * 0.7978845608028654
    RC = 5
    for i in range(4):
        a("v_rcp_f32 v%d, v%d" % (RC + 3 * i, RS + 2 * i + 1))
    a("s_nop 0")
    for i in range(4):
        a("v_mul_f32 v%d, v%d, v%d" % (RC + 3 * i + 2, RS + 2 * i + 1, RS + 2 * i + 1))
        a("v_mul_f32 v%d, v%d, v%d" % (RC + 3 * i + 1, RC + 3 * i, RC + 3 * i))
        a("v_mul_f32 v%d, 0x%x, v%d" % (RC + 3 * i, f2u(c1), RC + 3 * i))
        a("v_mul_f32 v%d, 0x%x, v%d" % (RC + 3 * i + 1, f2u(0.044715), RC + 3 * i + 1))
        a("v_mul_f32 v%d, v%d, v%d" % (RC + 3 * i + 1, RC + 3 * i + 1, RC + 3 * i))
    a("s_waitcnt lgkmcnt(0)")
    T0 = FR0
    OUT = FR0 + 16
    n = 0
    for ip in (0, 2):
        for j in range(3):
            el = []
            for ii in (ip, ip + 1):
                for r in range(4):
                    el.append((ACC + 4 * (ii * 6 + j) + r, ACC + 4 * (ii * 6 + 3 + j) + r, csreg(j) + r, csreg(3 + j) + r,
                               RS + 2 * ii, RC + 3 * ii, RC + 3 * ii + 1, RC + 3 * ii + 2))
            e2 = list(enumerate(el))[::2]
            for q, (x, u, cg, cu, m_, k1_, k3_, s2_) in e2:
                a(pk("fma", x, ("nb", m_), cg, x))
            for q, (x, u, cg, cu, m_, k1_, k3_, s2_) in e2:
                a(pk("mul", T0 + q, x, x))
            for q, (x, u, cg, cu, m_, k1_, k3_, s2_) in e2:
                a(pk("fma", T0 + q, T0 + q, ("b", k3_), ("b", k1_)))
            for q, (x, u, cg, cu, m_, k1_, k3_, s2_) in e2:
                a(pk("mul", T0 + q, x, T0 + q))
            for q in range(8):
                a("v_exp_f32 v%d, v%d" % (T0 + q, T0 + q))
            for q, (x, u, cg, cu, m_, k1_, k3_, s2_) in e2:
                a(pk("fma", u, ("nb", m_), cu, u))
            for q, (x, u, cg, cu, m_, k1_, k3_, s2_) in e2:
                a(pk("mul", u, x, u))
            for q, (x, u, cg, cu, m_, k1_, k3_, s2_) in e2:
                a(pk("fma", T0 + q, T0 + q, ("b", s2_), ("b", s2_)))
            for q in range(8):
                a("v_rcp_f32 v%d, v%d" % (T0 + q, T0 + q))
            a("s_nop 0")
            for q, (x, u, cg, cu, m_, k1_, k3_, s2_) in e2:
                a(pk("mul", u, u, T0 + q))
            o = OUT + 4 * (n % 3)
            n += 1
            for q in range(4):
                a("v_cvt_pk_bf16_f32 v%d, v%d, v%d" % (o + q, el[2 * q][1], el[2 * q + 1][1]))
            a("s_nop 1")
            a("v_permlane16_swap_b32 v%d, v%d" % (o, o + 2))
            a("v_permlane16_swap_b32 v%d, v%d" % (o + 1, o + 3))
            a("s_nop 1")
            a("buffer_store_dwordx4 %s, v25, %s, s%d offen offset:%d %s" % (vr(o, 4), sr(SACT, 4), 70 + ip // 2, 512 * j, SCF))
    stamp(a, 7)
    p2_early(a)
    p1_done(a, ["s_cmp_eq_u32 s%d, 8" % S_FB, "s_cselect_b32 s64, 0, 64", "s_lshl_b32 s3, s%d, 2" % S_RB, "s_add_u32 s3, s3, s64"])

    a.label("L_k1_att")
    a.vm = list(VM0)
    a("s_mov_b32 s%d, s%d" % (S_RB, S_SLOT))
    make_srd(a, SW, 6, 7, 640 * 3840)
    ARING = 65536
    ASLOT = 22528
    a("s_add_u32 s66, s%d, s%d" % (S_RB, S_XCD))
    for _ in range(2):
        a("s_cmp_ge_u32 s66, 10")
        a("s_cselect_b32 s67, 10, 0")
        a("s_sub_u32 s66, s66, s67")
    if not ROT:
        a("s_mov_b32 s66, 0")
    if RP == 5:
        a("s_and_b32 s66, s66, 14")
    if RP == 2:
        a("s_and_b32 s66, s66, 1")
        a("s_mul_i32 s66, s66, 5")
    if RP == 3:
        a("s_mul_i32 s66, s66, 22")
        a("s_lshr_b32 s66, s66, 6")
        a("s_mul_i32 s66, s66, 3")
        a("s_min_u32 s66, s66, 6")
    a("s_lshl_b32 s%d, s66, 7" % S_SOA)
    a("s_mul_i32 s%d, s66, 245760" % S_SOB)
    a("s_mul_i32 s70, s%d, 160" % S_XCD)
    a("v_mul_u32_u24 v16, 3840, v7")
    a("v_add_u32 v16, s70, v16")
    a("s_lshr_b32 s66, s%d, 1" % S_W)
    a("s_lshl_b32 s66, s66, 2")
    a("v_mov_b32 v17, 1120")
    for j in range(2):
        if j:
            a("v_xor_b32 v1, 2, v8")
            a("v_add_u32 v1, s66, v1")
        else:
            a("v_add_u32 v1, s66, v8")
        a("v_min_u32 v1, 14, v1")
        a("v_lshlrev_b32 v%d, 5, v1" % (13 + j))
        a("v_lshl_add_u32 v%d, v9, 4, v%d" % (13 + j, 13 + j))
        a("v_cmp_le_u32 vcc, 5, v1")
        a("v_add_u32 v%d, v%d, v16" % (13 + j, 13 + j))
        a("s_and_b32 s67, s%d, 1" % S_W)
        a("v_cndmask_b32 v18, 0, v17, vcc")
        a("v_cmp_le_u32 vcc, 10, v1")
        a("v_add_u32 v%d, v%d, v18" % (13 + j, 13 + j))
        a("s_lshl_b32 s67, s67, 1")
        a("v_cndmask_b32 v18, 0, v17, vcc")
        a("s_add_u32 s67, s67, %d" % j)
        a("s_mul_i32 s67, s67, %d" % (8 * 3840))
        a("v_add3_u32 v%d, v%d, v18, s67" % (13 + j, 13 + j))
    a("s_and_b32 s66, s%d, 1" % S_W)
    a("s_lshl_b32 s66, s66, 6")
    a("v_xor_b32 v1, s66, v10")
    a("s_mul_i32 s66, s%d, 20" % S_RB)
    a("s_add_u32 s66, s66, s%d" % S_W)
    a("s_max_u32 s67, s66, 2")
    a("s_sub_u32 s67, s67, 2")
    a("s_min_u32 s67, s67, 255")
    a("s_mul_i32 s67, s67, %d" % (8 * 1280))
    a("v_add_u32 v10, s67, v1")
    a("s_add_u32 s67, s66, 6")
    a("s_min_u32 s68, s67, 255")
    a("s_mul_i32 s68, s68, %d" % (8 * 1280))
    a("v_add_u32 v11, s68, v1")
    a("s_add_u32 s67, s66, 14")
    a("s_min_u32 s67, s67, 255")
    a("s_mul_i32 s67, s67, %d" % (8 * 1280))
    a("s_cmp_lt_u32 s%d, 6" % S_W)
    a("s_cselect_b32 s68, s67, s68")
    a("s_cselect_b32 s78, 16384, 8192")
    a("v_add_u32 v12, s68, v1")
    a("s_lshl_b32 s79, s%d, 10" % S_W)
    a("s_add_u32 s78, s78, s79")
    a("s_lshl_b32 s3, s%d, 11" % S_W)
    a("s_mul_i32 s66, s%d, %d" % (S_WM, 6 * 2048))
    a("s_add_u32 s66, s66, %d" % ARING)
    for c in ((3, 2, 1, 0) if MF == 32 else (1, 0)):
        if c:
            a("v_xor_b32 v%d, %d, v15" % (15 + c, (32 if MF == 32 else 64) * c))
        a("v_add_u32 v%d, s66, v%d" % (15 + c, 15 + c))
    a("s_lshl_b32 s66, s%d, 12" % S_WN)
    for j in range(4):
        a("v_xor_b32 v%d, %d, v6" % (17 + j, j))
        a("v_lshl_add_u32 v%d, v%d, 5, v5" % (17 + j, 17 + j))
        a("v_add_u32 v%d, s66, v%d" % (17 + j, 17 + j))

    def bdma2(st):
        return [("s_add_u32 m0, s3, 0x%x" % ((st % 4) * 16384 + 1024 * j),
                 "buffer_load_dwordx4 v%d, %s, s%d offen lds" % (13 + j, sr(SW, 4), S_SOB), "B%d" % st,
                 adv(S_SOB, 32 * 3840, 640 * 3840) if j == 1 else []) for j in range(2)]

    def adma2(S):
        b = ARING + (S % 3) * ASLOT
        ld = "buffer_load_dwordx4 v%d, %s, s%d offen lds"
        return [[("s_add_u32 m0, s79, 0x%x" % b, ld % (10, sr(SX, 4), S_SOA), "A%d" % S, []),
                 ("s_add_u32 m0, s79, 0x%x" % (b + 8192), ld % (11, sr(SX, 4), S_SOA), "A%d" % S, [])],
                [("s_add_u32 m0, s78, 0x%x" % b, ld % (12, sr(SX, 4), S_SOA), "A%d" % S,
                  adv(S_SOA, 128, 1280))]]

    pre = ["v_and_b32 v1, 15, v2", "s_mul_i32 s66, s%d, 96" % S_WM, "v_add_u32 v5, s66, v1",
           "v_mul_u32_u24 v5, %d, v5" % PITCH, "v_lshl_add_u32 v5, v4, 3, v5", "v_lshlrev_b32 v6, 4, v4",
           "s_mul_i32 s67, s%d, 160" % S_RB, "s_add_u32 s66, s66, s67", "s_sub_u32 s66, s66, 16", "s_lshl_b32 s66, s66, 4",
           "v_and_b32 v63, 7, v2", "v_lshl_add_u32 v63, v63, 3, s66", "v_bfe_u32 v7, v2, 3, 1", "v_lshl_add_u32 v63, v7, 7, v63"]
    early = pre[:5]
    pre = ["v_lshlrev_b32 v6, 4, v4", "s_mul_i32 s66, s%d, 96" % S_WM] + pre[6:]
    for t in range(4):
        early += ["s_lshl_b32 s66, s%d, 2" % S_WN, "s_add_u32 s66, s66, %d" % t, "s_min_u32 s66, s66, 14",
                  ["s_cmp_ge_u32 s66, 5", "s_cselect_b32 s67, 5, 0", "s_cselect_b32 s68, %d, %d" % (REG_K, REG_Q),
                   "s_cselect_b32 s69, 1024, 0"],
                  ["s_cmp_ge_u32 s66, 10", "s_cselect_b32 s67, 10, s67", "s_cselect_b32 s68, %d, s68" % REG_V,
                   "s_cselect_b32 s69, 2048, s69"],
                  "s_sub_u32 s66, s66, s67", "s_lshl_b32 s67, s66, 5", "s_add_u32 s67, s67, s68",
                  "v_add_u32 v%d, s67, v5" % (21 + t),
                  "s_lshl_b32 s66, s66, 6", "s_add_u32 s66, s66, s69", "s_add_u32 s66, s66, %d" % CSL,
                  "v_writelane_b32 v25, s66, %d" % t]
        pre += [["v_readlane_b32 s67, v25, %d" % t, "s_nop 1", "v_add_u32 v%d, s67, v6" % (52 + t)]]
    early += ["v_lshrrev_b32 v26, 4, v2", "v_lshlrev_b32 v6, 2, v26", "v_sub_u32 v6, v1, v6"]
    for T in range(2):
        for r in range(4):
            early += ["v_add_u32 v7, %d, v6" % (16 - 16 * T - r), "v_alignbit_b32 v7, v7, v7, 1",
                      "v_cmp_ge_u32 %s, 7, v7" % sr(4 + 2 * (4 * T + r), 2)]
    pre += ["v_and_b32 v1, 15, v2"]
    pre += ["s_mul_i32 s66, s%d, %d" % (S_WM, 80 * PITCH), "s_mul_i32 s67, s%d, 40" % S_WN, "s_add_u32 s66, s66, s67",
            "v_mul_u32_u24 v5, %d, v1" % PITCH, "v_add_u32 v5, s66, v5",
            "v_lshlrev_b32 v6, 4, v26",
            "v_cmp_gt_u32 s[76:77], 3, v26", "v_cmp_gt_u32 s[74:75], 2, v26", "s_nop 1",
            "v_cndmask_b32 v6, 0, v6, s[76:77]",
            "v_add_u32 v56, v5, v6",
            "v_add_u32 v58, %d, v56" % (REG_Q + 16 * PITCH),
            "v_min_u32 v57, 191, v0", "v_mul_u32_u24 v57, %d, v57" % PITCH, "v_add_u32 v57, 160, v57",
            "v_lshrrev_b32 v60, 2, v2", "v_mul_u32_u24 v60, %d, v60" % PITCH, "v_and_b32 v6, 3, v2",
            "v_lshl_add_u32 v60, v6, 3, v60", "s_add_u32 s66, s66, %d" % REG_V, "v_add_u32 v60, s66, v60",
            "s_mul_i32 s66, s%d, 5" % S_WN, "s_mul_i32 s67, s%d, %d" % (S_WM, 5 * 2560), "s_add_u32 s67, s67, %d" % OSTG]
    for Dd in range(2):
        pre += ["v_add_u32 v6, s66, v26"] + (["v_add_u32 v6, 4, v6"] if Dd else []) + \
               ["v_lshrrev_b32 v7, 1, v6", "v_lshlrev_b32 v7, 8, v7", "v_and_b32 v6, 1, v6",
                "v_lshl_add_u32 v7, v6, 3, v7", "v_lshl_add_u32 v7, v1, 4, v7", "v_add_u32 v%d, s67, v7" % (61 + Dd)]
    pre += ["v_cmp_gt_u32 vcc, 16, v2", "v_mov_b32 v6, %d" % (REG_Q + 176 * PITCH - 4 * 2560), "s_nop 1", "v_cndmask_b32 v62, v6, v62, vcc",
            "v_mov_b32 v6, 0x%x" % BIG, "s_mov_b32 s67, 26215", "s_mov_b32 s68, %d" % (ACT_MT - 2560)]
    for nn in range(4):
        pre += ["s_lshl_b32 s66, s%d, 10" % S_W, "s_add_u32 s66, s66, %d" % (8192 * nn), "v_add_u32 v7, s66, v3",
                "v_mul_lo_u32 v5, v7, s67", "v_lshrrev_b32 v5, 26, v5", "v_mul_lo_u32 v5, v5, s68",
                "v_cmp_gt_u32 vcc, 25600, v7", "v_add_u32 v5, v5, v7", "s_nop 0", "v_cndmask_b32 v%d, v6, v5, vcc" % (48 + nn)]
    pre += ["v_cmp_gt_u32 vcc, 20, v2", "s_nop 1", "v_cndmask_b32 v27, v6, v3, vcc",
            "s_mul_i32 s69, s%d, %d" % (S_RB, 10 * ACT_MT), "s_mul_i32 s67, s%d, 2560" % S_XCD, "s_add_u32 s69, s69, s67",
            "s_mul_i32 s70, s%d, 320" % S_XCD, "s_add_u32 s70, s70, %d" % ST_CS, "s_add_u32 s71, s70, 2560", "s_add_u32 s72, s70, 5120",
            "v_mov_b32 v%d, 240" % (TT + 1)]
    RS = 36
    t17 = ["v_add_u32 v1, 256, v63",
           ("buffer_load_dwordx2 %s, v63, %s, 0 offen sc1" % (vr(RS, 2), sr(SST, 4)), "TL")]
    for i in range(1, 6):
        t17.append(("buffer_load_dwordx2 %s, v1, %s, 0 offen offset:%d sc1" % (vr(RS + 2 * i, 2), sr(SST, 4), 256 * (i - 1)), "TL"))
    for sec in range(3):
        t17.append(["s_mov_b32 m0, %d" % (CSL + 1024 * sec), "s_nop 0",
                    ("buffer_load_dwordx4 v27, %s, s%d offen sc1 lds" % (sr(SST, 4), 70 + sec), "TL")])

    def csreg2(t):
        return 240 + 4 * t
    t19 = ["ds_read_b128 %s, v%d" % (vr(csreg2(t), 4), 52 + t) for t in range(4)]
    bg, top = std_bg(pre, t17, t19)
    P = dict(nI=3, nJ=2, name="att", bdma=bdma2, adma=adma2, bg=bg, toptags=top, early=early,
             a_addr=lambda S3, q, i: (15 + q, S3 * ASLOT + i * 2048),
             b_addr=lambda slot, j: (17 + j, slot * 16384))
    a("s_cmp_eq_u32 s%d, 1" % S_WM)
    a("s_cbranch_scc1 L_att_wm1")
    vm_save = list(a.vm)
    k1_mainloop(a, P)
    a("s_branch L_att_epi")
    a.label("L_att_wm1")
    a.vm = vm_save
    bg, top = std_bg(pre, t17, t19)
    P = dict(P, name="att1", skipA=1, bg=bg, toptags=top)
    k1_mainloop(a, P)
    a.label("L_att_epi")
    FM = [28, 30, 40, 42]
    a("s_or_b32 s66, s%d, s%d" % (S_WM, S_RB))
    a("s_cmp_eq_u32 s66, 0")
    for r in range(4):
        a("s_cselect_b64 %s, 0, %s" % (sr(FM[r], 2), sr(4 + 2 * r, 2)))
    a("s_mov_b32 s63, s69")

    stamp_e(a, 1)
    for i in range(6):
        a("v_max_f32 v%d, 0x%x, v%d" % (RS + 2 * i + 1, f2u(1e-3), RS + 2 * i + 1))
    for i in range(6):
        a("v_rcp_f32 v%d, v%d" % (RS + 2 * i + 1, RS + 2 * i + 1))
    a("s_waitcnt lgkmcnt(0)")
    W0 = FR0
    n = 0
    a("v_mov_b32 v8, 0")
    a("v_mov_b32 v9, 0")
    a("ds_write_b64 v57, v[8:9]")
    for i in range(6):
        if i == 5:
            a("s_cmp_eq_u32 s%d, 1" % S_WM)
            a("s_cbranch_scc1 L_att_wdone")
        for j in range(4):
            acc = ACC + 4 * (i * 4 + j)
            for r in (0, 2):
                a(pk("fma", acc + r, ("nb", RS + 2 * i), csreg2(j) + r, acc + r))
        for j in range(4):
            acc = ACC + 4 * (i * 4 + j)
            for r in (0, 2):
                a(pk("mul", acc + r, acc + r, ("b", RS + 2 * i + 1)))
        for j in range(4):
            acc = ACC + 4 * (i * 4 + j)
            o = W0 + 2 * (n % 8)
            n += 1
            a("v_cvt_pk_bf16_f32 v%d, v%d, v%d" % (o, acc, acc + 1))
            a("v_cvt_pk_bf16_f32 v%d, v%d, v%d" % (o + 1, acc + 2, acc + 3))
            a("ds_write_b64 v%d, %s offset:%d" % (21 + j, vr(o, 2), i * 16 * PITCH))
    a.label("L_att_wdone")
    stamp_e(a, 2)
    p2_early(a, True)
    a("s_waitcnt lgkmcnt(0)")
    a("s_barrier")
    stamp_e(a, 3)
    IB = ACC
    SB = FR0 + 8
    TB = FR0 + 48
    for n in range(5):
        b = IB + 20 * n
        off = n * 16 * PITCH
        a("v_add_u32 v7, %d, v58" % off)
        a("v_add_u32 v8, %d, v56" % off)
        a("v_add_u32 v9, %d, v56" % (off + 16 * PITCH))
        a("ds_read2_b64 %s, v7 offset0:0 offset1:1" % vr(b, 4))
        a("ds_read2_b64 %s, v8 offset0:0 offset1:1" % vr(b + 4, 4))
        a("ds_read2_b64 %s, v9 offset0:0 offset1:1" % vr(b + 8, 4))
    for n in range(5):
        b = IB + 20 * n
        off = n * 16 * PITCH
        for Dd in range(2):
            for e in range(2):
                a("ds_read_b64_tr_b16 %s, v60 offset:%d" % (vr(b + 12 + 4 * Dd + 2 * e, 2), off + e * 16 * PITCH + Dd * 32))
    SC = (20 ** -0.5) * LOG2E
    a("v_mov_b32 v5, 0x%x" % f2u(SC))
    a("v_mov_b32 v6, 0x%x" % f2u(-1e9))
    a("s_waitcnt lgkmcnt(0)")
    for n in range(5):
        b = IB + 20 * n
        a("v_cndmask_b32 v%d, 0, v%d, s[76:77]" % (b, b))
        a("v_cndmask_b32 v%d, 0, v%d, s[76:77]" % (b + 1, b + 1))
        a("v_cndmask_b32 v%d, 0, v%d, s[74:75]" % (b + 2, b + 2))
        a("v_cndmask_b32 v%d, 0, v%d, s[74:75]" % (b + 3, b + 3))
    a("s_nop 1")
    stamp_e(a, 4)
    for n in range(5):
        b = IB + 20 * n
        for T in range(2):
            a("v_mfma_f32_16x16x32_bf16 %s, %s, %s, 0" % (vr(SB + 8 * n + 4 * T, 4), vr(b + 4 + 4 * T, 4), vr(b, 4)))
    a("s_nop 0")
    for n in range(5):
        s = SB + 8 * n
        for q in range(0, 8, 2):
            a(pk("mul", s + q, s + q, ("b", 5)))
        for q in range(8):
            m = sr(FM[q], 2) if (n == 0 and q < 4) else sr(4 + 2 * q, 2)
            a("v_cndmask_b32 v%d, v6, v%d, %s" % (s + q, s + q, m))
        t = TB + 2 * n
        a("v_max3_f32 v%d, v%d, v%d, v%d" % (t, s, s + 1, s + 2))
        a("v_max3_f32 v%d, v%d, v%d, v%d" % (t + 1, s + 3, s + 4, s + 5))
        a("v_max3_f32 v%d, v%d, v%d, v%d" % (t, t, s + 6, s + 7))
        a("v_max_f32 v%d, v%d, v%d" % (t, t, t + 1))
    tr = [TB + 2 * n for n in range(5)]
    tt = [TB + 2 * n + 1 for n in range(5)]
    for x in xreduce(tr, tt, "v_max_f32"):
        a(x)
    for n in range(5):
        s = SB + 8 * n
        t = TB + 2 * n
        for q in range(0, 8, 2):
            a(pk("add", s + q, s + q, ("nb", t)))
        for q in range(8):
            a("v_exp_f32 v%d, v%d" % (s + q, s + q))
        a("s_nop 0")
        a("v_add_f32 v%d, v%d, v%d" % (t, s, s + 1))
        a("v_add_f32 v%d, v%d, v%d" % (t + 1, s + 2, s + 3))
        a("v_add_f32 v%d, v%d, v%d" % (t, t, s + 4))
        a("v_add_f32 v%d, v%d, v%d" % (t + 1, t + 1, s + 5))
        a("v_add_f32 v%d, v%d, v%d" % (t, t, s + 6))
        a("v_add_f32 v%d, v%d, v%d" % (t + 1, t + 1, s + 7))
        a("v_add_f32 v%d, v%d, v%d" % (t, t, t + 1))
    for x in xreduce(tr, tt, "v_add_f32"):
        a(x)
    for n in range(5):
        t = TB + 2 * n
        a("v_rcp_f32 v%d, v%d" % (t, t))
    a("s_nop 0")
    for n in range(5):
        s = SB + 8 * n
        t = TB + 2 * n
        b = IB + 20 * n
        for q in range(0, 8, 2):
            a(pk("mul", s + q, s + q, ("b", t)))
        for q in range(4):
            a("v_cvt_pk_bf16_f32 v%d, v%d, v%d" % (b + q, s + 2 * q, s + 2 * q + 1))
    stamp_e(a, 5)
    a("s_nop 1")
    for n in range(5):
        b = IB + 20 * n
        for Dd in range(2):
            a("v_mfma_f32_16x16x32_bf16 %s, %s, %s, 0" % (vr(SB + 8 * n + 4 * Dd, 4), vr(b + 12 + 4 * Dd, 4), vr(b, 4)))
    a("s_nop 0")
    for n in range(5):
        s = SB + 8 * n
        b = IB + 20 * n
        for Dd in range(2):
            a("v_cvt_pk_bf16_f32 v%d, v%d, v%d" % (b + 4 + 2 * Dd, s + 4 * Dd, s + 4 * Dd + 1))
            a("v_cvt_pk_bf16_f32 v%d, v%d, v%d" % (b + 5 + 2 * Dd, s + 4 * Dd + 2, s + 4 * Dd + 3))
        a("ds_write_b64 v61, %s offset:%d" % (vr(b + 4, 2), 2560 * n))
    a("s_mov_b64 exec, 0xffff")
    for n in range(5):
        a("ds_write_b64 v62, %s offset:%d" % (vr(IB + 20 * n + 6, 2), 2560 * n))
    a("s_mov_b64 exec, -1")
    a("s_add_u32 s3, s65, %d" % OSTG)
    a("v_add_u32 v5, s3, v3")
    a("s_waitcnt lgkmcnt(0)")
    a("s_barrier")
    for nn in range(4):
        a("ds_read_b128 %s, v5 offset:%d" % (vr(ACC + 4 * nn, 4), 8192 * nn))
    for nn in range(4):
        a("s_waitcnt lgkmcnt(%d)" % (3 - nn))
        a("buffer_store_dwordx4 %s, v%d, %s, s63 offen %s" % (vr(ACC + 4 * nn, 4), 48 + nn, sr(SACT, 4), SCF))
    p2_early_b(a, range(3, 6))
    stamp(a, 7)
    p1_done(a, ["s_lshl_b32 s3, s%d, 2" % S_RB, "s_add_u32 s3, s3, 128"])

    a.label("L_k1_extra")
    a.vm = list(VM0)
    for x in stats_loads() + k2_prefetch():
        emit(a, x)
    a("s_waitcnt vmcnt(0)")
    for x in stats_segA():
        emit(a, x)
    a("s_waitcnt lgkmcnt(0)")
    a("s_barrier")
    for x in stats_segB():
        emit(a, x)
    a("s_waitcnt lgkmcnt(0)")
    for x in stats_segC():
        emit(a, x)
    tlb_warm_act(a)
    a("s_barrier")
    for x in stats_signal():
        emit(a, x)
    p2_early(a)
    a("v_mov_b32 v%d, 240" % (TT + 1))
    a("s_mov_b32 s66, 0")
    a("s_waitcnt vmcnt(0)")
    a("s_cmp_lg_u32 s%d, 0" % S_W)
    a("s_cbranch_scc1 L_xpoll_ok")
    a.label("L_xpoll")
    a("s_sleep 100")
    a("buffer_load_dword v%d, v%d, %s, 0 offen sc1" % (TT, TT + 1, sr(SDBG, 4)))
    a("s_waitcnt vmcnt(0)")
    a("v_readfirstlane_b32 s67, v%d" % TT)
    a("s_add_u32 s66, s66, 1")
    a("s_nop 2")
    a("s_cmp_ge_u32 s67, 256")
    a("s_cbranch_scc1 L_xpoll_ok")
    a("s_cmp_lt_u32 s66, 0x20000")
    a("s_cbranch_scc1 L_xpoll")
    a.label("L_xpoll_ok")
    gen_phase2(a)
    a.label("L_k1_end")
    a("s_endpgm")
    a.label("L_code_end")
    return (name, 256, 102 if STAMP else 80)


K2_NS = 7
K2_NST = 37


def p2_poll(a, nm, off_reg, pre=False):
    a("s_cmp_lg_u32 s20, 0")
    a("s_cbranch_scc1 L_p2ok_%s" % nm)
    a("v_cmp_gt_u32 s[58:59], 0x%x, v%d" % (BIG, off_reg))
    a("s_mov_b32 s21, 0")
    if pre:
        a("s_branch L_p2chk_%s" % nm)
    a.label("L_p2poll_%s" % nm)
    a.l.append("    buffer_load_dword v22, v%d, s[60:63], 0 offen sc1" % off_reg)
    a("s_waitcnt vmcnt(0)")
    a.label("L_p2chk_%s" % nm)
    a("v_cmp_eq_u32 vcc, 0, v22")
    a("s_add_u32 s21, s21, 1")
    a("s_nop 2")
    a("s_and_b64 vcc, vcc, s[58:59]")
    a("s_cbranch_scc0 L_p2ok_%s" % nm)
    a("s_cmp_ge_u32 s21, 0x20000")
    a("s_cbranch_scc1 L_p2ok_%s" % nm)
    a("s_sleep 2")
    a("s_cmp_lg_u64 vcc, s[58:59]")
    a("s_cbranch_scc1 L_p2poll_%s" % nm)
    a("s_sleep 30")
    a("s_branch L_p2poll_%s" % nm)
    a.label("L_p2ok_%s" % nm)


def gen_phase2(a):
    a.p2 = True
    a.label("L_phase2")
    a("s_load_dwordx2 s[4:5], s[0:1], 0")
    a("s_load_dwordx2 s[30:31], s[0:1], 56")
    p2_map(a, 24)
    a("s_cmp_eq_u32 s28, 1")
    a("s_cbranch_scc1 L_p2_end")
    a("s_mov_b32 s20, s%d" % S_W)
    a("v_lshrrev_b32 v4, 4, v2")
    a("v_lshlrev_b32 v5, 10, v4")
    a("v_bfe_u32 v6, v2, 2, 2")
    a("v_lshl_add_u32 v5, v6, 7, v5")
    a("v_and_b32 v6, 3, v2")
    a("v_lshl_add_u32 v5, v6, 3, v5")
    a("v_bfe_u32 v6, v2, 3, 2")
    a("s_lshr_b32 s34, s20, 2")
    make_srd(a, 60, 22, 23, ST_BYTES, ST_OFF)
    a("s_lshl_b32 s36, s26, 4")
    a("s_add_u32 s37, s26, s27")
    a("s_lshl_b32 s37, s37, 4")
    a("s_sub_u32 s37, s37, 1")
    a("s_lshr_b32 s38, s36, 7")
    a("s_lshr_b32 s39, s37, 7")
    a("v_mov_b32 v21, s38")
    a("v_mov_b32 v22, s39")
    a("v_cmp_gt_u32 vcc, 8, v2")
    a("v_cmp_gt_u32 s[40:41], 16, v2")
    a("v_and_b32 v25, 7, v2")
    a("v_cndmask_b32 v21, v22, v21, vcc")
    a("v_mov_b32 v22, 0x%x" % BIG)
    a("v_lshl_add_u32 v23, v21, 3, v25")
    a("v_lshlrev_b32 v23, 7, v23")
    a("v_add_u32 v23, %d, v23" % (FLG + 13 * 8 * 128))
    a("v_cndmask_b32 v23, v22, v23, s[40:41]")
    a("s_mul_i32 s36, s36, 6554")
    a("s_mul_i32 s37, s37, 6554")
    a("s_lshr_b32 s36, s36, 20")
    a("s_lshr_b32 s37, s37, 20")
    a("v_mov_b32 v21, s36")
    a("v_mov_b32 v24, s37")
    a("v_cndmask_b32 v21, v24, v21, vcc")
    a("v_lshl_add_u32 v24, v21, 3, v25")
    a("v_lshlrev_b32 v24, 7, v24")
    a("v_add_u32 v24, %d, v24" % FLG)
    a("v_cndmask_b32 v24, v22, v24, s[40:41]")
    for lane, r in ((16, 38), (17, 39)):
        a("s_and_b32 s36, s%d, 1" % r)
        a("s_add_u32 s36, s36, 29")
        a("s_lshl_b32 s36, s36, 3")
        a("s_lshr_b32 s37, s%d, 1" % r)
        a("s_add_u32 s36, s36, s37")
        a("s_lshl_b32 s36, s36, 7")
        a("s_add_u32 s36, s36, %d" % FLG)
        a("v_writelane_b32 v24, s36, %d" % lane)
    a("s_lshr_b32 s35, s20, 2")
    a("s_and_b32 s36, s20, 3")
    a("s_waitcnt lgkmcnt(0)")
    make_srd(a, 40, 4, 5, 2048 * 1280)
    make_srd(a, 8, 30, 31, 2048 * 1280)
    make_srd(a, 12, 22, 23, ACT_BYTES, ACT_OFF)
    a("s_mul_i32 s37, s35, 3")
    a("s_add_u32 s37, s37, s26")
    a("s_mul_i32 s37, s37, %d" % (16 * 1280))
    a("s_lshl_b32 s38, s25, 7")
    a("s_add_u32 s37, s37, s38")
    a("s_lshl_b32 s38, s36, 5")
    a("s_add_u32 s37, s37, s38")
    a("v_and_b32 v26, 15, v2")
    a("v_mul_u32_u24 v26, 1280, v26")
    a("v_lshl_add_u32 v26, v4, 3, v26")
    a("v_add_u32 v26, s37, v26")
    a("s_mov_b32 s38, %d" % (16 * 1280))
    a("s_mov_b32 s39, %d" % (32 * 1280))
    a("buffer_load_dwordx2 v[28:29], v26, s[40:43], 0 offen")
    a("buffer_load_dwordx2 v[30:31], v26, s[40:43], s38 offen")
    a("buffer_load_dwordx2 v[32:33], v26, s[40:43], s39 offen")
    a("s_add_u32 s37, s26, s20")
    a("s_mul_i32 s37, s37, %d" % ACT_MT)
    a("v_add_u32 v10, s37, v3")
    a("s_mov_b32 s16, %d" % (20 * 1024))
    a("s_mov_b32 s17, %d" % (6 * 64 * 1280))
    a("s_lshl_b32 s18, s20, 11")
    a("s_lshl_b32 s19, s20, 10")
    a("s_mul_i32 s37, s35, 6144")
    a("v_add_u32 v12, s37, v3")
    a("v_add_u32 v13, 0x10000, v12")
    a("v_xor_b32 v15, s36, v6")
    a("v_lshl_add_u32 v15, v15, 5, v5")
    a("v_add_u32 v15, %d, v15" % P2_B)
    AC = 64
    FRB = 96
    NS = 6
    groups = [list(range(2 * g, min(2 * g + 2, K2_NST))) for g in range((K2_NST + 1) // 2)]
    NG = len(groups)
    p2_poll(a, "f", 23)
    a("s_waitcnt vmcnt(0)")
    a("s_barrier")
    stamp(a, 1)

    def freg(g, h):
        return FRB + 64 * (g % 2) + 32 * h

    def read_ops(g):
        ops = []
        for h, st in enumerate(groups[g]):
            f = freg(g, h)
            for kq in range(2):
                for e in range(2):
                    ops.append("ds_read_b64_tr_b16 %s, v15 offset:%d" % (vr(f + 16 * kq + 12 + 2 * e, 2), (st % NS) * 8192 + kq * 4096 + e * 512))
                for i in range(3):
                    off = (st % NS) * 12288 + i * 2048 + kq * 1024
                    ops.append("ds_read_b128 %s, v%d offset:%d" % (vr(f + 16 * kq + 4 * i, 4), 12 + (off >> 16), off & 0xffff))
        return ops

    def body(loader):
        a.vm = []
        tag = "l" if loader else "n"

        def dma_ops(g, doB=True):
            ops = []
            for st in groups[g]:
                if loader:
                    ops.append((["s_mov_b32 s16, 0"] if st == 27 else []) + ["s_add_u32 m0, s18, 0x%x" % ((st % NS) * 12288)])
                    ops.append([("buffer_load_dwordx4 v10, s[12:15], s16 offen lds", "S%d" % g)])
                    ops.append([("buffer_load_dwordx4 v10, s[12:15], s16 offen offset:1024 lds", "S%d" % g), "s_add_u32 s16, s16, 2048"])
                if doB:
                    srd = SPF1 if st < 27 else SPF2
                    ops.append((["s_mov_b32 s17, 0"] if st == 27 else []) + ["s_add_u32 m0, s19, 0x%x" % (P2_B + (st % NS) * 8192)])
                    ops.append([("buffer_load_dwordx4 v%d, %s, s17 offen lds" % (P2V, sr(srd, 4)), "S%d" % g), "s_add_u32 s17, s17, %d" % (64 * 1280)])
            return ops
        for g in range(3):
            for o in dma_ops(g, False):
                emit(a, o)
                if isinstance(o[-1], str) and o[-1].startswith("s_add_u32 m0"):
                    a("s_nop 0")
        n = a.vmwait({"S0"})
        a("s_waitcnt vmcnt(%d)" % (n if n is not None else 63))
        a("s_barrier")
        stamp(a, 2)
        for x in read_ops(0):
            a(x)
        for g in range(NG):
            if g in (5, 10, 15):
                stamp(a, 2 + g // 5)
            n = a.vmwait({"S%d" % (g + 1)}) if g + 1 < NG else None
            if g + 3 == 12 and loader:
                p2_poll(a, "a" + tag, 24, True)
            if n is not None:
                a("s_waitcnt vmcnt(%d) lgkmcnt(0)" % n)
            else:
                a("s_waitcnt lgkmcnt(0)")
            a("s_barrier")
            if g + 3 == 10 and loader:
                a("v_mov_b32 v22, 0")
                a("buffer_load_dword v22, v24, s[60:63], 0 offen sc1", "P2P")
            stream = dma_ops(g + 3) if g + 3 < NG else []
            rd = read_ops(g + 1) if g + 1 < NG else []
            mf = []
            for h, st in enumerate(groups[g]):
                f = freg(g, h)
                for kq in range(2):
                    for i in range(3):
                        acc = AC + 4 * i
                        c = "0" if (g == 0 and h == 0 and kq == 0) else vr(acc, 4)
                        mf.append("v_mfma_f32_16x16x32_bf16 %s, %s, %s, %s" % (vr(acc, 4), vr(f + 16 * kq + 12, 4), vr(f + 16 * kq + 4 * i, 4), c))
            for gi, x in enumerate(mf):
                a(x)
                left = len(mf) - gi
                for lst in (stream, rd):
                    k = (len(lst) + left - 1) // left
                    for _ in range(k):
                        o = lst.pop(0)
                        emit(a, o)
                        if lst is stream and k > 1 and isinstance(o[-1], str) and o[-1].startswith("s_add_u32 m0"):
                            a("s_nop 0")
    a("s_cmp_lt_u32 s20, s27")
    a("s_cbranch_scc0 L_k2_nl")
    body(True)
    a("s_branch L_k2_epi")
    a.label("L_k2_nl")
    body(False)
    a.label("L_k2_epi")
    stamp(a, 6)
    a("s_mov_b32 s37, 0xffff0000")
    a("s_nop 7")
    for i in range(3):
        for d in range(2):
            a("v_lshlrev_b32 v%d, 16, v%d" % (FRB, 28 + 2 * i + d))
            a("v_and_b32 v%d, s37, v%d" % (FRB + 1, 28 + 2 * i + d))
            a("v_add_f32 v%d, v%d, v%d" % (AC + 4 * i + 2 * d, AC + 4 * i + 2 * d, FRB))
            a("v_add_f32 v%d, v%d, v%d" % (AC + 4 * i + 2 * d + 1, AC + 4 * i + 2 * d + 1, FRB + 1))
        for d in range(2):
            a("v_cvt_pk_bf16_f32 v%d, v%d, v%d" % (28 + 2 * i + d, AC + 4 * i + 2 * d, AC + 4 * i + 2 * d + 1))
    a("buffer_store_dwordx2 v[28:29], v26, s[8:11], 0 offen" + OSF)
    a("buffer_store_dwordx2 v[30:31], v26, s[8:11], s38 offen" + OSF)
    a("s_sub_u32 s37, s27, s35")
    a("s_cmp_eq_u32 s37, 4")
    a("s_cbranch_scc1 L_k2_fl")
    a("buffer_store_dwordx2 v[32:33], v26, s[8:11], s39 offen" + OSF)
    a.label("L_k2_fl")
    a.label("L_p2_end")
    if STAMP:
        a("s_waitcnt vmcnt(0)")
        stamp_dump(a, 2, "L_sd_end")


def main():
    a = Asm()
    hdr = open("cdna_kernels/%s.s.ref" % NAME).read().splitlines()
    for l in hdr:
        if l.startswith(";") and "@launch" not in l:
            a.raw(l)
    if "--list" in sys.argv:
        a.raw("; @launch kernel=%s_kernel grid=(256,1,1) block=(512,1,1) lds=%d" % (NAME, K1_LDS))
    else:
        a.raw("; @launch grid=(256,1,1) block=(512,1,1) lds=%d" % K1_LDS)
    a.raw('.amdgcn_target "amdgcn-amd-amdhsa--gfx950"')
    ks = [gen_k1(a)]
    for (n, v, s) in ks:
        kernel_desc(a, n, v, s)
    av = [x for x in sys.argv[1:] if x.endswith(".s")]
    out = av[0] if av else "cdna_kernels/%s.s" % NAME
    open(out, "w").write(a.text())


main()
```

```python
import sys, struct, re

NAME = "parallel_sum__sliding_local_dilated__geglu_ffn__prompt"
ST_OFF = 0
ST_CS = 256 * 128
FLG = 65536
ST_BYTES = FLG + 256 * 128
ACT_OFF = 4 << 20
ACT_MT = 75 * 1024
ACT_BYTES = 128 * ACT_MT
BIG = 0x40000000
LOG2E = 1.4426950408889634
STAMP = "--stamp" in sys.argv
STAMP_OFF = 32 << 20
SCF = "sc0 sc1" if "--sc01" in sys.argv else "sc1"
OSF = " sc1" if "--osc1" in sys.argv else (" nt" if "--ont" in sys.argv else "")
MF = 32 if "--mf32" in sys.argv else 16
ROT = 0 if "--norot" in sys.argv else 1
RP = int(sys.argv[sys.argv.index("--rp") + 1]) if "--rp" in sys.argv else 5


def f2u(x):
    return struct.unpack("<I", struct.pack("<f", x))[0]


class Asm:
    def __init__(self):
        self.l = []
        self.vm = []

    def __call__(self, s, tag=None):
        m = re.match(r"s_cselect_b32 (s\d+), (\d+|0x[0-9a-f]+), (\d+|0x[0-9a-f]+)$", s)
        if m and int(m.group(2), 0) > 64 and int(m.group(3), 0) > 64:
            self.l.append("    s_mov_b32 %s, %s" % (m.group(1), m.group(3)))
            s = "s_cselect_b32 %s, %s, %s" % (m.group(1), m.group(2), m.group(1))
        self.l.append("    " + s)
        if s.startswith("buffer_") or s.startswith("global_"):
            kind = "D" if s.endswith(" lds") else ("L" if ("_load" in s or ("atomic" in s and " sc0" in s)) else "S")
            self.vm.append((tag, kind))

    def vmwait(self, tags):
        best = None
        for kind in "DLS":
            idx = [i for i, (t, k) in enumerate(self.vm) if t in tags and k == kind]
            if not idx:
                continue
            if kind == "S":
                n = sum(1 for (t, k) in self.vm[max(idx) + 1:] if k == "D")
            else:
                n = sum(1 for (t, k) in self.vm[max(idx) + 1:] if k == kind)
            best = n if best is None else min(best, n)
        return None if best is None else min(63, best)

    def label(self, s):
        self.l.append(s + ":")

    def raw(self, s):
        self.l.append(s)

    def text(self):
        return "\n".join(self.l) + "\n"


def vr(a, n):
    return "v[%d:%d]" % (a, a + n - 1)


def sr(a, n):
    return "s[%d:%d]" % (a, a + n - 1)


def pk(op, dst, *srcs):
    ops, lo, hi, neg = [], [], [], []
    for x in srcs:
        if isinstance(x, tuple):
            r = x[1]
            ops.append(vr(r & ~1, 2))
            lo.append(r & 1)
            hi.append(r & 1)
            neg.append(1 if x[0] == "nb" else 0)
        else:
            assert x % 2 == 0
            ops.append(vr(x, 2))
            lo.append(0)
            hi.append(1)
            neg.append(0)
    f = lambda l: "[" + ",".join(map(str, l)) + "]"
    t = "v_pk_%s_f32 %s, %s op_sel:%s op_sel_hi:%s" % (op, vr(dst, 2), ", ".join(ops), f(lo), f(hi))
    if any(neg):
        t += " neg_lo:%s neg_hi:%s" % (f(neg), f(neg))
    return t


def kernel_header(a, name):
    a.raw(".text")
    a.raw(".globl %s" % name)
    a.raw(".p2align 8")
    a.raw(".type %s,@function" % name)
    a.label(name)


def kernel_desc(a, name, vgpr, sgpr):
    a.raw('.section .rodata,"a"')
    a.raw(".p2align 6")
    a.raw(".amdhsa_kernel %s" % name)
    a.raw("  .amdhsa_next_free_vgpr %d" % vgpr)
    a.raw("  .amdhsa_next_free_sgpr %d" % sgpr)
    a.raw("  .amdhsa_accum_offset %d" % ((vgpr + 3) // 4 * 4))
    a.raw("  .amdhsa_group_segment_fixed_size 0")
    a.raw("  .amdhsa_kernarg_size 80")
    a.raw("  .amdhsa_user_sgpr_count 2")
    a.raw("  .amdhsa_user_sgpr_kernarg_segment_ptr 1")
    a.raw("  .amdhsa_system_sgpr_workgroup_id_x 1")
    a.raw(".end_amdhsa_kernel")


def stamp_e(a, idx):
    if STAMP and "--epi" in sys.argv:
        a("s_memtime %s" % sr(80 + 2 * idx, 2))


def stamp(a, idx):
    if STAMP and not ("--epi" in sys.argv and idx in (1, 2, 3, 4, 5) and not getattr(a, "p2", False)):
        a("s_memtime %s" % sr(80 + 2 * idx, 2))


def dbg_time(a, end):
    if "--dbgt" not in sys.argv:
        return
    if not end:
        a("s_memrealtime s[98:99]")
        return
    a("s_memrealtime s[100:101]")
    a("s_waitcnt vmcnt(0) lgkmcnt(0)")
    a("s_not_b32 s98, s98")
    a("v_mov_b32 v1, 0x%x" % BIG)
    a("v_mov_b32 v5, s98")
    a("v_mov_b32 v6, s100")
    a("v_cmp_eq_u32 vcc, 0, v0")
    a("v_mov_b32 v7, 8")
    a("s_nop 1")
    a("v_cndmask_b32 v1, v1, v7, vcc")
    a("buffer_atomic_umax v5, v1, %s, 0 offen" % sr(SDBG, 4))
    a("buffer_atomic_umax v6, v1, %s, 0 offen offset:4" % sr(SDBG, 4))


def stamp_start(a):
    if STAMP:
        a("s_memtime s[80:81]")
        a("s_memrealtime s[98:99]")


def stamp_flush(a, wave_sgpr, wslo, wshi, kidx, endlabel):
    if not STAMP:
        return
    stamp(a, 7)
    a("s_waitcnt vmcnt(0)")
    a("s_memtime s[96:97]")
    a("s_memrealtime s[100:101]")
    a("s_waitcnt lgkmcnt(0)")
    a("s_cmp_lg_u32 s%d, 0" % wave_sgpr)
    a("s_cbranch_scc1 %s" % endlabel)
    make_srd(a, 76, wslo, wshi, 1 << 20, STAMP_OFF + kidx * 65536)
    a("s_lshl_b32 s3, s2, 6")
    a("v_mov_b32 v0, s3")
    for i in range(9):
        a("v_mov_b32 v1, s%d" % (80 + 2 * i))
        a("buffer_store_dword v1, v0, s[76:79], 0 offen offset:%d" % (4 * i))
    a("v_mov_b32 v1, s98")
    a("buffer_store_dword v1, v0, s[76:79], 0 offen offset:56")
    a("v_mov_b32 v1, s100")
    a("buffer_store_dword v1, v0, s[76:79], 0 offen offset:60")


def stamp_dump(a, kidx, lbl):
    if not STAMP:
        return
    a("s_memtime s[96:97]")
    a("s_memrealtime s[100:101]")
    a("s_waitcnt lgkmcnt(0)")
    a("s_cmp_lg_u32 s56, 0")
    a("s_cbranch_scc1 %s" % lbl)
    make_srd(a, 76, 22, 23, 1 << 20, STAMP_OFF + kidx * 65536)
    a("s_lshl_b32 s3, s2, 6")
    a("v_mov_b32 v7, s3")
    for i in range(9):
        a("v_mov_b32 v1, s%d" % (80 + 2 * i))
        a.l.append("    buffer_store_dword v1, v7, s[76:79], 0 offen offset:%d" % (4 * i))
    a("v_mov_b32 v1, s98")
    a.l.append("    buffer_store_dword v1, v7, s[76:79], 0 offen offset:56")
    a("v_mov_b32 v1, s100")
    a.l.append("    buffer_store_dword v1, v7, s[76:79], 0 offen offset:60")
    a.label(lbl)


def make_srd(a, d, lo, hi, nbytes, off=0):
    if off:
        a("s_add_u32 s%d, s%d, 0x%x" % (d, lo, off))
        a("s_addc_u32 s%d, s%d, 0" % (d + 1, hi))
    else:
        a("s_mov_b32 s%d, s%d" % (d, lo))
        a("s_mov_b32 s%d, s%d" % (d + 1, hi))
    a("s_mov_b32 s%d, 0x%x" % (d + 2, nbytes))
    a("s_mov_b32 s%d, 0x00020000" % (d + 3))


ACC = 64
FR0 = 160
PITCH = 168
REG_K = 0
REG_V = 192 * PITCH
REG_Q = 2 * 192 * PITCH
SCR = 148480
CSL = SCR + 2048
P2_B = 98304
OSTG = P2_B + 3 * 8192
K1_LDS = P2_B + 7 * 8192
SX, SW, SACT, SST, SCS, SPF1, SPF2, SDBG = 24, 28, 32, 36, 40, 44, 48, 52
S_W, S_XCD, S_SLOT, S_WM, S_WN, S_FB, S_RB = 56, 57, 58, 59, 60, 61, 62
S_SOA, S_SOB = 64, 65
V_RLO, V_CLO = 30, 31
V_RSO, V_CSO, V_ATO, V_SCW, V_SCR = 32, 33, 34, 35, 29
RL = 36
CL = 44
SEL = 240
CD = 244
TT = 248


def k2_prefetch():
    D = TT + 4
    return [["s_lshl_b32 s66, s2, 3", "s_add_u32 s66, s66, s%d" % S_W, "s_lshl_b32 s66, s66, 10",
             ("buffer_load_dwordx4 %s, v3, %s, s66 offen" % (vr(D, 4), sr(SPF1, 4)), "PF"),
             ("buffer_load_dwordx4 %s, v3, %s, s66 offen" % (vr(D, 4), sr(SPF2, 4)), "PF"),
             "s_add_u32 s66, s66, 0x200000",
             ("buffer_load_dwordx4 %s, v3, %s, s66 offen" % (vr(D, 4), sr(SPF1, 4)), "PF")]]


def tlb_warm(a):
    tab = [(4, 2048 * 1280), (6, 640 * 3840), (12, 640 * 3456), (14, 640 * 3456), (16, 1728 * 1280), (8, 640 * 1280),
           (18, 2048 * 1280)]
    a("s_cmp_eq_u32 s%d, 7" % S_W)
    a("s_cbranch_scc1 L_tw7")
    make_srd(a, SCS, tab[0][0], tab[0][0] + 1, tab[0][1])
    for w in range(1, 7):
        a("s_cmp_eq_u32 s%d, %d" % (S_W, w))
        a("s_cselect_b32 s%d, s%d, s%d" % (SCS, tab[w][0], SCS))
        a("s_cselect_b32 s%d, s%d, s%d" % (SCS + 1, tab[w][0] + 1, SCS + 1))
        a("s_cselect_b32 s%d, %d, s%d" % (SCS + 2, tab[w][1], SCS + 2))
    a("v_lshlrev_b32 v1, 16, v2")
    a("buffer_load_dword v%d, v1, %s, 0 offen" % (TT + 7, sr(SCS, 4)), "TW")
    a("s_branch L_tw_done")
    a.label("L_tw7")
    make_srd(a, SCS, 22, 23, ACT_OFF + ACT_BYTES)
    a("s_and_b32 s66, s2, 1")
    a("s_lshl_b32 s66, s66, 6")
    a("v_add_u32 v1, s66, v2")
    a("v_mul_u32_u24 v1, %d, v1" % ACT_MT)
    a("v_add_u32 v1, %d, v1" % (ACT_OFF + 74 * 1024))
    a("v_cmp_eq_u32 vcc, 0, v2")
    a("v_mov_b32 v%d, 61440" % (TT + 7))
    a("s_nop 0")
    a("v_cndmask_b32 v1, v1, v%d, vcc" % (TT + 7))
    a.l.append("    buffer_load_dword v%d, v1, %s, 0 offen" % (TT + 7, sr(SCS, 4)))
    a.label("L_tw_done")


def tlb_warm_act(a):
    if "--act" not in sys.argv:
        a("s_waitcnt vmcnt(0)")
        return
    make_srd(a, SCS, 22, 23, ACT_OFF + ACT_BYTES)
    a("v_mul_u32_u24 v1, 0x5000, v0")
    a("v_add_u32 v1, %d, v1" % ACT_OFF)
    a("buffer_store_dword v1, v1, %s, 0 offen sc1" % sr(SCS, 4))
    a("s_waitcnt vmcnt(0)")


def l2_warm(a):
    D = TT + 6
    a("s_lshr_b32 s66, s2, 3")
    a("s_lshl_b32 s66, s66, 3")
    a("s_add_u32 s66, s66, s%d" % S_W)
    a("v_mul_u32_u24 v5, 43, v2")
    a("v_lshrrev_b32 v5, 8, v5")
    a("v_mul_u32_u24 v6, 6, v5")
    a("v_sub_u32 v6, v2, v6")
    a("v_lshlrev_b32 v5, 8, v5")
    a("v_add_u32 v5, s66, v5")
    a("v_mov_b32 v9, 0x%x" % BIG)
    a("v_cmp_gt_u32 vcc, 18, v2")
    a("v_cmp_gt_u32 s[68:69], 3, v6")
    a("v_mul_u32_u24 v7, 3840, v5")
    a("v_lshrrev_b32 v8, 1, v6")
    a("v_mul_u32_u24 v8, 1280, v8")
    a("v_and_b32 v1, 1, v6")
    a("v_lshl_add_u32 v8, v1, 7, v8")
    a("v_add_u32 v7, v7, v8")
    a("v_cndmask_b32 v7, v9, v7, vcc")
    a("s_mul_i32 s67, s78, 160")
    a("s_and_b32 s67, s67, 0xffffff80")
    make_srd(a, SCS, 6, 7, 640 * 3840)
    a("buffer_load_dword v%d, v7, %s, s67 offen" % (D, sr(SCS, 4)), "LW")
    a("s_and_b64 vcc, vcc, s[68:69]")
    a("v_mul_u32_u24 v7, 3456, v5")
    a("v_lshl_add_u32 v7, v6, 7, v7")
    a("s_mul_i32 s67, s78, 384")
    a("v_cndmask_b32 v7, v9, v7, vcc")
    make_srd(a, SCS, 12, 13, 640 * 3456)
    a("buffer_load_dword v%d, v7, %s, s67 offen" % (D, sr(SCS, 4)), "LW")
    make_srd(a, SCS, 14, 15, 640 * 3456)
    a("buffer_load_dword v%d, v7, %s, s67 offen" % (D, sr(SCS, 4)), "LW")


def p2_map(a, d):
    a("s_and_b32 s%d, s2, 7" % d)
    a("s_lshr_b32 s%d, s2, 3" % (d + 1))
    a("s_cmp_ge_u32 s%d, 2" % d)
    a("s_cselect_b32 s%d, 12, 31" % (d + 2))
    a("s_cselect_b32 s%d, 12, 99" % (d + 3))
    a("s_cmp_eq_u32 s%d, s%d" % (d + 1, d + 3))
    a("s_cselect_b32 s%d, 1, 0" % (d + 4))
    a("s_cmp_eq_u32 s%d, 31" % (d + 1))
    a("s_cselect_b32 s%d, s%d, s%d" % (d + 1, d + 2, d + 1))
    a("s_min_u32 s%d, s%d, 2" % (d + 2, d))
    a("s_mul_i32 s%d, s%d, 31" % (d, d))
    a("s_add_u32 s%d, s%d, s%d" % (d, d, d + 2))
    a("s_add_u32 s%d, s%d, s%d" % (d + 1, d, d + 1))
    a("s_mul_i32 s%d, s%d, 205" % (d, d + 1))
    a("s_lshr_b32 s%d, s%d, 11" % (d, d))
    a("s_mul_i32 s%d, s%d, 10" % (d + 2, d))
    a("s_sub_u32 s%d, s%d, s%d" % (d + 1, d + 1, d + 2))
    a("s_mul_i32 s%d, s%d, 5" % (d + 2, d))
    a("s_mov_b32 s%d, 5" % (d + 3))
    for t in (2, 5, 8):
        a("s_cmp_gt_u32 s%d, %d" % (d, t))
        a("s_addc_u32 s%d, s%d, 0" % (d + 2, d + 2))
        a("s_cmp_eq_u32 s%d, %d" % (d, t))
        a("s_addc_u32 s%d, s%d, 0" % (d + 3, d + 3))


P2V = 20


def p2_early(a, split=False):
    p2_map(a, 64)
    a("v_bfe_u32 v17, v2, 1, 2")
    a("v_bfe_u32 v18, v2, 4, 1")
    a("v_xor_b32 v17, v17, v18")
    a("v_and_b32 v18, 1, v2")
    a("v_lshlrev_b32 v17, 5, v17")
    a("v_lshl_add_u32 v17, v18, 4, v17")
    a("s_and_b32 s3, s%d, 1" % S_W)
    a("s_lshl_b32 s3, s3, 6")
    a("v_xor_b32 v17, s3, v17")
    a("v_lshrrev_b32 v18, 3, v2")
    a("v_mul_u32_u24 v18, 1280, v18")
    a("s_mul_i32 s3, s%d, %d" % (S_W, 8 * 1280))
    a("s_lshl_b32 s64, s65, 7")
    a("s_add_u32 s3, s3, s64")
    a("v_add3_u32 v%d, v17, v18, s3" % P2V)
    a("s_lshl_b32 s65, s%d, 10" % S_W)
    a("s_mov_b32 s64, 0")
    p2_early_b(a, range(3 if split else 6))


def p2_early_b(a, sts):
    for st in sts:
        a("s_add_u32 m0, s65, 0x%x" % (P2_B + st * 8192))
        a("s_nop 0")
        a("buffer_load_dwordx4 v%d, %s, s64 offen lds" % (P2V, sr(SPF1, 4)))
        a("s_add_u32 s64, s64, %d" % (64 * 1280))


def p1_done(a, cnt_sgpr_expr):
    a("s_lshl_b32 s3, s2, 7")
    a("s_add_u32 s3, s3, %d" % FLG)
    a("v_mov_b32 v1, 0x%x" % BIG)
    a("v_mov_b32 v5, s3")
    a("v_cmp_eq_u32 vcc, 0, v0")
    a("v_mov_b32 v6, 1")
    a("s_waitcnt vmcnt(0)")
    a("s_barrier")
    a("v_cndmask_b32 v1, v1, v5, vcc")
    a("buffer_store_dword v6, v1, %s, 0 offen sc1" % sr(SST, 4))
    stamp_dump(a, 1, "L_sd_%d" % len(a.l))
    a("s_branch L_phase2")


def stats_setup(a):
    a("s_lshl_b32 s66, s2, 3")
    a("s_add_u32 s66, s66, s%d" % S_W)
    a("s_mul_i32 s67, s66, 1280")
    a("v_mov_b32 v9, 0x%x" % BIG)
    a("v_add_u32 v1, s67, v3")
    a("v_cmp_gt_u32 vcc, 40, v2")
    a("s_lshl_b32 s67, s2, 7")
    a("v_lshl_add_u32 v5, v2, 3, s67")
    a("v_cndmask_b32 v%d, v9, v1, vcc" % V_RLO)
    a("v_cmp_gt_u32 vcc, 16, v0")
    a("s_cmp_ge_u32 s%d, 6" % S_SLOT)
    a("s_cselect_b32 s68, 2, 1")
    a("v_cndmask_b32 v%d, v9, v5, vcc" % V_RSO)
    a("s_cselect_b32 s67, 6, 0")
    a("s_sub_u32 s66, s%d, s67" % S_SLOT)
    a("s_mul_i32 s69, s%d, 6" % S_XCD)
    a("s_add_u32 s69, s69, s66")
    a("s_sub_u32 s66, s%d, 12" % S_SLOT)
    a("s_lshl_b32 s66, s66, 3")
    a("s_add_u32 s66, s66, s%d" % S_XCD)
    a("s_mov_b32 s73, 0")
    a("s_cmp_ge_u32 s66, 60")
    a("s_cselect_b32 s73, 1, s73")
    a("s_cselect_b32 s75, 12, 0")
    a("s_sub_u32 s74, s66, s75")
    a("s_cmp_ge_u32 s66, 66")
    a("s_cselect_b32 s73, 2, s73")
    a("s_cselect_b32 s75, 6, 0")
    a("s_sub_u32 s74, s74, s75")
    a("s_cmp_ge_u32 s%d, 12" % S_SLOT)
    a("s_cselect_b32 s68, s73, s68")
    a("s_cselect_b32 s69, s74, s69")
    a("s_cmp_ge_u32 s%d, 21" % S_SLOT)
    a("s_cselect_b32 s71, 1, 0")
    a("s_cmp_eq_u32 s68, 1")
    a("s_cselect_b32 s%d, s12, s14" % SCS)
    a("s_cselect_b32 s%d, s13, s15" % (SCS + 1))
    a("s_cselect_b32 s72, 1920, 3648")
    a("s_cmp_eq_u32 s68, 0")
    a("s_cselect_b32 s%d, s6, s%d" % (SCS, SCS))
    a("s_cselect_b32 s%d, s7, s%d" % (SCS + 1, SCS + 1))
    a("s_cselect_b32 s72, 0, s72")
    a("s_cselect_b32 s73, 3840, 3456")
    a("s_mul_i32 s%d, s73, 640" % (SCS + 2))
    a("s_mov_b32 s%d, 0x00020000" % (SCS + 3))
    a("v_lshrrev_b32 v1, 4, v2")
    a("v_bfe_u32 v5, v2, 2, 2")
    a("v_lshl_add_u32 v1, v1, 2, v5")
    a("s_lshl_b32 s75, s%d, 4" % S_W)
    a("v_add_u32 v1, s75, v1")
    a("v_mul_lo_u32 v1, v1, s73")
    a("v_and_b32 v5, 3, v2")
    a("v_lshl_add_u32 v1, v5, 4, v1")
    a("s_lshl_b32 s74, s69, 6")
    a("s_cmp_eq_u32 s71, 1")
    a("s_cselect_b32 s74, 0x%x, s74" % BIG)
    a("v_add_u32 v%d, s74, v1" % V_CLO)
    a("s_lshl_b32 s77, s73, 7")
    a("s_lshl_b32 s75, s69, 5")
    a("s_add_u32 s74, s72, s75")
    a("s_lshl_b32 s74, s74, 2")
    a("s_add_u32 s74, s74, %d" % ST_CS)
    a("s_or_b32 s75, s71, s%d" % S_W)
    a("s_cmp_eq_u32 s75, 0")
    a("s_cselect_b32 s74, s74, 0x%x" % BIG)
    a("v_lshl_add_u32 v1, v2, 2, s74")
    a("v_cmp_gt_u32 vcc, 32, v2")
    a("v_and_b32 v5, 15, v2")
    a("v_lshlrev_b32 v6, 4, v5")
    a("v_cndmask_b32 v%d, v9, v1, vcc" % V_CSO)
    a("v_cmp_gt_u32 vcc, 8, v5")
    a("s_lshl_b32 s74, s%d, 7" % S_W)
    a("s_add_u32 s74, s74, %d" % SCR)
    a("v_add_u32 v7, s74, v6")
    a("v_add_u32 v6, %d, v6" % (SCR + 1024))
    a("v_cndmask_b32 v%d, v6, v7, vcc" % V_SCW)
    for d in range(4):
        a("v_cmp_eq_u32 vcc, %d, v5" % (2 * d))
        a("v_mov_b32 v6, 0x3f80")
        a("v_cmp_eq_u32 s[68:69], %d, v5" % (2 * d + 1))
        a("v_cndmask_b32 v%d, 0, v6, vcc" % (SEL + d))
        a("v_mov_b32 v6, 0x3f800000")
        a("v_cndmask_b32 v%d, v%d, v6, s[68:69]" % (SEL + d, SEL + d))
    a("v_and_b32 v5, 7, v2")
    a("v_bfe_u32 v6, v2, 3, 2")
    a("v_lshlrev_b32 v6, 2, v6")
    a("v_lshl_add_u32 v5, v5, 4, v6")
    a("v_cmp_eq_u32 vcc, 0, v0")
    a("v_add_u32 v%d, %d, v5" % (V_SCR, SCR))
    a("s_lshl_b32 s76, s77, 1")
    a("v_mov_b32 v5, 240")
    a("v_cndmask_b32 v%d, v9, v5, vcc" % V_ATO)
    a("s_add_u32 s75, s76, s77")
    a("s_lshl_b32 s74, s77, 2")


def stats_loads():
    o = [("buffer_load_dwordx4 %s, v%d, %s, 0 offen" % (vr(RL, 4), V_RLO, sr(SX, 4)), "SL"),
         ("buffer_load_dwordx4 %s, v%d, %s, 0 offen offset:640" % (vr(RL + 4, 4), V_RLO, sr(SX, 4)), "SL")]
    for i in (1, 2, 0, 3, 4):
        so = ["0", "s77", "s76", "s75", "s74"][i]
        o.append(("buffer_load_dwordx4 %s, v%d, %s, %s offen" % (vr(CL + 4 * i, 4), V_CLO, sr(SCS, 4), so), "SL"))
    return o


def xreduce(regs, tmps, op="v_add_f32", swaps=("v_permlane16_swap_b32", "v_permlane32_swap_b32")):
    o = []
    for swp in swaps:
        for v, t in zip(regs, tmps):
            o.append("v_mov_b32 v%d, v%d" % (t, v))
        o.append("s_nop 1")
        for v, t in zip(regs, tmps):
            o.append("%s v%d, v%d" % (swp, v, t))
        o.append("s_nop 1")
        for v, t in zip(regs, tmps):
            o.append("%s v%d, v%d, v%d" % (op, v, v, t))
    return o


def stats_segA():
    o = []
    T = TT
    for i in range(5):
        o.append("v_mfma_f32_16x16x32_bf16 %s, %s, %s, %s" % (vr(CD, 4), vr(CL + 4 * i, 4), vr(SEL, 4), "0" if i == 0 else vr(CD, 4)))
    o.append("v_mov_b32 v%d, 0x3f803f80" % (T + 4))
    for d in range(8):
        c = "0" if d < 2 else "v%d" % (T + d % 2)
        o.append("v_dot2_f32_bf16 v%d, v%d, v%d, %s" % (T + d % 2, RL + d, T + 4, c))
        c = "0" if d < 2 else "v%d" % (T + 2 + d % 2)
        o.append("v_dot2_f32_bf16 v%d, v%d, v%d, %s" % (T + 2 + d % 2, RL + d, RL + d, c))
    o.append("s_nop 2")
    o.append("v_add_f32 v%d, v%d, v%d" % (T, T, T + 1))
    o.append("v_add_f32 v%d, v%d, v%d" % (T + 2, T + 2, T + 3))
    for sh in (8, 4, 2, 1):
        o.append("s_nop 1")
        for v in (T, T + 2):
            o.append("v_add_f32_dpp v%d, v%d, v%d row_ror:%d row_mask:0xf bank_mask:0xf" % (v, v, v, sh))
    o += xreduce([T, T + 2, CD, CD + 1, CD + 2, CD + 3], [T + 1, T + 3, CL, CL + 1, CL + 2, CL + 3])
    o.append("ds_write_b128 v%d, %s" % (V_SCW, vr(CD, 4)))
    o.append("v_mul_f32 v%d, 0x%x, v%d" % (T, f2u(1.0 / 640.0), T))
    o.append("v_mul_f32 v%d, 0x%x, v%d" % (T + 2, f2u(1.0 / 640.0), T + 2))
    o.append("v_fma_f32 v%d, -v%d, v%d, v%d" % (T + 2, T, T, T + 2))
    o.append("v_max_f32 v%d, 0, v%d" % (T + 2, T + 2))
    o.append("v_cvt_pk_bf16_f32 v%d, v%d, v%d" % (T + 1, T, T + 2))
    o.append("v_lshlrev_b32 v%d, 16, v%d" % (T + 4, T + 1))
    o.append("v_and_b32 v%d, 0xffff0000, v%d" % (T + 5, T + 1))
    o.append("v_add_f32 v%d, 0x%x, v%d" % (T + 5, f2u(1e-5), T + 5))
    o.append("v_cvt_pk_bf16_f32 v%d, v%d, v%d" % (T + 5, T + 5, T + 5))
    o.append("v_lshlrev_b32 v%d, 16, v%d" % (T + 5, T + 5))
    o.append("v_sqrt_f32 v%d, v%d" % (T + 5, T + 5))
    o.append("s_nop 0")
    o.append("v_cvt_pk_bf16_f32 v%d, v%d, v%d" % (T + 5, T + 5, T + 5))
    o.append("v_lshlrev_b32 v%d, 16, v%d" % (T + 5, T + 5))
    o.append(["s_lshl_b32 s66, s%d, 3" % S_W, "s_add_u32 s66, s66, %d" % (SCR + 1536), "v_mov_b32 v%d, s66" % T])
    o.append("ds_write_b64 v%d, %s offset:%d" % (T, vr(T + 4, 2), 0))
    return o


def stats_segB():
    return ["ds_read_b32 v%d, v%d offset:%d" % (CL + w, V_SCR, 128 * w) for w in range(8)] + \
           ["v_and_b32 v%d, 7, v2" % TT, "v_lshlrev_b32 v%d, 3, v%d" % (TT, TT), "v_add_u32 v%d, %d, v%d" % (TT, SCR + 1536, TT),
            "ds_read_b64 %s, v%d" % (vr(TT + 2, 2), TT)]


def stats_segC():
    o = []
    for (x, y) in ((0, 1), (2, 3), (4, 5), (6, 7), (0, 2), (4, 6), (0, 4)):
        o.append("v_add_f32 v%d, v%d, v%d" % (CL + x, CL + x, CL + y))
    o.append(("buffer_store_dword v%d, v%d, %s, 0 offen sc1" % (CL, V_CSO, sr(SST, 4)), "ST"))
    o.append(("buffer_store_dwordx2 %s, v%d, %s, 0 offen sc1" % (vr(TT + 2, 2), V_RSO, sr(SST, 4)), "ST"))
    return o


def stats_signal():
    return ["v_mov_b32 v%d, 1" % TT,
            ("buffer_atomic_add v%d, v%d, %s, 0 offen" % (TT, V_ATO, sr(SDBG, 4)), "AT")]


def emit(a, x):
    if isinstance(x, list):
        for y in x:
            emit(a, y)
    elif isinstance(x, tuple):
        a(x[0], x[1])
    else:
        a(x)


IT_SIG, IT_POLL, IT_CHK = 8, 15, 17


def k1_mainloop(a, P):
    nI, nJ = P["nI"], P["nJ"]
    NST = 20
    nA, nB = 2 * nI, 2 * nJ

    def fx(p, I, hh):
        return FR0 + 40 * p + 8 * I + 4 * hh

    def fw(p, j, hh):
        return FR0 + 40 * p + 8 * nI + 8 * j + 4 * hh

    def read_ops(stage):
        p = stage % 2
        ops = []
        if MF == 32:
            for hh in range(2):
                for j in range(nJ):
                    for e in range(2):
                        v, imm = P["b_addr"](stage % 4, j)
                        ops.append("ds_read_b64_tr_b16 %s, v%d offset:%d" % (vr(fw(p, j, hh) + 2 * e, 2), v, imm + hh * 2048 + e * 512))
                for I in range(nI):
                    v, imm = P["a_addr"]((stage // 2) % 3, 2 * (stage % 2) + hh, I)
                    ops.append("ds_read_b128 %s, v%d offset:%d" % (vr(fx(p, I, hh), 4), v, imm))
        else:
            for j in range(nB):
                for e in range(2):
                    v, imm = P["b_addr"](stage % 4, j)
                    ops.append("ds_read_b64_tr_b16 %s, v%d offset:%d" % (vr(FR0 + 40 * p + 4 * nA + 4 * j + 2 * e, 2), v, imm + e * 512))
            for i in range(nA - P.get("skipA", 0)):
                v, imm = P["a_addr"]((stage // 2) % 3, stage % 2, i)
                ops.append("ds_read_b128 %s, v%d offset:%d" % (vr(FR0 + 40 * p + 4 * i, 4), v, imm))
        return ops

    def mfmas(it):
        p = it % 2
        o = []
        if MF == 32:
            for hh in range(2):
                for I in range(nI):
                    for j in range(nJ):
                        acc = ACC + 16 * (I * nJ + j)
                        c = "0" if (it == 0 and hh == 0) else vr(acc, 16)
                        o.append("v_mfma_f32_32x32x16_bf16 %s, %s, %s, %s" % (vr(acc, 16), vr(fw(p, j, hh), 4), vr(fx(p, I, hh), 4), c))
        else:
            for i in range(nA - P.get("skipA", 0)):
                for j in range(nB):
                    acc = ACC + 4 * (i * nB + j)
                    c = "0" if it == 0 else vr(acc, 4)
                    o.append("v_mfma_f32_16x16x32_bf16 %s, %s, %s, %s" % (vr(acc, 4), vr(FR0 + 40 * p + 4 * nA + 4 * j, 4), vr(FR0 + 40 * p + 4 * i, 4), c))
        return o

    def pro(ops):
        for (m, d, tag, adv) in ops:
            a(m)
            a("s_nop 0")
            a(d, tag)
            for x in adv:
                a(x)
    B, A = P["bdma"], P["adma"]
    pro(B(0))
    pro(sum(A(0), []))
    pro(B(1))
    pro(sum(A(1), []))
    for x in stats_loads()[:3]:
        emit(a, x)
    for x in P.get("early", []):
        emit(a, x)
    stamp(a, 4)
    a("s_waitcnt vmcnt(%d)" % a.vmwait({"B0", "A0"}))
    a("s_barrier")
    stamp(a, 5)
    for x in read_ops(0):
        a(x)
    for it in range(NST):

        p = it % 2
        tags = set()
        if it + 1 < NST:
            tags |= {"B%d" % (it + 1), "A%d" % ((it + 1) // 2)}
        tags |= P["toptags"].get(it, set())
        n = a.vmwait(tags)
        if n is not None:
            a("s_waitcnt vmcnt(%d) lgkmcnt(0)" % n)
        else:
            a("s_waitcnt lgkmcnt(0)")
        if it == IT_CHK:
            nm = P["name"]
            a("s_mov_b32 s66, 0")
            a.label("L_poll_%s" % nm)
            a("v_readfirstlane_b32 s67, v%d" % TT)
            a("s_add_u32 s66, s66, 1")
            a("s_cmp_ge_u32 s67, 256")
            a("s_cbranch_scc1 L_pollok_%s" % nm)
            a("s_cmp_ge_u32 s66, 0x40000")
            a("s_cbranch_scc1 L_pollok_%s" % nm)
            a("s_sleep 2")
            a.l.append("    buffer_load_dword v%d, v%d, %s, 0 offen sc1" % (TT, TT + 1, sr(SDBG, 4)))
            a("s_waitcnt vmcnt(0)")
            a("s_branch L_poll_%s" % nm)
            a.label("L_pollok_%s" % nm)
        a("s_barrier")
        dm = []
        if it == 0:
            dm = B(2) + B(3) + A(2)[0]
        elif it == 1:
            dm = B(4) + B(5) + A(2)[1]
        elif it == 2:
            dm = B(6) + A(3)[0] + A(3)[1]
        else:
            if it + 4 < NST:
                dm += B(it + 4)
            S = (it - 1) // 2 + 3
            if S < 10:
                dm += A(S)[(it - 1) % 2]
        rd = read_ops(it + 1) if it + 1 < NST else []
        stream = []
        for (m, d, tag, adv) in dm:
            mid = rd.pop(0) if rd else "s_nop 0"
            stream.append([m, mid, (d, tag)] + adv)
        stream += [[x] for x in rd]
        stream += [[x] for x in P["bg"].get(it, [])]
        mf = mfmas(it)
        ngap = len(mf)
        for gi, x in enumerate(mf):
            a(x)
            k = (len(stream) + (ngap - gi) - 1) // (ngap - gi) if MF == 32 else min(len(stream), max(1, (len(stream) + (ngap - gi) - 1) // (ngap - gi)))
            for _ in range(k):
                if stream:
                    emit(a, stream.pop(0))
        for x in stream:
            emit(a, x)
    stamp(a, 6)


def adv(r, inc, tot):
    return ["s_add_u32 s%d, s%d, %d" % (r, r, inc), "s_cmp_ge_u32 s%d, %d" % (r, tot), "s_cselect_b32 s%d, 0, s%d" % (r, r)]


def split_bg(lst, its):
    n = (len(lst) + len(its) - 1) // len(its)
    return {it: lst[i * n:(i + 1) * n] for i, it in enumerate(its)}


def std_bg(pre, tail17, tail19):
    sl = stats_loads()
    bg = {0: sl[3:7]}
    bg.update(split_bg(stats_segA(), [2, 3]))
    bg[9] = k2_prefetch()
    bg[4] = stats_segB()
    bg[5] = stats_segC()
    bg[IT_SIG] = stats_signal()
    bg.update(split_bg(pre, [12, 13, 14]))
    bg[IT_POLL] = [("buffer_load_dword v%d, v%d, %s, 0 offen sc1" % (TT, TT + 1, sr(SDBG, 4)), "POLL")]
    bg[IT_CHK] = tail17
    bg[19] = tail19
    top = {2: {"SL"}, IT_SIG: {"ST"}, IT_CHK: {"POLL"}, 19: {"TL"}}
    return bg, top


def gen_k1(a):
    name = NAME + "_kernel"
    kernel_header(a, name)
    a("s_cmp_ge_u32 s2, 256")
    a("s_cbranch_scc1 L_k1_end")
    stamp_start(a)
    dbg_time(a, False)
    a("s_load_dwordx4 s[20:23], s[0:1], 64")
    a("s_load_dwordx4 s[4:7], s[0:1], 0")
    a("s_load_dwordx2 s[8:9], s[0:1], 16")
    a("s_load_dwordx4 s[12:15], s[0:1], 32")
    a("s_load_dwordx4 s[16:19], s[0:1], 48")
    a("v_lshrrev_b32 v1, 6, v0")
    a("v_and_b32 v2, 63, v0")
    a("v_readfirstlane_b32 s%d, v1" % S_W)
    a("v_lshlrev_b32 v3, 4, v2")
    a("s_getreg_b32 s78, hwreg(HW_REG_XCC_ID)")
    a("s_and_b32 s%d, s2, 7" % S_XCD)
    a("s_lshr_b32 s%d, s2, 3" % S_SLOT)
    a("s_and_b32 s78, s78, 7")
    a("s_lshl_b32 s66, s78, 5")
    a("v_mov_b32 v17, s66")
    a("v_mov_b32 v1, 0x%x" % BIG)
    a("v_cmp_eq_u32 vcc, 0, v0")
    a("v_mov_b32 v18, 1")
    a("s_lshr_b32 s%d, s%d, 2" % (S_WM, S_W))
    a("s_and_b32 s%d, s%d, 3" % (S_WN, S_W))
    a("v_cndmask_b32 v17, v1, v17, vcc")
    a("s_waitcnt lgkmcnt(0)")
    stamp(a, 1)
    make_srd(a, SDBG, 20, 21, 256)
    a.vm = []
    a("s_cmp_lg_u32 s%d, 0" % S_W)
    a("s_cbranch_scc1 L_tk_skip")
    a("buffer_atomic_add v18, v17, %s, 0 offen sc0" % sr(SDBG, 4), "TK")
    a.label("L_tk_skip")
    make_srd(a, SX, 4, 5, 2048 * 1280)
    make_srd(a, SACT, 22, 23, ACT_BYTES, ACT_OFF)
    make_srd(a, SST, 22, 23, ST_BYTES, ST_OFF)
    make_srd(a, SPF1, 16, 17, 1728 * 1280)
    make_srd(a, SPF2, 8, 9, 640 * 1280)
    tlb_warm(a)
    if "--lw" in sys.argv:
        l2_warm(a)
    stats_setup(a)
    a("v_lshrrev_b32 v4, 4, v2")
    a("v_lshlrev_b32 v5, 10, v4")
    a("v_bfe_u32 v6, v2, 2, 2")
    a("v_lshl_add_u32 v5, v6, 7, v5")
    a("v_and_b32 v6, 3, v2")
    a("v_lshl_add_u32 v5, v6, 3, v5")
    a("v_bfe_u32 v6, v2, 3, 2")
    a("v_bfe_u32 v26, v2, 4, 1")
    a("v_lshrrev_b32 v7, 3, v2")
    a("v_bfe_u32 v8, v2, 1, 2")
    a("v_xor_b32 v8, v8, v26")
    a("v_and_b32 v9, 1, v2")
    a("v_and_b32 v10, 7, v2")
    a("v_lshrrev_b32 v11, 4, v2")
    a("v_xor_b32 v10, v10, v11")
    a("v_lshlrev_b32 v10, 4, v10")
    a("v_mul_u32_u24 v11, 1280, v7")
    a("v_add_u32 v10, v10, v11")
    a("v_bfe_u32 v15, v2, 1, 3")
    a("v_xor_b32 v15, v15, v4")
    a("v_lshlrev_b32 v15, 4, v15")
    a("v_and_b32 v16, 7, v2")
    a("v_lshl_add_u32 v15, v16, 7, v15")
    a("v_bfe_u32 v16, v2, 3, 1")
    a("v_lshl_add_u32 v15, v16, 10, v15")
    a("s_cmp_lg_u32 s%d, 0" % S_W)
    a("s_cbranch_scc1 L_tk_done")
    a("s_mov_b32 s67, 0")
    a("s_waitcnt vmcnt(%d)" % a.vmwait({"TK"}))
    a.label("L_tk_loop")
    a("v_readfirstlane_b32 s68, v18")
    a("s_add_u32 s67, s67, 1")
    a("s_nop 2")
    a("s_cmp_lt_u32 s68, 32")
    a("s_cbranch_scc1 L_tk_got")
    a("s_cmp_ge_u32 s67, 16")
    a("s_cbranch_scc1 L_tk_got")
    a("s_add_u32 s78, s78, 1")
    a("s_and_b32 s78, s78, 7")
    a("s_lshl_b32 s68, s78, 5")
    a("v_writelane_b32 v17, s68, 0")
    a("v_mov_b32 v18, 1")
    a.l.append("    buffer_atomic_add v18, v17, %s, 0 offen sc0" % sr(SDBG, 4))
    a("s_waitcnt vmcnt(0)")
    a("s_branch L_tk_loop")
    a.label("L_tk_got")
    a("s_and_b32 s68, s68, 31")
    a("s_lshl_b32 s68, s68, 3")
    a("s_add_u32 s68, s68, s78")
    a("v_mov_b32 v17, %d" % (SCR + 2044))
    a("v_mov_b32 v18, s68")
    a("ds_write_b32 v17, v18")
    a("s_waitcnt lgkmcnt(0)")
    a.label("L_tk_done")
    stamp(a, 2)
    a("s_barrier")
    stamp(a, 3)
    a("v_mov_b32 v1, %d" % (SCR + 2044))
    a("ds_read_b32 v1, v1")
    a("s_waitcnt lgkmcnt(0)")
    a("v_readfirstlane_b32 s2, v1")
    a("s_nop 3")
    a("s_and_b32 s%d, s2, 7" % S_XCD)
    a("s_lshr_b32 s%d, s2, 3" % S_SLOT)
    a("s_lshl_b32 s66, s2, 7")
    a("s_add_u32 s66, s66, %d" % FLG)
    a("v_mov_b32 v17, s66")
    a("v_mov_b32 v1, 0x%x" % BIG)
    a("v_cmp_eq_u32 vcc, 0, v0")
    a("v_mov_b32 v18, 0")
    a("s_nop 0")
    a("v_cndmask_b32 v17, v1, v17, vcc")
    a("buffer_store_dword v18, v17, %s, 0 offen sc1" % sr(SST, 4), "ST")
    if "--prio" in sys.argv:
        a("s_cmp_lt_u32 s%d, 4" % S_W)
        a("s_cbranch_scc1 L_prio_done")
        a("s_setprio 1")
        a.label("L_prio_done")
    VM0 = list(a.vm)
    a("s_cmp_lt_u32 s%d, 13" % S_SLOT)
    a("s_cbranch_scc1 L_k1_att")
    a("s_cmp_lt_u32 s%d, 31" % S_SLOT)
    a("s_cbranch_scc0 L_k1_extra")
    a("s_sub_u32 s%d, s%d, 13" % (S_SLOT, S_SLOT))

    a.vm = list(VM0)
    a("s_lshl_b32 s66, s%d, 1" % S_XCD)
    a("s_add_u32 s66, s66, s%d" % S_SLOT)
    a("s_sub_u32 s66, s66, 16")
    a("s_cmp_lt_u32 s%d, 16" % S_SLOT)
    a("s_cselect_b32 s%d, s%d, 8" % (S_FB, S_XCD))
    a("s_cselect_b32 s%d, s%d, s66" % (S_RB, S_SLOT))
    a("s_cmp_lt_u32 s%d, 4" % S_W)
    a("s_cselect_b32 s%d, s12, s14" % SW)
    a("s_cselect_b32 s%d, s13, s15" % (SW + 1))
    a("s_mov_b32 s%d, %d" % (SW + 2, 640 * 3456))
    a("s_mov_b32 s%d, 0x00020000" % (SW + 3))
    a("s_add_u32 s66, s%d, s%d" % (S_RB, S_FB))
    for _ in range(2):
        a("s_cmp_ge_u32 s66, 10")
        a("s_cselect_b32 s67, 10, 0")
        a("s_sub_u32 s66, s66, s67")
    if not ROT:
        a("s_mov_b32 s66, 0")
    if RP == 5:
        a("s_and_b32 s66, s66, 14")
    if RP == 2:
        a("s_and_b32 s66, s66, 1")
        a("s_mul_i32 s66, s66, 5")
    if RP == 3:
        a("s_mul_i32 s66, s66, 22")
        a("s_lshr_b32 s66, s66, 6")
        a("s_mul_i32 s66, s66, 3")
        a("s_min_u32 s66, s66, 6")
    a("s_lshl_b32 s%d, s66, 7" % S_SOA)
    a("s_mul_i32 s%d, s66, 221184" % S_SOB)
    a("s_mul_i32 s70, s%d, 384" % S_FB)
    a("v_mul_u32_u24 v16, 3456, v7")
    a("v_add_u32 v16, s70, v16")
    a("v_lshlrev_b32 v1, 5, v8")
    a("v_lshl_add_u32 v1, v9, 4, v1")
    for j in range(3):
        a("s_mul_i32 s66, s%d, 3" % S_W)
        a("s_add_u32 s66, s66, %d" % j)
        a("s_and_b32 s67, s66, 3")
        a("s_lshr_b32 s68, s66, 2")
        a("s_cmp_ge_u32 s68, 3")
        a("s_cselect_b32 s69, 3, 0")
        a("s_sub_u32 s68, s68, s69")
        if MF == 32:
            a("s_xor_b32 s69, s67, s%d" % S_WM)
            a("s_and_b32 s69, s69, 1")
        else:
            a("s_and_b32 s69, s67, 1")
        a("s_lshl_b32 s69, s69, 6")
        a("v_xor_b32 v%d, s69, v1" % (12 + j))
        a("s_mul_i32 s67, s67, %d" % (8 * 3456))
        a("s_lshl_b32 s68, s68, 7")
        a("s_add_u32 s67, s67, s68")
        a("v_add3_u32 v%d, v%d, v16, s67" % (12 + j, 12 + j))
    a("s_lshl_b32 s66, s%d, 3" % S_RB)
    a("s_add_u32 s66, s66, s%d" % S_W)
    a("s_mul_i32 s66, s66, %d" % (16 * 1280))
    a("v_xor_b32 v11, 64, v10")
    a("v_add_u32 v10, s66, v10")
    a("s_add_u32 s66, s66, %d" % (8 * 1280))
    a("v_add_u32 v11, s66, v11")
    a("s_mul_i32 s3, s%d, 3072" % S_W)
    a("s_lshl_b32 s79, s%d, 11" % S_W)
    ARING = 98304
    a("s_lshl_b32 s66, s%d, 13" % S_WM)
    a("s_add_u32 s66, s66, %d" % ARING)
    for c in ((3, 2, 1, 0) if MF == 32 else (1, 0)):
        if c:
            a("v_xor_b32 v%d, %d, v15" % (15 + c, (32 if MF == 32 else 64) * c))
        a("v_add_u32 v%d, s66, v%d" % (15 + c, 15 + c))
    if MF == 32:
        a("v_lshlrev_b32 v1, 1, v26")
        a("v_xor_b32 v6, v6, v1")
        a("v_mul_u32_u24 v1, 12288, v26")
        a("v_add_u32 v5, v5, v1")
    for j in range(3):
        a("s_mul_i32 s66, s%d, 3" % S_WN)
        a("s_add_u32 s66, s66, %d" % j)
        a("s_and_b32 s67, s66, 3")
        a("s_lshr_b32 s66, s66, 2")
        a("s_lshl_b32 s66, s66, 12")
        a("v_xor_b32 v%d, s67, v6" % (19 + j))
        a("v_lshl_add_u32 v%d, v%d, 5, v5" % (19 + j, 19 + j))
        a("v_add_u32 v%d, s66, v%d" % (19 + j, 19 + j))
        a("v_add_u32 v%d, 0x%x, v%d" % (22 + j, 2 * 24576, 19 + j))

    def bdma(st):
        o = []
        for j in range(3):
            o.append(("s_add_u32 m0, s3, 0x%x" % ((st % 4) * 24576 + 1024 * j),
                      "buffer_load_dwordx4 v%d, %s, s%d offen lds" % (12 + j, sr(SW, 4), S_SOB), "B%d" % st,
                      adv(S_SOB, 32 * 3456, 640 * 3456) if j == 2 else []))
        return o

    def adma(S):
        return [[("s_add_u32 m0, s79, 0x%x" % (ARING + (S % 3) * 16384 + 1024 * h),
                  "buffer_load_dwordx4 v%d, %s, s%d offen lds" % (10 + h, sr(SX, 4), S_SOA), "A%d" % S,
                  adv(S_SOA, 128, 1280) if h == 1 else [])] for h in range(2)]

    pre = ["v_and_b32 v25, 1, v4", "s_mov_b32 s66, %d" % ACT_MT, "v_mul_lo_u32 v25, v25, s66",
           "v_lshrrev_b32 v1, 1, v4", "v_lshl_add_u32 v25, v1, 8, v25", "v_and_b32 v1, 15, v2", "v_lshl_add_u32 v25, v1, 4, v25",
           "s_mul_i32 s66, s%d, %d" % (S_WM, 4 * ACT_MT), "s_mul_i32 s67, s%d, %d" % (S_WN, 6 * 256),
           "s_add_u32 s66, s66, s67", "v_add_u32 v25, s66, v25",
           "s_mul_i32 s70, s%d, %d" % (S_RB, 8 * ACT_MT), "s_mul_i32 s67, s%d, %d" % (S_FB, 24 * 256),
           "s_add_u32 s70, s70, s67", "s_add_u32 s70, s70, %d" % (80 * 256), "s_add_u32 s71, s70, %d" % (2 * ACT_MT),
           "s_lshl_b32 s66, s%d, 1" % S_RB, "s_add_u32 s66, s66, s%d" % S_WM, "s_lshl_b32 s66, s66, 10",
           "v_and_b32 v26, 7, v2", "v_lshl_add_u32 v26, v26, 3, s66", "v_bfe_u32 v1, v2, 3, 1", "v_lshl_add_u32 v26, v1, 7, v26",
           "v_cmp_gt_u32 vcc, 48, v2", "v_mov_b32 v1, 0x%x" % BIG, "s_nop 0", "v_cndmask_b32 v27, v1, v3, vcc",
           "s_mul_i32 s72, s%d, 768" % S_FB, "s_add_u32 s72, s72, %d" % (ST_CS + 1920 * 4),
           "s_add_u32 s73, s72, %d" % (1728 * 4),
           "s_mul_i32 s66, s%d, 192" % S_WN, "s_add_u32 s66, s66, %d" % CSL, "v_lshl_add_u32 v28, v4, 4, s66",
           "v_mov_b32 v%d, 240" % (TT + 1)]
    RS = 36
    CS0 = 44
    t17 = [("buffer_load_dwordx2 %s, v26, %s, 0 offen offset:%d sc1" % (vr(RS + 2 * i, 2), sr(SST, 4), 256 * i), "TL") for i in range(4)]
    for mat in range(2):
        t17.append(["s_mov_b32 m0, %d" % (CSL + 1024 * mat), "s_nop 0",
                    ("buffer_load_dwordx4 v27, %s, s%d offen sc1 lds" % (sr(SST, 4), 72 + mat), "TL")])

    def csreg(t):
        return CS0 + 4 * t if t < 5 else 240
    t19 = ["ds_read_b128 %s, v28 offset:%d" % (vr(csreg(t), 4), (t // 3) * 1024 + (t % 3) * 64) for t in range(6)]
    bg, top = std_bg(pre[-1:], t17, t19)
    P = dict(nI=2, nJ=3, name="ffn", bdma=bdma, adma=adma, bg=bg, toptags=top, early=pre[:-1],
             a_addr=lambda S3, q, i: (15 + q, S3 * 16384 + i * 2048),
             b_addr=lambda slot, j: (19 + 3 * (slot // 2) + j % 3, (slot % 2) * 24576 + (j // 3) * 12288))
    k1_mainloop(a, P)

    c1 = -2.0 * LOG2E * 0.7978845608028654
    RC = 5
    for i in range(4):
        a("v_rcp_f32 v%d, v%d" % (RC + 3 * i, RS + 2 * i + 1))
    a("s_nop 0")
    for i in range(4):
        a("v_mul_f32 v%d, v%d, v%d" % (RC + 3 * i + 2, RS + 2 * i + 1, RS + 2 * i + 1))
        a("v_mul_f32 v%d, v%d, v%d" % (RC + 3 * i + 1, RC + 3 * i, RC + 3 * i))
        a("v_mul_f32 v%d, 0x%x, v%d" % (RC + 3 * i, f2u(c1), RC + 3 * i))
        a("v_mul_f32 v%d, 0x%x, v%d" % (RC + 3 * i + 1, f2u(0.044715), RC + 3 * i + 1))
        a("v_mul_f32 v%d, v%d, v%d" % (RC + 3 * i + 1, RC + 3 * i + 1, RC + 3 * i))
    a("s_waitcnt lgkmcnt(0)")
    T0 = FR0
    OUT = FR0 + 16
    n = 0
    for ip in (0, 2):
        for j in range(3):
            el = []
            for ii in (ip, ip + 1):
                for r in range(4):
                    el.append((ACC + 4 * (ii * 6 + j) + r, ACC + 4 * (ii * 6 + 3 + j) + r, csreg(j) + r, csreg(3 + j) + r,
                               RS + 2 * ii, RC + 3 * ii, RC + 3 * ii + 1, RC + 3 * ii + 2))
            e2 = list(enumerate(el))[::2]
            for q, (x, u, cg, cu, m_, k1_, k3_, s2_) in e2:
                a(pk("fma", x, ("nb", m_), cg, x))
            for q, (x, u, cg, cu, m_, k1_, k3_, s2_) in e2:
                a(pk("mul", T0 + q, x, x))
            for q, (x, u, cg, cu, m_, k1_, k3_, s2_) in e2:
                a(pk("fma", T0 + q, T0 + q, ("b", k3_), ("b", k1_)))
            for q, (x, u, cg, cu, m_, k1_, k3_, s2_) in e2:
                a(pk("mul", T0 + q, x, T0 + q))
            for q in range(8):
                a("v_exp_f32 v%d, v%d" % (T0 + q, T0 + q))
            for q, (x, u, cg, cu, m_, k1_, k3_, s2_) in e2:
                a(pk("fma", u, ("nb", m_), cu, u))
            for q, (x, u, cg, cu, m_, k1_, k3_, s2_) in e2:
                a(pk("mul", u, x, u))
            for q, (x, u, cg, cu, m_, k1_, k3_, s2_) in e2:
                a(pk("fma", T0 + q, T0 + q, ("b", s2_), ("b", s2_)))
            for q in range(8):
                a("v_rcp_f32 v%d, v%d" % (T0 + q, T0 + q))
            a("s_nop 0")
            for q, (x, u, cg, cu, m_, k1_, k3_, s2_) in e2:
                a(pk("mul", u, u, T0 + q))
            o = OUT + 4 * (n % 3)
            n += 1
            for q in range(4):
                a("v_cvt_pk_bf16_f32 v%d, v%d, v%d" % (o + q, el[2 * q][1], el[2 * q + 1][1]))
            a("s_nop 1")
            a("v_permlane16_swap_b32 v%d, v%d" % (o, o + 2))
            a("v_permlane16_swap_b32 v%d, v%d" % (o + 1, o + 3))
            a("s_nop 1")
            a("buffer_store_dwordx4 %s, v25, %s, s%d offen offset:%d %s" % (vr(o, 4), sr(SACT, 4), 70 + ip // 2, 512 * j, SCF))
    stamp(a, 7)
    p2_early(a)
    p1_done(a, ["s_cmp_eq_u32 s%d, 8" % S_FB, "s_cselect_b32 s64, 0, 64", "s_lshl_b32 s3, s%d, 2" % S_RB, "s_add_u32 s3, s3, s64"])

    a.label("L_k1_att")
    a.vm = list(VM0)
    a("s_mov_b32 s%d, s%d" % (S_RB, S_SLOT))
    make_srd(a, SW, 6, 7, 640 * 3840)
    ARING = 65536
    ASLOT = 22528
    a("s_add_u32 s66, s%d, s%d" % (S_RB, S_XCD))
    for _ in range(2):
        a("s_cmp_ge_u32 s66, 10")
        a("s_cselect_b32 s67, 10, 0")
        a("s_sub_u32 s66, s66, s67")
    if not ROT:
        a("s_mov_b32 s66, 0")
    if RP == 5:
        a("s_and_b32 s66, s66, 14")
    if RP == 2:
        a("s_and_b32 s66, s66, 1")
        a("s_mul_i32 s66, s66, 5")
    if RP == 3:
        a("s_mul_i32 s66, s66, 22")
        a("s_lshr_b32 s66, s66, 6")
        a("s_mul_i32 s66, s66, 3")
        a("s_min_u32 s66, s66, 6")
    a("s_lshl_b32 s%d, s66, 7" % S_SOA)
    a("s_mul_i32 s%d, s66, 245760" % S_SOB)
    a("s_mul_i32 s70, s%d, 160" % S_XCD)
    a("v_mul_u32_u24 v16, 3840, v7")
    a("v_add_u32 v16, s70, v16")
    a("s_lshr_b32 s66, s%d, 1" % S_W)
    a("s_lshl_b32 s66, s66, 2")
    a("v_mov_b32 v17, 1120")
    for j in range(2):
        if j:
            a("v_xor_b32 v1, 2, v8")
            a("v_add_u32 v1, s66, v1")
        else:
            a("v_add_u32 v1, s66, v8")
        a("v_min_u32 v1, 14, v1")
        a("v_lshlrev_b32 v%d, 5, v1" % (13 + j))
        a("v_lshl_add_u32 v%d, v9, 4, v%d" % (13 + j, 13 + j))
        a("v_cmp_le_u32 vcc, 5, v1")
        a("v_add_u32 v%d, v%d, v16" % (13 + j, 13 + j))
        a("s_and_b32 s67, s%d, 1" % S_W)
        a("v_cndmask_b32 v18, 0, v17, vcc")
        a("v_cmp_le_u32 vcc, 10, v1")
        a("v_add_u32 v%d, v%d, v18" % (13 + j, 13 + j))
        a("s_lshl_b32 s67, s67, 1")
        a("v_cndmask_b32 v18, 0, v17, vcc")
        a("s_add_u32 s67, s67, %d" % j)
        a("s_mul_i32 s67, s67, %d" % (8 * 3840))
        a("v_add3_u32 v%d, v%d, v18, s67" % (13 + j, 13 + j))
    a("s_and_b32 s66, s%d, 1" % S_W)
    a("s_lshl_b32 s66, s66, 6")
    a("v_xor_b32 v1, s66, v10")
    a("s_mul_i32 s66, s%d, 20" % S_RB)
    a("s_add_u32 s66, s66, s%d" % S_W)
    a("s_max_u32 s67, s66, 2")
    a("s_sub_u32 s67, s67, 2")
    a("s_min_u32 s67, s67, 255")
    a("s_mul_i32 s67, s67, %d" % (8 * 1280))
    a("v_add_u32 v10, s67, v1")
    a("s_add_u32 s67, s66, 6")
    a("s_min_u32 s68, s67, 255")
    a("s_mul_i32 s68, s68, %d" % (8 * 1280))
    a("v_add_u32 v11, s68, v1")
    a("s_add_u32 s67, s66, 14")
    a("s_min_u32 s67, s67, 255")
    a("s_mul_i32 s67, s67, %d" % (8 * 1280))
    a("s_cmp_lt_u32 s%d, 6" % S_W)
    a("s_cselect_b32 s68, s67, s68")
    a("s_cselect_b32 s78, 16384, 8192")
    a("v_add_u32 v12, s68, v1")
    a("s_lshl_b32 s79, s%d, 10" % S_W)
    a("s_add_u32 s78, s78, s79")
    a("s_lshl_b32 s3, s%d, 11" % S_W)
    a("s_mul_i32 s66, s%d, %d" % (S_WM, 6 * 2048))
    a("s_add_u32 s66, s66, %d" % ARING)
    for c in ((3, 2, 1, 0) if MF == 32 else (1, 0)):
        if c:
            a("v_xor_b32 v%d, %d, v15" % (15 + c, (32 if MF == 32 else 64) * c))
        a("v_add_u32 v%d, s66, v%d" % (15 + c, 15 + c))
    a("s_lshl_b32 s66, s%d, 12" % S_WN)
    for j in range(4):
        a("v_xor_b32 v%d, %d, v6" % (17 + j, j))
        a("v_lshl_add_u32 v%d, v%d, 5, v5" % (17 + j, 17 + j))
        a("v_add_u32 v%d, s66, v%d" % (17 + j, 17 + j))

    def bdma2(st):
        return [("s_add_u32 m0, s3, 0x%x" % ((st % 4) * 16384 + 1024 * j),
                 "buffer_load_dwordx4 v%d, %s, s%d offen lds" % (13 + j, sr(SW, 4), S_SOB), "B%d" % st,
                 adv(S_SOB, 32 * 3840, 640 * 3840) if j == 1 else []) for j in range(2)]

    def adma2(S):
        b = ARING + (S % 3) * ASLOT
        ld = "buffer_load_dwordx4 v%d, %s, s%d offen lds"
        return [[("s_add_u32 m0, s79, 0x%x" % b, ld % (10, sr(SX, 4), S_SOA), "A%d" % S, []),
                 ("s_add_u32 m0, s79, 0x%x" % (b + 8192), ld % (11, sr(SX, 4), S_SOA), "A%d" % S, [])],
                [("s_add_u32 m0, s78, 0x%x" % b, ld % (12, sr(SX, 4), S_SOA), "A%d" % S,
                  adv(S_SOA, 128, 1280))]]

    pre = ["v_and_b32 v1, 15, v2", "s_mul_i32 s66, s%d, 96" % S_WM, "v_add_u32 v5, s66, v1",
           "v_mul_u32_u24 v5, %d, v5" % PITCH, "v_lshl_add_u32 v5, v4, 3, v5", "v_lshlrev_b32 v6, 4, v4",
           "s_mul_i32 s67, s%d, 160" % S_RB, "s_add_u32 s66, s66, s67", "s_sub_u32 s66, s66, 16", "s_lshl_b32 s66, s66, 4",
           "v_and_b32 v63, 7, v2", "v_lshl_add_u32 v63, v63, 3, s66", "v_bfe_u32 v7, v2, 3, 1", "v_lshl_add_u32 v63, v7, 7, v63"]
    early = pre[:5]
    pre = ["v_lshlrev_b32 v6, 4, v4", "s_mul_i32 s66, s%d, 96" % S_WM] + pre[6:]
    for t in range(4):
        early += ["s_lshl_b32 s66, s%d, 2" % S_WN, "s_add_u32 s66, s66, %d" % t, "s_min_u32 s66, s66, 14",
                  ["s_cmp_ge_u32 s66, 5", "s_cselect_b32 s67, 5, 0", "s_cselect_b32 s68, %d, %d" % (REG_K, REG_Q),
                   "s_cselect_b32 s69, 1024, 0"],
                  ["s_cmp_ge_u32 s66, 10", "s_cselect_b32 s67, 10, s67", "s_cselect_b32 s68, %d, s68" % REG_V,
                   "s_cselect_b32 s69, 2048, s69"],
                  "s_sub_u32 s66, s66, s67", "s_lshl_b32 s67, s66, 5", "s_add_u32 s67, s67, s68",
                  "v_add_u32 v%d, s67, v5" % (21 + t),
                  "s_lshl_b32 s66, s66, 6", "s_add_u32 s66, s66, s69", "s_add_u32 s66, s66, %d" % CSL,
                  "v_writelane_b32 v25, s66, %d" % t]
        pre += [["v_readlane_b32 s67, v25, %d" % t, "s_nop 1", "v_add_u32 v%d, s67, v6" % (52 + t)]]
    early += ["v_lshrrev_b32 v26, 4, v2", "v_lshlrev_b32 v6, 2, v26", "v_sub_u32 v6, v1, v6"]
    for T in range(2):
        for r in range(4):
            early += ["v_add_u32 v7, %d, v6" % (16 - 16 * T - r), "v_alignbit_b32 v7, v7, v7, 1",
                      "v_cmp_ge_u32 %s, 7, v7" % sr(4 + 2 * (4 * T + r), 2)]
    pre += ["v_and_b32 v1, 15, v2"]
    pre += ["s_mul_i32 s66, s%d, %d" % (S_WM, 80 * PITCH), "s_mul_i32 s67, s%d, 40" % S_WN, "s_add_u32 s66, s66, s67",
            "v_mul_u32_u24 v5, %d, v1" % PITCH, "v_add_u32 v5, s66, v5",
            "v_lshlrev_b32 v6, 4, v26",
            "v_cmp_gt_u32 s[76:77], 3, v26", "v_cmp_gt_u32 s[74:75], 2, v26", "s_nop 1",
            "v_cndmask_b32 v6, 0, v6, s[76:77]",
            "v_add_u32 v56, v5, v6",
            "v_add_u32 v58, %d, v56" % (REG_Q + 16 * PITCH),
            "v_min_u32 v57, 191, v0", "v_mul_u32_u24 v57, %d, v57" % PITCH, "v_add_u32 v57, 160, v57",
            "v_lshrrev_b32 v60, 2, v2", "v_mul_u32_u24 v60, %d, v60" % PITCH, "v_and_b32 v6, 3, v2",
            "v_lshl_add_u32 v60, v6, 3, v60", "s_add_u32 s66, s66, %d" % REG_V, "v_add_u32 v60, s66, v60",
            "s_mul_i32 s66, s%d, 5" % S_WN, "s_mul_i32 s67, s%d, %d" % (S_WM, 5 * 2560), "s_add_u32 s67, s67, %d" % OSTG]
    for Dd in range(2):
        pre += ["v_add_u32 v6, s66, v26"] + (["v_add_u32 v6, 4, v6"] if Dd else []) + \
               ["v_lshrrev_b32 v7, 1, v6", "v_lshlrev_b32 v7, 8, v7", "v_and_b32 v6, 1, v6",
                "v_lshl_add_u32 v7, v6, 3, v7", "v_lshl_add_u32 v7, v1, 4, v7", "v_add_u32 v%d, s67, v7" % (61 + Dd)]
    pre += ["v_cmp_gt_u32 vcc, 16, v2", "v_mov_b32 v6, %d" % (REG_Q + 176 * PITCH - 4 * 2560), "s_nop 1", "v_cndmask_b32 v62, v6, v62, vcc",
            "v_mov_b32 v6, 0x%x" % BIG, "s_mov_b32 s67, 26215", "s_mov_b32 s68, %d" % (ACT_MT - 2560)]
    for nn in range(4):
        pre += ["s_lshl_b32 s66, s%d, 10" % S_W, "s_add_u32 s66, s66, %d" % (8192 * nn), "v_add_u32 v7, s66, v3",
                "v_mul_lo_u32 v5, v7, s67", "v_lshrrev_b32 v5, 26, v5", "v_mul_lo_u32 v5, v5, s68",
                "v_cmp_gt_u32 vcc, 25600, v7", "v_add_u32 v5, v5, v7", "s_nop 0", "v_cndmask_b32 v%d, v6, v5, vcc" % (48 + nn)]
    pre += ["v_cmp_gt_u32 vcc, 20, v2", "s_nop 1", "v_cndmask_b32 v27, v6, v3, vcc",
            "s_mul_i32 s69, s%d, %d" % (S_RB, 10 * ACT_MT), "s_mul_i32 s67, s%d, 2560" % S_XCD, "s_add_u32 s69, s69, s67",
            "s_mul_i32 s70, s%d, 320" % S_XCD, "s_add_u32 s70, s70, %d" % ST_CS, "s_add_u32 s71, s70, 2560", "s_add_u32 s72, s70, 5120",
            "v_mov_b32 v%d, 240" % (TT + 1)]
    RS = 36
    t17 = ["v_add_u32 v1, 256, v63",
           ("buffer_load_dwordx2 %s, v63, %s, 0 offen sc1" % (vr(RS, 2), sr(SST, 4)), "TL")]
    for i in range(1, 6):
        t17.append(("buffer_load_dwordx2 %s, v1, %s, 0 offen offset:%d sc1" % (vr(RS + 2 * i, 2), sr(SST, 4), 256 * (i - 1)), "TL"))
    for sec in range(3):
        t17.append(["s_mov_b32 m0, %d" % (CSL + 1024 * sec), "s_nop 0",
                    ("buffer_load_dwordx4 v27, %s, s%d offen sc1 lds" % (sr(SST, 4), 70 + sec), "TL")])

    def csreg2(t):
        return 240 + 4 * t
    t19 = ["ds_read_b128 %s, v%d" % (vr(csreg2(t), 4), 52 + t) for t in range(4)]
    bg, top = std_bg(pre, t17, t19)
    P = dict(nI=3, nJ=2, name="att", bdma=bdma2, adma=adma2, bg=bg, toptags=top, early=early,
             a_addr=lambda S3, q, i: (15 + q, S3 * ASLOT + i * 2048),
             b_addr=lambda slot, j: (17 + j, slot * 16384))
    a("s_cmp_eq_u32 s%d, 1" % S_WM)
    a("s_cbranch_scc1 L_att_wm1")
    vm_save = list(a.vm)
    k1_mainloop(a, P)
    a("s_branch L_att_epi")
    a.label("L_att_wm1")
    a.vm = vm_save
    bg, top = std_bg(pre, t17, t19)
    P = dict(P, name="att1", skipA=1, bg=bg, toptags=top)
    k1_mainloop(a, P)
    a.label("L_att_epi")
    FM = [28, 30, 40, 42]
    a("s_or_b32 s66, s%d, s%d" % (S_WM, S_RB))
    a("s_cmp_eq_u32 s66, 0")
    for r in range(4):
        a("s_cselect_b64 %s, 0, %s" % (sr(FM[r], 2), sr(4 + 2 * r, 2)))
    a("s_mov_b32 s63, s69")

    stamp_e(a, 1)
    for i in range(6):
        a("v_max_f32 v%d, 0x%x, v%d" % (RS + 2 * i + 1, f2u(1e-3), RS + 2 * i + 1))
    for i in range(6):
        a("v_rcp_f32 v%d, v%d" % (RS + 2 * i + 1, RS + 2 * i + 1))
    a("s_waitcnt lgkmcnt(0)")
    W0 = FR0
    n = 0
    a("v_mov_b32 v8, 0")
    a("v_mov_b32 v9, 0")
    a("ds_write_b64 v57, v[8:9]")
    for i in range(6):
        if i == 5:
            a("s_cmp_eq_u32 s%d, 1" % S_WM)
            a("s_cbranch_scc1 L_att_wdone")
        for j in range(4):
            acc = ACC + 4 * (i * 4 + j)
            for r in (0, 2):
                a(pk("fma", acc + r, ("nb", RS + 2 * i), csreg2(j) + r, acc + r))
        for j in range(4):
            acc = ACC + 4 * (i * 4 + j)
            for r in (0, 2):
                a(pk("mul", acc + r, acc + r, ("b", RS + 2 * i + 1)))
        for j in range(4):
            acc = ACC + 4 * (i * 4 + j)
            o = W0 + 2 * (n % 8)
            n += 1
            a("v_cvt_pk_bf16_f32 v%d, v%d, v%d" % (o, acc, acc + 1))
            a("v_cvt_pk_bf16_f32 v%d, v%d, v%d" % (o + 1, acc + 2, acc + 3))
            a("ds_write_b64 v%d, %s offset:%d" % (21 + j, vr(o, 2), i * 16 * PITCH))
    a.label("L_att_wdone")
    stamp_e(a, 2)
    p2_early(a, True)
    a("s_waitcnt lgkmcnt(0)")
    a("s_barrier")
    stamp_e(a, 3)
    IB = ACC
    SB = FR0 + 8
    TB = FR0 + 48
    for n in range(5):
        b = IB + 20 * n
        off = n * 16 * PITCH
        a("v_add_u32 v7, %d, v58" % off)
        a("v_add_u32 v8, %d, v56" % off)
        a("v_add_u32 v9, %d, v56" % (off + 16 * PITCH))
        a("ds_read2_b64 %s, v7 offset0:0 offset1:1" % vr(b, 4))
        a("ds_read2_b64 %s, v8 offset0:0 offset1:1" % vr(b + 4, 4))
        a("ds_read2_b64 %s, v9 offset0:0 offset1:1" % vr(b + 8, 4))
    for n in range(5):
        b = IB + 20 * n
        off = n * 16 * PITCH
        for Dd in range(2):
            for e in range(2):
                a("ds_read_b64_tr_b16 %s, v60 offset:%d" % (vr(b + 12 + 4 * Dd + 2 * e, 2), off + e * 16 * PITCH + Dd * 32))
    SC = (20 ** -0.5) * LOG2E
    a("v_mov_b32 v5, 0x%x" % f2u(SC))
    a("v_mov_b32 v6, 0x%x" % f2u(-1e9))
    a("s_waitcnt lgkmcnt(0)")
    for n in range(5):
        b = IB + 20 * n
        a("v_cndmask_b32 v%d, 0, v%d, s[76:77]" % (b, b))
        a("v_cndmask_b32 v%d, 0, v%d, s[76:77]" % (b + 1, b + 1))
        a("v_cndmask_b32 v%d, 0, v%d, s[74:75]" % (b + 2, b + 2))
        a("v_cndmask_b32 v%d, 0, v%d, s[74:75]" % (b + 3, b + 3))
    a("s_nop 1")
    stamp_e(a, 4)
    for n in range(5):
        b = IB + 20 * n
        for T in range(2):
            a("v_mfma_f32_16x16x32_bf16 %s, %s, %s, 0" % (vr(SB + 8 * n + 4 * T, 4), vr(b + 4 + 4 * T, 4), vr(b, 4)))
    a("s_nop 0")
    for n in range(5):
        s = SB + 8 * n
        for q in range(0, 8, 2):
            a(pk("mul", s + q, s + q, ("b", 5)))
        for q in range(8):
            m = sr(FM[q], 2) if (n == 0 and q < 4) else sr(4 + 2 * q, 2)
            a("v_cndmask_b32 v%d, v6, v%d, %s" % (s + q, s + q, m))
        t = TB + 2 * n
        a("v_max3_f32 v%d, v%d, v%d, v%d" % (t, s, s + 1, s + 2))
        a("v_max3_f32 v%d, v%d, v%d, v%d" % (t + 1, s + 3, s + 4, s + 5))
        a("v_max3_f32 v%d, v%d, v%d, v%d" % (t, t, s + 6, s + 7))
        a("v_max_f32 v%d, v%d, v%d" % (t, t, t + 1))
    tr = [TB + 2 * n for n in range(5)]
    tt = [TB + 2 * n + 1 for n in range(5)]
    for x in xreduce(tr, tt, "v_max_f32"):
        a(x)
    for n in range(5):
        s = SB + 8 * n
        t = TB + 2 * n
        for q in range(0, 8, 2):
            a(pk("add", s + q, s + q, ("nb", t)))
        for q in range(8):
            a("v_exp_f32 v%d, v%d" % (s + q, s + q))
        a("s_nop 0")
        a("v_add_f32 v%d, v%d, v%d" % (t, s, s + 1))
        a("v_add_f32 v%d, v%d, v%d" % (t + 1, s + 2, s + 3))
        a("v_add_f32 v%d, v%d, v%d" % (t, t, s + 4))
        a("v_add_f32 v%d, v%d, v%d" % (t + 1, t + 1, s + 5))
        a("v_add_f32 v%d, v%d, v%d" % (t, t, s + 6))
        a("v_add_f32 v%d, v%d, v%d" % (t + 1, t + 1, s + 7))
        a("v_add_f32 v%d, v%d, v%d" % (t, t, t + 1))
    for x in xreduce(tr, tt, "v_add_f32"):
        a(x)
    for n in range(5):
        t = TB + 2 * n
        a("v_rcp_f32 v%d, v%d" % (t, t))
    a("s_nop 0")
    for n in range(5):
        s = SB + 8 * n
        t = TB + 2 * n
        b = IB + 20 * n
        for q in range(0, 8, 2):
            a(pk("mul", s + q, s + q, ("b", t)))
        for q in range(4):
            a("v_cvt_pk_bf16_f32 v%d, v%d, v%d" % (b + q, s + 2 * q, s + 2 * q + 1))
    stamp_e(a, 5)
    a("s_nop 1")
    for n in range(5):
        b = IB + 20 * n
        for Dd in range(2):
            a("v_mfma_f32_16x16x32_bf16 %s, %s, %s, 0" % (vr(SB + 8 * n + 4 * Dd, 4), vr(b + 12 + 4 * Dd, 4), vr(b, 4)))
    a("s_nop 0")
    for n in range(5):
        s = SB + 8 * n
        b = IB + 20 * n
        for Dd in range(2):
            a("v_cvt_pk_bf16_f32 v%d, v%d, v%d" % (b + 4 + 2 * Dd, s + 4 * Dd, s + 4 * Dd + 1))
            a("v_cvt_pk_bf16_f32 v%d, v%d, v%d" % (b + 5 + 2 * Dd, s + 4 * Dd + 2, s + 4 * Dd + 3))
        a("ds_write_b64 v61, %s offset:%d" % (vr(b + 4, 2), 2560 * n))
    a("s_mov_b64 exec, 0xffff")
    for n in range(5):
        a("ds_write_b64 v62, %s offset:%d" % (vr(IB + 20 * n + 6, 2), 2560 * n))
    a("s_mov_b64 exec, -1")
    a("s_add_u32 s3, s65, %d" % OSTG)
    a("v_add_u32 v5, s3, v3")
    a("s_waitcnt lgkmcnt(0)")
    a("s_barrier")
    for nn in range(4):
        a("ds_read_b128 %s, v5 offset:%d" % (vr(ACC + 4 * nn, 4), 8192 * nn))
    for nn in range(4):
        a("s_waitcnt lgkmcnt(%d)" % (3 - nn))
        a("buffer_store_dwordx4 %s, v%d, %s, s63 offen %s" % (vr(ACC + 4 * nn, 4), 48 + nn, sr(SACT, 4), SCF))
    p2_early_b(a, range(3, 6))
    stamp(a, 7)
    p1_done(a, ["s_lshl_b32 s3, s%d, 2" % S_RB, "s_add_u32 s3, s3, 128"])

    a.label("L_k1_extra")
    a.vm = list(VM0)
    for x in stats_loads() + k2_prefetch():
        emit(a, x)
    a("s_waitcnt vmcnt(0)")
    for x in stats_segA():
        emit(a, x)
    a("s_waitcnt lgkmcnt(0)")
    a("s_barrier")
    for x in stats_segB():
        emit(a, x)
    a("s_waitcnt lgkmcnt(0)")
    for x in stats_segC():
        emit(a, x)
    tlb_warm_act(a)
    a("s_barrier")
    for x in stats_signal():
        emit(a, x)
    p2_early(a)
    a("v_mov_b32 v%d, 240" % (TT + 1))
    a("s_mov_b32 s66, 0")
    a("s_waitcnt vmcnt(0)")
    a("s_cmp_lg_u32 s%d, 0" % S_W)
    a("s_cbranch_scc1 L_xpoll_ok")
    a.label("L_xpoll")
    a("s_sleep 100")
    a("buffer_load_dword v%d, v%d, %s, 0 offen sc1" % (TT, TT + 1, sr(SDBG, 4)))
    a("s_waitcnt vmcnt(0)")
    a("v_readfirstlane_b32 s67, v%d" % TT)
    a("s_add_u32 s66, s66, 1")
    a("s_nop 2")
    a("s_cmp_ge_u32 s67, 256")
    a("s_cbranch_scc1 L_xpoll_ok")
    a("s_cmp_lt_u32 s66, 0x20000")
    a("s_cbranch_scc1 L_xpoll")
    a.label("L_xpoll_ok")
    gen_phase2(a)
    a.label("L_k1_end")
    a("s_endpgm")
    a.label("L_code_end")
    return (name, 256, 102 if (STAMP or "--dbgt" in sys.argv) else 80)


K2_NS = 7
K2_NST = 37


def p2_poll(a, nm, off_reg, pre=False):
    a("s_cmp_lg_u32 s20, 0")
    a("s_cbranch_scc1 L_p2ok_%s" % nm)
    a("v_cmp_gt_u32 s[58:59], 0x%x, v%d" % (BIG, off_reg))
    a("s_mov_b32 s21, 0")
    if pre:
        a("s_branch L_p2chk_%s" % nm)
    a.label("L_p2poll_%s" % nm)
    a.l.append("    buffer_load_dword v22, v%d, s[60:63], 0 offen sc1" % off_reg)
    a("s_waitcnt vmcnt(0)")
    a.label("L_p2chk_%s" % nm)
    a("v_cmp_eq_u32 vcc, 0, v22")
    a("s_add_u32 s21, s21, 1")
    a("s_nop 2")
    a("s_and_b64 vcc, vcc, s[58:59]")
    a("s_cbranch_scc0 L_p2ok_%s" % nm)
    a("s_cmp_ge_u32 s21, 0x20000")
    a("s_cbranch_scc1 L_p2ok_%s" % nm)
    a("s_sleep 2")
    a("s_cmp_lg_u64 vcc, s[58:59]")
    a("s_cbranch_scc1 L_p2poll_%s" % nm)
    a("s_sleep 30")
    a("s_branch L_p2poll_%s" % nm)
    a.label("L_p2ok_%s" % nm)


def gen_phase2(a):
    a.p2 = True
    a.label("L_phase2")
    a("s_load_dwordx2 s[4:5], s[0:1], 0")
    a("s_load_dwordx2 s[30:31], s[0:1], 56")
    p2_map(a, 24)
    a("s_cmp_eq_u32 s28, 1")
    a("s_cbranch_scc1 L_p2_end")
    a("s_mov_b32 s20, s%d" % S_W)
    a("v_lshrrev_b32 v4, 4, v2")
    a("v_lshlrev_b32 v5, 10, v4")
    a("v_bfe_u32 v6, v2, 2, 2")
    a("v_lshl_add_u32 v5, v6, 7, v5")
    a("v_and_b32 v6, 3, v2")
    a("v_lshl_add_u32 v5, v6, 3, v5")
    a("v_bfe_u32 v6, v2, 3, 2")
    a("s_lshr_b32 s34, s20, 2")
    make_srd(a, 60, 22, 23, ST_BYTES, ST_OFF)
    a("s_lshl_b32 s36, s26, 4")
    a("s_add_u32 s37, s26, s27")
    a("s_lshl_b32 s37, s37, 4")
    a("s_sub_u32 s37, s37, 1")
    a("s_lshr_b32 s38, s36, 7")
    a("s_lshr_b32 s39, s37, 7")
    a("v_mov_b32 v21, s38")
    a("v_mov_b32 v22, s39")
    a("v_cmp_gt_u32 vcc, 8, v2")
    a("v_cmp_gt_u32 s[40:41], 16, v2")
    a("v_and_b32 v25, 7, v2")
    a("v_cndmask_b32 v21, v22, v21, vcc")
    a("v_mov_b32 v22, 0x%x" % BIG)
    a("v_lshl_add_u32 v23, v21, 3, v25")
    a("v_lshlrev_b32 v23, 7, v23")
    a("v_add_u32 v23, %d, v23" % (FLG + 13 * 8 * 128))
    a("v_cndmask_b32 v23, v22, v23, s[40:41]")
    a("s_mul_i32 s36, s36, 6554")
    a("s_mul_i32 s37, s37, 6554")
    a("s_lshr_b32 s36, s36, 20")
    a("s_lshr_b32 s37, s37, 20")
    a("v_mov_b32 v21, s36")
    a("v_mov_b32 v24, s37")
    a("v_cndmask_b32 v21, v24, v21, vcc")
    a("v_lshl_add_u32 v24, v21, 3, v25")
    a("v_lshlrev_b32 v24, 7, v24")
    a("v_add_u32 v24, %d, v24" % FLG)
    a("v_cndmask_b32 v24, v22, v24, s[40:41]")
    for lane, r in ((16, 38), (17, 39)):
        a("s_and_b32 s36, s%d, 1" % r)
        a("s_add_u32 s36, s36, 29")
        a("s_lshl_b32 s36, s36, 3")
        a("s_lshr_b32 s37, s%d, 1" % r)
        a("s_add_u32 s36, s36, s37")
        a("s_lshl_b32 s36, s36, 7")
        a("s_add_u32 s36, s36, %d" % FLG)
        a("v_writelane_b32 v24, s36, %d" % lane)
    a("s_lshr_b32 s35, s20, 2")
    a("s_and_b32 s36, s20, 3")
    a("s_waitcnt lgkmcnt(0)")
    make_srd(a, 40, 4, 5, 2048 * 1280)
    make_srd(a, 8, 30, 31, 2048 * 1280)
    make_srd(a, 12, 22, 23, ACT_BYTES, ACT_OFF)
    a("s_mul_i32 s37, s35, 3")
    a("s_add_u32 s37, s37, s26")
    a("s_mul_i32 s37, s37, %d" % (16 * 1280))
    a("s_lshl_b32 s38, s25, 7")
    a("s_add_u32 s37, s37, s38")
    a("s_lshl_b32 s38, s36, 5")
    a("s_add_u32 s37, s37, s38")
    a("v_and_b32 v26, 15, v2")
    a("v_mul_u32_u24 v26, 1280, v26")
    a("v_lshl_add_u32 v26, v4, 3, v26")
    a("v_add_u32 v26, s37, v26")
    a("s_mov_b32 s38, %d" % (16 * 1280))
    a("s_mov_b32 s39, %d" % (32 * 1280))
    a("buffer_load_dwordx2 v[28:29], v26, s[40:43], 0 offen")
    a("buffer_load_dwordx2 v[30:31], v26, s[40:43], s38 offen")
    a("buffer_load_dwordx2 v[32:33], v26, s[40:43], s39 offen")
    a("s_add_u32 s37, s26, s20")
    a("s_mul_i32 s37, s37, %d" % ACT_MT)
    a("v_add_u32 v10, s37, v3")
    a("s_mov_b32 s16, %d" % (20 * 1024))
    a("s_mov_b32 s17, %d" % (6 * 64 * 1280))
    a("s_lshl_b32 s18, s20, 11")
    a("s_lshl_b32 s19, s20, 10")
    a("s_mul_i32 s37, s35, 6144")
    a("v_add_u32 v12, s37, v3")
    a("v_add_u32 v13, 0x10000, v12")
    a("v_xor_b32 v15, s36, v6")
    a("v_lshl_add_u32 v15, v15, 5, v5")
    a("v_add_u32 v15, %d, v15" % P2_B)
    AC = 64
    FRB = 96
    NS = 6
    groups = [list(range(2 * g, min(2 * g + 2, K2_NST))) for g in range((K2_NST + 1) // 2)]
    NG = len(groups)
    p2_poll(a, "f", 23)
    a("s_waitcnt vmcnt(0)")
    a("s_barrier")
    stamp(a, 1)

    def freg(g, h):
        return FRB + 64 * (g % 2) + 32 * h

    def read_ops(g):
        ops = []
        for h, st in enumerate(groups[g]):
            f = freg(g, h)
            for kq in range(2):
                for e in range(2):
                    ops.append("ds_read_b64_tr_b16 %s, v15 offset:%d" % (vr(f + 16 * kq + 12 + 2 * e, 2), (st % NS) * 8192 + kq * 4096 + e * 512))
                for i in range(3):
                    off = (st % NS) * 12288 + i * 2048 + kq * 1024
                    ops.append("ds_read_b128 %s, v%d offset:%d" % (vr(f + 16 * kq + 4 * i, 4), 12 + (off >> 16), off & 0xffff))
        return ops

    def body(loader):
        a.vm = []
        tag = "l" if loader else "n"

        def dma_ops(g, doB=True):
            ops = []
            for st in groups[g]:
                if loader:
                    ops.append((["s_mov_b32 s16, 0"] if st == 27 else []) + ["s_add_u32 m0, s18, 0x%x" % ((st % NS) * 12288)])
                    ops.append([("buffer_load_dwordx4 v10, s[12:15], s16 offen lds", "S%d" % g)])
                    ops.append([("buffer_load_dwordx4 v10, s[12:15], s16 offen offset:1024 lds", "S%d" % g), "s_add_u32 s16, s16, 2048"])
                if doB:
                    srd = SPF1 if st < 27 else SPF2
                    ops.append((["s_mov_b32 s17, 0"] if st == 27 else []) + ["s_add_u32 m0, s19, 0x%x" % (P2_B + (st % NS) * 8192)])
                    ops.append([("buffer_load_dwordx4 v%d, %s, s17 offen lds" % (P2V, sr(srd, 4)), "S%d" % g), "s_add_u32 s17, s17, %d" % (64 * 1280)])
            return ops
        for g in range(3):
            for o in dma_ops(g, False):
                emit(a, o)
                if isinstance(o[-1], str) and o[-1].startswith("s_add_u32 m0"):
                    a("s_nop 0")
        n = a.vmwait({"S0"})
        a("s_waitcnt vmcnt(%d)" % (n if n is not None else 63))
        a("s_barrier")
        stamp(a, 2)
        for x in read_ops(0):
            a(x)
        for g in range(NG):
            if g in (5, 10, 15):
                stamp(a, 2 + g // 5)
            n = a.vmwait({"S%d" % (g + 1)}) if g + 1 < NG else None
            if g + 3 == 12 and loader:
                p2_poll(a, "a" + tag, 24, True)
            if n is not None:
                a("s_waitcnt vmcnt(%d) lgkmcnt(0)" % n)
            else:
                a("s_waitcnt lgkmcnt(0)")
            a("s_barrier")
            if g + 3 == 10 and loader:
                a("v_mov_b32 v22, 0")
                a("buffer_load_dword v22, v24, s[60:63], 0 offen sc1", "P2P")
            stream = dma_ops(g + 3) if g + 3 < NG else []
            rd = read_ops(g + 1) if g + 1 < NG else []
            mf = []
            for h, st in enumerate(groups[g]):
                f = freg(g, h)
                for kq in range(2):
                    for i in range(3):
                        acc = AC + 4 * i
                        c = "0" if (g == 0 and h == 0 and kq == 0) else vr(acc, 4)
                        mf.append("v_mfma_f32_16x16x32_bf16 %s, %s, %s, %s" % (vr(acc, 4), vr(f + 16 * kq + 12, 4), vr(f + 16 * kq + 4 * i, 4), c))
            for gi, x in enumerate(mf):
                a(x)
                left = len(mf) - gi
                for lst in (stream, rd):
                    k = (len(lst) + left - 1) // left
                    for _ in range(k):
                        o = lst.pop(0)
                        emit(a, o)
                        if lst is stream and k > 1 and isinstance(o[-1], str) and o[-1].startswith("s_add_u32 m0"):
                            a("s_nop 0")
    a("s_cmp_lt_u32 s20, s27")
    a("s_cbranch_scc0 L_k2_nl")
    body(True)
    a("s_branch L_k2_epi")
    a.label("L_k2_nl")
    body(False)
    a.label("L_k2_epi")
    stamp(a, 6)
    a("s_mov_b32 s37, 0xffff0000")
    a("s_nop 7")
    for i in range(3):
        for d in range(2):
            a("v_lshlrev_b32 v%d, 16, v%d" % (FRB, 28 + 2 * i + d))
            a("v_and_b32 v%d, s37, v%d" % (FRB + 1, 28 + 2 * i + d))
            a("v_add_f32 v%d, v%d, v%d" % (AC + 4 * i + 2 * d, AC + 4 * i + 2 * d, FRB))
            a("v_add_f32 v%d, v%d, v%d" % (AC + 4 * i + 2 * d + 1, AC + 4 * i + 2 * d + 1, FRB + 1))
        for d in range(2):
            a("v_cvt_pk_bf16_f32 v%d, v%d, v%d" % (28 + 2 * i + d, AC + 4 * i + 2 * d, AC + 4 * i + 2 * d + 1))
    a("buffer_store_dwordx2 v[28:29], v26, s[8:11], 0 offen" + OSF)
    a("buffer_store_dwordx2 v[30:31], v26, s[8:11], s38 offen" + OSF)
    a("s_sub_u32 s37, s27, s35")
    a("s_cmp_eq_u32 s37, 4")
    a("s_cbranch_scc1 L_k2_fl")
    a("buffer_store_dwordx2 v[32:33], v26, s[8:11], s39 offen" + OSF)
    a.label("L_k2_fl")
    a.label("L_p2_end")
    dbg_time(a, True)
    if STAMP:
        a("s_waitcnt vmcnt(0)")
        stamp_dump(a, 2, "L_sd_end")


def main():
    a = Asm()
    hdr = open("cdna_kernels/%s.s.ref" % NAME).read().splitlines()
    for l in hdr:
        if l.startswith(";") and "@launch" not in l:
            a.raw(l)
    if "--list" in sys.argv:
        a.raw("; @launch kernel=%s_kernel grid=(256,1,1) block=(512,1,1) lds=%d" % (NAME, K1_LDS))
    else:
        a.raw("; @launch grid=(256,1,1) block=(512,1,1) lds=%d" % K1_LDS)
    a.raw('.amdgcn_target "amdgcn-amd-amdhsa--gfx950"')
    ks = [gen_k1(a)]
    for (n, v, s) in ks:
        kernel_desc(a, n, v, s)
    av = [x for x in sys.argv[1:] if x.endswith(".s")]
    out = av[0] if av else "cdna_kernels/%s.s" % NAME
    open(out, "w").write(a.text())


main()
```
